```python
import torch

def _softmax(x, axis=-1):
    return torch.softmax(x, dim=axis)

def _gelu(x):
    return torch.nn.functional.gelu(x, approximate='tanh')

def _silu(x):
    return torch.nn.functional.silu(x)

def _sigmoid(x):
    return torch.sigmoid(x)

def _layernorm(x, axis=-1, eps=1e-05):
    m = x.mean(dim=axis, keepdim=True)
    v = x.var(dim=axis, keepdim=True, unbiased=False)
    return (x - m) / torch.sqrt(v + eps)

def _scatter_add(tgt, idx, src, axis=0):
    return tgt.clone().index_add_(axis, idx, src)

def _segment_sum(src, seg, n):
    out = torch.zeros((n,) + src.shape[1:], dtype=src.dtype)
    return out.index_add_(0, seg, src)

def _pad(x, pw):
    flat = tuple((v for pair in reversed(pw) for v in pair))
    return torch.nn.functional.pad(x, flat)
kernel_name = 'parallel_sum__memory_aug_recurrent_mem_tr__dense_activation_silu__prompt'

def setup_inputs():

    _w = lambda a: (lambda t: t.to(torch.bfloat16) if t.is_floating_point() else t)(torch.as_tensor(a))

    def _A_setup():
        B, S, Dm = (1, 2048, 1024)
        H, Dh = (32, 128)
        M, seg = (8, 32)
        seg = min(seg, S)
        S = S // seg * seg
        return {'x': _w((lambda *s: torch.randn(*s, dtype=torch.bfloat16) * 0.05)(B, S, Dm)), 'mem0': _w((lambda *s: torch.randn(*s, dtype=torch.bfloat16) * 0.2)(B, M, Dm)), 'Wq': _w((lambda *s: torch.randn(*s, dtype=torch.bfloat16) * 1.6)(Dm, H, Dh) * Dm ** (-0.5)), 'Wk': _w((lambda *s: torch.randn(*s, dtype=torch.bfloat16) * 1.6)(Dm, H, Dh) * Dm ** (-0.5)), 'Wv': _w((lambda *s: torch.randn(*s, dtype=torch.bfloat16) * 0.2)(Dm, H, Dh) * Dm ** (-0.5)), 'Wo': _w((lambda *s: torch.randn(*s, dtype=torch.bfloat16) * 0.2)(H, Dh, Dm) * (H * Dh) ** (-0.5)), 'seg_len': seg}
    _A_in = _A_setup()

    def _B_setup():
        B, S, D, F = (1, 2048, 1024, 3584)
        return {'x': _w((lambda *s: torch.randn(*s, dtype=torch.bfloat16) * 0.05)(B, S, D)), 'w1': _w((lambda *s: torch.randn(*s, dtype=torch.bfloat16) * 0.8)(D, F) * D ** (-0.5)), 'w2': _w((lambda *s: torch.randn(*s, dtype=torch.bfloat16) * 0.1)(F, D) * F ** (-0.5))}
    _B_in = _B_setup()
    return {'A_x': _A_in['x'], 'A_mem0': _A_in['mem0'], 'A_Wq': _A_in['Wq'], 'A_Wk': _A_in['Wk'], 'A_Wv': _A_in['Wv'], 'A_Wo': _A_in['Wo'], 'A_seg_len': _A_in['seg_len'], 'B_x': _B_in['x'], 'B_w1': _B_in['w1'], 'B_w2': _B_in['w2']}

def reference(A_x, A_mem0, A_Wq, A_Wk, A_Wv, A_Wo, A_seg_len, B_x, B_w1, B_w2):

    def _A_ref(x, mem0, Wq, Wk, Wv, Wo, seg_len):
        B, S, Dm = x.shape
        H, Dh = (Wq.shape[1], Wq.shape[2])
        M = mem0.shape[1]
        scale = Dh ** (-0.5)
        n_seg = S // seg_len
        L = M + seg_len
        idx = torch.arange(L)
        mask = (idx[:, None] < M) | (idx[:, None] >= idx[None, :])
        mem = mem0
        outs = []
        for s in range(n_seg):
            xs = x[:, s * seg_len:(s + 1) * seg_len, :].clone()
            h = torch.concatenate([mem, xs], axis=1)
            q = torch.einsum('btd,dhe->bhte', h, Wq)
            k = torch.einsum('btd,dhe->bhte', h, Wk)
            v = torch.einsum('btd,dhe->bhte', h, Wv)
            scores = torch.einsum('bhqe,bhke->bhqk', q, k) * scale
            scores = torch.where(mask[None, None], scores, -1000000000.0)
            p = _softmax(scores, axis=-1)
            o = torch.einsum('bhqk,bhke->bhqe', p, v)
            o = torch.einsum('bhte,hed->btd', o, Wo)
            mem = o[:, :M, :].clone()
            outs.append(o[:, M:, :])
        return torch.concatenate(outs, axis=1)

    def _B_ref(x, w1, w2):
        h = torch.einsum('bsd,df->bsf', x, w1)
        h = _silu(h)
        out = torch.einsum('bsf,fd->bsd', h, w2)
        return out
    x = A_x
    xn = _layernorm(x, axis=-1)
    return x + _A_ref(xn, A_mem0, A_Wq, A_Wk, A_Wv, A_Wo, A_seg_len) + _B_ref(xn, B_w1, B_w2)
```

```python
import re

TRANS = ("v_exp_f32", "v_log_f32", "v_rcp_f32", "v_rsq_f32", "v_sqrt_f32", "v_sin_f32", "v_cos_f32", "v_rcp_iflag_f32")
REG = re.compile(r"^(-|\|)?([vas])(\d+|\[(\d+):(\d+)\])\|?$")

def regs_of(op):
    op = op.strip()
    if op in ("vcc", "vcc_lo", "vcc_hi"): return {("s", "vcc")}
    if op in ("exec", "exec_lo", "exec_hi"): return {("s", "exec")}
    if op == "m0": return {("s", "m0")}
    m = REG.match(op)
    if not m: return set()
    k = m.group(2)
    if m.group(4) is not None: return {(k, i) for i in range(int(m.group(4)), int(m.group(5)) + 1)}
    return {(k, int(m.group(3)))}

class Ins:
    def __init__(self, text):
        self.text = text
        t = text.split(";")[0].strip()
        t = re.sub(r"\s(op_sel|op_sel_hi|neg_lo|neg_hi|quad_perm):\[[^\]]*\]", "", t)
        self.label = t[:-1] if t.endswith(":") else None
        self.op = "" if (self.label or not t or t.startswith(".")) else t.split()[0]
        rest = t[len(self.op):].strip() if self.op else ""
        parts = [p.strip() for p in rest.split(",")] if rest else []
        mods = ""
        if parts:
            last = parts[-1].split()
            if last:
                parts[-1] = last[0]; mods = " ".join(last[1:])
        self.ops = parts; self.mods = mods
        op = self.op
        self.mfma = op.startswith("v_mfma") or op.startswith("v_smfmac")
        self.valu = op.startswith("v_") and not self.mfma
        self.salu = op.startswith("s_")
        self.ds = op.startswith("ds_")
        self.vmem = op.startswith("buffer_") or op.startswith("global_")
        self.dpp = "_dpp" in op or any(x in mods for x in ("quad_perm", "row_ror", "row_shr", "row_shl", "row_mirror", "row_half_mirror", "row_bcast", "row_newbcast", "wave_"))
        self.trans = op.replace("_e32", "").replace("_e64", "") in TRANS
        self.perm = op.startswith("v_permlane")
        self.rdlane = op.startswith("v_readfirstlane") or op.startswith("v_readlane")
        self.ldsdma = self.vmem and (" lds" in " " + mods or "load_lds" in op)
        self.passes = 0
        R = [regs_of(p) for p in parts]
        dst = set(); src = set(); self.srcC = set(); self.srcAB = set(); self.stdata = set()
        if self.mfma:
            self.passes = 8 if ("32x32" in op) else 4
            dst = R[0]; self.srcAB = R[1] | R[2]
            if op.startswith("v_smfmac"):
                self.srcC = R[0]; self.srcAB |= R[3]
            else: self.srcC = R[3]
            src = self.srcAB | self.srcC
        elif self.valu:
            if self.perm and "swap" in op: dst = R[0] | R[1]; src = R[0] | R[1]
            elif op.startswith("v_cmp"):
                dst = R[0]; src = set().union(*R[1:])
                if op.startswith("v_cmpx"): dst = dst | {("s", "exec")}
            elif "_co_" in op:
                dst = R[0] | R[1]; src = set().union(*R[2:])
            elif op == "v_nop": pass
            else:
                dst = R[0]; src = set().union(*R[1:]) if len(R) > 1 else set()
                if op.startswith("v_fmac") or op.startswith("v_mac") or self.dpp or op.startswith("v_writelane") or op.startswith("v_dot2c"): src |= R[0]
                if op.startswith("v_cndmask") and len(R) == 3: src |= {("s", "vcc")}
        elif self.ds:
            if op.startswith("ds_read") or "permute" in op or "swizzle" in op or "_rtn" in op: dst = R[0]; src = set().union(*R[1:])
            else: src = set().union(*R)
        elif self.vmem:
            if ("load" in op and not self.ldsdma) or ("atomic" in op and "sc0" in mods and op.startswith("global_")):
                dst = R[0]; src = set().union(*R[1:])
            elif "atomic" in op and "sc0" in mods:
                dst = R[0]; src = set().union(*R)
            else:
                src = set().union(*R) if R else set()
                if "store" in op and ("x3" in op or "x4" in op):
                    self.stdata = R[0] if op.startswith("buffer_") else R[1]
            if self.ldsdma: src |= {("s", "m0")}
        elif self.salu:
            if op.startswith("s_cmp") or op.startswith("s_cbranch") or op in ("s_branch", "s_waitcnt", "s_nop", "s_barrier", "s_endpgm", "s_setprio", "s_sleep"):
                src = set().union(*R) if R else set()
            elif R:
                dst = R[0]; src = set().union(*R[1:]) if len(R) > 1 else set()
                if "saveexec" in op: dst = dst | {("s", "exec")}
        self.dst = dst; self.src = src
        self.states = 0 if (not self.op) else (int(parts[0], 0) + 1 if op == "s_nop" else 1)

def need(p, c):
    n = 0
    vd = {r for r in p.dst if r[0] in "va"}; sd = {r for r in p.dst if r[0] == "s"}
    if p.valu:
        if c.mfma and vd & c.src: n = max(n, 2)
        if c.valu and (c.dpp or c.perm) and vd & c.src: n = max(n, 2)
        if c.rdlane and vd & c.src: n = max(n, 1)
        if p.trans and c.valu and not c.trans and vd & c.src: n = max(n, 1)
        if p.trans and (c.ds or c.vmem) and vd & c.src: n = max(n, 1)
        if p.op.startswith("v_dot"):
            if c.op == p.op:
                if vd & (c.src - c.dst): n = max(n, 3)
            elif vd & (c.src | c.dst): n = max(n, 3)
        if sd:
            if c.vmem and sd & c.src: n = max(n, 5)
            if c.valu and sd & c.src: n = max(n, 4 if (c.rdlane or c.op.startswith("v_writelane")) else 2)
            if ("s", "exec") in sd:
                if c.dpp: n = max(n, 5)
                if c.mfma or c.perm or c.rdlane: n = max(n, 4)
    if p.mfma:
        big = 8 if p.passes == 4 else 12
        if c.mfma:
            if vd & c.srcAB: n = max(n, big)
            if vd & c.srcC and not (vd == c.srcC and p.op == c.op): n = max(n, big - 2)
            if vd & c.dst and not (vd & c.srcC): n = max(n, big - 2)
        elif (c.valu or c.ds or c.vmem) and vd & (c.src | c.dst): n = max(n, big)
        if c.valu and p.srcC & c.dst: n = max(n, 3 if p.passes == 4 else 7)
    if p.salu and ("s", "m0") in p.dst and c.ldsdma: n = max(n, 1)
    if p.stdata and (c.valu or c.mfma) and p.stdata & c.dst: n = max(n, 2)
    if p.stdata and (c.ds or c.vmem) and p.stdata & c.dst: n = max(n, 1)
    return n

def elapsed(seq, i, j, mfma_w):
    t = 0; last_m = seq[i].mfma; since = 0; lastp = seq[i].passes
    for k in range(i + 1, j):
        x = seq[k]
        if x.mfma and last_m and mfma_w:
            w = max(1, min(mfma_w, lastp - 1) - since)
            t += w; since = 0; lastp = x.passes
        else:
            t += x.states; since += x.states
            if x.mfma: last_m = True; since = 0; lastp = x.passes
    return t

class Asm:
    def __init__(self, mfma_w=0):
        self.lines = []; self.mfma_w = mfma_w; self.nlab = 0
    def __call__(self, s):
        for l in s.split("\n"):
            l = l.strip()
            if l: self.lines.append(l)
    def lab(self, name): self.lines.append(name + ":")
    def newlab(self, p="L"):
        self.nlab += 1; return f"{p}_{self.nlab}"
    def finish(self, verbose=False):
        out = []; W = 24; ins_count = 0
        for l in self.lines:
            c = Ins(l)
            if c.op:
                worst = 0
                lo = max(0, len(out) - W)
                seq = out[lo:] + [c]
                start = 0
                for k in range(len(seq) - 2, -1, -1):
                    if seq[k].op in ("s_branch", "s_endpgm", "s_setpc_b64"): start = k + 1; break
                for k in range(start, len(seq) - 1):
                    n = need(seq[k], c)
                    if n:
                        e = elapsed(seq, k, len(seq) - 1, self.mfma_w)
                        worst = max(worst, n - e)
                if worst > 0:
                    out.append(Ins(f"s_nop {worst - 1}")); ins_count += 1
            out.append(c)
        labs = {x.label: i for i, x in enumerate(out) if x.label}
        for i, x in enumerate(out):
            if x.op.startswith("s_cbranch") or x.op == "s_branch":
                t = labs.get(x.ops[0])
                if t is None: continue
                pre = out[max(0, i - W):i + 1]
                st = 0
                for k in range(len(pre) - 2, -1, -1):
                    if pre[k].op in ("s_branch", "s_endpgm"): st = k + 1; break
                pre = pre[st:]
                post = []
                for y in out[t:t + W]:
                    post.append(y)
                    if y.op in ("s_branch", "s_endpgm"): break
                seq = pre + post
                for a in range(len(pre)):
                    for b in range(len(pre), len(seq)):
                        if not seq[b].op: continue
                        n = need(seq[a], seq[b])
                        if n and elapsed(seq, a, b, self.mfma_w) < n:
                            raise SystemExit(f"hazard across branch {x.text}: [{seq[a].text}] -> [{seq[b].text}] need {n}")
        if verbose: print("nops inserted", ins_count, "instructions", sum(1 for x in out if x.op))
        return "\n".join(x.text.split(";")[0].rstrip() for x in out if x.text.split(";")[0].strip()) + "\n"

def kdesc(k, vg=512, acc=256, karg=104):
    return f""".amdhsa_kernel {k}
  .amdhsa_next_free_vgpr {vg}
  .amdhsa_next_free_sgpr 102
  .amdhsa_accum_offset {acc}
  .amdhsa_group_segment_fixed_size 0
  .amdhsa_kernarg_size {karg}
  .amdhsa_user_sgpr_count 2
  .amdhsa_user_sgpr_kernarg_segment_ptr 1
  .amdhsa_system_sgpr_workgroup_id_x 1
.end_amdhsa_kernel
"""
def khead(k):
    return f""".globl {k}
.p2align 8
.type {k},@function
{k}:
"""
```

```python
from asmlib import *
from layout import *

WS = 4
sW, sG, sBUD = 14, 16, 17
sQ, sTK, sB, sN, sFLG, sNC = 18, 19, 20, 21, 22, 23
sWM, sWN = 32, 33
SA, SB_ = 44, 48
sOA, sOB, sWB, sSTB, sCNT = 52, 53, 54, 55, 56
sRBA, sROW, sOUT, sTYP, sWA = 57, 58, 59, 60, 61
sE = 62
SO = 72
sTRC = 76
vAR, vBR, vDA, vDB, vE = 1, 2, 4, 6, 10
ACC0 = 16
PAD = 1088
aTAB = 255
L_TK = 135168
LDS_BYTES = L_TK + 64
ws = f"s[{WS}:{WS+3}]"
CSC = 0x3e0293ee
NEG = 0xff61b1e6
T_K, T_V, T_QA, T_F1, T_F2, T_WO, T_END = range(7)

class Cfg:
    def __init__(s, MT=8, NS=4, r0=0, rstep=2, sc1=False):
        s.MT, s.NT, s.NS, s.r0, s.rstep, s.sc1 = MT, 8, NS, r0, rstep, sc1
        s.BM, s.BN = 32 * MT, 256
        s.AB = s.BM * 64; s.BB = 16 * PAD; s.SB = s.AB + s.BB
        s.PA, s.PB = s.AB // 4096, 4
        s.P = s.PA + s.PB
        s.lds = s.SB * NS
        s.M = MT * s.NT
        s.FR = 4 * (MT + s.NT)
        s.nv = min(s.M, 60)
        assert NS % 2 == 0
        s.bias = []; b = 0
        mo = max(((MT - 1) >> 1) * 2048 + 256, 4 * PAD + 4 * 64)
        for k in range(NS):
            if k * s.SB + mo - b > 65535: b = k * s.SB
            s.bias.append(b)
    def acc(s, t, f):
        i = t * s.NT + f
        return ("v", ACC0 + 4 * i) if i < s.nv else ("a", 2 * s.FR + 4 * (i - s.nv))
    def accs(s, t, f):
        k, b = s.acc(t, f); return f"{k}[{b}:{b+3}]"
    def xf(s, p, t): return f"a[{s.FR*p+4*t}:{s.FR*p+4*t+3}]"
    def wf(s, p, f, h=None):
        b = s.FR * p + 4 * s.MT + 4 * f
        return f"a[{b}:{b+3}]" if h is None else f"a[{b+2*h}:{b+2*h+1}]"

def setup(a, c):
    a(f"""
    v_lshrrev_b32 v{vE}, 4, v0                    ; g
    v_and_b32 v{vE+1}, 15, v0
    s_mul_i32 s{sE}, s{sWM}, {c.MT // 2 * 2048}
    v_lshl_add_u32 v{vAR}, v{vE}, 9, s{sE}
    v_lshl_add_u32 v{vAR}, v{vE+1}, 4, v{vAR}
    v_lshrrev_b32 v{vE+1}, 5, v0
    v_lshlrev_b32 v{vE+1}, 4, v{vE+1}
    v_and_b32 v{vE}, 1, v{vE}
    v_lshl_add_u32 v{vE+1}, v{vE}, 2, v{vE+1}
    v_bfe_u32 v{vE}, v0, 2, 2
    v_add_u32 v{vE+1}, v{vE+1}, v{vE}             ; k row
    v_bfe_u32 v{vE+2}, v0, 1, 1
    v_lshlrev_b32 v{vE+2}, 5, v{vE+2}
    v_and_b32 v{vE+3}, 1, v0
    v_lshl_add_u32 v{vE+2}, v{vE+3}, 3, v{vE+2}
    s_mov_b32 s{sE}, {PAD}
    v_lshrrev_b32 v{vE+3}, 1, v{vE+1}
    v_mad_u32_u24 v{vE+2}, v{vE+3}, s{sE}, v{vE+2}
    v_and_b32 v{vE+3}, 1, v{vE+1}
    v_lshl_add_u32 v{vE+2}, v{vE+3}, 9, v{vE+2}
    v_lshl_add_u32 v{vBR}, v{vE+3}, 4, v{vE+2}
    s_lshl_b32 s{sE}, s{sWN}, 8
    s_add_u32 s{sE}, s{sE}, {c.AB}
    v_add_u32 v{vBR}, s{sE}, v{vBR}
    v_xor_b32 v{vBR+1}, 16, v{vBR}
    s_mul_i32 s{sWA}, s{sW}, {c.PA * 1024}
    s_mul_i32 s{sWB}, s{sW}, {c.PB * PAD}
    s_add_u32 s{sWB}, s{sWB}, {c.AB}
    s_mul_i32 s{sE}, s{sW}, {c.PA // 2}
    s_mul_i32 s{sE}, s{sE}, s{sRBA}
    v_lshl_add_u32 v{vDA}, v0, 4, s{sE}
    """)
    if c.PA == 4:
        a(f"s_sub_u32 s{sE}, s{sRBA}, 2048\nv_add_u32 v{vDA+1}, s{sE}, v{vDA}")
    a(f"""
    v_lshrrev_b32 v{vE}, 5, v0
    v_and_b32 v{vE+1}, 31, v0
    v_xor_b32 v{vE+1}, v{vE+1}, v{vE}
    v_lshlrev_b32 v{vE+1}, 4, v{vE+1}
    s_lshl_b32 s{sE}, s{sW}, 3
    v_add_u32 v{vE}, s{sE}, v{vE}
    v_mad_u32_u24 v{vDB}, v{vE}, s{sROW}, v{vE+1}
    s_lshl_b32 s{sE}, s{sROW}, 1
    s_sub_u32 s{sE}, s{sE}, {PAD}
    v_add_u32 v{vDB+1}, s{sE}, v{vDB}
    v_add_u32 v{vDB+2}, s{sE}, v{vDB+1}
    v_add_u32 v{vDB+3}, s{sE}, v{vDB+2}
    s_lshl_b32 s{sSTB}, s{sROW}, 5
    """)

def pieces(c, slot):
    out = []
    for i in range(c.PA):
        g = []
        if i == 0: g.append(f"s_add_u32 m0, s{sWA}, {slot * c.SB}")
        g.append(f"buffer_load_dwordx4 v{vDA + (i >> 1)}, s[{SA}:{SA+3}], s{sOA} offen offset:{1024*i}{' sc1' if c.sc1 else ''} lds")
        if i == c.PA - 1: g.append(f"s_add_u32 s{sOA}, s{sOA}, 2048")
        out.append(g)
    for i in range(c.PB):
        g = []
        if i == 0: g.append(f"s_add_u32 m0, s{sWB}, {slot * c.SB}")
        g.append(f"buffer_load_dwordx4 v{vDB + i}, s[{SB_}:{SB_+3}], s{sOB} offen offset:{PAD*i} lds")
        if i == c.PB - 1: g.append(f"s_add_u32 s{sOB}, s{sOB}, s{sSTB}")
        out.append(g)
    return out

def reads(c, slot, p):
    o = slot * c.SB - c.bias[slot]
    r = []
    xs = [f"ds_read_b128 {c.xf(p, t)}, v{vAR} offset:{o + (t >> 1) * 2048 + (t & 1) * 256}" for t in range(c.MT)]
    wsr = [[f"ds_read_b64_tr_b16 {c.wf(p, f, h)}, v{vBR+(f&1)} offset:{o + 4 * h * PAD + (f >> 1) * 64}" for h in range(2)] for f in range(c.NT)]
    for i in range(max(c.MT, c.NT)):
        if i < c.NT: r += wsr[i]
        if i < c.MT: r.append(xs[i])
    return r

def rebias(c, frm, to):
    d = c.bias[to] - c.bias[frm]
    if d == 0: return []
    return [f"v_add_u32 v{r}, {d & 0xffffffff}, v{r}" for r in (vAR, vBR, vBR + 1)]

def stage(a, c, slot, form, first=False, hook=None):
    p = slot & 1
    fill = [[] for _ in range(c.M)]
    nslot = (slot + 1) % c.NS
    items = reads(c, nslot, p ^ 1) + rebias(c, nslot, (nslot + 1) % c.NS)
    pc = pieces(c, slot)
    span = c.M - c.r0 - 4
    st = min(c.rstep, span / len(items))
    dg = [min(c.M - 1, (i * c.M) // c.P + 1) for i in range(len(pc))]
    for i, x in enumerate(items):
        fill[min(c.M - 1, c.r0 + int(i * st))].append(x)
    for gp, x in zip(dg, pc):
        if "m0" in x[0] and gp > 0 and not any(y.startswith("buffer") for y in fill[gp - 1] + fill[gp]):
            fill[gp - 1].append(x[0]); x = x[1:]
        fill[gp] += x[:1] if x[0].startswith("buffer") else x[:2]
        rest = x[1:] if x[0].startswith("buffer") else x[2:]
        fill[min(c.M - 1, gp + 1)] += rest
    a(f"s_waitcnt vmcnt({(c.NS - 2) * c.P}) lgkmcnt(0)\ns_barrier")
    if hook: a(hook)
    n = 0
    for t in range(c.MT):
        for f0 in range(c.NT):
            f = f0 if t % 2 == 0 else c.NT - 1 - f0
            A, B = (c.wf(p, f), c.xf(p, t)) if form == "T" else (c.xf(p, t), c.wf(p, f))
            a(f"v_mfma_f32_16x16x32_bf16 {c.accs(t, f)}, {A}, {B}, {'0' if first else c.accs(t, f)}")
            for x in fill[n]: a(x)
            n += 1

def cold_start(a, c):
    for s in range(c.NS):
        for g in pieces(c, s):
            for x in g: a(x)
    a(f"s_waitcnt vmcnt({(c.NS - 1) * c.P})\ns_barrier")
    for x in reads(c, 0, 0) + rebias(c, 0, 1): a(x)

def main_loop(a, c, form, tag):
    L = f"{tag}_l"
    hook = f"s_cmp_eq_u32 s{sCNT}, 1\ns_cselect_b32 s{SA+2}, 0, s{SA+2}\ns_cselect_b32 s{SB_+2}, 0, s{SB_+2}"
    stage(a, c, 0, form, True, hook)
    a(".p2align 3")
    a.lab(L)
    for s in range(1, c.NS): stage(a, c, s, form)
    a(f"s_sub_u32 s{sCNT}, s{sCNT}, 1\ns_cmp_eq_u32 s{sCNT}, 0\ns_cbranch_scc1 {tag}_x")
    stage(a, c, 0, form, False, hook)
    a(f"s_branch {L}")
    a.lab(f"{tag}_x")

class VM:
    def __init__(s, a): s.a = a; s.q = []
    def op(s, text, tag=None): s.a(text); s.q.append(tag)
    def wait(s, tag):
        idx = max(i for i, t in enumerate(s.q) if t == tag)
        s.a(f"s_waitcnt vmcnt({min(63, len(s.q) - 1 - idx)})")

def lane0(a, v, tmp):
    a(f"v_mov_b32 v{v}, {OOB}\nv_mov_b32 v{tmp}, 0\nv_cmp_eq_u32 vcc, 0, v0\nv_cndmask_b32 v{v}, v{v}, v{tmp}, vcc")

def poll(a, lab, soff, val, n=1, va=vE, vd=12):
    x = {1: "dword", 4: "dwordx4"}[n]
    d = f"v{vd}" if n == 1 else f"v[{vd}:{vd+3}]"
    a(f"v_mov_b32 v{va}, 0")
    a.lab(lab)
    a(f"buffer_load_{x} {d}, v{va}, {ws}, s{soff} offen sc1\ns_waitcnt vmcnt(0)")
    if n == 4: a(f"v_min_u32 v{vd}, v{vd}, v{vd+1}\nv_min3_u32 v{vd}, v{vd}, v{vd+2}, v{vd+3}")
    a(f"""v_readfirstlane_b32 s{sE+9}, v{vd}
    s_cmp_ge_u32 s{sE+9}, {val}
    s_cbranch_scc1 {lab}_d
    s_cmp_eq_u32 s{sBUD}, 0
    s_cbranch_scc1 {lab}_d
    s_sub_u32 s{sBUD}, s{sBUD}, 1
    s_branch {lab}""")
    a.lab(lab + "_d")

def lanes_frag(a, v, tmp):
    a(f"v_lshrrev_b32 v{v}, 4, v0\nv_lshlrev_b32 v{v}, 9, v{v}\nv_and_b32 v{tmp}, 15, v0\nv_lshl_add_u32 v{v}, v{tmp}, 4, v{v}")
def lanes_vt(a, v, tmp):
    a(f"""v_lshrrev_b32 v{v}, 4, v0
    v_lshlrev_b32 v{v}, 9, v{v}
    v_bfe_u32 v{tmp}, v0, 3, 1
    v_lshl_add_u32 v{v}, v{tmp}, 8, v{v}
    v_and_b32 v{tmp}, 7, v0
    v_lshl_add_u32 v{v}, v{tmp}, 4, v{v}""")

def getreg(a, c, t, f, tmp):
    k, b = c.acc(t, f)
    if k == "v": return b
    for i in range(4): a(f"v_accvgpr_read_b32 v{tmp+i}, a{b+i}")
    return tmp

def pack(a, d, b0, b1):
    a(f"""v_cvt_pk_bf16_f32 v{d}, v{b0}, v{b0+1}
    v_cvt_pk_bf16_f32 v{d+1}, v{b0+2}, v{b0+3}
    v_cvt_pk_bf16_f32 v{d+2}, v{b1}, v{b1+1}
    v_cvt_pk_bf16_f32 v{d+3}, v{b1+2}, v{b1+3}""")

vTKT = 1
def take_ticket(a, lab):
    a(f"s_cmp_lg_u32 s{sW}, 0\ns_cbranch_scc1 {lab}")
    lane0(a, 2, 3)
    a(f"""v_mov_b32 v{vTKT}, 1
    s_lshl_b32 s{sE}, s{sQ}, 8
    s_add_u32 s{sE}, s{sE}, {CTRL_OFF + C_TASK}
    buffer_atomic_add v{vTKT}, v2, {ws}, s{sE} offen sc0 sc1""")
    a.lab(lab)

def epi_store(a, c, kind, rstride):
    if kind == "vt":
        lanes_vt(a, vE, vE + 1)
        prs = [((t, f), (t + 1, f)) for t in range(0, c.MT, 2) for f in range(c.NT)]
    else:
        lanes_frag(a, vE, vE + 1)
        prs = [((t, f), (t, f + 1)) for t in range(c.MT) for f in range(0, c.NT, 2)]
        prs.sort(key=lambda p: (p[0][0] >> 1, p[0][1] >> 2, p[0][0] & 1))
    if kind == "silu":
        a(f"s_mov_b32 s{sE+2}, 0xbfb8aa3b\ns_mov_b32 s{sE+3}, 0xbfb8aa3b\ns_mov_b32 s{sE+4}, 1.0\ns_mov_b32 s{sE+5}, 1.0")
    cur = None
    for (t, f), (t2, f2) in prs:
        base = (t >> 1) * rstride + (f >> 2) * 4096
        off = ((f >> 1) & 1) * 2048 + ((f & 1) * 128 if kind == "vt" else (t & 1) * 256)
        if base != cur: a(f"s_add_u32 s{sE}, s{sOUT}, {base}"); cur = base
        b0 = getreg(a, c, t, f, ACC0); b1 = getreg(a, c, t2, f2, ACC0 + 4)
        if kind == "silu":
            for b in (b0, b1):
                for o, q in ((0, 12), (2, 14)): a(f"v_pk_mul_f32 v[{q}:{q+1}], v[{b+o}:{b+o+1}], s[{sE+2}:{sE+3}]")
                for q in (12, 13, 14, 15): a(f"v_exp_f32 v{q}, v{q}")
                for q in (12, 14): a(f"v_pk_add_f32 v[{q}:{q+1}], v[{q}:{q+1}], s[{sE+4}:{sE+5}]")
                for q in (12, 13, 14, 15): a(f"v_rcp_f32 v{q}, v{q}")
                for o, q in ((0, 12), (2, 14)): a(f"v_pk_mul_f32 v[{b+o}:{b+o+1}], v[{b+o}:{b+o+1}], v[{q}:{q+1}]")
        pack(a, b0, b0, b1)
        a(f"buffer_store_dwordx4 v[{b0}:{b0+3}], v{vE}, {ws}, s{sE} offen offset:{off} sc1")

def epi_qa(a, c, tag):
    vKA, vVA, vKM, vVM = 2, 3, 4, 5
    vMD, vMM, vM0, vM1, vS0, vS1 = 6, 12, 10, 11, 10, 11
    sKA, sVA, sKM, sVM, sC = sE, sE + 2, sE + 4, sE + 5, sE + 6
    a(f"""s_lshl_b32 s{sE}, s{sN}, 1
    s_add_u32 s{sE}, s{sE}, s{sWN}              ; head
    s_lshl_b32 s{sE+1}, s{sB}, 1
    s_add_u32 s{sE+1}, s{sE+1}, s{sWM}
    s_lshl_b32 s{sE+2}, s{sE}, 4
    s_add_u32 s{sE+2}, s{sE+2}, {CTRL_OFF + C_PROG}
    s_lshl_b32 s{sE+3}, s{sE+1}, 2
    s_add_u32 s{sE+3}, s{sE+3}, 4""")
    poll(a, tag + "_pp", sE + 2, f"s{sE+3}", 4)
    a(f"""s_lshl_b32 s{sE+1}, s{sE+1}, 18
    s_lshl_b32 s{sE}, s{sE}, 11
    s_add_u32 s{sE}, s{sE}, s{sE+1}
    s_add_u32 s{sKM}, s{sE}, {KM_OFF}
    s_add_u32 s{sVM}, s{sE}, {VM_OFF}
    s_add_u32 s{sKA}, s{sOUT}, {(K_OFF - O_OFF) & 0xffffffff}
    s_add_u32 s{sKA+1}, s{sKA}, 4096
    s_add_u32 s{sVA}, s{sOUT}, {(VT_OFF - O_OFF) & 0xffffffff}
    s_add_u32 s{sVA+1}, s{sVA}, 4096
    s_mov_b32 s{sC}, {CSC}
    s_mov_b32 s{sC+1}, {CSC}""")
    lanes_frag(a, vKA, 10); lanes_vt(a, vVA, 10)
    a(f"""v_lshrrev_b32 v10, 4, v0                ; g
    v_and_b32 v11, 15, v0                         ; m
    v_lshlrev_b32 v{vKM}, 7, v10
    v_lshl_add_u32 v{vKM}, v11, 4, v{vKM}
    v_mov_b32 v12, {OOB}
    v_cmp_gt_u32 vcc, 8, v11
    v_cndmask_b32 v{vKM}, v12, v{vKM}, vcc
    v_lshrrev_b32 v13, 3, v11
    v_lshlrev_b32 v13, 7, v13
    v_lshl_add_u32 v13, v10, 8, v13
    v_and_b32 v14, 7, v0
    v_lshl_add_u32 v{vVM}, v14, 3, v13
    v_cmp_gt_u32 vcc, 2, v10
    v_cndmask_b32 v{vVM}, v12, v{vVM}, vcc""")
    vm = VM(a)
    sets = (144, 0)
    Kr = lambda s, kt, F: sets[s & 1] + 16 * kt + 4 * F
    KMr = lambda s, F: sets[s & 1] + 32 + 4 * F
    Vr = lambda s, F, e: sets[s & 1] + 48 + 12 * F + 6 * e
    def loadK(s):
        r = []
        for F in range(4):
            r.append((f"buffer_load_dwordx4 a[{KMr(s,F)}:{KMr(s,F)+3}], v{vKM}, {ws}, s{sKM} offen offset:{512*F} sc1", ("K", s)))
            for kt in range(2):
                r.append((f"buffer_load_dwordx4 a[{Kr(s,kt,F)}:{Kr(s,kt,F)+3}], v{vKA}, {ws}, s{sKA+(F>>1)} offen offset:{2048*(F&1)+256*kt} sc1", ("K", s)))
        r.append((f"s_add_u32 s{sKM}, s{sKM}, 65536\ns_add_u32 s{sKA}, s{sKA}, 262144\ns_add_u32 s{sKA+1}, s{sKA+1}, 262144", None))
        return r
    def loadV(s):
        r = []
        for F in range(4):
            for e in range(2):
                b = Vr(s, F, e)
                r.append((f"buffer_load_dwordx4 a[{b+2}:{b+5}], v{vVA}, {ws}, s{sVA+(F>>1)} offen offset:{2048*(F&1)+128*e} sc1", ("V", s)))
                r.append((f"buffer_load_dwordx2 a[{b}:{b+1}], v{vVM}, {ws}, s{sVM} offen offset:{512*F+64*e} sc1", ("V", s)))
        r.append((f"s_add_u32 s{sVM}, s{sVM}, 65536\ns_add_u32 s{sVA}, s{sVA}, 262144\ns_add_u32 s{sVA+1}, s{sVA+1}, 262144", None))
        return r
    def emit(x):
        if x[1] is None: a(x[0])
        else: vm.op(*x)
    for x in loadK(0) + loadV(0): emit(x)
    a(f"v_mov_b32 v12, {NEG}\nv_lshlrev_b32 v13, 2, v10")
    for i in range(4):
        a(f"v_add_u32 v14, {i}, v13\nv_cmp_gt_u32 vcc, v14, v11\nv_cndmask_b32 v{vMD+i}, 0, v12, vcc")
    a(f"v_cmp_le_u32 vcc, 2, v10\nv_cndmask_b32 v12, 0, v12, vcc\nv_mov_b32 v13, v12\nv_mov_b32 v14, v12\nv_mov_b32 v15, v12")
    free = []; Q = {}
    pend = loadK(1) + loadV(1)
    for t in range(8):
        for F in range(4):
            k0, b0 = c.acc(t, 2 * F); k1, b1 = c.acc(t, 2 * F + 1)
            if k0 == "v":
                pack(a, b0, b0, b1); Q[t, F] = b0; free.append(b1)
            else:
                x, y = free.pop(0), free.pop(0)
                getreg(a, c, t, 2 * F, x); getreg(a, c, t, 2 * F + 1, y)
                pack(a, x, x, y); Q[t, F] = x; free.append(y)
            if t >= 1 and pend: emit(pend.pop(0))
            if t >= 4 and pend: emit(pend.pop(0))
    for x in pend: emit(x)
    R = lambda b, n=4: f"v[{b}:{b+n-1}]"
    A = lambda b, n=4: f"a[{b}:{b+n-1}]"
    for s in range(4):
        t0, t1 = 2 * s, 2 * s + 1
        D0, M0, E0, E1, M1 = [free.pop(0) for _ in range(5)]
        vm.wait(("K", s))
        for F in range(4):
            for d, kr, q, seed in ((D0, Kr(s, 0, F), Q[t0, F], R(vMD)), (M0, KMr(s, F), Q[t0, F], R(vMM)), (E0, Kr(s, 0, F), Q[t1, F], "0"),
                                   (E1, Kr(s, 1, F), Q[t1, F], R(vMD)), (M1, KMr(s, F), Q[t1, F], R(vMM))):
                a(f"v_mfma_f32_16x16x32_bf16 {R(d)}, {A(kr)}, {R(q)}, {seed if F == 0 else R(d)}")
        if s < 2:
            for x in loadK(s + 2): emit(x)
        for F in range(4): free += [Q[t0, F], Q[t1, F]]
        g0 = [D0 + i for i in range(4)] + [M0 + i for i in range(4)]
        g1 = [E0 + i for i in range(4)] + [E1 + i for i in range(4)] + [M1 + i for i in range(4)]
        def both(op3, op2, r0, r1):
            for r, g in ((r0, g0), (r1, g1)):
                a(f"{op3} v{r}, v{g[0]}, v{g[1]}, v{g[2]}")
                k = 3
                while k + 1 < len(g): a(f"{op3} v{r}, v{r}, v{g[k]}, v{g[k+1]}"); k += 2
                a(f"{op2} v{r}, v{r}, v{g[k]}")
        def across(op, r0, r1):
            a(f"""v_permlane32_swap_b32 v{r0}, v{r1}
            {op} v{r0}, v{r0}, v{r1}
            v_mov_b32 v{r1}, v{r0}
            v_permlane16_swap_b32 v{r0}, v{r1}
            {op} v{r0}, v{r0}, v{r1}""")
        both("v_max3_f32", "v_max_f32", vM0, vM1)
        across("v_max_f32", vM0, vM1)
        a(f"v_mul_f32 v{vM0}, s{sC}, v{vM0}\nv_mov_b32 v{vM1}, v{vM0}\nv_permlane32_swap_b32 v{vM0}, v{vM1}")
        for g, hi in ((g0, 0), (g1, 1)):
            for k in range(0, len(g), 2):
                a(f"v_pk_fma_f32 {R(g[k],2)}, {R(g[k],2)}, s[{sC}:{sC+1}], {R(vM0,2)} op_sel:[0,0,{hi}] op_sel_hi:[1,1,{hi}] neg_lo:[0,0,1] neg_hi:[0,0,1]")
        for r in g0 + g1: a(f"v_exp_f32 v{r}, v{r}")
        x, y = free.pop(0), free.pop(0)
        a(f"v_pk_add_f32 {R(x,2)}, {R(D0,2)}, {R(D0+2,2)}\nv_pk_add_f32 {R(x+2,2)}, {R(M0,2)}, {R(M0+2,2)}")
        a(f"v_pk_add_f32 {R(y,2)}, {R(E0,2)}, {R(E0+2,2)}\nv_pk_add_f32 {R(y+2,2)}, {R(E1,2)}, {R(E1+2,2)}")
        a(f"v_pk_add_f32 {R(x,2)}, {R(x,2)}, {R(x+2,2)}\nv_pk_add_f32 {R(y,2)}, {R(y,2)}, {R(y+2,2)}")
        a(f"v_pk_add_f32 {R(y+2,2)}, {R(M1,2)}, {R(M1+2,2)}\nv_add_f32 v{vS0}, v{x}, v{x+1}\nv_pk_add_f32 {R(y,2)}, {R(y,2)}, {R(y+2,2)}")
        a(f"v_add_f32 v{vS1}, v{y}, v{y+1}")
        across("v_add_f32", vS0, vS1)
        a(f"v_rcp_f32 v{vS0}, v{vS0}\nv_mov_b32 v{vS1}, v{vS0}\nv_permlane32_swap_b32 v{vS0}, v{vS1}")
        for g, hi in ((g0, 0), (g1, 1)):
            for k in range(0, len(g), 2):
                a(f"v_pk_mul_f32 {R(g[k],2)}, {R(g[k],2)}, {R(vS0,2)} op_sel:[0,{hi}] op_sel_hi:[1,{hi}]")
        pack(a, x, M0, D0)
        pack(a, y, E0, E1)
        a(f"v_cvt_pk_bf16_f32 v{M1}, v{M1}, v{M1+1}\nv_cvt_pk_bf16_f32 v{M1+1}, v{M1+2}, v{M1+3}")
        free += [D0, M0, E0, E1]
        vm.wait(("V", s))
        O = {(tt, F, e): free.pop(0) for F in range(4) for e in range(2) for tt in range(2)}
        for F in range(4):
            for e in range(2):
                a(f"v_mfma_f32_16x16x16_bf16 {R(O[1,F,e])}, {A(Vr(s,F,e),2)}, {R(M1,2)}, 0")
        for F in range(4):
            for e in range(2):
                a(f"v_mfma_f32_16x16x32_bf16 {R(O[0,F,e])}, {A(Vr(s,F,e))}, {R(x)}, 0")
        a(f"s_add_u32 s{sE+8}, s{sOUT}, {262144 * s}\ns_add_u32 s{sE+9}, s{sOUT}, {262144 * s + 4096}")
        def out(tt, F):
            b0 = O[tt, F, 0]
            pack(a, b0, b0, O[tt, F, 1])
            vm.op(f"buffer_store_dwordx4 {R(b0)}, v{vKA}, {ws}, s{sE+8+(F>>1)} offen offset:{2048*(F&1)+256*tt} sc1", "st")
        for F in range(4):
            for e in range(2):
                a(f"v_mfma_f32_16x16x32_bf16 {R(O[1,F,e])}, {A(Vr(s,F,e)+2)}, {R(y)}, {R(O[1,F,e])}")
            if F >= 1: out(0, F - 1)
        if s < 2:
            for z in loadV(s + 2): emit(z)
        out(0, 3)
        for F in range(4): out(1, F)
        free += [x, y, M1] + list(O.values())

vXF = 144
def fw_addr(a):
    a(f"""s_lshl_b32 s{sE}, s{sB}, 1
    s_add_u32 s{sE}, s{sE}, s{sWM}
    s_lshl_b32 s{sE}, s{sE}, 17
    s_lshl_b32 s{sE+1}, s{sN}, 1
    s_add_u32 s{sE+1}, s{sE+1}, s{sWN}
    s_lshl_b32 s{sE+1}, s{sE+1}, 13
    s_add_u32 s{sOUT}, s{sE}, s{sE+1}""")
def fw_prs(c): return [(t, F) for th in range(c.MT // 2) for Fh in range(2) for t in (2 * th, 2 * th + 1) for F in (2 * Fh, 2 * Fh + 1)]
def fw_load(a, c, sbase, sc1):
    cur = None
    for n, (t, F) in enumerate(fw_prs(c)):
        base = (t >> 1) * 65536 + (F >> 1) * 4096
        if base != cur: a(f"s_add_u32 s{sE+1}, s{sbase}, {base}"); cur = base
        a(f"buffer_load_dwordx4 v[{vXF+4*n}:{vXF+4*n+3}], v{vE}, {ws}, s{sE+1} offen offset:{2048*(F&1)+256*(t&1)}{' sc1' if sc1 else ''}")
def fw_add(a, c, waits):
    a(f"s_mov_b32 s{sE+2}, 0x3f80\ns_mov_b32 s{sE+3}, 0x3f800000")
    for n, (t, F) in enumerate(fw_prs(c)):
        if waits and n % 2 == 0: a(f"s_waitcnt vmcnt({14 - n})")
        for e in range(2):
            b = c.acc(t, 2 * F + e)[1]
            for i in range(4): a(f"v_dot2c_f32_bf16 v{b+i}, s{sE+2+(i&1)}, v{vXF+4*n+2*e+(i>>1)}")

def epi_fw(a, c, tag):
    lane0(a, 2, 3)
    a(f"v_mov_b32 v3, 1\nbuffer_atomic_add v3, v2, {ws}, s{sFLG} offen sc0 sc1")
    a(f"s_cmp_lg_u32 s{sTYP}, {T_F2}\ns_cbranch_scc1 {tag}_nox")
    fw_add(a, c, False)
    a.lab(tag + "_nox")
    lanes_frag(a, vE, vE + 1)
    a(f"""s_waitcnt vmcnt(0)
    v_readfirstlane_b32 s{sE+4}, v3
    s_add_u32 s{sFLG}, s{sFLG}, 4
    s_cmp_ge_u32 s{sE+4}, s{sNC}
    s_cbranch_scc1 {tag}_last
    s_lshl_b32 s{sE+4}, s{sE+4}, 22
    s_add_u32 s{sE+4}, s{sE+4}, {Y_OFF}
    s_add_u32 s{sE+4}, s{sE+4}, s{sOUT}""")
    cur = None
    for t, F in fw_prs(c):
        base = (t >> 1) * 65536 + (F >> 1) * 4096
        if base != cur: a(f"s_add_u32 s{sE+1}, s{sE+4}, {base}"); cur = base
        b0 = c.acc(t, 2 * F)[1]
        pack(a, b0, b0, b0 + 4)
        a(f"buffer_store_dwordx4 v[{b0}:{b0+3}], v{vE}, {ws}, s{sE+1} offen offset:{2048*(F&1)+256*(t&1)} sc1")
    a(f"s_branch {tag}_end")
    a.lab(tag + "_last")
    poll(a, tag + "_pd", sFLG, f"s{sNC}", 1, va=vE + 1)
    a(f"s_add_u32 s{sE+4}, s{sOUT}, {Y_OFF}\ns_mov_b32 s{sE+5}, s{sNC}")
    a.lab(tag + "_sl")
    fw_load(a, c, sE + 4, True)
    fw_add(a, c, True)
    a(f"s_add_u32 s{sE+4}, s{sE+4}, {1 << 22}\ns_sub_u32 s{sE+5}, s{sE+5}, 1\ns_cmp_lg_u32 s{sE+5}, 0\ns_cbranch_scc1 {tag}_sl")
    a(f"""v_and_b32 v{vE}, 15, v0
    v_lshlrev_b32 v{vE}, 11, v{vE}
    v_lshrrev_b32 v{vE+1}, 4, v0
    v_lshl_add_u32 v{vE}, v{vE+1}, 4, v{vE}
    s_lshl_b32 s{sE}, s{sB}, 1
    s_add_u32 s{sE}, s{sE}, s{sWM}
    s_lshl_b32 s{sE}, s{sE}, 17
    s_lshl_b32 s{sE+1}, s{sN}, 1
    s_add_u32 s{sE+1}, s{sE+1}, s{sWN}
    s_lshl_b32 s{sE+1}, s{sE+1}, 8
    s_add_u32 s{sE}, s{sE}, s{sE+1}""")
    for t in range(c.MT):
        for F in range(4): pack(a, c.acc(t, 2 * F)[1], c.acc(t, 2 * F)[1], c.acc(t, 2 * F + 1)[1])
        for F in range(4):
            b0 = c.acc(t, 2 * F)[1]
            a(f"v_permlane16_swap_b32 v{b0}, v{b0+2}\nv_permlane16_swap_b32 v{b0+1}, v{b0+3}")
        for F in range(4):
            b0 = c.acc(t, 2 * F)[1]
            a(f"buffer_store_dwordx4 v[{b0}:{b0+3}], v{vE}, s[{SO}:{SO+3}], s{sE} offen offset:{64*F}")
        if t < c.MT - 1: a(f"s_add_u32 s{sE}, s{sE}, 32768")
    a.lab(tag + "_end")

def gemm_side(a, name, table, trace=False, cs=None, cw=None):
    cs = cs or Cfg(8); cw = cw or Cfg(4, sc1=True)
    assert cs.lds <= L_TK and cw.lds <= L_TK
    n = name + "_g"
    tab = list(table) + [(T_END, 0)]
    nt = len(tab)
    by = [(t << 5) | i for t, i in tab] + [0, 0, 0]
    for k in range((nt + 3) // 4):
        wv = by[4 * k] | (by[4 * k + 1] << 8) | (by[4 * k + 2] << 16) | (by[4 * k + 3] << 24)
        a(f"s_mov_b32 s{sE}, {wv}\nv_writelane_b32 v1, s{sE}, {k}")
    assert (nt + 3) // 4 <= 64
    a(f"""v_accvgpr_write_b32 a{aTAB}, v1
    s_lshr_b32 s{sQ}, s{sG}, 5
    s_and_b32 s{sTK}, s{sG}, 31
    s_lshr_b32 s{sWM}, s{sW}, 1
    s_and_b32 s{sWN}, s{sW}, 1
    s_mov_b32 s{SA}, s{WS}
    s_mov_b32 s{SA+1}, s{WS+1}
    s_mov_b32 s{SA+3}, 0x20000
    s_mov_b32 s{SB_+3}, 0x20000
    s_load_dwordx2 s[{SO}:{SO+1}], s[0:1], {A_OUT}
    s_mov_b32 s{SO+2}, {2048 * 1024 * 2}
    s_mov_b32 s{SO+3}, 0x20000""")
    if trace: a(f"s_lshl_b32 s{sTRC}, s{sG}, 9\ns_add_u32 s{sTRC}, s{sTRC}, {TRACE_OFF + 65536}")
    def stamp(i):
        if trace: a(f"s_memrealtime s[{sTRC+2}:{sTRC+3}]\ns_waitcnt lgkmcnt(0)\ns_mov_b32 s{sTRC+4+i}, s{sTRC+2}")
    a.lab(n + "_task")
    stamp(0)
    a(f"""s_min_u32 s{sTK}, s{sTK}, {nt - 1}
    v_accvgpr_read_b32 v1, a{aTAB}
    s_lshr_b32 s{sE}, s{sTK}, 2
    s_and_b32 s{sE+1}, s{sTK}, 3
    s_lshl_b32 s{sE+1}, s{sE+1}, 3
    v_readlane_b32 s{sE}, v1, s{sE}
    s_lshr_b32 s{sE}, s{sE}, s{sE+1}
    s_bfe_u32 s{sTYP}, s{sE}, 0x30005
    s_and_b32 s{sE}, s{sE}, 31
    s_mov_b32 s{SA+2}, {WS_BYTES}
    s_cmp_eq_u32 s{sTYP}, {T_END}
    s_cbranch_scc1 {n}_done
    s_cmp_ge_u32 s{sTYP}, {T_F2}
    s_cbranch_scc1 {n}_fw
    s_cmp_eq_u32 s{sTYP}, {T_F1}
    s_cbranch_scc1 {n}_f1
    s_lshr_b32 s{sB}, s{sE}, 2
    s_and_b32 s{sN}, s{sE}, 3
    s_lshl_b32 s{sE}, s{sQ}, 2
    s_add_u32 s{sN}, s{sN}, s{sE}
    s_mov_b32 s{sROW}, 8192
    s_mov_b32 s{sE+2}, 262144
    s_lshl_b32 s{sFLG}, s{sB}, 4
    s_add_u32 s{sFLG}, s{sFLG}, s{sN}
    s_lshl_b32 s{sFLG}, s{sFLG}, 6
    s_add_u32 s{sFLG}, s{sFLG}, {CTRL_OFF + C_KV}
    s_lshl_b32 s{sE+3}, s{sB}, 1
    s_add_u32 s{sE+3}, s{sE+3}, s{sWM}
    s_lshl_b32 s{sE+3}, s{sE+3}, 6
    s_add_u32 s{sE+3}, s{sE+3}, {CTRL_OFF + C_QA}
    s_mov_b32 s{sE}, {A_WK}
    s_mov_b32 s{sOUT}, {K_OFF}
    s_cmp_eq_u32 s{sTYP}, {T_V}
    s_cselect_b32 s{sE}, {A_WV}, s{sE}
    s_cselect_b32 s{sOUT}, {VT_OFF}, s{sOUT}
    s_cmp_eq_u32 s{sTYP}, {T_QA}
    s_cselect_b32 s{sE}, {A_WQ}, s{sE}
    s_cselect_b32 s{sOUT}, {O_OFF}, s{sOUT}
    s_cselect_b32 s{sFLG}, s{sE+3}, s{sFLG}
    s_branch {n}_std
    {n}_f1:
    s_mul_i32 s{sE+1}, s{sQ}, 28
    s_add_u32 s{sE}, s{sE}, s{sE+1}
    s_and_b32 s{sB}, s{sE}, 7
    s_lshr_b32 s{sN}, s{sE}, 3
    s_mov_b32 s{sROW}, 7168
    s_mov_b32 s{sE+2}, 229376
    s_lshl_b32 s{sFLG}, s{sB}, 6
    s_add_u32 s{sFLG}, s{sFLG}, {CTRL_OFF + C_F1}
    s_mov_b32 s{sE}, {A_W1}
    s_mov_b32 s{sOUT}, {H1_OFF}
    {n}_std:
    s_load_dwordx2 s[{SB_}:{SB_+1}], s[0:1], s{sE}
    s_lshl_b32 s{SB_+2}, s{sROW}, 10
    s_mov_b32 s{sRBA}, 65536
    s_lshl_b32 s{sOA}, s{sB}, 19
    s_lshl_b32 s{sOB}, s{sN}, 9
    s_lshl_b32 s{sE}, s{sB}, 1
    s_add_u32 s{sE}, s{sE}, s{sWM}
    s_mul_i32 s{sE}, s{sE}, s{sE+2}
    s_lshl_b32 s{sE}, s{sE}, 2
    s_add_u32 s{sOUT}, s{sOUT}, s{sE}
    s_lshl_b32 s{sE}, s{sN}, 1
    s_add_u32 s{sE}, s{sE}, s{sWN}
    s_lshl_b32 s{sE}, s{sE}, 13
    s_add_u32 s{sOUT}, s{sOUT}, s{sE}
    s_mov_b32 s{sCNT}, {32 // cs.NS}""")
    assert XN_OFF == 0
    setup(a, cs)
    a("s_waitcnt lgkmcnt(0)")
    cold_start(a, cs)
    stamp(1)
    a(f"s_cmp_eq_u32 s{sTYP}, {T_V}\ns_cbranch_scc1 {n}_v")
    main_loop(a, cs, "T", n + "_T")
    stamp(2)
    take_ticket(a, n + "_tk1")
    a(f"s_cmp_eq_u32 s{sTYP}, {T_QA}\ns_cbranch_scc1 {n}_qa\ns_cmp_eq_u32 s{sTYP}, {T_F1}\ns_cbranch_scc1 {n}_ef1")
    epi_store(a, cs, "frag", 262144)
    a(f"s_branch {n}_next")
    a.lab(n + "_ef1")
    epi_store(a, cs, "silu", 229376)
    a(f"s_branch {n}_next")
    a.lab(n + "_qa")
    epi_qa(a, cs, n + "_qa")
    a(f"s_branch {n}_next")
    a.lab(n + "_v")
    main_loop(a, cs, "N", n + "_N")
    stamp(2)
    take_ticket(a, n + "_tk2")
    epi_store(a, cs, "vt", 262144)
    a(f"s_branch {n}_next")
    a.lab(n + "_fw")
    a(f"""s_mov_b32 s{sB}, s{sE}
    s_mov_b32 s{sN}, s{sQ}
    s_mov_b32 s{sROW}, 2048
    s_mov_b32 s{sNC}, 1
    s_lshl_b32 s{sFLG}, s{sB}, 2
    s_add_u32 s{sFLG}, s{sFLG}, s{sN}
    s_lshl_b32 s{sFLG}, s{sFLG}, 2
    s_add_u32 s{sFLG}, s{sFLG}, s{sW}
    s_lshl_b32 s{sFLG}, s{sFLG}, 6
    s_add_u32 s{sFLG}, s{sFLG}, {CTRL_OFF + C_FW}
    s_lshl_b32 s{sOB}, s{sN}, 9""")
    fw_addr(a)
    a(f"""s_cmp_eq_u32 s{sTYP}, {T_F2}
    s_cbranch_scc0 {n}_wo
    s_load_dwordx2 s[{SB_}:{SB_+1}], s[0:1], {A_W2}
    s_mov_b32 s{SB_+2}, {3584 * 2048}
    s_mov_b32 s{sRBA}, 229376
    s_mul_i32 s{sOA}, s{sB}, {4 * 229376}
    s_add_u32 s{sOA}, s{sOA}, {H1_OFF}
    s_mov_b32 s{sCNT}, {112 // cw.NS}
    s_add_u32 s{sE}, s{sOUT}, {XF_OFF}""")
    lanes_frag(a, vE, vE + 1)
    fw_load(a, cw, sE, False)
    a(f"""s_lshr_b32 s{sE}, s{sB}, 1
    s_lshl_b32 s{sE}, s{sE}, 6
    s_add_u32 s{sE}, s{sE}, {CTRL_OFF + C_F1}
    s_mov_b32 s{sE+1}, 56
    s_branch {n}_fw2
    {n}_wo:
    s_load_dwordx2 s[{SB_}:{SB_+1}], s[0:1], {A_WO}
    s_mov_b32 s{SB_+2}, {4096 * 2048}
    s_mov_b32 s{sRBA}, 262144
    s_lshl_b32 s{sOA}, s{sB}, 20
    s_add_u32 s{sOA}, s{sOA}, {O_OFF}
    s_mov_b32 s{sCNT}, {128 // cw.NS}
    s_lshl_b32 s{sE}, s{sB}, 6
    s_add_u32 s{sE}, s{sE}, {CTRL_OFF + C_QA}
    s_mov_b32 s{sE+1}, 32
    {n}_fw2:""")
    poll(a, n + "_pfw", sE, f"s{sE+1}")
    setup(a, cw)
    a("s_waitcnt lgkmcnt(0)")
    cold_start(a, cw)
    stamp(1)
    main_loop(a, cw, "T", n + "_W")
    stamp(2)
    take_ticket(a, n + "_tk3")
    epi_fw(a, cw, n + "_efw")
    a.lab(n + "_next")
    lane0(a, 2, 3)
    a(f"""v_mov_b32 v3, 1
    s_waitcnt vmcnt(0)
    buffer_atomic_add v3, v2, {ws}, s{sFLG} offen sc1""")
    if trace:
        stamp(3)
        a(f"s_cmp_lg_u32 s{sW}, 0\ns_cbranch_scc1 {n}_ntr")
        for i in range(4): a(f"v_mov_b32 v{4+i}, s{sTRC+4+i}")
        a(f"s_lshl_b32 s{sE}, s{sTK}, 8\ns_or_b32 s{sE}, s{sE}, s{sTYP}\nv_mov_b32 v8, s{sE}")
        a(f"buffer_store_dwordx4 v[4:7], v2, {ws}, s{sTRC} offen\nbuffer_store_dword v8, v2, {ws}, s{sTRC} offen offset:16\ns_add_u32 s{sTRC}, s{sTRC}, 32")
        a.lab(n + "_ntr")
    a(f"""s_cmp_lg_u32 s{sW}, 0
    s_cbranch_scc1 {n}_nw
    v_mov_b32 v2, {L_TK}
    v_readfirstlane_b32 s{sE}, v{vTKT}
    v_mov_b32 v{vTKT}, s{sE}
    ds_write_b32 v2, v{vTKT}
    s_waitcnt lgkmcnt(0)
    {n}_nw:
    s_barrier
    v_mov_b32 v2, {L_TK}
    ds_read_b32 v{vTKT}, v2
    s_waitcnt lgkmcnt(0)
    v_readfirstlane_b32 s{sTK}, v{vTKT}
    s_add_u32 s{sTK}, s{sTK}, 32
    s_branch {n}_task""")
    a.lab(n + "_done")
```

```python
MB = 1 << 20
XN_OFF = 0
XF_OFF = 4 * MB
K_OFF = 20 * MB
VT_OFF = 36 * MB
H1_OFF = 52 * MB
O_OFF = 68 * MB
KM_OFF = 84 * MB
VM_OFF = 88 * MB
Y_OFF = 96 * MB
RING_OFF = 160 * MB
SLOT = 512 * 1024
R_MEM = 0
R_O = 65536
R_SP = 131072
R_PART = 131072 + 163840
R_END = R_PART + 131072
assert R_END <= SLOT
NSLOT = 4
CTRL_OFF = RING_OFF + NSLOT * SLOT
C_TICKET = 0
C_PROG = 4096
C_FLAGS = 8192
C_KV = 8192
C_F1 = 16384
C_QA = 17408
C_TASK = 20480
C_FW = 32768
CTRL_SIZE = 65536
TRACE_OFF = 200 * MB
WS_BYTES = 256 * MB
OOB = 0x80000000
KNAME = "parallel_sum__memory_aug_recurrent_mem_tr__dense_activation_silu__prompt"
A_X, A_MEM0, A_WQ, A_WK, A_WV, A_WO, A_SEG, A_BX, A_W1, A_W2, A_OUT, A_DBG, A_WS = [8 * i for i in range(13)]
```

```python
from asmlib import *
from layout import *

def srd(a, s, karg_off, nbytes, tmp=None):
    a(f"s_load_dwordx2 s[{s}:{s+1}], s[0:1], {karg_off}")
    a(f"s_mov_b32 s{s+2}, {nbytes}")
    a(f"s_mov_b32 s{s+3}, 0x20000")

def gen_prep(name):
    a = Asm()
    a(f"s_cmp_ge_u32 s2, 256\ns_cbranch_scc1 {name}_end")
    srd(a, 4, A_WS, WS_BYTES); srd(a, 8, A_X, 2048 * 1024 * 2)
    a("""
    v_and_b32 v1, 63, v0
    v_lshrrev_b32 v2, 6, v0            ; wave
    v_and_b32 v3, 7, v1                ; r
    v_lshrrev_b32 v4, 3, v1            ; p
    s_lshl_b32 s12, s2, 3
    v_add_u32 v5, s12, v3              ; row
    v_lshlrev_b32 v6, 11, v5           ; row*2048
    v_lshlrev_b32 v7, 9, v2
    v_lshl_add_u32 v7, v4, 4, v7
    v_add_u32 v6, v6, v7
    s_waitcnt lgkmcnt(0)
    """)
    for i in range(4):
        a(f"buffer_load_dwordx4 v[{16+4*i}:{19+4*i}], v6, s[8:11], 0 offen offset:{128*i}")
    a("""
    v_mov_b32 v8, -1
    v_mov_b32 v9, -1
    v_mov_b32 v10, -1
    v_mov_b32 v11, -1
    v_mov_b32 v12, 0
    s_lshl_b32 s12, s2, 12
    v_lshl_add_u32 v13, v0, 4, s12
    """)
    for i in range(CLR_MB):
        a(f"s_mov_b32 s13, {RING_OFF + i * MB}\nbuffer_store_dwordx4 v[8:11], v13, s[4:7], s13 offen")
    a(f"""
    s_lshl_b32 s12, s2, 8
    v_and_b32 v14, 63, v0
    v_lshl_add_u32 v14, v14, 2, s12
    s_mov_b32 s13, {CTRL_OFF}
    buffer_store_dword v12, v14, s[4:7], s13 offen
    """)
    a(f"""
    v_lshrrev_b32 v7, 5, v5            ; rb
    v_lshlrev_b32 v7, 16, v7
    v_and_b32 v15, 31, v5
    v_lshl_add_u32 v7, v15, 4, v7
    v_lshl_add_u32 v7, v2, 14, v7
    v_lshl_add_u32 v7, v4, 9, v7       ; (p>>1)*1024 + (p&1)*512 = p*512
    s_waitcnt vmcnt({CLR_MB + 1})
    """)
    for i in range(4):
        b = 80 + 4 * i; r = 16 + 4 * i
        for k in range(4): a(f"v_mov_b32 v{b+k}, v{r+k}")
        a(f"v_mov_b32_dpp v{b+2}, v{r} row_ror:8 row_mask:0xf bank_mask:0x3")
        a(f"v_mov_b32_dpp v{b+3}, v{r+1} row_ror:8 row_mask:0xf bank_mask:0x3")
        a(f"v_mov_b32_dpp v{b}, v{r+2} row_ror:8 row_mask:0xf bank_mask:0xc")
        a(f"v_mov_b32_dpp v{b+1}, v{r+3} row_ror:8 row_mask:0xf bank_mask:0xc")
        a(f"s_mov_b32 s13, {XF_OFF + 4096 * i}\nbuffer_store_dwordx4 v[{b}:{b+3}], v7, s[4:7], s13 offen")
    for d in range(16):
        a(f"v_lshlrev_b32 v{32+2*d}, 16, v{16+d}\nv_and_b32 v{33+2*d}, 0xffff0000, v{16+d}")
    def tree(dst, fn):
        pass
    a("v_add_f32 v64, v32, v33\nv_add_f32 v65, v34, v35")
    for d in range(4, 32, 2):
        a(f"v_add_f32 v64, v64, v{32+d}\nv_add_f32 v65, v65, v{33+d}")
    a("v_add_f32 v64, v64, v65")
    def xlane_sum(r, t):
        a(f"v_add_f32_dpp v{r}, v{r}, v{r} row_ror:8 row_mask:0xf bank_mask:0xf")
        a(f"v_mov_b32 v{t}, v{r}\nv_permlane16_swap_b32 v{r}, v{t}\nv_add_f32 v{r}, v{r}, v{t}")
        a(f"v_mov_b32 v{t}, v{r}\nv_permlane32_swap_b32 v{r}, v{t}\nv_add_f32 v{r}, v{r}, v{t}")
    def xwave_sum(r, base):
        a(f"v_lshlrev_b32 v66, 4, v3\nv_lshl_add_u32 v67, v2, 2, v66\nds_write_b32 v67, v{r} offset:{base}\ns_waitcnt lgkmcnt(0)\ns_barrier")
        a(f"ds_read_b128 v[68:71], v66 offset:{base}\ns_waitcnt lgkmcnt(0)")
        a(f"v_add_f32 v68, v68, v69\nv_add_f32 v70, v70, v71\nv_add_f32 v{r}, v68, v70")
    xlane_sum(64, 65); xwave_sum(64, 0)
    a("v_mul_f32 v64, 0x3a800000, v64")
    a("v_sub_f32 v72, v32, v64\nv_sub_f32 v73, v33, v64\nv_mul_f32 v74, v72, v72\nv_mul_f32 v75, v73, v73")
    for d in range(2, 32, 2):
        a(f"v_sub_f32 v72, v{32+d}, v64\nv_sub_f32 v73, v{33+d}, v64\nv_fmac_f32 v74, v72, v72\nv_fmac_f32 v75, v73, v73")
    a("v_add_f32 v74, v74, v75")
    xlane_sum(74, 65); xwave_sum(74, 128)
    a("""
    v_mul_f32 v74, 0x3a800000, v74     ; var
    v_cvt_pk_bf16_f32 v74, v74, v64
    v_and_b32 v64, 0xffff0000, v74
    v_lshlrev_b32 v74, 16, v74
    v_add_f32 v74, 0x3727c5ac, v74     ; + 1e-5
    v_cvt_pk_bf16_f32 v74, v74, v74
    v_lshlrev_b32 v74, 16, v74
    v_sqrt_f32 v74, v74
    v_cvt_pk_bf16_f32 v74, v74, v74
    v_lshlrev_b32 v74, 16, v74
    v_rcp_f32 v74, v74
    """)
    for d in range(16):
        x, y = 32 + 2 * d, 33 + 2 * d
        a(f"""v_sub_f32 v{x}, v{x}, v64
        v_sub_f32 v{y}, v{y}, v64
        v_cvt_pk_bf16_f32 v{16+d}, v{x}, v{y}
        v_lshlrev_b32 v{x}, 16, v{16+d}
        v_and_b32 v{y}, 0xffff0000, v{16+d}
        v_mul_f32 v{x}, v{x}, v74
        v_mul_f32 v{y}, v{y}, v74
        v_cvt_pk_bf16_f32 v{16+d}, v{x}, v{y}""")
    for i in range(4):
        b = 16 + 4 * i
        a(f"v_mov_b32 v76, v{b+2}\nv_mov_b32 v77, v{b+3}")
        a(f"v_mov_b32_dpp v{b+2}, v{b} row_ror:8 row_mask:0xf bank_mask:0x3")
        a(f"v_mov_b32_dpp v{b+3}, v{b+1} row_ror:8 row_mask:0xf bank_mask:0x3")
        a(f"v_mov_b32_dpp v{b}, v76 row_ror:8 row_mask:0xf bank_mask:0xc")
        a(f"v_mov_b32_dpp v{b+1}, v77 row_ror:8 row_mask:0xf bank_mask:0xc")
        a(f"s_mov_b32 s13, {XN_OFF + 4096 * i}\nbuffer_store_dwordx4 v[{b}:{b+3}], v7, s[4:7], s13 offen")
    a(f"{name}_end:\ns_endpgm")
    return khead(name) + a.finish()
```

```python
from asmlib import *
from layout import *
from prep import srd

WS = 4
T0 = 8
sX, sJ, sW, sMODE, sG = 12, 13, 14, 15, 16
sBUD = 17
sSTEP, sCUR, sPREV, sRST, sTOK, sKM = 18, 19, 20, 21, 22, 23
sT = 24
sKVF = 32
sTR = 40

def roles(a, name):
    a(f"s_cmp_ge_u32 s2, 256\ns_cbranch_scc1 {name}_end")
    srd(a, WS, A_WS, WS_BYTES)
    a(f"""
    v_lshrrev_b32 v1, 6, v0
    s_mov_b32 s{sBUD}, 0x100000
    v_readfirstlane_b32 s{sW}, v1
    v_and_b32 v0, 63, v0
    s_getreg_b32 s{sT}, hwreg(HW_REG_XCC_ID, 0, 4)
    s_waitcnt lgkmcnt(0)
    s_cmp_lg_u32 s{sW}, 0
    s_cbranch_scc1 {name}_rwait
    s_mov_b32 s{sT+1}, {CTRL_OFF + C_TICKET}
    s_lshl_b32 s{sT+2}, s{sT}, 8
    v_mov_b32 v2, {OOB}
    v_mov_b32 v3, s{sT+2}
    v_cmp_eq_u32 vcc, 0, v0
    v_cndmask_b32 v2, v2, v3, vcc
    v_mov_b32 v1, 1
    buffer_atomic_add v1, v2, s[{WS}:{WS+3}], s{sT+1} offen sc0 sc1
    v_and_b32 v2, 15, v0
    v_lshlrev_b32 v2, 8, v2
    s_waitcnt vmcnt(0)
    v_readfirstlane_b32 s{sT+3}, v1          ; ticket
    {name}_rspin:
    buffer_load_dword v3, v2, s[{WS}:{WS+3}], s{sT+1} offen sc1
    s_waitcnt vmcnt(0)
    v_mov_b32 v4, v3
    v_add_u32_dpp v4, v4, v4 row_shr:1 row_mask:0xf bank_mask:0xf bound_ctrl:0
    v_add_u32_dpp v4, v4, v4 row_shr:2 row_mask:0xf bank_mask:0xf bound_ctrl:0
    v_add_u32_dpp v4, v4, v4 row_shr:4 row_mask:0xf bank_mask:0xf bound_ctrl:0
    v_add_u32_dpp v4, v4, v4 row_shr:8 row_mask:0xf bank_mask:0xf bound_ctrl:0
    v_readlane_b32 s{sT+4}, v4, 15
    s_cmp_ge_u32 s{sT+4}, 256
    s_cbranch_scc1 {name}_rgot
    s_cmp_eq_u32 s{sBUD}, 0
    s_cbranch_scc1 {name}_rgot
    s_sub_u32 s{sBUD}, s{sBUD}, 1
    s_branch {name}_rspin
    {name}_rgot:
    v_sub_u32 v4, v4, v3
    v_cmp_le_u32 vcc, 32, v3
    v_readlane_b32 s{sT+4}, v4, s{sT}
    s_and_b32 s{sT+5}, vcc_lo, 15
    s_add_u32 s{sT+4}, s{sT+4}, s{sT+3}
    s_cmp_eq_u32 s{sT+5}, 15
    s_cselect_b32 s{sMODE}, 1, 0
    s_cbranch_scc1 {name}_rfast
    s_lshr_b32 s{sX}, s{sT+4}, 5
    s_and_b32 s{sJ}, s{sT+4}, 31
    s_sub_u32 s{sG}, s{sT+4}, 128
    s_cselect_b32 s{sG}, -1, s{sG}
    s_branch {name}_rpub
    {name}_rfast:
    s_mov_b32 s{sX}, s{sT}
    s_mov_b32 s{sJ}, s{sT+3}
    s_add_u32 s{sT+5}, s{sT}, 1
    s_min_u32 s{sT+5}, s{sT+5}, 4
    s_lshl_b32 s{sT+5}, s{sT+5}, 5
    s_sub_u32 s{sG}, s{sT+4}, s{sT+5}
    s_cmp_lt_u32 s{sT}, 4
    s_cselect_b32 s{sT+5}, 32, 0
    s_cmp_lt_u32 s{sT+3}, s{sT+5}
    s_cselect_b32 s{sG}, -1, s{sG}
    {name}_rpub:
    v_mov_b32 v4, s{sX}
    v_mov_b32 v5, s{sJ}
    v_mov_b32 v6, s{sMODE}
    v_mov_b32 v7, s{sG}
    v_mov_b32 v1, 0
    ds_write_b128 v1, v[4:7]
    s_waitcnt lgkmcnt(0)
    {name}_rwait:
    s_barrier
    v_mov_b32 v1, 0
    ds_read_b128 v[4:7], v1
    s_waitcnt lgkmcnt(0)
    v_readfirstlane_b32 s{sX}, v4
    v_readfirstlane_b32 s{sJ}, v5
    v_readfirstlane_b32 s{sMODE}, v6
    v_readfirstlane_b32 s{sG}, v7
    s_and_b32 s{sX}, s{sX}, 3
    s_and_b32 s{sJ}, s{sJ}, 31
    s_barrier
    """)

vL = 0
vCOL, vG = 1, 2
vIDX = 3
vSENT = 4
vA = 8
vQ0, vQ1, vK0, vK1, vV0, vV1, vO0, vO1 = 24, 28, 32, 36, 40, 44, 48, 52
vMEMR, vOR, vPW, vXW, vLIN, vOPW, vOPR = 56, 57, 58, 59, 60, 61, 62
vA1, vA2, vA3, vA4, vTOK = 63, 64, 65, 66, 67
vT = 68
vKT = 72
vP = 80
vX = 112
vD = 116
vR = 128
vB0, vB1 = 132, 136
vONE = 140
vPB = 144
L_X, L_V, L_O = 0, 16384, 24576
XROW = 36
CSC = 0x3e0293ee

def vr(b, n=4): return f"v[{b}:{b+n-1}]"
def ar(b, n=8): return f"a[{b}:{b+n-1}]"

def rec_prologue(a, name):
    a(f"""
    v_and_b32 v{vCOL}, 15, v0
    v_lshrrev_b32 v{vG}, 4, v0
    s_lshl_b32 s{sT}, s{sX}, 5
    s_add_u32 s{sT}, s{sT}, s{sJ}            ; cu = 32x + j
    s_lshl_b32 s{sT+1}, s{sW}, 15
    v_lshrrev_b32 v8, 2, v0
    v_and_b32 v9, 3, v0
    v_lshlrev_b32 v9, 4, v9
    v_lshl_add_u32 v10, v8, 13, v9
    v_lshl_add_u32 v11, v8, 11, v9
    s_lshl_b32 s{sT+2}, s{sW}, 21
    s_lshl_b32 s{sT+3}, s{sT}, 6
    s_add_u32 s{sT+2}, s{sT+2}, s{sT+3}
    s_lshl_b32 s{sT+3}, s{sX}, 21
    s_lshl_b32 s{sT+4}, s{sW}, 19
    s_add_u32 s{sT+3}, s{sT+3}, s{sT+4}
    s_lshl_b32 s{sT+4}, s{sJ}, 6
    s_add_u32 s{sT+3}, s{sT+3}, s{sT+4}
    v_lshrrev_b32 v12, 2, v{vCOL}            ; r
    v_and_b32 v13, 3, v0
    v_lshlrev_b32 v13, 3, v13
    v_add_u32 v13, s{sT+1}, v13
    v_lshl_add_u32 v14, v{vG}, 3, v12
    v_lshl_add_u32 v14, v14, 6, v13          ; qkv
    v_and_b32 v15, 1, v{vG}
    v_lshlrev_b32 v15, 4, v15
    v_lshrrev_b32 v16, 1, v{vG}
    v_lshl_add_u32 v15, v16, 3, v15          ; e0
    v_and_b32 v16, 1, v12
    v_add_u32 v15, v15, v16
    v_lshrrev_b32 v16, 1, v12
    v_lshl_add_u32 v15, v16, 2, v15
    v_lshl_add_u32 v15, v15, 6, v13          ; wo
    """)
    def dma(karg, nbytes, region, vaddr, sbase, step):
        srd(a, T0, karg, nbytes)
        a(f"s_add_u32 m0, s{sT+1}, {region}\ns_mov_b32 s{sT+5}, s{sbase}\ns_waitcnt lgkmcnt(0)")
        for i in range(16):
            a(f"buffer_load_dwordx4 v{vaddr}, s[{T0}:{T0+3}], s{sT+5} offen lds")
            if i < 15: a(f"s_add_u32 m0, m0, 1024\ns_add_u32 s{sT+5}, s{sT+5}, {step}")
    def trr(abase, region, vaddr, bstep):
        for T in range(2):
            for s in range(4):
                for hh in range(2):
                    for b in range(2):
                        r = abase + T * 32 + s * 8 + hh * 4 + b * 2
                        a(f"ds_read_b64_tr_b16 a[{r}:{r+1}], v{vaddr} offset:{region + (64*s + 32*hh + bstep*b) * 64 + 32 * T}")
                a("s_waitcnt lgkmcnt(4)")
        a("s_waitcnt lgkmcnt(0)")
    W8 = 8 * MB
    dma(A_WQ, W8, 0, 10, sT + 2, 16 * 8192)
    dma(A_WK, W8, 16384, 10, sT + 2, 16 * 8192)
    a("s_waitcnt vmcnt(16)"); trr(0, 0, 14, 4)
    dma(A_WV, W8, 0, 10, sT + 2, 16 * 8192)
    a("s_waitcnt vmcnt(16)"); trr(64, 16384, 14, 4)
    dma(A_WO, W8, 16384, 11, sT + 3, 16 * 2048)
    a("s_waitcnt vmcnt(16)"); trr(128, 0, 14, 4)
    a("s_waitcnt vmcnt(0)"); trr(192, 16384, 15, 2)
    srd(a, T0, A_MEM0, 16384)
    a(f"""
    v_and_b32 v{vT}, 7, v0
    v_lshlrev_b32 v{vT}, 11, v{vT}
    v_lshl_add_u32 v{vT}, v{vG}, 5, v{vT}
    v_bfe_u32 v{vT+1}, v0, 3, 1
    v_lshl_add_u32 v{vT}, v{vT+1}, 2, v{vT}
    s_lshl_b32 s{sT+5}, s{sW}, 9
    s_waitcnt lgkmcnt(0)
    """)
    for s in range(4):
        for t in range(4):
            a(f"buffer_load_dword v{vA+4*s+t}, v{vT}, s[{T0}:{T0+3}], s{sT+5} offen offset:{128*s+8*t}")
    a(f"""
    v_mov_b32 v{vIDX}, 0x4444
    v_mov_b32 v{vT}, 0xeeee
    v_cmp_le_u32 vcc, 8, v{vCOL}
    v_cndmask_b32 v{vIDX}, v{vIDX}, v{vT}, vcc
    """)
    for i in range(4):
        a(f"v_mov_b32 v{vSENT+i}, -1\nv_mov_b32 v{vONE+i}, 0x3f803f80\nv_mov_b32 v{vR+i}, 0\nv_mov_b32 v{vB0+i}, 0\nv_mov_b32 v{vB1+i}, 0")
    for r in range(vQ0, vO1 + 4): a(f"v_mov_b32 v{r}, 0")
    a(f"""
    v_lshlrev_b32 v{vLIN}, 4, v0             ; lane*16
    s_lshl_b32 s{sT+1}, s{sX}, 14
    s_lshl_b32 s{sT+2}, s{sW}, 12
    s_add_u32 s{sT+2}, s{sT+2}, s{sT+1}
    v_add_u32 v{vMEMR}, s{sT+2}, v{vLIN}
    v_add_u32 v{vOR}, {R_O}, v{vMEMR}
    s_lshl_b32 s{sT+2}, s{sJ}, 12
    s_lshl_b32 s{sT+3}, s{sX}, 10
    s_add_u32 s{sT+2}, s{sT+2}, s{sT+3}
    s_lshl_b32 s{sT+3}, s{sW}, 8
    s_add_u32 s{sT+2}, s{sT+2}, s{sT+3}
    s_add_u32 s{sT+2}, s{sT+2}, {R_PART}
    v_lshl_add_u32 v{vPW}, v0, 2, s{sT+2}
    v_and_b32 v{vT}, 1, v{vG}
    v_mul_u32_u24 v{vT}, {4*XROW*4}, v{vT}
    v_lshrrev_b32 v{vT+1}, 1, v{vG}
    v_lshl_add_u32 v{vT+1}, v{vT+1}, 4, v{vCOL}
    v_lshl_add_u32 v{vT}, v{vT+1}, 2, v{vT}
    s_mul_i32 s{sT+2}, s{sW}, {16*XROW*4}
    v_add_u32 v{vXW}, s{sT+2}, v{vT}
    v_lshrrev_b32 v{vT}, 3, v{vCOL}
    v_lshlrev_b32 v{vT}, 5, v{vT}
    v_xor_b32 v{vT}, v{vT}, v{vLIN}
    s_lshl_b32 s{sT+2}, s{sW}, 10
    v_add_u32 v{vOPW}, s{sT+2}, v{vT}
    v_bfe_u32 v{vT}, v0, 1, 2                ; t = 2half + (i>>1)
    v_lshlrev_b32 v{vT+1}, 2, v{vT}
    v_and_b32 v{vT+2}, 1, v0
    v_add_u32 v{vT+1}, v{vT+1}, v{vT+2}      ; 4t + u
    s_and_b32 s{sT+2}, s{sW}, 1
    s_lshl_b32 s{sT+2}, s{sT+2}, 1
    v_and_b32 v{vT}, 2, v{vT}                ; t1<<1
    v_xor_b32 v{vT}, s{sT+2}, v{vT}
    v_add_u32 v{vT+1}, v{vT+1}, v{vT}        ; n'
    v_bfe_u32 v{vT}, v0, 3, 2
    v_lshl_add_u32 v{vT+1}, v{vT+1}, 2, v{vT}
    v_lshrrev_b32 v{vT}, 5, v0
    v_lshl_add_u32 v{vT+1}, v{vT}, 6, v{vT+1}
    s_lshr_b32 s{sT+2}, s{sW}, 1
    s_lshl_b32 s{sT+2}, s{sT+2}, 9
    v_lshl_add_u32 v{vOPR}, v{vT+1}, 2, s{sT+2}
    s_mov_b32 s{sSTEP}, 0
    s_mov_b32 s{sTOK}, 0
    s_mov_b32 s{sKM}, 0
    s_mov_b32 s{sCUR}, {RING_OFF}
    s_mov_b32 s{sPREV}, {RING_OFF + 3 * SLOT}
    s_mov_b32 s{sRST}, {RING_OFF + 2 * SLOT}
    v_and_b32 v{vT+2}, 1, v{vG}              ; hi
    v_lshrrev_b32 v{vT+3}, 1, v{vG}          ; g>>1
    """)

def kv_wait(a, lab):
    a(f"v_mov_b32 v{vT+1}, 0")
    a.lab(lab)
    a(f"""buffer_load_dword v{vT}, v{vT+1}, s[{WS}:{WS+3}], s{sKVF} offen sc1
    s_waitcnt vmcnt(0)
    v_readfirstlane_b32 s{sT+6}, v{vT}
    s_cmp_ge_u32 s{sT+6}, 8
    s_cbranch_scc1 {lab}_d
    s_cmp_eq_u32 s{sBUD}, 0
    s_cbranch_scc1 {lab}_d
    s_sub_u32 s{sBUD}, s{sBUD}, 1
    s_branch {lab}""")
    a.lab(lab + "_d")

def role_prologue(a, w, kv=None):
    cu = sT
    if kv and w > 0:
        a(f"s_lshr_b32 s{sKVF}, s{cu}, 3\ns_lshl_b32 s{sKVF}, s{sKVF}, 6\ns_add_u32 s{sKVF}, s{sKVF}, {CTRL_OFF + C_KV}")
        kv_wait(a, f"{kv}_kv0_{w}")
    sel = lambda dst, cond: a(f"v_mov_b32 v{vT}, {OOB}\n{cond}\nv_cndmask_b32 v{dst}, v{vT}, v{dst}, vcc")
    if w < 3:
        a(f"""
        v_mul_u32_u24 v{vA1}, {XROW*4}, v{vCOL}
        v_lshl_add_u32 v{vA1}, v{vT+3}, 6, v{vA1}
        v_lshl_add_u32 v{vA1}, v{vT+2}, 4, v{vA1}
        s_mul_i32 s{sT+2}, s{cu}, 1280
        s_add_u32 s{sT+2}, s{sT+2}, {R_SP + (1024 - 256 if w == 0 else 512 * (w - 1))}
        v_lshl_add_u32 v{vA2}, v{vG}, 3, v{vCOL}
        v_lshl_add_u32 v{vA2}, v{vA2}, 4, s{sT+2}
        """)
        sel(vA2, f"v_cmp_gt_u32 vcc, 8, v{vCOL}")
        if w == 0:
            sel(vA2, f"v_cmp_le_u32 vcc, 32, v0")
            a(f"""
            s_lshl_b32 s{sT+2}, s{cu}, 9
            s_add_u32 s{sT+2}, s{sT+2}, {KM_OFF - 128}
            v_lshlrev_b32 v{vA3}, 7, v{vG}
            v_lshl_add_u32 v{vA3}, v{vCOL}, 4, v{vA3}
            v_add_u32 v{vA3}, s{sT+2}, v{vA3}
            """)
            sel(vA3, f"v_cmp_le_u32 vcc, 8, v{vCOL}")
            a(f"""
            s_lshl_b32 s{sT+2}, s{sJ}, 12
            s_add_u32 s{sT+2}, s{sT+2}, {R_PART}
            v_add_u32 v{vA4}, s{sT+2}, v{vLIN}
            s_lshl_b32 s{sT+2}, s{sJ}, 9
            s_add_u32 s{sT+2}, s{sT+2}, s{sT+1}
            v_lshl_add_u32 v{vTOK}, v0, 3, s{sT+2}
            """)
        else:
            a(f"""
            s_lshl_b32 s{sT+2}, s{cu}, 11
            s_add_u32 s{sT+2}, s{sT+2}, {K_OFF + 256 * (w - 1)}
            v_lshlrev_b32 v{vTOK}, 9, v{vG}
            v_lshl_add_u32 v{vTOK}, v{vCOL}, 4, v{vTOK}
            v_add_u32 v{vTOK}, s{sT+2}, v{vTOK}
            buffer_load_dwordx4 {vr(vKT)}, v{vTOK}, s[{WS}:{WS+3}], s{sTOK} offen sc1
            s_lshl_b32 s{sT+2}, s{cu}, 2
            s_add_u32 s{sT+2}, s{sT+2}, {CTRL_OFF + C_PROG}
            v_mov_b32 v{vA3}, s{sT+2}
            """)
            sel(vA3, "v_cmp_eq_u32 vcc, 0, v0")
    else:
        a(f"""
        s_and_b32 s{sT+2}, s{cu}, 0x7c
        s_mul_i32 s{sT+2}, s{sT+2}, 1280
        s_add_u32 s{sT+2}, s{sT+2}, {R_SP}
        v_lshl_add_u32 v{vA1}, v{vG}, 3, v{vCOL}
        v_lshlrev_b32 v{vA1}, 4, v{vA1}
        v_add_u32 v{vA2}, 512, v{vA1}
        v_lshl_add_u32 v{vT}, v{vT+2}, 3, v{vCOL}
        v_lshlrev_b32 v{vT}, 4, v{vT}
        v_add_u32 v{vT}, {1024 - 128}, v{vT}
        v_cmp_gt_u32 vcc, 8, v{vCOL}
        v_cndmask_b32 v{vA1}, v{vT}, v{vA1}, vcc
        v_cndmask_b32 v{vA2}, v{vT}, v{vA2}, vcc
        v_add_u32 v{vA1}, s{sT+2}, v{vA1}
        v_add_u32 v{vA2}, s{sT+2}, v{vA2}
        ; o write
        s_lshl_b32 s{sT+2}, s{sJ}, 9
        s_add_u32 s{sT+2}, s{sT+2}, s{sT+1}
        s_add_u32 s{sT+2}, s{sT+2}, {R_O}
        v_lshl_add_u32 v{vA3}, v{vG}, 3, v{vCOL}       ; (g>>1)*16 + (g&1)*8 + q
        v_lshl_add_u32 v{vA3}, v{vA3}, 4, s{sT+2}
        """)
        sel(vA3, f"v_cmp_gt_u32 vcc, 8, v{vCOL}")
        a(f"""
        s_lshl_b32 s{sT+2}, s{cu}, 9
        s_add_u32 s{sT+2}, s{sT+2}, {VM_OFF}
        v_lshl_add_u32 v{vA4}, v{vT+3}, 4, v{vCOL}
        v_lshlrev_b32 v{vA4}, 3, v{vA4}
        v_lshl_add_u32 v{vA4}, v{vT+2}, 8, v{vA4}
        v_add_u32 v{vA4}, s{sT+2}, v{vA4}
        s_lshl_b32 s{sT+2}, s{cu}, 11
        s_add_u32 s{sT+2}, s{sT+2}, {VT_OFF}
        v_lshlrev_b32 v{vTOK}, 9, v{vG}
        v_lshl_add_u32 v{vTOK}, v{vCOL}, 4, v{vTOK}
        v_add_u32 v{vTOK}, s{sT+2}, v{vTOK}
        buffer_load_dwordx4 {vr(vKT)}, v{vTOK}, s[{WS}:{WS+3}], s{sTOK} offen sc1
        buffer_load_dwordx4 {vr(vKT+4)}, v{vTOK}, s[{WS}:{WS+3}], s{sTOK} offen offset:256 sc1
        """)
    a("s_waitcnt vmcnt(0)\ns_barrier")

def rec_loop(a, name, w, fast, trace=False, nsteps=64, kv=False):
    p = f"{name}_{'f' if fast else 's'}{w}"
    loc = "" if fast else " sc1"
    ws = f"s[{WS}:{WS+3}]"
    trn = [0]
    def stamp():
        if not trace: return
        i = trn[0]; trn[0] += 1
        a(f"s_memtime s[36:37]\ns_waitcnt lgkmcnt(0)\ns_sub_u32 s38, s36, s39\ns_add_u32 s{sTR+i}, s{sTR+i}, s38\ns_mov_b32 s39, s36")
    def retry(lab, done):
        a(f"s_cmp_eq_u32 s{sBUD}, 0\ns_cbranch_scc1 {done}\ns_sub_u32 s{sBUD}, s{sBUD}, 1\ns_branch {lab}")
    def gather(tag, vaddr, soff):
        lab, done = f"{p}_{tag}", f"{p}_{tag}d"
        a.lab(lab)
        for s in range(4):
            a(f"buffer_load_dwordx4 {vr(vA+4*s)}, v{vaddr}, {ws}, s{soff} offen offset:{1024*s} sc1")
        a(f"""s_waitcnt vmcnt(3)
        v_max_u32 v{vT}, v{vA}, v{vA+2}
        s_waitcnt vmcnt(2)
        v_max3_u32 v{vT}, v{vT}, v{vA+4}, v{vA+6}
        s_waitcnt vmcnt(1)
        v_max3_u32 v{vT}, v{vT}, v{vA+8}, v{vA+10}
        s_waitcnt vmcnt(0)
        v_max3_u32 v{vT}, v{vT}, v{vA+12}, v{vA+14}
        v_cmp_eq_u32 vcc, -1, v{vT}
        s_cbranch_vccz {done}""")
        retry(lab, done); a.lab(done)
    def smf(acc, wb, T, s): a(f"v_smfmac_f32_16x16x64_bf16 {vr(acc)}, {vr(vA+4*s)}, {ar(wb+32*T+8*s)}, v{vIDX}")
    def fold(t0, t1):
        return [f"v_permlane32_swap_b32 v{t0+i}, v{t1+i}" for i in range(4)] + [f"v_add_f32 v{t0+i}, v{t0+i}, v{t1+i}" for i in range(4)]
    def xw(t0, rowoff):
        return [f"ds_write2_b32 v{vXW}, v{t0+i}, v{t0+i+1} offset0:{(rowoff+i)*XROW - (0)} offset1:{(rowoff+i+1)*XROW}" for i in (0, 2)]
    if trace:
        for i in range(16): a(f"s_mov_b32 s{sTR+i}, 0")
        a("s_memtime s[36:37]\ns_waitcnt lgkmcnt(0)\ns_mov_b32 s39, s36")
    a(f"s_branch {p}_qkv")
    a.lab(f"{p}_top")
    gather("pm", vMEMR, sPREV)
    a.lab(f"{p}_qkv")
    stamp()
    for s in range(4):
        smf(vQ0, 0, 0, s); smf(vQ1, 0, 1, s)
    fq = fold(vQ0, vQ1) + xw(vQ0, 0)
    k = 0
    for s in range(4):
        for T in range(2):
            smf(vK0 + 4 * T, 64, T, s)
            if 2 * s + T >= 2:
                for _ in range(2):
                    if k < len(fq): a(fq[k]); k += 1
    assert k == len(fq)
    smf(vV0, 128, 0, 0); smf(vV1, 128, 1, 0)
    a(f"v_add_u32 v{vT}, {8*XROW*4}, v{vXW}")
    for x in fold(vK0, vK1): a(x)
    for i in (0, 2): a(f"ds_write2_b32 v{vT}, v{vK0+i}, v{vK0+i+1} offset0:{i*XROW} offset1:{(i+1)*XROW}")
    a("s_waitcnt lgkmcnt(0)\ns_barrier")
    if w < 3:
        for pw in range(4):
            for b in range(2):
                a(f"ds_read_b128 {vr(vP+8*pw+4*b)}, v{vA1} offset:{L_X + pw*16*XROW*4 + 32*b}")
    for s in range(1, 4):
        smf(vV0, 128, 0, s); smf(vV1, 128, 1, s)
    if w < 3:
        a("s_waitcnt lgkmcnt(4)")
        for i in range(8): a(f"v_add_f32 v{vP+i}, v{vP+i}, v{vP+8+i}")
        a("s_waitcnt lgkmcnt(0)")
        for i in range(8): a(f"v_add_f32 v{vP+16+i}, v{vP+16+i}, v{vP+24+i}")
        for i in range(0, 8, 2):
            a(f"v_add_f32 v{vP+i}, v{vP+i}, v{vP+16+i}\nv_add_f32 v{vP+i+1}, v{vP+i+1}, v{vP+17+i}")
            a(f"v_cvt_pk_bf16_f32 v{vX+i//2}, v{vP+i}, v{vP+i+1}")
        a(f"v_mfma_f32_16x16x32_bf16 {vr(vD)}, {vr(vX if w == 0 else vKT)}, {vr(vX)}, 0")
        for x in fold(vV0, vV1): a(x)
        a(f"buffer_store_dwordx4 {vr(vD)}, v{vA2}, {ws}, s{sCUR} offen{loc}")
        if w == 0: a(f"buffer_store_dwordx4 {vr(vX)}, v{vA3}, {ws}, s{sKM} offen sc1")
        a(f"ds_write_b128 v{vLIN}, {vr(vV0)} offset:{L_V + 1024*w}")
        stamp()
        a("s_waitcnt lgkmcnt(0)\ns_barrier")
        for r in range(vQ0, vV1 + 4): a(f"v_mov_b32 v{r}, 0")
        a(f"s_cmp_eq_u32 s{sSTEP}, {nsteps-1}\ns_cbranch_scc1 {p}_fin")
        a("s_barrier")
    else:
        for x in fold(vV0, vV1): a(x)
        for r in range(vQ0, vK1 + 4): a(f"v_mov_b32 v{r}, 0")
        a("s_barrier")
        for pw in range(3): a(f"ds_read_b128 {vr(vP+4*pw)}, v{vLIN} offset:{L_V + 1024*pw}")
        a("s_waitcnt lgkmcnt(1)")
        for i in range(4): a(f"v_add_f32 v{vP+i}, v{vP+i}, v{vP+4+i}")
        a("s_waitcnt lgkmcnt(0)")
        for i in range(4): a(f"v_add_f32 v{vP+8+i}, v{vP+8+i}, v{vV0+i}")
        for i in range(4): a(f"v_add_f32 v{vP+i}, v{vP+i}, v{vP+8+i}")
        a(f"v_cvt_pk_bf16_f32 v{vR}, v{vP}, v{vP+1}\nv_cvt_pk_bf16_f32 v{vR+1}, v{vP+2}, v{vP+3}")
        a(f"buffer_store_dwordx2 {vr(vR,2)}, v{vA4}, {ws}, s{sKM} offen sc1")
        for r in range(vV0, vV1 + 4): a(f"v_mov_b32 v{r}, 0")
        a(f"s_cmp_eq_u32 s{sSTEP}, {nsteps-1}\ns_cbranch_scc1 {p}_fin")
        stamp()
        lab, done = f"{p}_ps", f"{p}_psd"
        a.lab(lab)
        for pw in range(4):
            a(f"buffer_load_dwordx4 {vr(vP+8*pw)}, v{vA1}, {ws}, s{sCUR} offen offset:{1280*pw} sc1")
            a(f"buffer_load_dwordx4 {vr(vP+8*pw+4)}, v{vA2}, {ws}, s{sCUR} offen offset:{1280*pw} sc1")
        a("s_waitcnt vmcnt(4)")
        for i in range(8): a(f"v_add_f32 v{vP+i}, v{vP+i}, v{vP+8+i}")
        a("s_waitcnt vmcnt(2)")
        for i in range(8): a(f"v_add_f32 v{vP+i}, v{vP+i}, v{vP+16+i}")
        a("s_waitcnt vmcnt(0)")
        for i in (0, 2, 4, 6): a(f"v_add_f32 v{vP+i}, v{vP+i}, v{vP+24+i}")
        a(f"v_cmp_u_f32 vcc, v{vP}, v{vP+2}\nv_cmp_u_f32 s[{sT+6}:{sT+7}], v{vP+4}, v{vP+6}")
        for i in (1, 3, 5, 7): a(f"v_add_f32 v{vP+i}, v{vP+i}, v{vP+24+i}")
        a(f"s_or_b64 vcc, vcc, s[{sT+6}:{sT+7}]\ns_cbranch_scc0 {done}")
        retry(lab, done); a.lab(done)
        stamp()
        m, t = vT, vT + 1
        a(f"""v_max3_f32 v{m}, v{vP}, v{vP+1}, v{vP+2}
        v_max3_f32 v{t}, v{vP+3}, v{vP+4}, v{vP+5}
        v_max3_f32 v{m}, v{m}, v{vP+6}, v{vP+7}
        v_max_f32 v{m}, v{m}, v{t}
        v_max_f32_dpp v{m}, v{m}, v{m} row_ror:8 row_mask:0xf bank_mask:0xf
        v_mov_b32 v{t}, v{m}
        v_permlane16_swap_b32 v{m}, v{t}
        v_max_f32 v{m}, v{m}, v{t}
        v_mov_b32 v{t}, v{m}
        v_permlane32_swap_b32 v{m}, v{t}
        v_max_f32 v{m}, v{m}, v{t}
        s_mov_b32 s{sT+6}, {CSC}
        v_mul_f32 v{m}, s{sT+6}, v{m}""")
        for i in range(8): a(f"v_fma_f32 v{vP+i}, v{vP+i}, s{sT+6}, -v{m}")
        for i in range(8): a(f"v_exp_f32 v{vP+i}, v{vP+i}")
        for i in range(4): a(f"v_cvt_pk_bf16_f32 v{vPB+i}, v{vP+2*i}, v{vP+2*i+1}")
        a(f"v_mfma_f32_16x16x32_bf16 {vr(vD+8)}, {vr(vONE)}, {vr(vPB)}, 0")
        for i in range(2): a(f"v_mov_b32_dpp v{vB0+i}, v{vPB+i} row_ror:8 row_mask:0x3 bank_mask:0xf")
        a(f"v_mfma_f32_16x16x32_bf16 {vr(vD)}, {vr(vKT)}, {vr(vPB)}, 0")
        a(f"v_mfma_f32_16x16x32_bf16 {vr(vD+8)}, {vr(vONE)}, {vr(vB0)}, {vr(vD+8)}")
        for i in range(2): a(f"v_mov_b32_dpp v{vB1+i}, v{vPB+i} row_ror:8 row_mask:0xc bank_mask:0xf")
        a(f"v_mfma_f32_16x16x32_bf16 {vr(vD+4)}, {vr(vKT+4)}, {vr(vPB)}, 0")
        a(f"v_mfma_f32_16x16x32_bf16 {vr(vD)}, {vr(vR)}, {vr(vB0)}, {vr(vD)}")
        a(f"v_mfma_f32_16x16x32_bf16 {vr(vD+4)}, {vr(vR)}, {vr(vB1)}, {vr(vD+4)}")
        a(f"v_rcp_f32 v{m}, v{vD+8}")
        for i in range(0, 8, 2):
            a(f"v_mul_f32 v{vD+i}, v{vD+i}, v{m}\nv_mul_f32 v{vD+i+1}, v{vD+i+1}, v{m}")
            a(f"v_cvt_pk_bf16_f32 v{vX+i//2}, v{vD+i}, v{vD+i+1}")
        a(f"buffer_store_dwordx4 {vr(vX)}, v{vA3}, {ws}, s{sCUR} offen{loc}")
        stamp()
        a("s_barrier")
    gather("po", vOR, sCUR)
    stamp()
    for s in range(4):
        smf(vO0, 192, 0, s); smf(vO1, 192, 1, s)
    for x in fold(vO0, vO1): a(x)
    a(f"ds_write_b128 v{vOPW}, {vr(vO0)} offset:{L_O}\ns_waitcnt lgkmcnt(0)\ns_barrier")
    for pw in range(4): a(f"ds_read_b32 v{vP+pw}, v{vOPR} offset:{L_O + 1024*pw}")
    a(f"""s_waitcnt lgkmcnt(2)
    v_add_f32 v{vP}, v{vP}, v{vP+1}
    s_waitcnt lgkmcnt(0)
    v_add_f32 v{vP+2}, v{vP+2}, v{vP+3}
    v_add_f32 v{vP}, v{vP}, v{vP+2}
    buffer_store_dword v{vP}, v{vPW}, {ws}, s{sCUR} offen sc1""")
    stamp()
    a(f"buffer_store_dword v{vSENT}, v{vPW}, {ws}, s{sRST} offen sc1")
    for r in range(vO0, vO1 + 4): a(f"v_mov_b32 v{r}, 0")
    a(f"s_add_u32 s{sTOK}, s{sTOK}, 262144\ns_add_u32 s{sKM}, s{sKM}, 65536\ns_add_u32 s{sSTEP}, s{sSTEP}, 1")
    if kv and w > 0:
        a(f"s_and_b32 s{sT+6}, s{sSTEP}, 7\ns_cbranch_scc1 {p}_kv_d\ns_add_u32 s{sKVF}, s{sKVF}, 1024")
        kv_wait(a, f"{p}_kv")
    if w < 3:
        a(f"buffer_store_dwordx4 {vr(vSENT)}, v{vA2}, {ws}, s{sRST} offen{loc}")
    if w in (1, 2):
        a(f"buffer_load_dwordx4 {vr(vKT)}, v{vTOK}, {ws}, s{sTOK} offen sc1")
    if w == 1:
        a(f"v_mov_b32 v{vT}, s{sSTEP}\nbuffer_store_dword v{vT}, v{vA3}, {ws}, 0 offen sc1")
    if w == 3:
        a(f"buffer_store_dwordx4 {vr(vSENT)}, v{vA3}, {ws}, s{sRST} offen{loc}")
        a(f"buffer_load_dwordx4 {vr(vKT)}, v{vTOK}, {ws}, s{sTOK} offen sc1")
        a(f"buffer_load_dwordx4 {vr(vKT+4)}, v{vTOK}, {ws}, s{sTOK} offen offset:256 sc1")
    if w == 0:
        a(f"buffer_store_dwordx2 {vr(vSENT,2)}, v{vTOK}, {ws}, s{sRST} offen{loc}")
        lab, done = f"{p}_pp", f"{p}_ppd"
        a.lab(lab)
        for x in range(4): a(f"buffer_load_dwordx4 {vr(vP+4*x)}, v{vA4}, {ws}, s{sCUR} offen offset:{1024*x} sc1")
        a("s_waitcnt vmcnt(2)")
        for i in range(4): a(f"v_add_f32 v{vP+i}, v{vP+i}, v{vP+4+i}")
        a("s_waitcnt vmcnt(0)")
        for i in range(4): a(f"v_add_f32 v{vP+8+i}, v{vP+8+i}, v{vP+12+i}")
        for i in range(4): a(f"v_add_f32 v{vP+i}, v{vP+i}, v{vP+8+i}")
        a(f"v_cmp_u_f32 vcc, v{vP}, v{vP+1}\nv_cmp_u_f32 s[{sT+6}:{sT+7}], v{vP+2}, v{vP+3}")
        a(f"v_cvt_pk_bf16_f32 v{vX}, v{vP}, v{vP+1}\nv_cvt_pk_bf16_f32 v{vX+1}, v{vP+2}, v{vP+3}")
        a(f"s_or_b64 vcc, vcc, s[{sT+6}:{sT+7}]\ns_cbranch_scc0 {done}")
        retry(lab, done); a.lab(done)
        a(f"buffer_store_dwordx2 {vr(vX,2)}, v{vTOK}, {ws}, s{sCUR} offen{loc}")
    a(f"""s_mov_b32 s{sPREV}, s{sCUR}
    s_and_b32 s{sT+6}, s{sSTEP}, 3
    s_lshl_b32 s{sCUR}, s{sT+6}, 19
    s_xor_b32 s{sRST}, s{sCUR}, {2*SLOT}
    s_add_u32 s{sCUR}, s{sCUR}, {RING_OFF}
    s_add_u32 s{sRST}, s{sRST}, {RING_OFF}""")
    stamp()
    a(f"s_barrier\ns_branch {p}_top")
    a.lab(f"{p}_fin")
    a("s_waitcnt vmcnt(0)\ns_barrier")
    if w == 1:
        a(f"v_mov_b32 v{vT}, {nsteps}\nbuffer_store_dword v{vT}, v{vA3}, {ws}, 0 offen sc1")
    if trace:
        a(f"s_lshl_b32 s{sT+6}, s{sX}, 5\ns_add_u32 s{sT+6}, s{sT+6}, s{sJ}\ns_lshl_b32 s{sT+6}, s{sT+6}, 8\ns_add_u32 s{sT+6}, s{sT+6}, {TRACE_OFF + 64*w}")
        a(f"v_mov_b32 v{vT+1}, 0")
        for i in range(12):
            a(f"v_mov_b32 v{vT}, s{sTR+i}\nbuffer_store_dword v{vT}, v{vT+1}, {ws}, s{sT+6} offen offset:{4*i}")
        a(f"v_mov_b32 v{vT}, s{sBUD}\nbuffer_store_dword v{vT}, v{vT+1}, {ws}, s{sT+6} offen offset:60")
    a(f"s_branch {name}_recdone")

def rec_all(a, name, trace=False, modes=(True, False), kv=False):
    rec_prologue(a, name)
    for w in range(3):
        a(f"s_cmp_eq_u32 s{sW}, {w}\ns_cbranch_scc1 {name}_rp{w}")
    for w in (3, 0, 1, 2):
        if w != 3: a.lab(f"{name}_rp{w}")
        role_prologue(a, w, name if kv else None)
        if len(modes) == 2:
            a(f"s_cmp_eq_u32 s{sMODE}, 0\ns_cbranch_scc1 {name}_safe{w}")
        rec_loop(a, name, w, modes[0], trace, kv=kv)
        if len(modes) == 2:
            a.lab(f"{name}_safe{w}")
            rec_loop(a, name, w, modes[1], trace, kv=kv)

def gen_rec_only(name, trace=False, force_safe=False, mfma_w=0):
    a = Asm(mfma_w)
    roles(a, name)
    if force_safe: a(f"s_mov_b32 s{sMODE}, 0")
    a(f"s_cmp_lg_u32 s{sG}, -1\ns_cbranch_scc1 {name}_end")
    rec_all(a, name, trace)
    a(f"{name}_recdone:\ns_waitcnt vmcnt(0)\n{name}_end:\ns_endpgm")
    return khead(name) + a.finish(True)
```

```python
import sys
from asmlib import *; from layout import *; from prep import gen_prep
from rec import roles, rec_all, sG
import g2
from g2 import T_K, T_V, T_QA, T_F1, T_F2, T_WO
KV = lambda b: [(T_K, 4 * b + i) for i in range(4)] + [(T_V, 4 * b + i) for i in range(4)]
QA = lambda b: [(T_QA, 4 * b + i) for i in range(4)]
F1 = lambda lo, hi: [(T_F1, i) for i in range(lo, hi)]
F2 = lambda lo, hi: [(T_F2, i) for i in range(lo, hi)]
WO = lambda lo, hi: [(T_WO, i) for i in range(lo, hi)]
def order0():
    t = sum((KV(b) for b in range(8)), []) + F1(0, 28) + QA(0) + F2(0, 16)
    for b in range(1, 8): t += QA(b) + WO(2 * b - 2, 2 * b)
    return t + WO(14, 16)
HEAD = open("cdna_kernels/" + KNAME + ".s.ref").read().split("; Override launch")[0]
def mk(trace=False, force_safe=False, mfma_w=0, table=None, rtrace=False):
    name = KNAME + "_kernel"; n = "m"
    a = Asm(mfma_w)
    roles(a, n)
    if force_safe: a("s_mov_b32 s15, 0")
    a(f"s_cmp_lg_u32 s{sG}, -1\ns_cbranch_scc1 {n}_gemm")
    rec_all(a, n, rtrace, kv=True)
    a.lab(n + "_gemm")
    g2.gemm_side(a, n, table or order0(), trace)
    a(f"{n}_recdone:\ns_waitcnt vmcnt(0)\n{n}_end:\ns_endpgm")
    s = HEAD + f"; @launch kernel=prep_kernel grid=(256,1,1) block=(256,1,1) lds=256\n; @launch kernel={name} grid=(256,1,1) block=(256,1,1) lds={g2.LDS_BYTES}\n"
    s += '.amdgcn_target "amdgcn-amd-amdhsa--gfx950"\n.text\n' + gen_prep("prep_kernel") + khead(name) + a.finish(True)
    s += '.section .rodata,"a"\n.p2align 6\n' + kdesc("prep_kernel", 128, 128) + ".p2align 6\n" + kdesc(name)
    return s
if __name__ == "__main__":
    out = sys.argv[1] if len(sys.argv) > 1 else "main.s"
    open(out, "w").write(mk(**(eval(sys.argv[2]) if len(sys.argv) > 2 else {})))
```

```python
from asmlib import *
from layout import *

WS = 4
sW, sG, sBUD = 14, 16, 17
sQ, sTK, sB, sN, sFLG, sNC = 18, 19, 20, 21, 22, 23
sWM, sWN = 32, 33
sSL = 34
SA, SB_ = 44, 48
sOA, sOB, sWB, sSTB, sCNT = 52, 53, 54, 55, 56
sRBA, sROW, sOUT, sTYP, sWA = 57, 58, 59, 60, 61
sE = 62
SO = 72
sTRC = 76
vAR, vBR, vDA, vDB, vE = 1, 2, 4, 6, 10
ACC0 = 16
PAD = 1088
aTAB = 255
L_TK = 135168
LDS_BYTES = L_TK + 64
ws = f"s[{WS}:{WS+3}]"
CSC = 0x3e0293ee
NEG = 0xff61b1e6
T_K, T_V, T_QA, T_F1, T_F2, T_WO, T_END = range(7)

class Cfg:
    def __init__(s, MT=8, NS=4, r0=0, rstep=2, sc1=False):
        s.MT, s.NT, s.NS, s.r0, s.rstep, s.sc1 = MT, 8, NS, r0, rstep, sc1
        s.BM, s.BN = 32 * MT, 256
        s.AB = s.BM * 64; s.BB = 16 * PAD; s.SB = s.AB + s.BB
        s.PA, s.PB = s.AB // 4096, 4
        s.P = s.PA + s.PB
        s.lds = s.SB * NS
        s.M = MT * s.NT
        s.FR = 4 * (MT + s.NT)
        s.nv = min(s.M, 60)
        assert NS % 2 == 0
        s.bias = []; b = 0
        mo = max(((MT - 1) >> 1) * 2048 + 256, 4 * PAD + 4 * 64)
        for k in range(NS):
            if k * s.SB + mo - b > 65535: b = k * s.SB
            s.bias.append(b)
    def acc(s, t, f):
        i = t * s.NT + f
        return ("v", ACC0 + 4 * i) if i < s.nv else ("a", 2 * s.FR + 4 * (i - s.nv))
    def accs(s, t, f):
        k, b = s.acc(t, f); return f"{k}[{b}:{b+3}]"
    def xf(s, p, t): return f"a[{s.FR*p+4*t}:{s.FR*p+4*t+3}]"
    def wf(s, p, f, h=None):
        b = s.FR * p + 4 * s.MT + 4 * f
        return f"a[{b}:{b+3}]" if h is None else f"a[{b+2*h}:{b+2*h+1}]"

def setup(a, c):
    a(f"""
    v_lshrrev_b32 v{vE}, 4, v0                    ; g
    v_and_b32 v{vE+1}, 15, v0
    s_mul_i32 s{sE}, s{sWM}, {c.MT // 2 * 2048}
    v_lshl_add_u32 v{vAR}, v{vE}, 9, s{sE}
    v_lshl_add_u32 v{vAR}, v{vE+1}, 4, v{vAR}
    v_lshrrev_b32 v{vE+1}, 5, v0
    v_lshlrev_b32 v{vE+1}, 4, v{vE+1}
    v_and_b32 v{vE}, 1, v{vE}
    v_lshl_add_u32 v{vE+1}, v{vE}, 2, v{vE+1}
    v_bfe_u32 v{vE}, v0, 2, 2
    v_add_u32 v{vE+1}, v{vE+1}, v{vE}             ; k row
    v_bfe_u32 v{vE+2}, v0, 1, 1
    v_lshlrev_b32 v{vE+2}, 5, v{vE+2}
    v_and_b32 v{vE+3}, 1, v0
    v_lshl_add_u32 v{vE+2}, v{vE+3}, 3, v{vE+2}
    s_mov_b32 s{sE}, {PAD}
    v_lshrrev_b32 v{vE+3}, 1, v{vE+1}
    v_mad_u32_u24 v{vE+2}, v{vE+3}, s{sE}, v{vE+2}
    v_and_b32 v{vE+3}, 1, v{vE+1}
    v_lshl_add_u32 v{vE+2}, v{vE+3}, 9, v{vE+2}
    v_lshl_add_u32 v{vBR}, v{vE+3}, 4, v{vE+2}
    s_lshl_b32 s{sE}, s{sWN}, 8
    s_add_u32 s{sE}, s{sE}, {c.AB}
    v_add_u32 v{vBR}, s{sE}, v{vBR}
    v_xor_b32 v{vBR+1}, 16, v{vBR}
    s_mul_i32 s{sWA}, s{sW}, {c.PA * 1024}
    s_mul_i32 s{sWB}, s{sW}, {c.PB * PAD}
    s_add_u32 s{sWB}, s{sWB}, {c.AB}
    s_mul_i32 s{sE}, s{sW}, {c.PA // 2}
    s_mul_i32 s{sE}, s{sE}, s{sRBA}
    v_lshl_add_u32 v{vDA}, v0, 4, s{sE}
    """)
    if c.PA == 4:
        a(f"s_sub_u32 s{sE}, s{sRBA}, 2048\nv_add_u32 v{vDA+1}, s{sE}, v{vDA}")
    a(f"""
    v_lshrrev_b32 v{vE}, 5, v0
    v_and_b32 v{vE+1}, 31, v0
    v_xor_b32 v{vE+1}, v{vE+1}, v{vE}
    v_lshlrev_b32 v{vE+1}, 4, v{vE+1}
    s_lshl_b32 s{sE}, s{sW}, 3
    v_add_u32 v{vE}, s{sE}, v{vE}
    v_mad_u32_u24 v{vDB}, v{vE}, s{sROW}, v{vE+1}
    s_lshl_b32 s{sE}, s{sROW}, 1
    s_sub_u32 s{sE}, s{sE}, {PAD}
    v_add_u32 v{vDB+1}, s{sE}, v{vDB}
    v_add_u32 v{vDB+2}, s{sE}, v{vDB+1}
    v_add_u32 v{vDB+3}, s{sE}, v{vDB+2}
    s_lshl_b32 s{sSTB}, s{sROW}, 5
    """)

def pieces(c, slot):
    out = []
    for i in range(c.PA):
        g = []
        if i == 0: g.append(f"s_add_u32 m0, s{sWA}, {slot * c.SB}")
        g.append(f"buffer_load_dwordx4 v{vDA + (i >> 1)}, s[{SA}:{SA+3}], s{sOA} offen offset:{1024*i}{' sc1' if c.sc1 else ''} lds")
        if i == c.PA - 1: g.append(f"s_add_u32 s{sOA}, s{sOA}, 2048")
        out.append(g)
    for i in range(c.PB):
        g = []
        if i == 0: g.append(f"s_add_u32 m0, s{sWB}, {slot * c.SB}")
        g.append(f"buffer_load_dwordx4 v{vDB + i}, s[{SB_}:{SB_+3}], s{sOB} offen offset:{PAD*i} lds")
        if i == c.PB - 1: g.append(f"s_add_u32 s{sOB}, s{sOB}, s{sSTB}")
        out.append(g)
    return out

def reads(c, slot, p):
    o = slot * c.SB - c.bias[slot]
    r = []
    xs = [f"ds_read_b128 {c.xf(p, t)}, v{vAR} offset:{o + (t >> 1) * 2048 + (t & 1) * 256}" for t in range(c.MT)]
    wsr = [[f"ds_read_b64_tr_b16 {c.wf(p, f, h)}, v{vBR+(f&1)} offset:{o + 4 * h * PAD + (f >> 1) * 64}" for h in range(2)] for f in range(c.NT)]
    for i in range(max(c.MT, c.NT)):
        if i < c.NT: r += wsr[i]
        if i < c.MT: r.append(xs[i])
    return r

def rebias(c, frm, to):
    d = c.bias[to] - c.bias[frm]
    if d == 0: return []
    return [f"v_add_u32 v{r}, {d & 0xffffffff}, v{r}" for r in (vAR, vBR, vBR + 1)]

def stage(a, c, slot, form, first=False, hook=None):
    p = slot & 1
    fill = [[] for _ in range(c.M)]
    nslot = (slot + 1) % c.NS
    items = reads(c, nslot, p ^ 1) + rebias(c, nslot, (nslot + 1) % c.NS)
    pc = pieces(c, slot)
    span = c.M - c.r0 - 4
    st = min(c.rstep, span / len(items))
    dg = [min(c.M - 1, (i * c.M) // c.P + 1) for i in range(len(pc))]
    for i, x in enumerate(items):
        fill[min(c.M - 1, c.r0 + int(i * st))].append(x)
    for gp, x in zip(dg, pc):
        if "m0" in x[0] and gp > 0 and not any(y.startswith("buffer") for y in fill[gp - 1] + fill[gp]):
            fill[gp - 1].append(x[0]); x = x[1:]
        fill[gp] += x[:1] if x[0].startswith("buffer") else x[:2]
        rest = x[1:] if x[0].startswith("buffer") else x[2:]
        fill[min(c.M - 1, gp + 1)] += rest
    a(f"s_waitcnt vmcnt({(c.NS - 2) * c.P}) lgkmcnt(0)\ns_barrier")
    if hook: a(hook)
    n = 0
    for t in range(c.MT):
        for f0 in range(c.NT):
            f = f0 if t % 2 == 0 else c.NT - 1 - f0
            A, B = (c.wf(p, f), c.xf(p, t)) if form == "T" else (c.xf(p, t), c.wf(p, f))
            a(f"v_mfma_f32_16x16x32_bf16 {c.accs(t, f)}, {A}, {B}, {'0' if first else c.accs(t, f)}")
            for x in fill[n]: a(x)
            n += 1

def cold_start(a, c):
    for s in range(c.NS):
        for g in pieces(c, s):
            for x in g: a(x)
    a(f"s_waitcnt vmcnt({(c.NS - 1) * c.P})\ns_barrier")
    for x in reads(c, 0, 0) + rebias(c, 0, 1): a(x)

def main_loop(a, c, form, tag):
    L = f"{tag}_l"
    hook = f"s_cmp_eq_u32 s{sCNT}, 1\ns_cselect_b32 s{SA+2}, 0, s{SA+2}\ns_cselect_b32 s{SB_+2}, 0, s{SB_+2}"
    stage(a, c, 0, form, True, hook)
    a(".p2align 3")
    a.lab(L)
    for s in range(1, c.NS): stage(a, c, s, form)
    a(f"s_sub_u32 s{sCNT}, s{sCNT}, 1\ns_cmp_eq_u32 s{sCNT}, 0\ns_cbranch_scc1 {tag}_x")
    stage(a, c, 0, form, False, hook)
    a(f"s_branch {L}")
    a.lab(f"{tag}_x")

class VM:
    def __init__(s, a): s.a = a; s.q = []
    def op(s, text, tag=None): s.a(text); s.q.append(tag)
    def wait(s, tag):
        idx = max(i for i, t in enumerate(s.q) if t == tag)
        s.a(f"s_waitcnt vmcnt({min(63, len(s.q) - 1 - idx)})")

def lane0(a, v, tmp):
    a(f"v_mov_b32 v{v}, {OOB}\nv_mov_b32 v{tmp}, 0\nv_cmp_eq_u32 vcc, 0, v0\nv_cndmask_b32 v{v}, v{v}, v{tmp}, vcc")

def poll(a, lab, soff, val, n=1, va=vE, vd=12):
    x = {1: "dword", 2: "dwordx2", 4: "dwordx4"}[n]
    d = f"v{vd}" if n == 1 else f"v[{vd}:{vd+n-1}]"
    a(f"v_mov_b32 v{va}, 0")
    a.lab(lab)
    a(f"buffer_load_{x} {d}, v{va}, {ws}, s{soff} offen sc1\ns_waitcnt vmcnt(0)")
    if n == 2: a(f"v_and_b32 v{vd+1}, 32, v{vd+1}\nv_lshlrev_b32 v{vd+1}, 1, v{vd+1}\nv_max_u32 v{vd}, v{vd}, v{vd+1}")
    if n == 4: a(f"v_min_u32 v{vd}, v{vd}, v{vd+1}\nv_min3_u32 v{vd}, v{vd}, v{vd+2}, v{vd+3}")
    a(f"""v_readfirstlane_b32 s{sE+9}, v{vd}
    s_cmp_ge_u32 s{sE+9}, {val}
    s_cbranch_scc1 {lab}_d
    s_cmp_eq_u32 s{sBUD}, 0
    s_cbranch_scc1 {lab}_d
    s_sub_u32 s{sBUD}, s{sBUD}, 1
    s_branch {lab}""")
    a.lab(lab + "_d")

def lanes_frag(a, v, tmp):
    a(f"v_lshrrev_b32 v{v}, 4, v0\nv_lshlrev_b32 v{v}, 9, v{v}\nv_and_b32 v{tmp}, 15, v0\nv_lshl_add_u32 v{v}, v{tmp}, 4, v{v}")
def lanes_vt(a, v, tmp):
    a(f"""v_lshrrev_b32 v{v}, 4, v0
    v_lshlrev_b32 v{v}, 9, v{v}
    v_bfe_u32 v{tmp}, v0, 3, 1
    v_lshl_add_u32 v{v}, v{tmp}, 8, v{v}
    v_and_b32 v{tmp}, 7, v0
    v_lshl_add_u32 v{v}, v{tmp}, 4, v{v}""")

def getreg(a, c, t, f, tmp):
    k, b = c.acc(t, f)
    if k == "v": return b
    for i in range(4): a(f"v_accvgpr_read_b32 v{tmp+i}, a{b+i}")
    return tmp

def pack(a, d, b0, b1):
    a(f"""v_cvt_pk_bf16_f32 v{d}, v{b0}, v{b0+1}
    v_cvt_pk_bf16_f32 v{d+1}, v{b0+2}, v{b0+3}
    v_cvt_pk_bf16_f32 v{d+2}, v{b1}, v{b1+1}
    v_cvt_pk_bf16_f32 v{d+3}, v{b1+2}, v{b1+3}""")

vTKT = 1
def take_ticket(a, lab):
    a(f"s_cmp_lg_u32 s{sW}, 0\ns_cbranch_scc1 {lab}")
    lane0(a, 2, 3)
    a(f"""v_mov_b32 v{vTKT}, 1
    s_lshl_b32 s{sE}, s{sQ}, 8
    s_add_u32 s{sE}, s{sE}, {CTRL_OFF + C_TASK}
    buffer_atomic_add v{vTKT}, v2, {ws}, s{sE} offen sc0 sc1""")
    a.lab(lab)

def get_sel(a, lab):
    a(f"s_cmp_lg_u32 s{sSL}, -1\ns_cbranch_scc1 {lab}_k\ns_mov_b32 s{sE}, {CTRL_OFF + C_SEL}")
    poll(a, lab, sE, 1)
    a(f"s_and_b32 s{sSL}, s{sE+9}, 2\ns_lshl_b32 s{sSL}, s{sSL}, 12")
    a.lab(lab + "_k")
def near_out(a):
    a(f"s_lshl_b32 s{sE}, s{sWM}, 13\ns_xor_b32 s{sE}, s{sE}, s{sSL}\ns_add_u32 s{sOUT}, s{sOUT}, s{sE}")

def epi_store(a, c, kind, rstride):
    if kind == "vt":
        lanes_vt(a, vE, vE + 1)
        prs = [((t, f), (t + 1, f)) for t in range(0, c.MT, 2) for f in range(c.NT)]
    else:
        lanes_frag(a, vE, vE + 1)
        prs = [((t, f), (t, f + 1)) for t in range(c.MT) for f in range(0, c.NT, 2)]
        prs.sort(key=lambda p: (p[0][0] >> 1, p[0][1] >> 2, p[0][0] & 1))
    if kind == "silu":
        a(f"s_mov_b32 s{sE+2}, 0xbfb8aa3b\ns_mov_b32 s{sE+3}, 0xbfb8aa3b\ns_mov_b32 s{sE+4}, 1.0\ns_mov_b32 s{sE+5}, 1.0")
    cur = None
    for (t, f), (t2, f2) in prs:
        base = (t >> 1) * rstride + (f >> 2) * 4096
        off = ((f >> 1) & 1) * 2048 + ((f & 1) * 128 if kind == "vt" else (t & 1) * 256)
        if base != cur: a(f"s_add_u32 s{sE}, s{sOUT}, {base}"); cur = base
        b0 = getreg(a, c, t, f, ACC0); b1 = getreg(a, c, t2, f2, ACC0 + 4)
        if kind == "silu":
            for b in (b0, b1):
                for o, q in ((0, 12), (2, 14)): a(f"v_pk_mul_f32 v[{q}:{q+1}], v[{b+o}:{b+o+1}], s[{sE+2}:{sE+3}]")
                for q in (12, 13, 14, 15): a(f"v_exp_f32 v{q}, v{q}")
                for q in (12, 14): a(f"v_pk_add_f32 v[{q}:{q+1}], v[{q}:{q+1}], s[{sE+4}:{sE+5}]")
                for q in (12, 13, 14, 15): a(f"v_rcp_f32 v{q}, v{q}")
                for o, q in ((0, 12), (2, 14)): a(f"v_pk_mul_f32 v[{b+o}:{b+o+1}], v[{b+o}:{b+o+1}], v[{q}:{q+1}]")
        pack(a, b0, b0, b1)
        a(f"buffer_store_dwordx4 v[{b0}:{b0+3}], v{vE}, {ws}, s{sE} offen offset:{off} sc1")

def epi_qa(a, c, tag):
    vKA, vVA, vKM, vVM = 2, 3, 4, 5
    vMD, vMM, vM0, vM1, vS0, vS1 = 6, 12, 10, 11, 10, 11
    sKA, sVA, sKM, sVM, sC = sE, sE + 2, sE + 4, sE + 5, sE + 6
    a(f"""s_lshl_b32 s{sE}, s{sN}, 1
    s_add_u32 s{sE}, s{sE}, s{sWN}              ; head
    s_lshl_b32 s{sE+1}, s{sB}, 1
    s_add_u32 s{sE+1}, s{sE+1}, s{sWM}
    s_lshr_b32 s{sE+2}, s{sE}, 3
    s_lshl_b32 s{sE+2}, s{sE+2}, 8
    s_add_u32 s{sE+2}, s{sE+2}, {CTRL_OFF + C_PROG}
    s_lshl_b32 s{sE+3}, s{sE+1}, 2
    s_add_u32 s{sE+3}, s{sE+3}, 4""")
    poll(a, tag + "_pp", sE + 2, f"s{sE+3}", 2)
    assert (KM_OFF >> 21) % 2 == 0 and (VM_OFF >> 21) % 2 == 0 and (K_OFF >> 21) % 2 == 0 and (VT_OFF >> 21) % 2 == 0
    a(f"""s_lshl_b32 s{sE+2}, s{sE+1}, 19
    s_lshr_b32 s{sE+3}, s{sE}, 2
    s_lshl_b32 s{sE+3}, s{sE+3}, 14
    s_add_u32 s{sE+2}, s{sE+2}, s{sE+3}
    s_and_b32 s{sE+3}, s{sE}, 3
    s_lshl_b32 s{sE+3}, s{sE+3}, 11
    s_add_u32 s{sE+2}, s{sE+2}, s{sE+3}
    s_lshl_b32 s{sE+3}, s{sB}, 12
    s_xor_b32 s{sE+3}, s{sE+3}, s{sSL}
    s_and_b32 s{sE+3}, s{sE+3}, 8192
    s_add_u32 s{sE+2}, s{sE+2}, s{sE+3}
    s_add_u32 s{sKM}, s{sE+2}, {KM_OFF}
    s_add_u32 s{sVM}, s{sE+2}, {VM_OFF}
    s_lshl_b32 s{sE+1}, s{sE+1}, 21
    s_lshl_b32 s{sE}, s{sE}, 14
    s_add_u32 s{sE}, s{sE}, s{sE+1}
    s_lshl_b32 s{sE+1}, s{sWM}, 13
    s_xor_b32 s{sE+1}, s{sE+1}, s{sSL}
    s_add_u32 s{sE}, s{sE}, s{sE+1}
    s_add_u32 s{sVA}, s{sE}, {VT_OFF}
    s_add_u32 s{sVA+1}, s{sVA}, 4096
    s_add_u32 s{sKA}, s{sE}, {K_OFF}
    s_add_u32 s{sKA+1}, s{sKA}, 4096
    s_mov_b32 s{sC}, {CSC}
    s_mov_b32 s{sC+1}, {CSC}""")
    lanes_frag(a, vKA, 10); lanes_vt(a, vVA, 10)
    a(f"""v_lshrrev_b32 v10, 4, v0                ; g
    v_and_b32 v11, 15, v0                         ; m
    v_lshlrev_b32 v{vKM}, 7, v10
    v_lshl_add_u32 v{vKM}, v11, 4, v{vKM}
    v_mov_b32 v12, {OOB}
    v_cmp_gt_u32 vcc, 8, v11
    v_cndmask_b32 v{vKM}, v12, v{vKM}, vcc
    v_lshrrev_b32 v13, 3, v11
    v_lshlrev_b32 v13, 8, v13
    v_lshl_add_u32 v13, v10, 3, v13
    v_and_b32 v14, 7, v0
    v_lshl_add_u32 v{vVM}, v14, 4, v13
    v_cmp_gt_u32 vcc, 2, v10
    v_cndmask_b32 v{vVM}, v12, v{vVM}, vcc""")
    vm = VM(a)
    sets = (144, 0)
    Kr = lambda s, kt, F: sets[s & 1] + 16 * kt + 4 * F
    KMr = lambda s, F: sets[s & 1] + 32 + 4 * F
    Vr = lambda s, F, e: sets[s & 1] + 48 + 12 * F + 6 * e
    def loadK(s):
        r = []
        for F in range(4):
            r.append((f"buffer_load_dwordx4 a[{KMr(s,F)}:{KMr(s,F)+3}], v{vKM}, {ws}, s{sKM} offen offset:{512*F} sc1", ("K", s)))
            for kt in range(2):
                r.append((f"buffer_load_dwordx4 a[{Kr(s,kt,F)}:{Kr(s,kt,F)+3}], v{vKA}, {ws}, s{sKA+(F>>1)} offen offset:{2048*(F&1)+256*kt} sc1", ("K", s)))
        r.append((f"s_add_u32 s{sKM}, s{sKM}, 131072\ns_add_u32 s{sKA}, s{sKA}, 524288\ns_add_u32 s{sKA+1}, s{sKA+1}, 524288", None))
        return r
    def loadV(s):
        r = []
        for F in range(4):
            for e in range(2):
                b = Vr(s, F, e)
                r.append((f"buffer_load_dwordx4 a[{b+2}:{b+5}], v{vVA}, {ws}, s{sVA+(F>>1)} offen offset:{2048*(F&1)+128*e} sc1", ("V", s)))
                r.append((f"buffer_load_dwordx2 a[{b}:{b+1}], v{vVM}, {ws}, s{sVM} offen offset:{512*F+128*e} sc1", ("V", s)))
        r.append((f"s_add_u32 s{sVM}, s{sVM}, 131072\ns_add_u32 s{sVA}, s{sVA}, 524288\ns_add_u32 s{sVA+1}, s{sVA+1}, 524288", None))
        return r
    def emit(x):
        if x[1] is None: a(x[0])
        else: vm.op(*x)
    for x in loadK(0) + loadV(0): emit(x)
    a(f"v_mov_b32 v12, {NEG}\nv_lshlrev_b32 v13, 2, v10")
    for i in range(4):
        a(f"v_add_u32 v14, {i}, v13\nv_cmp_gt_u32 vcc, v14, v11\nv_cndmask_b32 v{vMD+i}, 0, v12, vcc")
    a(f"v_cmp_le_u32 vcc, 2, v10\nv_cndmask_b32 v12, 0, v12, vcc\nv_mov_b32 v13, v12\nv_mov_b32 v14, v12\nv_mov_b32 v15, v12")
    free = []; Q = {}
    pend = loadK(1) + loadV(1)
    for t in range(8):
        for F in range(4):
            k0, b0 = c.acc(t, 2 * F); k1, b1 = c.acc(t, 2 * F + 1)
            if k0 == "v":
                pack(a, b0, b0, b1); Q[t, F] = b0; free.append(b1)
            else:
                x, y = free.pop(0), free.pop(0)
                getreg(a, c, t, 2 * F, x); getreg(a, c, t, 2 * F + 1, y)
                pack(a, x, x, y); Q[t, F] = x; free.append(y)
            if t >= 1 and pend: emit(pend.pop(0))
            if t >= 4 and pend: emit(pend.pop(0))
    for x in pend: emit(x)
    R = lambda b, n=4: f"v[{b}:{b+n-1}]"
    A = lambda b, n=4: f"a[{b}:{b+n-1}]"
    for s in range(4):
        t0, t1 = 2 * s, 2 * s + 1
        D0, M0, E0, E1, M1 = [free.pop(0) for _ in range(5)]
        vm.wait(("K", s))
        for F in range(4):
            for d, kr, q, seed in ((D0, Kr(s, 0, F), Q[t0, F], R(vMD)), (M0, KMr(s, F), Q[t0, F], R(vMM)), (E0, Kr(s, 0, F), Q[t1, F], "0"),
                                   (E1, Kr(s, 1, F), Q[t1, F], R(vMD)), (M1, KMr(s, F), Q[t1, F], R(vMM))):
                a(f"v_mfma_f32_16x16x32_bf16 {R(d)}, {A(kr)}, {R(q)}, {seed if F == 0 else R(d)}")
        if s < 2:
            for x in loadK(s + 2): emit(x)
        for F in range(4): free += [Q[t0, F], Q[t1, F]]
        g0 = [D0 + i for i in range(4)] + [M0 + i for i in range(4)]
        g1 = [E0 + i for i in range(4)] + [E1 + i for i in range(4)] + [M1 + i for i in range(4)]
        def both(op3, op2, r0, r1):
            for r, g in ((r0, g0), (r1, g1)):
                a(f"{op3} v{r}, v{g[0]}, v{g[1]}, v{g[2]}")
                k = 3
                while k + 1 < len(g): a(f"{op3} v{r}, v{r}, v{g[k]}, v{g[k+1]}"); k += 2
                a(f"{op2} v{r}, v{r}, v{g[k]}")
        def across(op, r0, r1):
            a(f"""v_permlane32_swap_b32 v{r0}, v{r1}
            {op} v{r0}, v{r0}, v{r1}
            v_mov_b32 v{r1}, v{r0}
            v_permlane16_swap_b32 v{r0}, v{r1}
            {op} v{r0}, v{r0}, v{r1}""")
        both("v_max3_f32", "v_max_f32", vM0, vM1)
        across("v_max_f32", vM0, vM1)
        a(f"v_mul_f32 v{vM0}, s{sC}, v{vM0}\nv_mov_b32 v{vM1}, v{vM0}\nv_permlane32_swap_b32 v{vM0}, v{vM1}")
        for g, hi in ((g0, 0), (g1, 1)):
            for k in range(0, len(g), 2):
                a(f"v_pk_fma_f32 {R(g[k],2)}, {R(g[k],2)}, s[{sC}:{sC+1}], {R(vM0,2)} op_sel:[0,0,{hi}] op_sel_hi:[1,1,{hi}] neg_lo:[0,0,1] neg_hi:[0,0,1]")
        for r in g0 + g1: a(f"v_exp_f32 v{r}, v{r}")
        x, y = free.pop(0), free.pop(0)
        a(f"v_pk_add_f32 {R(x,2)}, {R(D0,2)}, {R(D0+2,2)}\nv_pk_add_f32 {R(x+2,2)}, {R(M0,2)}, {R(M0+2,2)}")
        a(f"v_pk_add_f32 {R(y,2)}, {R(E0,2)}, {R(E0+2,2)}\nv_pk_add_f32 {R(y+2,2)}, {R(E1,2)}, {R(E1+2,2)}")
        a(f"v_pk_add_f32 {R(x,2)}, {R(x,2)}, {R(x+2,2)}\nv_pk_add_f32 {R(y,2)}, {R(y,2)}, {R(y+2,2)}")
        a(f"v_pk_add_f32 {R(y+2,2)}, {R(M1,2)}, {R(M1+2,2)}\nv_add_f32 v{vS0}, v{x}, v{x+1}\nv_pk_add_f32 {R(y,2)}, {R(y,2)}, {R(y+2,2)}")
        a(f"v_add_f32 v{vS1}, v{y}, v{y+1}")
        across("v_add_f32", vS0, vS1)
        a(f"v_rcp_f32 v{vS0}, v{vS0}\nv_mov_b32 v{vS1}, v{vS0}\nv_permlane32_swap_b32 v{vS0}, v{vS1}")
        for g, hi in ((g0, 0), (g1, 1)):
            for k in range(0, len(g), 2):
                a(f"v_pk_mul_f32 {R(g[k],2)}, {R(g[k],2)}, {R(vS0,2)} op_sel:[0,{hi}] op_sel_hi:[1,{hi}]")
        pack(a, x, M0, D0)
        pack(a, y, E0, E1)
        a(f"v_cvt_pk_bf16_f32 v{M1}, v{M1}, v{M1+1}\nv_cvt_pk_bf16_f32 v{M1+1}, v{M1+2}, v{M1+3}")
        free += [D0, M0, E0, E1]
        vm.wait(("V", s))
        O = {(tt, F, e): free.pop(0) for F in range(4) for e in range(2) for tt in range(2)}
        for F in range(4):
            for e in range(2):
                a(f"v_mfma_f32_16x16x16_bf16 {R(O[1,F,e])}, {A(Vr(s,F,e),2)}, {R(M1,2)}, 0")
        for F in range(4):
            for e in range(2):
                a(f"v_mfma_f32_16x16x32_bf16 {R(O[0,F,e])}, {A(Vr(s,F,e))}, {R(x)}, 0")
        a(f"s_add_u32 s{sE+8}, s{sOUT}, {262144 * s}\ns_add_u32 s{sE+9}, s{sOUT}, {262144 * s + 4096}")
        def out(tt, F):
            b0 = O[tt, F, 0]
            pack(a, b0, b0, O[tt, F, 1])
            vm.op(f"buffer_store_dwordx4 {R(b0)}, v{vKA}, {ws}, s{sE+8+(F>>1)} offen offset:{2048*(F&1)+256*tt} sc1", "st")
        for F in range(4):
            for e in range(2):
                a(f"v_mfma_f32_16x16x32_bf16 {R(O[1,F,e])}, {A(Vr(s,F,e)+2)}, {R(y)}, {R(O[1,F,e])}")
            if F >= 1: out(0, F - 1)
        if s < 2:
            for z in loadV(s + 2): emit(z)
        out(0, 3)
        for F in range(4): out(1, F)
        free += [x, y, M1] + list(O.values())

vXF = 144
def fw_addr(a):
    a(f"""s_lshl_b32 s{sE}, s{sB}, 1
    s_add_u32 s{sE}, s{sE}, s{sWM}
    s_lshl_b32 s{sE}, s{sE}, 17
    s_lshl_b32 s{sE+1}, s{sN}, 1
    s_add_u32 s{sE+1}, s{sE+1}, s{sWN}
    s_lshl_b32 s{sE+1}, s{sE+1}, 13
    s_add_u32 s{sOUT}, s{sE}, s{sE+1}""")
def fw_prs(c): return [(t, F) for th in range(c.MT // 2) for Fh in range(2) for t in (2 * th, 2 * th + 1) for F in (2 * Fh, 2 * Fh + 1)]
def fw_load(a, c, sbase, sc1):
    cur = None
    for n, (t, F) in enumerate(fw_prs(c)):
        base = (t >> 1) * 65536 + (F >> 1) * 4096
        if base != cur: a(f"s_add_u32 s{sE+1}, s{sbase}, {base}"); cur = base
        a(f"buffer_load_dwordx4 v[{vXF+4*n}:{vXF+4*n+3}], v{vE}, {ws}, s{sE+1} offen offset:{2048*(F&1)+256*(t&1)}{' sc1' if sc1 else ''}")
def fw_add(a, c, waits):
    a(f"s_mov_b32 s{sE+2}, 0x3f80\ns_mov_b32 s{sE+3}, 0x3f800000")
    for n, (t, F) in enumerate(fw_prs(c)):
        if waits and n % 2 == 0: a(f"s_waitcnt vmcnt({14 - n})")
        for e in range(2):
            b = c.acc(t, 2 * F + e)[1]
            for i in range(4): a(f"v_dot2c_f32_bf16 v{b+i}, s{sE+2+(i&1)}, v{vXF+4*n+2*e+(i>>1)}")

def epi_fw(a, c, tag):
    lane0(a, 2, 3)
    a(f"v_mov_b32 v3, 1\nbuffer_atomic_add v3, v2, {ws}, s{sFLG} offen sc0 sc1")
    a(f"s_cmp_lg_u32 s{sTYP}, {T_F2}\ns_cbranch_scc1 {tag}_nox")
    fw_add(a, c, False)
    a.lab(tag + "_nox")
    lanes_frag(a, vE, vE + 1)
    a(f"""s_waitcnt vmcnt(0)
    v_readfirstlane_b32 s{sE+4}, v3
    s_add_u32 s{sFLG}, s{sFLG}, 4
    s_cmp_ge_u32 s{sE+4}, s{sNC}
    s_cbranch_scc1 {tag}_last
    s_lshl_b32 s{sE+4}, s{sE+4}, 22
    s_add_u32 s{sE+4}, s{sE+4}, {Y_OFF}
    s_add_u32 s{sE+4}, s{sE+4}, s{sOUT}""")
    cur = None
    for t, F in fw_prs(c):
        base = (t >> 1) * 65536 + (F >> 1) * 4096
        if base != cur: a(f"s_add_u32 s{sE+1}, s{sE+4}, {base}"); cur = base
        b0 = c.acc(t, 2 * F)[1]
        pack(a, b0, b0, b0 + 4)
        a(f"buffer_store_dwordx4 v[{b0}:{b0+3}], v{vE}, {ws}, s{sE+1} offen offset:{2048*(F&1)+256*(t&1)} sc1")
    a(f"s_branch {tag}_end")
    a.lab(tag + "_last")
    poll(a, tag + "_pd", sFLG, f"s{sNC}", 1, va=vE + 1)
    a(f"s_add_u32 s{sE+4}, s{sOUT}, {Y_OFF}\ns_mov_b32 s{sE+5}, s{sNC}")
    a.lab(tag + "_sl")
    fw_load(a, c, sE + 4, True)
    fw_add(a, c, True)
    a(f"s_add_u32 s{sE+4}, s{sE+4}, {1 << 22}\ns_sub_u32 s{sE+5}, s{sE+5}, 1\ns_cmp_lg_u32 s{sE+5}, 0\ns_cbranch_scc1 {tag}_sl")
    a(f"""v_and_b32 v{vE}, 15, v0
    v_lshlrev_b32 v{vE}, 11, v{vE}
    v_lshrrev_b32 v{vE+1}, 4, v0
    v_lshl_add_u32 v{vE}, v{vE+1}, 4, v{vE}
    s_lshl_b32 s{sE}, s{sB}, 1
    s_add_u32 s{sE}, s{sE}, s{sWM}
    s_lshl_b32 s{sE}, s{sE}, 17
    s_lshl_b32 s{sE+1}, s{sN}, 1
    s_add_u32 s{sE+1}, s{sE+1}, s{sWN}
    s_lshl_b32 s{sE+1}, s{sE+1}, 8
    s_add_u32 s{sE}, s{sE}, s{sE+1}""")
    for t in range(c.MT):
        for F in range(4): pack(a, c.acc(t, 2 * F)[1], c.acc(t, 2 * F)[1], c.acc(t, 2 * F + 1)[1])
        for F in range(4):
            b0 = c.acc(t, 2 * F)[1]
            a(f"v_permlane16_swap_b32 v{b0}, v{b0+2}\nv_permlane16_swap_b32 v{b0+1}, v{b0+3}")
        for F in range(4):
            b0 = c.acc(t, 2 * F)[1]
            a(f"buffer_store_dwordx4 v[{b0}:{b0+3}], v{vE}, s[{SO}:{SO+3}], s{sE} offen offset:{64*F}")
        if t < c.MT - 1: a(f"s_add_u32 s{sE}, s{sE}, 32768")
    a.lab(tag + "_end")

def gemm_side(a, name, table, trace=False, cs=None, cw=None):
    cs = cs or Cfg(8); cw = cw or Cfg(4, sc1=True)
    assert cs.lds <= L_TK and cw.lds <= L_TK
    n = name + "_g"
    tab = list(table) + [(T_END, 0)]
    nt = len(tab)
    by = [(t << 5) | i for t, i in tab] + [0, 0, 0]
    for k in range((nt + 3) // 4):
        wv = by[4 * k] | (by[4 * k + 1] << 8) | (by[4 * k + 2] << 16) | (by[4 * k + 3] << 24)
        a(f"s_mov_b32 s{sE}, {wv}\nv_writelane_b32 v1, s{sE}, {k}")
    assert (nt + 3) // 4 <= 64
    a(f"""v_accvgpr_write_b32 a{aTAB}, v1
    s_lshr_b32 s{sQ}, s{sG}, 5
    s_and_b32 s{sTK}, s{sG}, 31
    s_lshr_b32 s{sWM}, s{sW}, 1
    s_and_b32 s{sWN}, s{sW}, 1
    s_mov_b32 s{sSL}, -1
    s_mov_b32 s{SA}, s{WS}
    s_mov_b32 s{SA+1}, s{WS+1}
    s_mov_b32 s{SA+3}, 0x20000
    s_mov_b32 s{SB_+3}, 0x20000
    s_load_dwordx2 s[{SO}:{SO+1}], s[0:1], {A_OUT}
    s_mov_b32 s{SO+2}, {2048 * 1024 * 2}
    s_mov_b32 s{SO+3}, 0x20000""")
    if trace: a(f"s_lshl_b32 s{sTRC}, s{sG}, 9\ns_add_u32 s{sTRC}, s{sTRC}, {GTRACE_OFF}")
    def stamp(i):
        if trace: a(f"s_memrealtime s[{sTRC+2}:{sTRC+3}]\ns_waitcnt lgkmcnt(0)\ns_mov_b32 s{sTRC+4+i}, s{sTRC+2}")
    a.lab(n + "_task")
    stamp(0)
    a(f"""s_min_u32 s{sTK}, s{sTK}, {nt - 1}
    v_accvgpr_read_b32 v1, a{aTAB}
    s_lshr_b32 s{sE}, s{sTK}, 2
    s_and_b32 s{sE+1}, s{sTK}, 3
    s_lshl_b32 s{sE+1}, s{sE+1}, 3
    v_readlane_b32 s{sE}, v1, s{sE}
    s_lshr_b32 s{sE}, s{sE}, s{sE+1}
    s_bfe_u32 s{sTYP}, s{sE}, 0x30005
    s_and_b32 s{sE}, s{sE}, 31
    s_mov_b32 s{SA+2}, {WS_BYTES}
    s_cmp_eq_u32 s{sTYP}, {T_END}
    s_cbranch_scc1 {n}_done
    s_cmp_ge_u32 s{sTYP}, {T_F2}
    s_cbranch_scc1 {n}_fw
    s_cmp_eq_u32 s{sTYP}, {T_F1}
    s_cbranch_scc1 {n}_f1
    s_lshr_b32 s{sB}, s{sE}, 2
    s_and_b32 s{sN}, s{sE}, 3
    s_lshl_b32 s{sE}, s{sQ}, 2
    s_add_u32 s{sN}, s{sN}, s{sE}
    s_mov_b32 s{sROW}, 8192
    s_mov_b32 s{sE+2}, 524288
    s_mov_b32 s{sE+4}, 14
    s_lshl_b32 s{sFLG}, s{sB}, 4
    s_add_u32 s{sFLG}, s{sFLG}, s{sN}
    s_lshl_b32 s{sFLG}, s{sFLG}, 6
    s_add_u32 s{sFLG}, s{sFLG}, {CTRL_OFF + C_KV}
    s_lshl_b32 s{sE+3}, s{sB}, 1
    s_add_u32 s{sE+3}, s{sE+3}, s{sWM}
    s_lshl_b32 s{sE+3}, s{sE+3}, 6
    s_add_u32 s{sE+3}, s{sE+3}, {CTRL_OFF + C_QA}
    s_mov_b32 s{sE}, {A_WK}
    s_mov_b32 s{sOUT}, {K_OFF}
    s_cmp_eq_u32 s{sTYP}, {T_V}
    s_cselect_b32 s{sE}, {A_WV}, s{sE}
    s_cselect_b32 s{sOUT}, {VT_OFF}, s{sOUT}
    s_cmp_eq_u32 s{sTYP}, {T_QA}
    s_cselect_b32 s{sE}, {A_WQ}, s{sE}
    s_cselect_b32 s{sOUT}, {O_OFF}, s{sOUT}
    s_cselect_b32 s{sFLG}, s{sE+3}, s{sFLG}
    s_cselect_b32 s{sE+2}, 262144, s{sE+2}
    s_cselect_b32 s{sE+4}, 13, s{sE+4}
    s_branch {n}_std
    {n}_f1:
    s_mul_i32 s{sE+1}, s{sQ}, 28
    s_add_u32 s{sE}, s{sE}, s{sE+1}
    s_and_b32 s{sB}, s{sE}, 7
    s_lshr_b32 s{sN}, s{sE}, 3
    s_mov_b32 s{sROW}, 7168
    s_mov_b32 s{sE+2}, 229376
    s_mov_b32 s{sE+4}, 13
    s_lshl_b32 s{sFLG}, s{sB}, 6
    s_add_u32 s{sFLG}, s{sFLG}, {CTRL_OFF + C_F1}
    s_mov_b32 s{sE}, {A_W1}
    s_mov_b32 s{sOUT}, {H1_OFF}
    {n}_std:
    s_load_dwordx2 s[{SB_}:{SB_+1}], s[0:1], s{sE}
    s_lshl_b32 s{SB_+2}, s{sROW}, 10
    s_mov_b32 s{sRBA}, 65536
    s_lshl_b32 s{sOA}, s{sB}, 19
    s_lshl_b32 s{sOB}, s{sN}, 9
    s_lshl_b32 s{sE}, s{sB}, 1
    s_add_u32 s{sE}, s{sE}, s{sWM}
    s_mul_i32 s{sE}, s{sE}, s{sE+2}
    s_lshl_b32 s{sE}, s{sE}, 2
    s_add_u32 s{sOUT}, s{sOUT}, s{sE}
    s_lshl_b32 s{sE}, s{sN}, 1
    s_add_u32 s{sE}, s{sE}, s{sWN}
    s_lshl_b32 s{sE}, s{sE}, s{sE+4}
    s_add_u32 s{sOUT}, s{sOUT}, s{sE}
    s_mov_b32 s{sCNT}, {32 // cs.NS}""")
    assert XN_OFF == 0
    setup(a, cs)
    a("s_waitcnt lgkmcnt(0)")
    cold_start(a, cs)
    stamp(1)
    a(f"s_cmp_eq_u32 s{sTYP}, {T_V}\ns_cbranch_scc1 {n}_v")
    main_loop(a, cs, "T", n + "_T")
    stamp(2)
    get_sel(a, n + "_s1")
    take_ticket(a, n + "_tk1")
    a(f"s_cmp_eq_u32 s{sTYP}, {T_QA}\ns_cbranch_scc1 {n}_qa\ns_cmp_eq_u32 s{sTYP}, {T_F1}\ns_cbranch_scc1 {n}_ef1")
    near_out(a)
    epi_store(a, cs, "frag", 524288)
    a(f"s_branch {n}_next")
    a.lab(n + "_ef1")
    epi_store(a, cs, "silu", 229376)
    a(f"s_branch {n}_next")
    a.lab(n + "_qa")
    epi_qa(a, cs, n + "_qa")
    a(f"s_branch {n}_next")
    a.lab(n + "_v")
    main_loop(a, cs, "N", n + "_N")
    stamp(2)
    get_sel(a, n + "_s2")
    take_ticket(a, n + "_tk2")
    near_out(a)
    epi_store(a, cs, "vt", 524288)
    a(f"s_branch {n}_next")
    a.lab(n + "_fw")
    a(f"""s_mov_b32 s{sB}, s{sE}
    s_mov_b32 s{sN}, s{sQ}
    s_mov_b32 s{sROW}, 2048
    s_mov_b32 s{sNC}, 1
    s_lshl_b32 s{sFLG}, s{sB}, 2
    s_add_u32 s{sFLG}, s{sFLG}, s{sN}
    s_lshl_b32 s{sFLG}, s{sFLG}, 2
    s_add_u32 s{sFLG}, s{sFLG}, s{sW}
    s_lshl_b32 s{sFLG}, s{sFLG}, 6
    s_add_u32 s{sFLG}, s{sFLG}, {CTRL_OFF + C_FW}
    s_lshl_b32 s{sOB}, s{sN}, 9""")
    fw_addr(a)
    a(f"""s_cmp_eq_u32 s{sTYP}, {T_F2}
    s_cbranch_scc0 {n}_wo
    s_load_dwordx2 s[{SB_}:{SB_+1}], s[0:1], {A_W2}
    s_mov_b32 s{SB_+2}, {3584 * 2048}
    s_mov_b32 s{sRBA}, 229376
    s_mul_i32 s{sOA}, s{sB}, {4 * 229376}
    s_add_u32 s{sOA}, s{sOA}, {H1_OFF}
    s_mov_b32 s{sCNT}, {112 // cw.NS}
    s_add_u32 s{sE}, s{sOUT}, {XF_OFF}""")
    lanes_frag(a, vE, vE + 1)
    fw_load(a, cw, sE, False)
    a(f"""s_lshr_b32 s{sE}, s{sB}, 1
    s_lshl_b32 s{sE}, s{sE}, 6
    s_add_u32 s{sE}, s{sE}, {CTRL_OFF + C_F1}
    s_mov_b32 s{sE+1}, 56
    s_branch {n}_fw2
    {n}_wo:
    s_load_dwordx2 s[{SB_}:{SB_+1}], s[0:1], {A_WO}
    s_mov_b32 s{SB_+2}, {4096 * 2048}
    s_mov_b32 s{sRBA}, 262144
    s_lshl_b32 s{sOA}, s{sB}, 20
    s_add_u32 s{sOA}, s{sOA}, {O_OFF}
    s_mov_b32 s{sCNT}, {128 // cw.NS}
    s_lshl_b32 s{sE}, s{sB}, 6
    s_add_u32 s{sE}, s{sE}, {CTRL_OFF + C_QA}
    s_mov_b32 s{sE+1}, 32
    {n}_fw2:""")
    poll(a, n + "_pfw", sE, f"s{sE+1}")
    setup(a, cw)
    a("s_waitcnt lgkmcnt(0)")
    cold_start(a, cw)
    stamp(1)
    main_loop(a, cw, "T", n + "_W")
    stamp(2)
    take_ticket(a, n + "_tk3")
    epi_fw(a, cw, n + "_efw")
    a.lab(n + "_next")
    lane0(a, 2, 3)
    a(f"""v_mov_b32 v3, 1
    s_waitcnt vmcnt(0)
    buffer_atomic_add v3, v2, {ws}, s{sFLG} offen sc1""")
    if trace:
        stamp(3)
        a(f"s_cmp_lg_u32 s{sW}, 0\ns_cbranch_scc1 {n}_ntr")
        for i in range(4): a(f"v_mov_b32 v{4+i}, s{sTRC+4+i}")
        a(f"s_lshl_b32 s{sE}, s{sTK}, 8\ns_or_b32 s{sE}, s{sE}, s{sTYP}\nv_mov_b32 v8, s{sE}")
        a(f"buffer_store_dwordx4 v[4:7], v2, {ws}, s{sTRC} offen\nbuffer_store_dword v8, v2, {ws}, s{sTRC} offen offset:16\ns_add_u32 s{sTRC}, s{sTRC}, 32")
        a.lab(n + "_ntr")
    a(f"""s_cmp_lg_u32 s{sW}, 0
    s_cbranch_scc1 {n}_nw
    v_mov_b32 v2, {L_TK}
    v_readfirstlane_b32 s{sE}, v{vTKT}
    v_mov_b32 v{vTKT}, s{sE}
    ds_write_b32 v2, v{vTKT}
    s_waitcnt lgkmcnt(0)
    {n}_nw:
    s_barrier
    v_mov_b32 v2, {L_TK}
    ds_read_b32 v{vTKT}, v2
    s_waitcnt lgkmcnt(0)
    v_readfirstlane_b32 s{sTK}, v{vTKT}
    s_add_u32 s{sTK}, s{sTK}, 32
    s_branch {n}_task""")
    a.lab(n + "_done")
```

```python
MB = 1 << 20
XN_OFF = 0
XF_OFF = 4 * MB
KM_OFF = 8 * MB
VM_OFF = 16 * MB
K_OFF = 24 * MB
VT_OFF = 56 * MB
H1_OFF = 88 * MB
O_OFF = 104 * MB
Y_OFF = 120 * MB
RING_OFF = 160 * MB
SLOT = 512 * 1024
R_MEM = 0
R_O = 65536
R_SP = 131072
R_PART = 131072 + 163840
R_END = R_PART + 131072
assert R_END <= SLOT
NSLOT = 4
R_ST = 131072
R_SM = 262144
PART_OFF = RING_OFF + NSLOT * SLOT
PSLOT = 262144
CLR_MB = 3
CTRL_OFF = RING_OFF + CLR_MB * MB
C_TICKET = 0
C_PROG = 4096
C_SEL = 5120
C_FLAGS = 8192
C_KV = 8192
C_F1 = 16384
C_QA = 18432
C_TASK = 20480
C_OS = 20480
C_FW = 32768
C_PM = 65536
C_OM = 98304
CTRL_SIZE = 131072
XR_OFF = 164 * MB
XG_OFF = 168 * MB
TRACE_OFF = 200 * MB
GTRACE_OFF = 208 * MB
WS_BYTES = 256 * MB
OOB = 0x80000000
KNAME = "parallel_sum__memory_aug_recurrent_mem_tr__dense_activation_silu__prompt"
A_X, A_MEM0, A_WQ, A_WK, A_WV, A_WO, A_SEG, A_BX, A_W1, A_W2, A_OUT, A_DBG, A_WS = [8 * i for i in range(13)]
```

```python
from asmlib import *
from layout import *
from prep import srd
from rec import roles, WS, T0, sX, sJ, sW, sMODE, sG, sBUD, sT
sSTEP, sCUR, sRST, sPCUR, sPRST, sKM = 18, 19, 20, 21, 22, 23
sPEND, sCSC, sTK, sTV, sKVF, sSEL = 32, 33, 62, 63, 64, 65
sTB = 68
vTR, vFL, vOPW = 74, 75, 196
OPW = 1280
sMB = 66
sTR = 40
vCOL, vG, vIDX = 1, 2, 3
vSENT = 4
vA = 8
vQ0, vQ1, vK0, vK1, vV0, vV1, vO0, vO1 = 24, 28, 32, 36, 40, 44, 48, 52
vMEMR, vOR, vXW, vLIN, vOPR, vPW, vPR, vMW = 56, 57, 58, 59, 60, 61, 62, 65
vA1, vA2, vA3, vA4, vA5, vA6, vA7, vA8 = range(66, 74)
vT = 76
vKT, vVT = 80, 88
vF, vX, vD = 96, 100, 104
vR0, vR1, vBM, vONE, vPB, vS, vSO = 116, 120, 124, 128, 132, 136, 144
vP = 148
L_X, L_V, L_O, L_T, L_SEL = 0, 12288, 16384, 24576, 22528
XROW = 40
CSC = 0x3e0293ee
ws = f"s[{WS}:{WS+3}]"
def vr(b, n=4): return f"v[{b}:{b+n-1}]"
def ar(b, n=8): return f"a[{b}:{b+n-1}]"
def pk(d, x, y): return f"v_pk_add_f32 {vr(d,2)}, {vr(x,2)}, {vr(y,2)}"

def rec_prologue(a, name, sel=0):
    a(f"""
    v_and_b32 v{vCOL}, 15, v0
    v_lshrrev_b32 v{vG}, 4, v0
    s_lshl_b32 s{sT}, s{sX}, 5
    s_add_u32 s{sT}, s{sT}, s{sJ}            ; cu = 32x + j
    s_lshl_b32 s{sT+1}, s{sW}, 15
    v_lshrrev_b32 v8, 2, v0
    v_and_b32 v9, 3, v0
    v_lshlrev_b32 v9, 4, v9
    v_lshl_add_u32 v10, v8, 13, v9
    v_lshl_add_u32 v11, v8, 11, v9
    s_lshl_b32 s{sT+2}, s{sW}, 21
    s_lshl_b32 s{sT+3}, s{sT}, 6
    s_add_u32 s{sT+2}, s{sT+2}, s{sT+3}
    s_lshl_b32 s{sT+3}, s{sX}, 21
    s_lshl_b32 s{sT+4}, s{sW}, 19
    s_add_u32 s{sT+3}, s{sT+3}, s{sT+4}
    s_lshl_b32 s{sT+4}, s{sJ}, 6
    s_add_u32 s{sT+3}, s{sT+3}, s{sT+4}
    v_and_b32 v13, 3, v0
    v_lshlrev_b32 v13, 3, v13
    v_add_u32 v13, s{sT+1}, v13
    v_bfe_u32 v16, v0, 3, 1                  ; h
    v_bfe_u32 v17, v0, 2, 1                  ; u
    v_lshl_add_u32 v14, v16, 4, v17
    v_lshl_add_u32 v14, v{vG}, 2, v14        ; 16h + 4g + u
    v_lshl_add_u32 v14, v14, 6, v13
    v_lshl_add_u32 v15, v16, 2, v17
    v_and_b32 v18, 1, v{vG}
    v_lshl_add_u32 v15, v18, 4, v15
    v_lshrrev_b32 v18, 1, v{vG}
    v_lshl_add_u32 v15, v18, 3, v15          ; 16(g&1) + 8(g>>1) + 4h + u
    v_lshl_add_u32 v15, v15, 6, v13
    """)
    def dma(karg, nbytes, region, vaddr, sbase, step):
        srd(a, T0, karg, nbytes)
        a(f"s_add_u32 m0, s{sT+1}, {region}\ns_mov_b32 s{sT+5}, s{sbase}\ns_waitcnt lgkmcnt(0)")
        for i in range(16):
            a(f"buffer_load_dwordx4 v{vaddr}, s[{T0}:{T0+3}], s{sT+5} offen lds")
            if i < 15: a(f"s_add_u32 m0, m0, 1024\ns_add_u32 s{sT+5}, s{sT+5}, {step}")
    def trr(abase, region, vaddr):
        for T in range(2):
            for s in range(4):
                for d in range(4):
                    r = abase + T * 32 + s * 8 + 2 * d
                    a(f"ds_read_b64_tr_b16 a[{r}:{r+1}], v{vaddr} offset:{region + (64*s + 32*(d>>1) + 2*(d&1)) * 64 + 32 * T}")
                a("s_waitcnt lgkmcnt(4)")
        a("s_waitcnt lgkmcnt(0)")
    W8 = 8 * MB
    dma(A_WQ, W8, 0, 10, sT + 2, 16 * 8192)
    dma(A_WK, W8, 16384, 10, sT + 2, 16 * 8192)
    a("s_waitcnt vmcnt(16)"); trr(0, 0, 14)
    dma(A_WV, W8, 0, 10, sT + 2, 16 * 8192)
    a("s_waitcnt vmcnt(16)"); trr(64, 16384, 14)
    dma(A_WO, W8, 16384, 11, sT + 3, 16 * 2048)
    a("s_waitcnt vmcnt(16)"); trr(128, 0, 14)
    a("s_waitcnt vmcnt(0)"); trr(192, 16384, 15)
    srd(a, T0, A_MEM0, 16384)
    a(f"""
    v_lshrrev_b32 v{vT}, 2, v{vCOL}
    v_and_b32 v{vT+1}, 1, v0
    v_lshl_add_u32 v{vT}, v{vT}, 1, v{vT+1}
    v_lshlrev_b32 v{vT}, 11, v{vT}
    v_lshrrev_b32 v{vT+3}, 1, v{vG}          ; g>>1
    v_and_b32 v{vT+2}, 1, v{vG}              ; g&1
    v_lshl_add_u32 v{vT}, v{vT+3}, 6, v{vT}
    v_lshl_add_u32 v{vT}, v{vT+2}, 4, v{vT}
    v_bfe_u32 v{vT+1}, v0, 1, 1              ; h
    v_lshl_add_u32 v{vT}, v{vT+1}, 5, v{vT}
    s_lshl_b32 s{sT+5}, s{sW}, 9
    s_waitcnt lgkmcnt(0)
    """)
    for s in range(4):
        a(f"buffer_load_dwordx4 {vr(vA+4*s)}, v{vT}, s[{T0}:{T0+3}], s{sT+5} offen offset:{128*s}")
    a(f"""
    v_mov_b32 v{vIDX}, 0x4444
    v_mov_b32 v{vT}, 0xeeee
    v_cmp_eq_u32 s[{sMB}:{sMB+1}], 1, v{vT+1}
    v_cndmask_b32 v{vIDX}, v{vIDX}, v{vT}, s[{sMB}:{sMB+1}]
    """)
    for i in range(4):
        a(f"v_mov_b32 v{vSENT+i}, -1\nv_mov_b32 v{vONE+i}, 0x3f803f80\nv_mov_b32 v{vR0+i}, 0\nv_mov_b32 v{vR1+i}, 0\nv_mov_b32 v{vBM+i}, 0")
    for r in range(vQ0, vO1 + 4): a(f"v_mov_b32 v{r}, 0")
    a(f"""
    v_lshlrev_b32 v{vLIN}, 4, v0             ; lane*16
    s_movk_i32 s{sT+6}, 288
    s_movk_i32 s{sT+7}, 640
    s_lshl_b32 s{sT+1}, s{sX}, 14
    s_lshl_b32 s{sT+2}, s{sW}, 12
    s_add_u32 s{sT+2}, s{sT+2}, s{sT+1}
    v_add_u32 v{vMEMR}, s{sT+2}, v{vLIN}
    v_add_u32 v{vOR}, {R_O}, v{vMEMR}
    v_mul_u32_u24 v{vT}, {4*XROW*4}, v{vG}
    v_lshl_add_u32 v{vT}, v{vCOL}, 2, v{vT}
    s_mul_i32 s{sT+2}, s{sW}, {16*XROW*4}
    v_add_u32 v{vXW}, s{sT+2}, v{vT}
    s_lshl_b32 s{sT+4}, s{sJ}, 9
    s_add_u32 s{sT+4}, s{sT+4}, s{sT+1}      ; x*16K + j*512
    v_lshl_add_u32 v{vMW}, v0, 3, s{sT+4}
    s_mul_i32 s{sT+2}, s{sW}, {OPW}
    s_add_u32 s{sT+2}, s{sT+2}, {L_O}
    v_lshl_add_u32 v{vOPW}, v0, 2, s{sT+2}
    v_and_b32 v{vOPR}, 1, v0
    v_lshlrev_b32 v{vOPR}, 4, v{vOPR}
    v_bfe_u32 v{vT}, v0, 1, 1
    v_mad_u32_u24 v{vOPR}, v{vT}, s{sT+6}, v{vOPR}
    v_bfe_u32 v{vT}, v0, 2, 1
    v_mad_u32_u24 v{vOPR}, v{vT}, s{sT+7}, v{vOPR}
    v_bfe_u32 v{vT}, v0, 3, 2
    v_lshl_add_u32 v{vOPR}, v{vT}, 6, v{vOPR}
    v_lshl_add_u32 v{vOPR}, v{vT+3}, 5, v{vOPR}
    s_lshr_b32 s{sT+2}, s{sJ}, 1
    s_lshl_b32 s{sT+2}, s{sT+2}, 14
    s_and_b32 s{sT+3}, s{sJ}, 1
    s_lshl_b32 s{sT+3}, s{sT+3}, 12
    s_add_u32 s{sT+5}, s{sT+2}, s{sT+3}
    v_add_u32 v{vT}, s{sT+5}, v{vLIN}
    """)
    for i in range(4):
        a(f"s_add_u32 s{sT+2}, s{sX}, {i}\ns_and_b32 s{sT+2}, s{sT+2}, 3\ns_lshl_b32 s{sT+2}, s{sT+2}, 10\nv_add_u32 v{vPW+i}, s{sT+2}, v{vT}")
    a(f"""
    s_mov_b32 s{sSTEP}, 0
    s_mov_b32 s{sKM}, 0
    s_mov_b32 s{sPEND}, 0
    s_mov_b32 s{sCSC}, {CSC}
    s_mov_b32 s{sCUR}, {RING_OFF}
    s_mov_b32 s{sRST}, {RING_OFF + 2 * SLOT}
    s_mov_b32 s{sPCUR}, {PART_OFF}
    s_mov_b32 s{sPRST}, {PART_OFF + 2 * PSLOT}
    """)

def kv_wait(a, lab):
    a(f"v_mov_b32 v{vT+1}, 0")
    a.lab(lab)
    a(f"""buffer_load_dword v{vT}, v{vT+1}, {ws}, s{sKVF} offen sc1
    s_waitcnt vmcnt(0)
    v_readfirstlane_b32 s{sT+6}, v{vT}
    s_cmp_ge_u32 s{sT+6}, 8
    s_cbranch_scc1 {lab}_d
    s_cmp_eq_u32 s{sBUD}, 0
    s_cbranch_scc1 {lab}_d
    s_sub_u32 s{sBUD}, s{sBUD}, 1
    s_branch {lab}""")
    a.lab(lab + "_d")

def near(a, d, s):
    a(f"s_lshr_b32 s{d}, s{s}, 8\ns_xor_b32 s{d}, s{d}, s{sSEL}\ns_and_b32 s{d}, s{d}, 8192\ns_add_u32 s{d}, s{d}, s{s}")
def tok_dma(a):
    near(a, sT + 5, sTK)
    a(f"s_add_u32 s{sT+4}, s{sT+5}, {VT_OFF - K_OFF}")
    for i, (so, o) in enumerate(((sT + 5, 0), (sT + 5, 256), (sT + 4, 0), (sT + 4, 256))):
        a(f"s_add_u32 m0, s{sTB}, {1024 * i - o}\nbuffer_load_dwordx4 v{vA1}, {ws}, s{so} offen offset:{o} sc1 lds")
    a(f"s_add_u32 s{sTK}, s{sTK}, 524288\ns_xor_b32 s{sTB}, s{sTB}, 4096")
def tok_read(a):
    for i in range(4): a(f"ds_read_b128 {vr(vKT+4*i)}, v{vTR} offset:{L_T + 1024*i}")
    a(f"v_xor_b32 v{vTR}, 4096, v{vTR}")

def probe(a, name, n=6):
    a(f"""s_mov_b32 s{sT+6}, {CTRL_OFF + C_SEL}
    v_mov_b32 v{vT+1}, 0
    s_or_b32 s{sT+2}, s{sX}, s{sJ}
    s_cmp_lg_u32 s{sT+2}, 0
    s_cbranch_scc1 {name}_pw
    s_mov_b32 s{sT+2}, -1
    s_mov_b32 s{sT+3}, -1""")
    for i in range(2 * n):
        a(f"""s_memtime s[34:35]
        s_waitcnt lgkmcnt(0)
        buffer_store_dwordx4 {vr(vSENT)}, v{vPW}, {ws}, s{sPCUR} offen sc1
        s_waitcnt vmcnt(0)
        s_memtime s[36:37]
        s_waitcnt lgkmcnt(0)
        s_sub_u32 s36, s36, s34
        s_min_u32 s{sT+2+(i&1)}, s{sT+2+(i&1)}, s36
        s_xor_b32 s{sPCUR}, s{sPCUR}, 8192""")
    a(f"""s_cmp_lt_u32 s{sT+3}, s{sT+2}
    s_cselect_b32 s{sT+7}, {'1, 2' if PART_OFF >> 21 & 1 else '2, 1'}
    v_mov_b32 v{vT}, s{sT+7}
    buffer_store_dword v{vT}, v{vT+1}, {ws}, s{sT+6} offen sc1
    s_branch {name}_pd
    {name}_pw:
    buffer_load_dword v{vT}, v{vT+1}, {ws}, s{sT+6} offen sc1
    s_waitcnt vmcnt(0)
    v_readfirstlane_b32 s{sT+7}, v{vT}
    s_cmp_lg_u32 s{sT+7}, 0
    s_cbranch_scc1 {name}_pd
    s_cmp_eq_u32 s{sBUD}, 0
    s_cbranch_scc1 {name}_pd
    s_sub_u32 s{sBUD}, s{sBUD}, 1
    s_branch {name}_pw
    {name}_pd:
    s_and_b32 s{sSEL}, s{sT+7}, 2
    s_lshl_b32 s{sSEL}, s{sSEL}, 12""")

def role_prologue(a, w, name, kv=None, sel=None):
    cu = sT
    def msk(dst, hi):
        a(f"v_mov_b32 v{vT}, {OOB}")
        a(f"v_cndmask_b32 v{dst}, v{vT}, v{dst}, s[{sMB}:{sMB+1}]" if hi else f"v_cndmask_b32 v{dst}, v{dst}, v{vT}, s[{sMB}:{sMB+1}]")
    def xread(dst):
        a(f"""v_mul_u32_u24 v{dst}, {XROW*4}, v{vCOL}
        v_lshl_add_u32 v{dst}, v{vT+3}, 6, v{dst}
        v_lshl_add_u32 v{dst}, v{vT+2}, 4, v{dst}""")
    a(f"""s_lshl_b32 s{sT+6}, s{cu}, 10
    s_add_u32 s{sT+6}, s{sT+6}, {R_ST}
    s_lshr_b32 s{sT+7}, s{cu}, 2
    s_lshl_b32 s{sT+7}, s{sT+7}, 10
    s_add_u32 s{sT+7}, s{sT+7}, {R_SM}
    s_and_b32 s{sT+3}, s{cu}, 3
    s_lshl_b32 s{sT+3}, s{sT+3}, 2""")
    if w == 0:
        xread(vA1)
        a(f"s_sub_u32 s{sT+2}, s{sT+6}, 32\nv_add_u32 v{vA2}, s{sT+2}, v{vLIN}"); msk(vA2, True)
        a(f"s_add_u32 s{sT+2}, s{sT+7}, s{sT+3}\ns_sub_u32 s{sT+2}, s{sT+2}, 32\nv_add_u32 v{vA3}, s{sT+2}, v{vLIN}"); msk(vA3, True)
        for k in range(1, 4):
            a(f"""s_add_u32 s{sT+2}, s{cu}, {k}
            s_and_b32 s{sT+2}, s{sT+2}, 3
            s_and_b32 s{sT+1}, s{cu}, 0x7c
            s_or_b32 s{sT+2}, s{sT+2}, s{sT+1}
            s_lshl_b32 s{sT+2}, s{sT+2}, 10
            s_add_u32 s{sT+2}, s{sT+2}, {R_ST}
            v_add_u32 v{vA4+k-1}, s{sT+2}, v{vLIN}""")
        a(f"""v_add_u32 v{vA7}, s{sT+7}, v{vLIN}
        v_lshl_add_u32 v{vA8}, v{vT+3}, 4, v{vCOL}
        v_lshl_add_u32 v{vA8}, v{vT+2}, 1, v{vA8}      ; 16(g>>1) + 4a + 2(g&1) + b
        s_add_u32 s{sT+2}, s{sT+4}, {R_O}
        v_lshl_add_u32 v{vA8}, v{vA8}, 4, s{sT+2}""")
        msk(vA8, False)
    elif w == 1:
        xread(vA1)
        a(f"""s_lshr_b32 s{sT+2}, s{cu}, 4
        s_lshl_b32 s{sT+2}, s{sT+2}, 14
        s_and_b32 s{sT+1}, s{cu}, 15
        s_lshl_b32 s{sT+1}, s{sT+1}, 9
        s_add_u32 s{sT+2}, s{sT+2}, s{sT+1}
        s_add_u32 s{sT+2}, s{sT+2}, {KM_OFF}
        v_lshrrev_b32 v{vA2}, 2, v{vCOL}
        v_and_b32 v{vT}, 1, v0
        v_lshl_add_u32 v{vA2}, v{vA2}, 1, v{vT}        ; key
        v_lshl_add_u32 v{vA2}, v{vG}, 3, v{vA2}
        v_lshl_add_u32 v{vA2}, v{vA2}, 4, s{sT+2}""")
        msk(vA2, False)
        a(f"""v_add_u32 v{vA3}, s{sT+6}, v{vLIN}
        s_add_u32 s{sT+2}, s{sT+7}, s{sT+3}
        v_add_u32 v{vA4}, s{sT+2}, v{vLIN}""")
    elif w == 2:
        a(f"""s_lshr_b32 s{sT+2}, s{cu}, 4
        s_lshl_b32 s{sT+2}, s{sT+2}, 14
        s_and_b32 s{sT+1}, s{cu}, 15
        s_lshl_b32 s{sT+1}, s{sT+1}, 9
        s_add_u32 s{sT+2}, s{sT+2}, s{sT+1}
        s_add_u32 s{sT+2}, s{sT+2}, {VM_OFF}
        v_add_u32 v{vA1}, s{sT+2}, v{vLIN}
        v_mov_b32 v{vT}, {OOB}
        v_cmp_gt_u32 vcc, 32, v0
        v_cndmask_b32 v{vA1}, v{vT}, v{vA1}, vcc
        v_lshl_add_u32 v{vA2}, v0, 3, s{sT+4}
        v_add_u32 v{vA3}, {R_O}, v{vA2}
        s_lshl_b32 s{sT+2}, s{sX}, 8
        s_add_u32 s{sT+2}, s{sT+2}, {CTRL_OFF + C_PROG}
        s_cmp_eq_u32 s{sJ}, 0
        s_cselect_b32 s{sT+2}, s{sT+2}, {OOB}
        v_mov_b32 v{vA4}, s{sT+2}
        v_mov_b32 v{vT}, {OOB}
        v_cmp_eq_u32 vcc, 0, v0
        v_cndmask_b32 v{vA4}, v{vT}, v{vA4}, vcc""")
    else:
        a(f"""s_lshr_b32 s{sT+2}, s{cu}, 2
        s_lshl_b32 s{sT+2}, s{sT+2}, 14
        s_and_b32 s{sT+3}, s{cu}, 3
        s_lshl_b32 s{sT+3}, s{sT+3}, 11
        s_add_u32 s{sT+2}, s{sT+2}, s{sT+3}
        v_lshlrev_b32 v{vA1}, 9, v{vG}
        v_lshl_add_u32 v{vA1}, v{vCOL}, 4, v{vA1}
        v_add_u32 v{vA1}, s{sT+2}, v{vA1}
        s_mov_b32 s{sTK}, {K_OFF}
        s_lshl_b32 s{sT+2}, s{sX}, 8
        s_add_u32 s{sT+2}, s{sT+2}, {CTRL_OFF + C_PROG + 4}
        v_mov_b32 v{vA3}, s{sT+2}
        v_mov_b32 v{vT}, {OOB}
        v_cmp_eq_u32 vcc, 0, v0
        v_cndmask_b32 v{vA3}, v{vT}, v{vA3}, vcc""")
    a("s_waitcnt vmcnt(0)\ns_barrier")
    if w == 3:
        if sel is None: probe(a, name)
        else: a(f"s_mov_b32 s{sSEL}, {8192 * sel}")
        a(f"v_mov_b32 v{vT}, s{sSEL}\nv_mov_b32 v{vT+1}, {L_SEL}\nds_write_b32 v{vT+1}, v{vT}")
        if kv:
            a(f"s_lshr_b32 s{sKVF}, s{cu}, 3\ns_lshl_b32 s{sKVF}, s{sKVF}, 6\ns_add_u32 s{sKVF}, s{sKVF}, {CTRL_OFF + C_KV}")
            kv_wait(a, f"{kv}_kv0")
        a(f"s_mov_b32 s{sTB}, {L_T}\nv_mov_b32 v{vFL}, 8")
        tok_dma(a); tok_dma(a)
        a("s_waitcnt vmcnt(0) lgkmcnt(0)")
    a(f"s_barrier\nv_mov_b32 v{vT}, {L_SEL}\nds_read_b32 v{vT}, v{vT}\ns_waitcnt lgkmcnt(0)")
    a(f"v_readfirstlane_b32 s{sSEL}, v{vT}\nv_xor_b32 v{vT}, {PART_OFF >> 8 & 8192}, v{vT}")
    for r in [vPW, vPR, vPR + 1, vPR + 2]: a(f"v_add_u32 v{r}, v{vT}, v{r}")
    if w == 0:
        a(f"v_mov_b32 v{vTR}, v{vLIN}")
        tok_read(a)

def rec_loop(a, name, w, fast, trace=None, nsteps=64, ns_s=2, kv=False, exp=()):
    p = f"{name}_{'f' if fast else 's'}{w}"
    loc = "" if fast else " sc1"
    cold = []
    trn = [0]
    def stamp(i):
        if trace is not None: a(f"s_memtime s[{70+2*i}:{71+2*i}]")
    def smf(acc, wb, T, s): return f"v_smfmac_f32_16x16x64_bf16 {vr(acc)}, {vr(vA+4*rot(s))}, {ar(wb+32*T+8*rot(s))}, v{vIDX}"
    def ld(vaddr, s): return f"buffer_load_dwordx4 {vr(vA+4*rot(s))}, v{vaddr}, {ws}, s{sCUR} offen offset:{1024*rot(s)} sc1"
    def budget(out): return f"s_cmp_eq_u32 s{sBUD}, 0\ns_cbranch_scc1 {out}\ns_sub_u32 s{sBUD}, s{sBUD}, 1"
    def cnt(i): return f"s_add_u32 s{sTR+i}, s{sTR+i}, 1" if trace is not None else ""
    rot = (lambda s: (s + w) & 3) if "rot" in exp else (lambda s: s ^ (w & 1)) if "rot2" in exp else (lambda s: s)
    def stages(tag, vaddr, mm, ci, tail=0):
        q = f"{p}_{tag}"
        chk = lambda s: f"v_cmp_eq_u32 vcc, -1, v{vA+4*rot(s)}"
        a("s_waitcnt vmcnt(3)")
        if tag == "a": stamp(0)
        a(f"{chk(0)}\ns_cbranch_vccnz {q}m0")
        rest = {0: []}
        for s in range(4):
            M = mm(s)
            if s == 3:
                for x in M: a(x)
                break
            k = len(M) // 2
            for x in M[:k]: a(x)
            a(f"s_waitcnt vmcnt({2-s})\n{chk(s+1)}")
            k2 = len(M) - 1
            for x in M[k:k2]: a(x)
            a(f"s_cbranch_vccnz {q}m{s+1}")
            rest[s + 1] = M[k2:]
            for x in M[k2:]: a(x)
        a.lab(f"{q}b")
        c = ""
        for s in range(4):
            c += f"{q}m{s}:\n" + "\n".join(rest[s]) + f"\ns_mov_b32 s{sPEND}, {15 & ~((1 << s) - 1)}\n{budget(f'{q}h{4-s}{s}')}\n{cnt(ci)}\n{ld(vaddr, s)}\ns_branch {q}l{4-s}{(s+1)&3}\n"
        for n in range(1, 5):
            for s in range(4):
                c += f"{q}l{n}{s}:\n"
                if n < 4: c += f"s_bitcmp1_b32 s{sPEND}, {s}\ns_cbranch_scc0 {q}l{n}{(s+1)&3}\n"
                c += f"s_waitcnt vmcnt({n-1})\n{chk(s)}\ns_cbranch_vccz {q}h{n}{s}\n{budget(f'{q}h{n}{s}')}\n{cnt(ci+1)}\n{ld(vaddr, s)}\n"
            c += f"s_branch {q}l{n}0\n"
            for s in range(4):
                c += f"{q}h{n}{s}:\n" + "\n".join(mm(s)) + "\n"
                c += f"s_bitset0_b32 s{sPEND}, {s}\ns_branch {q}l{n-1}{(s+1)&3}\n" if n > 1 else (f"s_nop {tail-1}\n" if tail else "") + f"s_branch {q}b\n"
        cold.append(c)
    def zero(r0, r1):
        for r in range(r0, r1, 2): a(f"v_mov_b64 {vr(r,2)}, 0")
    mf = lambda d, x, y, c: a(f"v_mfma_f32_16x16x32_bf16 {vr(d)}, {vr(x)}, {vr(y)}, {vr(d) if c else 0}")
    def xreduce(fill=()):
        for pw in range(4):
            for b in range(2):
                a(f"ds_read_b128 {vr(vP+8*pw+4*b)}, v{vA1} offset:{L_X + pw*16*XROW*4 + 32*b}")
        for x in fill: a(x)
        a("s_waitcnt lgkmcnt(4)")
        for i in range(0, 8, 2): a(pk(vP + i, vP + i, vP + 8 + i))
        a("s_waitcnt lgkmcnt(2)")
        for i in range(0, 8, 2): a(pk(vP + i, vP + i, vP + 16 + i))
        a("s_waitcnt lgkmcnt(1)")
        for i in range(0, 4, 2): a(pk(vP + i, vP + i, vP + 24 + i))
        a("s_waitcnt lgkmcnt(0)")
        for i in range(4, 8, 2): a(pk(vP + i, vP + i, vP + 24 + i))
        for i in range(0, 8, 2): a(f"v_cvt_pk_bf16_f32 v{vX+i//2}, v{vP+i}, v{vP+i+1}")
    def vreduce(tmp):
        o = [x for x in range(4) if x != w]
        for k in range(3): a(f"ds_read_b128 {vr(tmp+4*k)}, v{vLIN} offset:{L_V + 1024*o[k]}")
        src = {w: vF, o[0]: tmp, o[1]: tmp + 4, o[2]: tmp + 8}
        a("s_waitcnt lgkmcnt(0)")
        for i in (0, 2): a(pk(tmp + 12 + i, src[0] + i, src[1] + i))
        for i in (0, 2): a(pk(vF + i, src[2] + i, src[3] + i))
        for i in (0, 2): a(pk(vF + i, vF + i, tmp + 12 + i))
        a(f"v_cvt_pk_bf16_f32 v{vR0}, v{vF}, v{vF+1}\nv_cvt_pk_bf16_f32 v{vR1}, v{vF+2}, v{vF+3}")
    def kvm():
        if "nokm" in exp or w not in (1, 2): return
        near(a, sT + 5, sKM)
        a(f"buffer_store_dwordx4 {vr(vX)}, v{vA2 if w == 1 else vA1}, {ws}, s{sT+5} offen sc1\ns_add_u32 s{sKM}, s{sKM}, 131072")
    def slow():
        if "wb1" in exp and w in (1, 2):
            a(f"s_cmp_eq_u32 s{sSTEP}, 0\ns_cbranch_scc1 {p}_nkm")
            kvm()
            if w == 2: a(f"v_mov_b32 v{vT}, s{sSTEP}\nv_add_u32 v{vT}, -1, v{vT}\nbuffer_store_dword v{vT}, v{vA4}, {ws}, 0 offen sc1")
            a.lab(f"{p}_nkm")
        else: kvm()
        if w == 1 and "w1r" not in exp: a(f"buffer_store_dwordx4 {vr(vSENT)}, v{vPW}, {ws}, s{sPRST} offen sc1")
        if w == 3 and "notok" not in exp:
            a(f"s_cmp_ge_u32 s{sSTEP}, {nsteps-2}\ns_cbranch_scc1 {p}_ntk")
            if kv:
                a(f"v_readfirstlane_b32 s{sT+6}, v{vFL}\ns_cmp_lt_u32 s{sT+6}, 8\ns_cbranch_scc1 {p}_kvw\n{p}_kv_d:")
                c = Asm(); kv_wait(c, f"{p}_kv"); cold.append(f"{p}_kvw:\n" + "\n".join(c.lines[:-1]) )
            tok_dma(a)
            if kv:
                a(f"""s_add_u32 s{sT+6}, s{sSTEP}, 3
                s_and_b32 s{sT+6}, s{sT+6}, 7
                s_cselect_b32 s{sT+6}, 0, 1024
                s_add_u32 s{sKVF}, s{sKVF}, s{sT+6}
                v_mov_b32 v{vT+1}, 0
                buffer_load_dword v{vFL}, v{vT+1}, {ws}, s{sKVF} offen sc1""")
            a.lab(f"{p}_ntk")
    if trace is not None:
        for i in range(16): a(f"s_mov_b32 s{sTR+i}, 0")
        a(f"v_and_b32 v201, 31, v0\nv_lshlrev_b32 v201, 2, v201\nv_add_u32 v201, {65536 + 8192*w}, v201\nv_mov_b32 v200, 98304\nv_cmp_gt_u32 vcc, 32, v0\nv_cndmask_b32 v201, v200, v201, vcc\nv_mov_b32 v200, 0")
    a.lab(f"{p}_top")
    stages("a", vMEMR, lambda s: [smf(vQ0, 0, 0, s), smf(vQ1, 0, 1, s), smf(vK0, 64, 0, s), smf(vK1, 64, 1, s)], 1)
    stamp(1)
    if w == 1:
        a(f"buffer_store_dwordx4 {vr(vSENT)}, v{vA3}, {ws}, s{sRST} offen{loc}")
        a(f"buffer_store_dword v{vSENT}, v{vA4}, {ws}, s{sRST} offen{loc}")
    if w == 2:
        if "prs" not in exp: a(f"buffer_store_dwordx2 {vr(vSENT,2)}, v{vA2}, {ws}, s{sRST} offen{loc}")
        a(f"buffer_store_dwordx2 {vr(vSENT,2)}, v{vA3}, {ws}, s{sRST} offen{loc}")
    V = [smf(vV0 + 4 * T, 128, T, s) for s in range(4) for T in range(2)]
    a(V[0])
    a(pk(vQ0, vQ0, vQ0 + 2)); a(pk(vQ1, vQ1, vQ1 + 2))
    for T in range(2): a(f"ds_write2_b32 v{vXW}, v{vQ0+4*T}, v{vQ0+4*T+1} offset0:{2*XROW+16*T} offset1:{3*XROW+16*T}")
    a(V[1])
    a(pk(vK0, vK0, vK0 + 2)); a(pk(vK1, vK1, vK1 + 2))
    for T in range(2): a(f"ds_write2_b32 v{vXW}, v{vK0+4*T}, v{vK0+4*T+1} offset0:{16*T} offset1:{XROW+16*T}")
    a(f"""s_and_b32 s{sT+6}, s{sSTEP}, 3
    s_lshl_b32 s{sCUR}, s{sT+6}, 19
    s_add_u32 s{sCUR}, s{sCUR}, {RING_OFF}""")
    for x in V[2:4]: a(x)
    a("s_waitcnt lgkmcnt(0)\ns_barrier")
    stamp(2)
    if "wb1" in exp: slow()
    vfold = [pk(vF, vV0, vV0 + 2), pk(vF + 2, vV1, vV1 + 2)]
    if w == 0:
        xreduce(V[4:])
        mf(vD, vKT, vX, 0); mf(vD + 4, vKT + 4, vX, 0); mf(vD + 8, vX, vX, 0)
        for x in vfold: a(x)
        a(f"buffer_store_dwordx4 {vr(vD)}, v{vA2}, {ws}, s{sCUR} offen{loc}")
        a(f"buffer_store_dwordx4 {vr(vD+4)}, v{vA2}, {ws}, s{sCUR} offen offset:32{loc}")
        a(f"buffer_store_dword v{vD+8}, v{vA3}, {ws}, s{sCUR} offen{loc}")
        a(f"buffer_store_dword v{vD+9}, v{vA3}, {ws}, s{sCUR} offen offset:32{loc}")
        stamp(3)
        def sld(k):
            b = vP + 16 * k
            return "\n".join(f"buffer_load_dwordx4 {vr(b+4*i)}, v{vA4+i}, {ws}, s{sCUR} offen sc1" for i in range(4))
        def schk(k, o, done, neg=False):
            b = vP + 16 * k
            return f"""s_waitcnt vmcnt({o+3})
            {pk(vS, vSO, b)}
            {pk(vS+2, vSO+2, b+2)}
            s_waitcnt vmcnt({o+2})
            {pk(vS, vS, b+4)}
            {pk(vS+2, vS+2, b+6)}
            s_waitcnt vmcnt({o+1})
            {pk(vS, vS, b+8)}
            {pk(vS+2, vS+2, b+10)}
            s_waitcnt vmcnt({o})
            {pk(vS+4, b+12, b+14)}
            v_add_f32 v{vS+4}, v{vS+4}, v{vS+5}
            v_cmp_u_f32 vcc, v{vS}, v{vS+4}
            s_cbranch_{'vccnz' if neg else 'vccz'} {done}"""
        if "acks" not in exp and "sb2" not in exp: a(sld(0))
        a(f"ds_write_b128 v{vLIN}, {vr(vF)} offset:{L_V}")
        a(f"s_mov_b64 vcc, s[{sMB}:{sMB+1}]")
        for i in range(4): a(f"v_cndmask_b32_dpp v{vSO+i}, v{vD+i}, v{vD+4+i}, vcc quad_perm:[2,3,2,3] row_mask:0xf bank_mask:0xf")
        a("s_waitcnt lgkmcnt(0)\ns_barrier")
        stamp(4)
        a(f"s_cmp_eq_u32 s{sSTEP}, {nsteps-1}\ns_cbranch_scc1 {p}_fin")
        if "sb2" in exp: a(sld(0))
        vreduce(vP + 32)
        if ns_s == 2: a(sld(1))
        zero(vQ0, vV1 + 4)
        stamp(5)
        if "acks" in exp: a("s_waitcnt vmcnt(0)"); stamp(6); a(sld(0))
        else: stamp(6)
        o = 4 * (ns_s - 1)
        a(schk(0, o, f"{p}_ps", True))
        c = f"{p}_ps:\n"
        if ns_s == 2:
            for k in range(2): c += f"{budget(f'{p}_psd')}\n{cnt(5)}\n{sld(k)}\n{schk(k ^ 1, o, f'{p}_psd')}\n"
        else:
            c += f"{budget(f'{p}_psd')}\n{cnt(5)}\n{sld(0)}\n{schk(0, 0, f'{p}_psd')}\n"
        cold.append(c + f"s_branch {p}_ps")
        a.lab(f"{p}_psd")
        stamp(7)
        m, t = vT, vT + 1
        D = "quad_perm:[2,3,0,1] row_mask:0xf bank_mask:0xf"
        a(f"""v_max3_f32 v{m}, v{vS}, v{vS+1}, v{vS+4}
        v_max3_f32 v{m}, v{m}, v{vS+2}, v{vS+3}
        v_max_f32_dpp v{m}, v{m}, v{m} {D}
        v_mov_b32 v{t}, v{m}
        v_permlane16_swap_b32 v{m}, v{t}
        v_max_f32 v{m}, v{m}, v{t}
        v_mov_b32 v{t}, v{m}
        v_permlane32_swap_b32 v{m}, v{t}
        v_max_f32 v{m}, v{m}, v{t}
        v_mul_f32 v{m}, s{sCSC}, v{m}""")
        for i in range(5): a(f"v_fma_f32 v{vS+i}, v{vS+i}, s{sCSC}, -v{m}")
        for i in range(5): a(f"v_exp_f32 v{vS+i}, v{vS+i}")
        a(f"""v_cvt_pk_bf16_f32 v{vPB}, v{vS}, v{vS+1}
        v_cvt_pk_bf16_f32 v{vPB+1}, v{vS+2}, v{vS+3}
        v_mov_b32_dpp v{t}, v{vS+4} {D}
        v_mov_b32_dpp v{vPB+2}, v{vPB} {D}
        v_mov_b32_dpp v{vPB+3}, v{vPB+1} {D}
        v_cvt_pk_bf16_f32 v{vBM}, v{vS+4}, v{t}""")
        mf(vD + 8, vONE, vPB, 0); mf(vD + 8, vONE, vBM, 1)
        mf(vD, vVT, vPB, 0); mf(vD, vR0, vBM, 1); mf(vD + 4, vVT + 4, vPB, 0)
        a(f"v_rcp_f32 v{m}, v{vD+8}")
        mf(vD + 4, vR1, vBM, 1)
        for i in range(0, 8, 2):
            a(f"v_pk_mul_f32 {vr(vD+i,2)}, {vr(vD+i,2)}, {vr(m,2)} op_sel_hi:[1,0]")
            a(f"v_cvt_pk_bf16_f32 v{vX+i//2}, v{vD+i}, v{vD+i+1}")
        a(f"buffer_store_dwordx4 {vr(vX)}, v{vA8}, {ws}, s{sCUR} offen{loc}")
        stamp(8)
        if "acko" in exp: a("s_waitcnt vmcnt(0)")
    else:
        for x in V[4:]: a(x)
        for x in vfold: a(x)
        a(f"ds_write_b128 v{vLIN}, {vr(vF)} offset:{L_V + 1024*w}")
        stamp(3)
        a("s_waitcnt lgkmcnt(0)\ns_barrier")
        stamp(4)
        if w == 1: xreduce()
        elif w == 2:
            vreduce(vP)
            a(f"""v_permlane16_swap_b32 v{vR0}, v{vR1}
            v_mov_b32 v{vX}, v{vR0}
            v_mov_b32 v{vX+1}, v{vR1}
            v_mov_b32 v{vX+2}, v{vR0}
            v_mov_b32 v{vX+3}, v{vR1}
            v_permlane32_swap_b32 v{vX}, v{vX+2}
            v_permlane32_swap_b32 v{vX+1}, v{vX+3}""")
        a(f"s_cmp_eq_u32 s{sSTEP}, {nsteps-1}\ns_cbranch_scc1 {p}_fin")
        zero(vQ0, vV1 + 4)
        for i in range(5, 9): stamp(i)
    a("s_barrier")
    stamp(9)
    for s in range(4): a(ld(vOR, s))
    stages("o", vOR, lambda s: [smf(vO0, 192, 0, s), smf(vO1, 192, 1, s)], 3)
    stamp(10)
    a(pk(vF, vO0, vO0 + 2)); a(pk(vF + 2, vO1, vO1 + 2))
    a(f"ds_write2_b32 v{vOPW}, v{vF}, v{vF+1} offset0:0 offset1:72\nds_write2_b32 v{vOPW}, v{vF+2}, v{vF+3} offset0:160 offset1:232")
    if "w2c" not in exp and "wb1" not in exp: slow()
    a("s_waitcnt lgkmcnt(0)\ns_barrier")
    stamp(11)
    book = f"""s_add_u32 s{sSTEP}, s{sSTEP}, 1
    s_mov_b32 s{sT+7}, s{sPCUR}
    s_and_b32 s{sT+6}, s{sSTEP}, 3
    s_lshl_b32 s{sPCUR}, s{sT+6}, {PSLOT.bit_length() - 1}
    s_xor_b32 s{sPRST}, s{sPCUR}, {2*PSLOT}
    s_add_u32 s{sPCUR}, s{sPCUR}, {PART_OFF}
    s_add_u32 s{sPRST}, s{sPRST}, {PART_OFF}
    s_xor_b32 s{sT+6}, s{sT+6}, 2
    s_lshl_b32 s{sRST}, s{sT+6}, 19
    s_add_u32 s{sRST}, s{sRST}, {RING_OFF}"""
    if w == 0:
        for pw in range(4): a(f"ds_read_b128 {vr(vP+4*pw)}, v{vOPR} offset:{L_O + OPW*pw}")
        if "prs" in exp: a(f"buffer_store_dwordx2 {vr(vSENT,2)}, v{vMW}, {ws}, s{sRST} offen{loc}")
        a(f"""s_waitcnt lgkmcnt(2)
        {pk(vP, vP, vP+4)}
        {pk(vP+2, vP+2, vP+6)}
        s_waitcnt lgkmcnt(0)
        {pk(vP+8, vP+8, vP+12)}
        {pk(vP+10, vP+10, vP+14)}
        {pk(vF, vP, vP+8)}
        {pk(vF+2, vP+2, vP+10)}
        buffer_store_dwordx4 {vr(vF)}, v{vPW}, {ws}, s{sPCUR} offen sc1""")
        stamp(12)
        def pld(k, so): return "\n".join(f"buffer_load_dwordx4 {vr(vP+12*k+4*i)}, v{vPR+i}, {ws}, s{so} offen sc1" for i in range(3))
        def pchk(k, o, lab, neg):
            b = vP + 12 * k
            return f"""s_waitcnt vmcnt({o+1})
            {pk(b, b, b+4)}
            {pk(b+2, b+2, b+6)}
            s_waitcnt vmcnt({o})
            {pk(b+8, b+8, vF)}
            {pk(b+10, b+10, vF+2)}
            {pk(b, b, b+8)}
            {pk(b+2, b+2, b+10)}
            v_cmp_u_f32 vcc, v{b}, v{b+3}
            v_cvt_pk_bf16_f32 v{vX}, v{b}, v{b+1}
            v_cvt_pk_bf16_f32 v{vX+1}, v{b+2}, v{b+3}
            s_cbranch_{'vccnz' if neg else 'vccz'} {lab}"""
        when = [c for c in "012" if "p" + c in exp] or ["2"]
        np_ = len(when); k = 0
        if "0" in when: a(pld(k, sPCUR)); k += 1
        tok_read(a)
        zero(vO0, vO1 + 4)
        a(book)
        if "1" in when: a(f"s_waitcnt vmcnt({1 + 3 * k})"); a(pld(k, sT + 7)); k += 1
        if "2" in when: a(f"s_waitcnt vmcnt({3 * k})"); stamp(13); a(pld(k, sT + 7)); k += 1
        else: stamp(13)
        o = 3 * (np_ - 1)
        a(pchk(0, o, f"{p}_ppr", True))
        c = f"{p}_ppr:\n"
        for k in range(np_): c += f"{budget(f'{p}_ppd')}\n{cnt(6)}\n{pld(k, sT + 7)}\n{pchk((k + 1) % np_, o, f'{p}_ppd', False)}\n"
        cold.append(c + f"s_branch {p}_ppr")
        a(f"""{p}_ppd:
        buffer_store_dwordx2 {vr(vX,2)}, v{vMW}, {ws}, s{sCUR} offen{loc}""")
        stamp(14)
        if "ackm" in exp: a("s_waitcnt vmcnt(0)")
        a("s_waitcnt lgkmcnt(0)")
    else:
        if "w2c" in exp: slow()
        if w == 2 and "wb1" not in exp: a(f"v_mov_b32 v{vT}, s{sSTEP}\nbuffer_store_dword v{vT}, v{vA4}, {ws}, 0 offen sc1")
        zero(vO0, vO1 + 4)
        a(book)
        for i in (12, 13, 14): stamp(i)
    a("s_barrier")
    stamp(15)
    for s in range(4): a(ld(vMEMR, s))
    if trace is not None:
        a("s_memrealtime s[36:37]\ns_waitcnt lgkmcnt(0)")
        for i in range(16): a(f"v_writelane_b32 v200, s{70+2*i}, {i}")
        a("v_writelane_b32 v200, s36, 16")
        for i in range(1, 7): a(f"v_writelane_b32 v200, s{sTR+i}, {16+i}")
        a(f"ds_write_b32 v201, v200\nv_add_u32 v201, 128, v201")
    a(f"s_branch {p}_top")
    for c in cold: a(c)
    a.lab(f"{p}_fin")
    kvm()
    a("s_waitcnt vmcnt(0)\ns_barrier")
    if w == 3:
        a(f"v_mov_b32 v{vT}, 1\nbuffer_atomic_add v{vT}, v{vA3}, {ws}, 0 offen sc1")
    if trace is not None:
        a(f"s_lshl_b32 s{sT+6}, s{sX}, 5\ns_add_u32 s{sT+6}, s{sT+6}, s{sJ}\ns_lshl_b32 s{sT+6}, s{sT+6}, 15\ns_add_u32 s{sT+6}, s{sT+6}, {TRACE_OFF + 8192*w}")
        for i in range(8):
            a(f"v_add_u32 v201, {65536 + 8192*w + 1024*i}, v{vLIN}\nds_read_b128 v[204:207], v201\ns_waitcnt lgkmcnt(0)\nbuffer_store_dwordx4 v[204:207], v{vLIN}, {ws}, s{sT+6} offen\ns_add_u32 s{sT+6}, s{sT+6}, 1024\ns_waitcnt vmcnt(0)")
    a(f"s_branch {name}_recdone")

def rec_all(a, name, modes=(True, False), sel=None, kv=False, **kw):
    rec_prologue(a, name)
    for w in range(3):
        a(f"s_cmp_eq_u32 s{sW}, {w}\ns_cbranch_scc1 {name}_rp{w}")
    for w in (3, 0, 1, 2):
        if w != 3: a.lab(f"{name}_rp{w}")
        role_prologue(a, w, name, name if kv else None, sel)
        if len(modes) == 2:
            a(f"s_cmp_eq_u32 s{sMODE}, 0\ns_cbranch_scc1 {name}_safe{w}")
        rec_loop(a, name, w, modes[0], kv=kv, **kw)
        if len(modes) == 2:
            a.lab(f"{name}_safe{w}")
            rec_loop(a, name, w, modes[1], kv=kv, **kw)

def gen_rec_only(name, force_safe=False, mfma_w=3, **kw):
    a = Asm(mfma_w)
    roles(a, name)
    if force_safe: a(f"s_mov_b32 s{sMODE}, 0")
    a(f"s_cmp_lg_u32 s{sG}, -1\ns_cbranch_scc1 {name}_end")
    rec_all(a, name, **kw)
    a(f"{name}_recdone:\ns_waitcnt vmcnt(0)\n{name}_end:\ns_endpgm")
    return khead(name) + a.finish(True)
```

```python
import sys
from asmlib import *; from layout import *; from prep import gen_prep
from rec import roles, sG
from rec3 import rec_all
import g2
from g2 import T_K, T_V, T_QA, T_F1, T_F2, T_WO
KV = lambda b: [(T_K, 4 * b + i) for i in range(4)] + [(T_V, 4 * b + i) for i in range(4)]
QA = lambda b: [(T_QA, 4 * b + i) for i in range(4)]
F1 = lambda lo, hi: [(T_F1, i) for i in range(lo, hi)]
F2 = lambda lo, hi: [(T_F2, i) for i in range(lo, hi)]
WO = lambda lo, hi: [(T_WO, i) for i in range(lo, hi)]
def order0():
    t = sum((KV(b) for b in range(8)), []) + F1(0, 28) + QA(0) + F2(0, 16)
    for b in range(1, 8): t += QA(b) + WO(2 * b - 2, 2 * b)
    return t + WO(14, 16)
HEAD = open("cdna_kernels/" + KNAME + ".s.ref").read().split("; Override launch")[0]
def mk(trace=False, force_safe=False, mfma_w=3, table=None, rtrace=None, exp=('acko', 'sb2', 'prs', 'p1')):
    name = KNAME + "_kernel"; n = "m"
    a = Asm(mfma_w)
    roles(a, n)
    if force_safe: a("s_mov_b32 s15, 0")
    a(f"s_cmp_lg_u32 s{sG}, -1\ns_cbranch_scc1 {n}_gemm")
    rec_all(a, n, kv=True, trace=rtrace, exp=exp)
    a.lab(n + "_gemm")
    g2.gemm_side(a, n, table or order0(), trace)
    a(f"{n}_recdone:\ns_waitcnt vmcnt(0)\n{n}_end:\ns_endpgm")
    s = HEAD + f"; @launch kernel=prep_kernel grid=(256,1,1) block=(256,1,1) lds=256\n; @launch kernel={name} grid=(256,1,1) block=(256,1,1) lds={g2.LDS_BYTES}\n"
    s += '.amdgcn_target "amdgcn-amd-amdhsa--gfx950"\n.text\n' + gen_prep("prep_kernel") + khead(name) + a.finish(True)
    s += '.section .rodata,"a"\n.p2align 6\n' + kdesc("prep_kernel", 128, 128) + ".p2align 6\n" + kdesc(name)
    return s
if __name__ == "__main__":
    out = sys.argv[1] if len(sys.argv) > 1 else "main.s"
    open(out, "w").write(mk(**(eval(sys.argv[2]) if len(sys.argv) > 2 else {})))
```

```python
from asmlib import *
from layout import *

WS = 4
sW, sG, sBUD = 14, 16, 17
sQ, sTK, sB, sN, sFLG, sNC = 18, 19, 20, 21, 22, 23
sWM, sWN = 32, 33
sSL = 34
SA, SB_ = 44, 48
sOA, sOB, sWB, sSTB, sCNT = 52, 53, 54, 55, 56
sRBA, sROW, sOUT, sTYP, sWA = 57, 58, 59, 60, 61
sE = 62
SO = 72
sTRC = 76
vAR, vBR, vDA, vDB, vE = 1, 2, 4, 6, 10
ACC0 = 16
PAD = 1088
aTAB = 255
L_TK = 153600
LDS_BYTES = L_TK + 64
ws = f"s[{WS}:{WS+3}]"
CSC = 0x3e0293ee
NEG = 0xff61b1e6
T_K, T_V, T_QA, T_F1, T_F2, T_WO, T_END = range(7)

class Cfg:
    def __init__(s, MT=8, NS=4, r0=0, rstep=2, sc1=False):
        s.MT, s.NT, s.NS, s.r0, s.rstep, s.sc1 = MT, 8, NS, r0, rstep, sc1
        s.BM, s.BN = 32 * MT, 256
        s.AB = s.BM * 64; s.BB = 16 * PAD; s.SB = s.AB + s.BB
        s.PA, s.PB = s.AB // 4096, 4
        s.P = s.PA + s.PB
        s.lds = s.SB * NS
        s.M = MT * s.NT
        s.FR = 4 * (MT + s.NT)
        s.nv = min(s.M, 60)
        assert NS % 2 == 0
        s.bias = []; b = 0
        mo = max(((MT - 1) >> 1) * 2048 + 256, 4 * PAD + 4 * 64)
        for k in range(NS):
            if k * s.SB + mo - b > 65535: b = k * s.SB
            s.bias.append(b)
    def acc(s, t, f):
        i = t * s.NT + f
        return ("v", ACC0 + 4 * i) if i < s.nv else ("a", 2 * s.FR + 4 * (i - s.nv))
    def accs(s, t, f):
        k, b = s.acc(t, f); return f"{k}[{b}:{b+3}]"
    def xf(s, p, t): return f"a[{s.FR*p+4*t}:{s.FR*p+4*t+3}]"
    def wf(s, p, f, h=None):
        b = s.FR * p + 4 * s.MT + 4 * f
        return f"a[{b}:{b+3}]" if h is None else f"a[{b+2*h}:{b+2*h+1}]"

def setup(a, c):
    a(f"""
    v_lshrrev_b32 v{vE}, 4, v0                    ; g
    v_and_b32 v{vE+1}, 15, v0
    s_mul_i32 s{sE}, s{sWM}, {c.MT // 2 * 2048}
    v_lshl_add_u32 v{vAR}, v{vE}, 9, s{sE}
    v_lshl_add_u32 v{vAR}, v{vE+1}, 4, v{vAR}
    v_lshrrev_b32 v{vE+1}, 5, v0
    v_lshlrev_b32 v{vE+1}, 4, v{vE+1}
    v_and_b32 v{vE}, 1, v{vE}
    v_lshl_add_u32 v{vE+1}, v{vE}, 2, v{vE+1}
    v_bfe_u32 v{vE}, v0, 2, 2
    v_add_u32 v{vE+1}, v{vE+1}, v{vE}             ; k row
    v_bfe_u32 v{vE+2}, v0, 1, 1
    v_lshlrev_b32 v{vE+2}, 5, v{vE+2}
    v_and_b32 v{vE+3}, 1, v0
    v_lshl_add_u32 v{vE+2}, v{vE+3}, 3, v{vE+2}
    s_mov_b32 s{sE}, {PAD}
    v_lshrrev_b32 v{vE+3}, 1, v{vE+1}
    v_mad_u32_u24 v{vE+2}, v{vE+3}, s{sE}, v{vE+2}
    v_and_b32 v{vE+3}, 1, v{vE+1}
    v_lshl_add_u32 v{vE+2}, v{vE+3}, 9, v{vE+2}
    v_lshl_add_u32 v{vBR}, v{vE+3}, 4, v{vE+2}
    s_lshl_b32 s{sE}, s{sWN}, 8
    s_add_u32 s{sE}, s{sE}, {c.AB}
    v_add_u32 v{vBR}, s{sE}, v{vBR}
    v_xor_b32 v{vBR+1}, 16, v{vBR}
    s_mul_i32 s{sWA}, s{sW}, {c.PA * 1024}
    s_mul_i32 s{sWB}, s{sW}, {c.PB * PAD}
    s_add_u32 s{sWB}, s{sWB}, {c.AB}
    s_mul_i32 s{sE}, s{sW}, {c.PA // 2}
    s_mul_i32 s{sE}, s{sE}, s{sRBA}
    v_lshl_add_u32 v{vDA}, v0, 4, s{sE}
    """)
    if c.PA == 4:
        a(f"s_sub_u32 s{sE}, s{sRBA}, 2048\nv_add_u32 v{vDA+1}, s{sE}, v{vDA}")
    a(f"""
    v_lshrrev_b32 v{vE}, 5, v0
    v_and_b32 v{vE+1}, 31, v0
    v_xor_b32 v{vE+1}, v{vE+1}, v{vE}
    v_lshlrev_b32 v{vE+1}, 4, v{vE+1}
    s_lshl_b32 s{sE}, s{sW}, 3
    v_add_u32 v{vE}, s{sE}, v{vE}
    v_mad_u32_u24 v{vDB}, v{vE}, s{sROW}, v{vE+1}
    s_lshl_b32 s{sE}, s{sROW}, 1
    s_sub_u32 s{sE}, s{sE}, {PAD}
    v_add_u32 v{vDB+1}, s{sE}, v{vDB}
    v_add_u32 v{vDB+2}, s{sE}, v{vDB+1}
    v_add_u32 v{vDB+3}, s{sE}, v{vDB+2}
    s_lshl_b32 s{sSTB}, s{sROW}, 5
    """)

def pieces(c, slot):
    out = []
    for i in range(c.PA):
        g = []
        if i == 0: g.append(f"s_add_u32 m0, s{sWA}, {slot * c.SB}")
        g.append(f"buffer_load_dwordx4 v{vDA + (i >> 1)}, s[{SA}:{SA+3}], s{sOA} offen offset:{1024*i}{' sc1' if c.sc1 else ''} lds")
        if i == c.PA - 1: g.append(f"s_add_u32 s{sOA}, s{sOA}, 2048")
        out.append(g)
    for i in range(c.PB):
        g = []
        if i == 0: g.append(f"s_add_u32 m0, s{sWB}, {slot * c.SB}")
        g.append(f"buffer_load_dwordx4 v{vDB + i}, s[{SB_}:{SB_+3}], s{sOB} offen offset:{PAD*i} lds")
        if i == c.PB - 1: g.append(f"s_add_u32 s{sOB}, s{sOB}, s{sSTB}")
        out.append(g)
    return out

def reads(c, slot, p):
    o = slot * c.SB - c.bias[slot]
    r = []
    xs = [f"ds_read_b128 {c.xf(p, t)}, v{vAR} offset:{o + (t >> 1) * 2048 + (t & 1) * 256}" for t in range(c.MT)]
    wsr = [[f"ds_read_b64_tr_b16 {c.wf(p, f, h)}, v{vBR+(f&1)} offset:{o + 4 * h * PAD + (f >> 1) * 64}" for h in range(2)] for f in range(c.NT)]
    for i in range(max(c.MT, c.NT)):
        if i < c.NT: r += wsr[i]
        if i < c.MT: r.append(xs[i])
    return r

def rebias(c, frm, to):
    d = c.bias[to] - c.bias[frm]
    if d == 0: return []
    return [f"v_add_u32 v{r}, {d & 0xffffffff}, v{r}" for r in (vAR, vBR, vBR + 1)]

def stage(a, c, slot, form, first=False, hook=None):
    p = slot & 1
    fill = [[] for _ in range(c.M)]
    nslot = (slot + 1) % c.NS
    items = reads(c, nslot, p ^ 1) + rebias(c, nslot, (nslot + 1) % c.NS)
    pc = pieces(c, slot)
    span = c.M - c.r0 - 4
    st = min(c.rstep, span / len(items))
    dg = [min(c.M - 1, (i * c.M) // c.P + 1) for i in range(len(pc))]
    for i, x in enumerate(items):
        fill[min(c.M - 1, c.r0 + int(i * st))].append(x)
    for gp, x in zip(dg, pc):
        if "m0" in x[0] and gp > 0 and not any(y.startswith("buffer") for y in fill[gp - 1] + fill[gp]):
            fill[gp - 1].append(x[0]); x = x[1:]
        fill[gp] += x[:1] if x[0].startswith("buffer") else x[:2]
        rest = x[1:] if x[0].startswith("buffer") else x[2:]
        fill[min(c.M - 1, gp + 1)] += rest
    a(f"s_waitcnt vmcnt({(c.NS - 2) * c.P}) lgkmcnt(0)\ns_barrier")
    if hook: a(hook)
    n = 0
    for t in range(c.MT):
        for f0 in range(c.NT):
            f = f0 if t % 2 == 0 else c.NT - 1 - f0
            A, B = (c.wf(p, f), c.xf(p, t)) if form == "T" else (c.xf(p, t), c.wf(p, f))
            a(f"v_mfma_f32_16x16x32_bf16 {c.accs(t, f)}, {A}, {B}, {'0' if first else c.accs(t, f)}")
            for x in fill[n]: a(x)
            n += 1

def cold_start(a, c):
    for s in range(c.NS):
        for g in pieces(c, s):
            for x in g: a(x)
    a(f"s_waitcnt vmcnt({(c.NS - 1) * c.P})\ns_barrier")
    for x in reads(c, 0, 0) + rebias(c, 0, 1): a(x)

def main_loop(a, c, form, tag):
    L = f"{tag}_l"
    hook = f"s_cmp_eq_u32 s{sCNT}, 1\ns_cselect_b32 s{SA+2}, 0, s{SA+2}\ns_cselect_b32 s{SB_+2}, 0, s{SB_+2}"
    stage(a, c, 0, form, True, hook)
    a(".p2align 3")
    a.lab(L)
    for s in range(1, c.NS): stage(a, c, s, form)
    a(f"s_sub_u32 s{sCNT}, s{sCNT}, 1\ns_cmp_eq_u32 s{sCNT}, 0\ns_cbranch_scc1 {tag}_x")
    stage(a, c, 0, form, False, hook)
    a(f"s_branch {L}")
    a.lab(f"{tag}_x")

class VM:
    def __init__(s, a): s.a = a; s.q = []
    def op(s, text, tag=None): s.a(text); s.q.append(tag)
    def wait(s, tag):
        idx = max(i for i, t in enumerate(s.q) if t == tag)
        s.a(f"s_waitcnt vmcnt({min(63, len(s.q) - 1 - idx)})")

def lane0(a, v, tmp):
    a(f"v_mov_b32 v{v}, {OOB}\nv_mov_b32 v{tmp}, 0\nv_cmp_eq_u32 vcc, 0, v0\nv_cndmask_b32 v{v}, v{v}, v{tmp}, vcc")

def poll(a, lab, soff, val, n=1, va=vE, vd=12):
    x = {1: "dword", 2: "dwordx2", 4: "dwordx4"}[n]
    d = f"v{vd}" if n == 1 else f"v[{vd}:{vd+n-1}]"
    a(f"v_mov_b32 v{va}, 0")
    a.lab(lab)
    a(f"buffer_load_{x} {d}, v{va}, {ws}, s{soff} offen sc1\ns_waitcnt vmcnt(0)")
    if n == 2: a(f"v_and_b32 v{vd+1}, 32, v{vd+1}\nv_lshlrev_b32 v{vd+1}, 1, v{vd+1}\nv_max_u32 v{vd}, v{vd}, v{vd+1}")
    if n == 4: a(f"v_min_u32 v{vd}, v{vd}, v{vd+1}\nv_min3_u32 v{vd}, v{vd}, v{vd+2}, v{vd+3}")
    a(f"""v_readfirstlane_b32 s{sE+9}, v{vd}
    s_cmp_ge_u32 s{sE+9}, {val}
    s_cbranch_scc1 {lab}_d
    s_cmp_eq_u32 s{sBUD}, 0
    s_cbranch_scc1 {lab}_d
    s_sub_u32 s{sBUD}, s{sBUD}, 1
    s_branch {lab}""")
    a.lab(lab + "_d")

def lanes_frag(a, v, tmp):
    a(f"v_lshrrev_b32 v{v}, 4, v0\nv_lshlrev_b32 v{v}, 9, v{v}\nv_and_b32 v{tmp}, 15, v0\nv_lshl_add_u32 v{v}, v{tmp}, 4, v{v}")
def lanes_vt(a, v, tmp):
    a(f"""v_lshrrev_b32 v{v}, 4, v0
    v_lshlrev_b32 v{v}, 9, v{v}
    v_bfe_u32 v{tmp}, v0, 3, 1
    v_lshl_add_u32 v{v}, v{tmp}, 8, v{v}
    v_and_b32 v{tmp}, 7, v0
    v_lshl_add_u32 v{v}, v{tmp}, 4, v{v}""")

def getreg(a, c, t, f, tmp):
    k, b = c.acc(t, f)
    if k == "v": return b
    for i in range(4): a(f"v_accvgpr_read_b32 v{tmp+i}, a{b+i}")
    return tmp

def pack(a, d, b0, b1):
    a(f"""v_cvt_pk_bf16_f32 v{d}, v{b0}, v{b0+1}
    v_cvt_pk_bf16_f32 v{d+1}, v{b0+2}, v{b0+3}
    v_cvt_pk_bf16_f32 v{d+2}, v{b1}, v{b1+1}
    v_cvt_pk_bf16_f32 v{d+3}, v{b1+2}, v{b1+3}""")

vTKT = 1
def take_ticket(a, lab):
    a(f"s_cmp_lg_u32 s{sW}, 0\ns_cbranch_scc1 {lab}")
    lane0(a, 2, 3)
    a(f"""v_mov_b32 v{vTKT}, 1
    s_lshl_b32 s{sE}, s{sQ}, 8
    s_add_u32 s{sE}, s{sE}, {CTRL_OFF + C_TASK}
    buffer_atomic_add v{vTKT}, v2, {ws}, s{sE} offen sc0 sc1""")
    a.lab(lab)

def get_sel(a, lab):
    a(f"s_cmp_lg_u32 s{sSL}, -1\ns_cbranch_scc1 {lab}_k\ns_mov_b32 s{sE}, {CTRL_OFF + C_SEL}")
    poll(a, lab, sE, 1)
    a(f"s_and_b32 s{sSL}, s{sE+9}, 2\ns_lshl_b32 s{sSL}, s{sSL}, 12")
    a.lab(lab + "_k")
def near_out(a):
    a(f"s_lshl_b32 s{sE}, s{sWM}, 13\ns_xor_b32 s{sE}, s{sE}, s{sSL}\ns_add_u32 s{sOUT}, s{sOUT}, s{sE}")

def epi_store(a, c, kind, rstride):
    if kind == "vt":
        lanes_vt(a, vE, vE + 1)
        prs = [((t, f), (t + 1, f)) for t in range(0, c.MT, 2) for f in range(c.NT)]
    else:
        lanes_frag(a, vE, vE + 1)
        prs = [((t, f), (t, f + 1)) for t in range(c.MT) for f in range(0, c.NT, 2)]
        prs.sort(key=lambda p: (p[0][0] >> 1, p[0][1] >> 2, p[0][0] & 1))
    if kind == "silu":
        a(f"s_mov_b32 s{sE+2}, 0xbfb8aa3b\ns_mov_b32 s{sE+3}, 0xbfb8aa3b\ns_mov_b32 s{sE+4}, 1.0\ns_mov_b32 s{sE+5}, 1.0")
    cur = None
    for (t, f), (t2, f2) in prs:
        base = (t >> 1) * rstride + (f >> 2) * 4096
        off = ((f >> 1) & 1) * 2048 + ((f & 1) * 128 if kind == "vt" else (t & 1) * 256)
        if base != cur: a(f"s_add_u32 s{sE}, s{sOUT}, {base}"); cur = base
        b0 = getreg(a, c, t, f, ACC0); b1 = getreg(a, c, t2, f2, ACC0 + 4)
        if kind == "silu":
            for b in (b0, b1):
                for o, q in ((0, 12), (2, 14)): a(f"v_pk_mul_f32 v[{q}:{q+1}], v[{b+o}:{b+o+1}], s[{sE+2}:{sE+3}]")
                for q in (12, 13, 14, 15): a(f"v_exp_f32 v{q}, v{q}")
                for q in (12, 14): a(f"v_pk_add_f32 v[{q}:{q+1}], v[{q}:{q+1}], s[{sE+4}:{sE+5}]")
                for q in (12, 13, 14, 15): a(f"v_rcp_f32 v{q}, v{q}")
                for o, q in ((0, 12), (2, 14)): a(f"v_pk_mul_f32 v[{b+o}:{b+o+1}], v[{b+o}:{b+o+1}], v[{q}:{q+1}]")
        pack(a, b0, b0, b1)
        a(f"buffer_store_dwordx4 v[{b0}:{b0+3}], v{vE}, {ws}, s{sE} offen offset:{off} sc1")

def epi_qa(a, c, tag):
    vKA, vVA, vKM, vVM = 2, 3, 4, 5
    vMD, vMM, vM0, vM1, vS0, vS1 = 6, 12, 10, 11, 10, 11
    sKA, sVA, sKM, sVM, sC = sE, sE + 2, sE + 4, sE + 5, sE + 6
    a(f"""s_lshl_b32 s{sE}, s{sN}, 1
    s_add_u32 s{sE}, s{sE}, s{sWN}              ; head
    s_lshl_b32 s{sE+1}, s{sB}, 1
    s_add_u32 s{sE+1}, s{sE+1}, s{sWM}
    s_lshr_b32 s{sE+2}, s{sE}, 3
    s_lshl_b32 s{sE+2}, s{sE+2}, 8
    s_add_u32 s{sE+2}, s{sE+2}, {CTRL_OFF + C_PROG}
    s_lshl_b32 s{sE+3}, s{sE+1}, 2
    s_add_u32 s{sE+3}, s{sE+3}, 4""")
    poll(a, tag + "_pp", sE + 2, f"s{sE+3}", 2)
    assert (KM_OFF >> 21) % 2 == 0 and (VM_OFF >> 21) % 2 == 0 and (K_OFF >> 21) % 2 == 0 and (VT_OFF >> 21) % 2 == 0
    a(f"""s_lshl_b32 s{sE+2}, s{sE+1}, 19
    s_lshr_b32 s{sE+3}, s{sE}, 2
    s_lshl_b32 s{sE+3}, s{sE+3}, 14
    s_add_u32 s{sE+2}, s{sE+2}, s{sE+3}
    s_and_b32 s{sE+3}, s{sE}, 3
    s_lshl_b32 s{sE+3}, s{sE+3}, 11
    s_add_u32 s{sE+2}, s{sE+2}, s{sE+3}
    s_lshl_b32 s{sE+3}, s{sB}, 12
    s_xor_b32 s{sE+3}, s{sE+3}, s{sSL}
    s_and_b32 s{sE+3}, s{sE+3}, 8192
    s_add_u32 s{sE+2}, s{sE+2}, s{sE+3}
    s_add_u32 s{sKM}, s{sE+2}, {KM_OFF}
    s_add_u32 s{sVM}, s{sE+2}, {VM_OFF}
    s_lshl_b32 s{sE+1}, s{sE+1}, 21
    s_lshl_b32 s{sE}, s{sE}, 14
    s_add_u32 s{sE}, s{sE}, s{sE+1}
    s_lshl_b32 s{sE+1}, s{sWM}, 13
    s_xor_b32 s{sE+1}, s{sE+1}, s{sSL}
    s_add_u32 s{sE}, s{sE}, s{sE+1}
    s_add_u32 s{sVA}, s{sE}, {VT_OFF}
    s_add_u32 s{sVA+1}, s{sVA}, 4096
    s_add_u32 s{sKA}, s{sE}, {K_OFF}
    s_add_u32 s{sKA+1}, s{sKA}, 4096
    s_mov_b32 s{sC}, {CSC}
    s_mov_b32 s{sC+1}, {CSC}""")
    lanes_frag(a, vKA, 10); lanes_vt(a, vVA, 10)
    a(f"""v_lshrrev_b32 v10, 4, v0                ; g
    v_and_b32 v11, 15, v0                         ; m
    v_lshlrev_b32 v{vKM}, 7, v10
    v_lshl_add_u32 v{vKM}, v11, 4, v{vKM}
    v_mov_b32 v12, {OOB}
    v_cmp_gt_u32 vcc, 8, v11
    v_cndmask_b32 v{vKM}, v12, v{vKM}, vcc
    v_lshrrev_b32 v13, 3, v11
    v_lshlrev_b32 v13, 8, v13
    v_lshl_add_u32 v13, v10, 3, v13
    v_and_b32 v14, 7, v0
    v_lshl_add_u32 v{vVM}, v14, 4, v13
    v_cmp_gt_u32 vcc, 2, v10
    v_cndmask_b32 v{vVM}, v12, v{vVM}, vcc""")
    vm = VM(a)
    sets = (144, 0)
    Kr = lambda s, kt, F: sets[s & 1] + 16 * kt + 4 * F
    KMr = lambda s, F: sets[s & 1] + 32 + 4 * F
    Vr = lambda s, F, e: sets[s & 1] + 48 + 12 * F + 6 * e
    def loadK(s):
        r = []
        for F in range(4):
            r.append((f"buffer_load_dwordx4 a[{KMr(s,F)}:{KMr(s,F)+3}], v{vKM}, {ws}, s{sKM} offen offset:{512*F} sc1", ("K", s)))
            for kt in range(2):
                r.append((f"buffer_load_dwordx4 a[{Kr(s,kt,F)}:{Kr(s,kt,F)+3}], v{vKA}, {ws}, s{sKA+(F>>1)} offen offset:{2048*(F&1)+256*kt} sc1", ("K", s)))
        r.append((f"s_add_u32 s{sKM}, s{sKM}, 131072\ns_add_u32 s{sKA}, s{sKA}, 524288\ns_add_u32 s{sKA+1}, s{sKA+1}, 524288", None))
        return r
    def loadV(s):
        r = []
        for F in range(4):
            for e in range(2):
                b = Vr(s, F, e)
                r.append((f"buffer_load_dwordx4 a[{b+2}:{b+5}], v{vVA}, {ws}, s{sVA+(F>>1)} offen offset:{2048*(F&1)+128*e} sc1", ("V", s)))
                r.append((f"buffer_load_dwordx2 a[{b}:{b+1}], v{vVM}, {ws}, s{sVM} offen offset:{512*F+128*e} sc1", ("V", s)))
        r.append((f"s_add_u32 s{sVM}, s{sVM}, 131072\ns_add_u32 s{sVA}, s{sVA}, 524288\ns_add_u32 s{sVA+1}, s{sVA+1}, 524288", None))
        return r
    def emit(x):
        if x[1] is None: a(x[0])
        else: vm.op(*x)
    for x in loadK(0) + loadV(0): emit(x)
    a(f"v_mov_b32 v12, {NEG}\nv_lshlrev_b32 v13, 2, v10")
    for i in range(4):
        a(f"v_add_u32 v14, {i}, v13\nv_cmp_gt_u32 vcc, v14, v11\nv_cndmask_b32 v{vMD+i}, 0, v12, vcc")
    a(f"v_cmp_le_u32 vcc, 2, v10\nv_cndmask_b32 v12, 0, v12, vcc\nv_mov_b32 v13, v12\nv_mov_b32 v14, v12\nv_mov_b32 v15, v12")
    free = []; Q = {}
    pend = loadK(1) + loadV(1)
    for t in range(8):
        for F in range(4):
            k0, b0 = c.acc(t, 2 * F); k1, b1 = c.acc(t, 2 * F + 1)
            if k0 == "v":
                pack(a, b0, b0, b1); Q[t, F] = b0; free.append(b1)
            else:
                x, y = free.pop(0), free.pop(0)
                getreg(a, c, t, 2 * F, x); getreg(a, c, t, 2 * F + 1, y)
                pack(a, x, x, y); Q[t, F] = x; free.append(y)
            if t >= 1 and pend: emit(pend.pop(0))
            if t >= 4 and pend: emit(pend.pop(0))
    for x in pend: emit(x)
    R = lambda b, n=4: f"v[{b}:{b+n-1}]"
    A = lambda b, n=4: f"a[{b}:{b+n-1}]"
    for s in range(4):
        t0, t1 = 2 * s, 2 * s + 1
        D0, M0, E0, E1, M1 = [free.pop(0) for _ in range(5)]
        vm.wait(("K", s))
        for F in range(4):
            for d, kr, q, seed in ((D0, Kr(s, 0, F), Q[t0, F], R(vMD)), (M0, KMr(s, F), Q[t0, F], R(vMM)), (E0, Kr(s, 0, F), Q[t1, F], "0"),
                                   (E1, Kr(s, 1, F), Q[t1, F], R(vMD)), (M1, KMr(s, F), Q[t1, F], R(vMM))):
                a(f"v_mfma_f32_16x16x32_bf16 {R(d)}, {A(kr)}, {R(q)}, {seed if F == 0 else R(d)}")
        if s < 2:
            for x in loadK(s + 2): emit(x)
        for F in range(4): free += [Q[t0, F], Q[t1, F]]
        g0 = [D0 + i for i in range(4)] + [M0 + i for i in range(4)]
        g1 = [E0 + i for i in range(4)] + [E1 + i for i in range(4)] + [M1 + i for i in range(4)]
        def both(op3, op2, r0, r1):
            for r, g in ((r0, g0), (r1, g1)):
                a(f"{op3} v{r}, v{g[0]}, v{g[1]}, v{g[2]}")
                k = 3
                while k + 1 < len(g): a(f"{op3} v{r}, v{r}, v{g[k]}, v{g[k+1]}"); k += 2
                a(f"{op2} v{r}, v{r}, v{g[k]}")
        def across(op, r0, r1):
            a(f"""v_permlane32_swap_b32 v{r0}, v{r1}
            {op} v{r0}, v{r0}, v{r1}
            v_mov_b32 v{r1}, v{r0}
            v_permlane16_swap_b32 v{r0}, v{r1}
            {op} v{r0}, v{r0}, v{r1}""")
        both("v_max3_f32", "v_max_f32", vM0, vM1)
        across("v_max_f32", vM0, vM1)
        a(f"v_mul_f32 v{vM0}, s{sC}, v{vM0}\nv_mov_b32 v{vM1}, v{vM0}\nv_permlane32_swap_b32 v{vM0}, v{vM1}")
        for g, hi in ((g0, 0), (g1, 1)):
            for k in range(0, len(g), 2):
                a(f"v_pk_fma_f32 {R(g[k],2)}, {R(g[k],2)}, s[{sC}:{sC+1}], {R(vM0,2)} op_sel:[0,0,{hi}] op_sel_hi:[1,1,{hi}] neg_lo:[0,0,1] neg_hi:[0,0,1]")
        for r in g0 + g1: a(f"v_exp_f32 v{r}, v{r}")
        x, y = free.pop(0), free.pop(0)
        a(f"v_pk_add_f32 {R(x,2)}, {R(D0,2)}, {R(D0+2,2)}\nv_pk_add_f32 {R(x+2,2)}, {R(M0,2)}, {R(M0+2,2)}")
        a(f"v_pk_add_f32 {R(y,2)}, {R(E0,2)}, {R(E0+2,2)}\nv_pk_add_f32 {R(y+2,2)}, {R(E1,2)}, {R(E1+2,2)}")
        a(f"v_pk_add_f32 {R(x,2)}, {R(x,2)}, {R(x+2,2)}\nv_pk_add_f32 {R(y,2)}, {R(y,2)}, {R(y+2,2)}")
        a(f"v_pk_add_f32 {R(y+2,2)}, {R(M1,2)}, {R(M1+2,2)}\nv_add_f32 v{vS0}, v{x}, v{x+1}\nv_pk_add_f32 {R(y,2)}, {R(y,2)}, {R(y+2,2)}")
        a(f"v_add_f32 v{vS1}, v{y}, v{y+1}")
        across("v_add_f32", vS0, vS1)
        a(f"v_rcp_f32 v{vS0}, v{vS0}\nv_mov_b32 v{vS1}, v{vS0}\nv_permlane32_swap_b32 v{vS0}, v{vS1}")
        for g, hi in ((g0, 0), (g1, 1)):
            for k in range(0, len(g), 2):
                a(f"v_pk_mul_f32 {R(g[k],2)}, {R(g[k],2)}, {R(vS0,2)} op_sel:[0,{hi}] op_sel_hi:[1,{hi}]")
        pack(a, x, M0, D0)
        pack(a, y, E0, E1)
        a(f"v_cvt_pk_bf16_f32 v{M1}, v{M1}, v{M1+1}\nv_cvt_pk_bf16_f32 v{M1+1}, v{M1+2}, v{M1+3}")
        free += [D0, M0, E0, E1]
        vm.wait(("V", s))
        O = {(tt, F, e): free.pop(0) for F in range(4) for e in range(2) for tt in range(2)}
        for F in range(4):
            for e in range(2):
                a(f"v_mfma_f32_16x16x16_bf16 {R(O[1,F,e])}, {A(Vr(s,F,e),2)}, {R(M1,2)}, 0")
        for F in range(4):
            for e in range(2):
                a(f"v_mfma_f32_16x16x32_bf16 {R(O[0,F,e])}, {A(Vr(s,F,e))}, {R(x)}, 0")
        a(f"s_add_u32 s{sE+8}, s{sOUT}, {262144 * s}\ns_add_u32 s{sE+9}, s{sOUT}, {262144 * s + 4096}")
        def out(tt, F):
            b0 = O[tt, F, 0]
            pack(a, b0, b0, O[tt, F, 1])
            vm.op(f"buffer_store_dwordx4 {R(b0)}, v{vKA}, {ws}, s{sE+8+(F>>1)} offen offset:{2048*(F&1)+256*tt} sc1", "st")
        for F in range(4):
            for e in range(2):
                a(f"v_mfma_f32_16x16x32_bf16 {R(O[1,F,e])}, {A(Vr(s,F,e)+2)}, {R(y)}, {R(O[1,F,e])}")
            if F >= 1: out(0, F - 1)
        if s < 2:
            for z in loadV(s + 2): emit(z)
        out(0, 3)
        for F in range(4): out(1, F)
        free += [x, y, M1] + list(O.values())

vXF = 144
def fw_addr(a):
    a(f"""s_lshl_b32 s{sE}, s{sB}, 1
    s_add_u32 s{sE}, s{sE}, s{sWM}
    s_lshl_b32 s{sE}, s{sE}, 17
    s_lshl_b32 s{sE+1}, s{sN}, 1
    s_add_u32 s{sE+1}, s{sE+1}, s{sWN}
    s_lshl_b32 s{sE+1}, s{sE+1}, 13
    s_add_u32 s{sOUT}, s{sE}, s{sE+1}""")
def fw_prs(c): return [(t, F) for th in range(c.MT // 2) for Fh in range(2) for t in (2 * th, 2 * th + 1) for F in (2 * Fh, 2 * Fh + 1)]
def fw_load(a, c, sbase, sc1):
    cur = None
    for n, (t, F) in enumerate(fw_prs(c)):
        base = (t >> 1) * 65536 + (F >> 1) * 4096
        if base != cur: a(f"s_add_u32 s{sE+1}, s{sbase}, {base}"); cur = base
        a(f"buffer_load_dwordx4 v[{vXF+4*n}:{vXF+4*n+3}], v{vE}, {ws}, s{sE+1} offen offset:{2048*(F&1)+256*(t&1)}{' sc1' if sc1 else ''}")
def fw_add(a, c, waits):
    a(f"s_mov_b32 s{sE+2}, 0x3f80\ns_mov_b32 s{sE+3}, 0x3f800000")
    for n, (t, F) in enumerate(fw_prs(c)):
        if waits and n % 2 == 0: a(f"s_waitcnt vmcnt({14 - n})")
        for e in range(2):
            b = c.acc(t, 2 * F + e)[1]
            for i in range(4): a(f"v_dot2c_f32_bf16 v{b+i}, s{sE+2+(i&1)}, v{vXF+4*n+2*e+(i>>1)}")

def epi_fw(a, c, tag):
    lane0(a, 2, 3)
    a(f"v_mov_b32 v3, 1\nbuffer_atomic_add v3, v2, {ws}, s{sFLG} offen sc0 sc1")
    a(f"s_cmp_lg_u32 s{sTYP}, {T_F2}\ns_cbranch_scc1 {tag}_nox")
    fw_add(a, c, False)
    a.lab(tag + "_nox")
    lanes_frag(a, vE, vE + 1)
    a(f"""s_waitcnt vmcnt(0)
    v_readfirstlane_b32 s{sE+4}, v3
    s_add_u32 s{sFLG}, s{sFLG}, 4
    s_cmp_ge_u32 s{sE+4}, s{sNC}
    s_cbranch_scc1 {tag}_last
    s_lshl_b32 s{sE+4}, s{sE+4}, 22
    s_add_u32 s{sE+4}, s{sE+4}, {Y_OFF}
    s_add_u32 s{sE+4}, s{sE+4}, s{sOUT}""")
    cur = None
    for t, F in fw_prs(c):
        base = (t >> 1) * 65536 + (F >> 1) * 4096
        if base != cur: a(f"s_add_u32 s{sE+1}, s{sE+4}, {base}"); cur = base
        b0 = c.acc(t, 2 * F)[1]
        pack(a, b0, b0, b0 + 4)
        a(f"buffer_store_dwordx4 v[{b0}:{b0+3}], v{vE}, {ws}, s{sE+1} offen offset:{2048*(F&1)+256*(t&1)} sc1")
    a(f"s_branch {tag}_end")
    a.lab(tag + "_last")
    poll(a, tag + "_pd", sFLG, f"s{sNC}", 1, va=vE + 1)
    a(f"s_add_u32 s{sE+4}, s{sOUT}, {Y_OFF}\ns_mov_b32 s{sE+5}, s{sNC}")
    a.lab(tag + "_sl")
    fw_load(a, c, sE + 4, True)
    fw_add(a, c, True)
    a(f"s_add_u32 s{sE+4}, s{sE+4}, {1 << 22}\ns_sub_u32 s{sE+5}, s{sE+5}, 1\ns_cmp_lg_u32 s{sE+5}, 0\ns_cbranch_scc1 {tag}_sl")
    a(f"""v_and_b32 v{vE}, 15, v0
    v_lshlrev_b32 v{vE}, 11, v{vE}
    v_lshrrev_b32 v{vE+1}, 4, v0
    v_lshl_add_u32 v{vE}, v{vE+1}, 4, v{vE}
    s_lshl_b32 s{sE}, s{sB}, 1
    s_add_u32 s{sE}, s{sE}, s{sWM}
    s_lshl_b32 s{sE}, s{sE}, 17
    s_lshl_b32 s{sE+1}, s{sN}, 1
    s_add_u32 s{sE+1}, s{sE+1}, s{sWN}
    s_lshl_b32 s{sE+1}, s{sE+1}, 8
    s_add_u32 s{sE}, s{sE}, s{sE+1}""")
    for t in range(c.MT):
        for F in range(4): pack(a, c.acc(t, 2 * F)[1], c.acc(t, 2 * F)[1], c.acc(t, 2 * F + 1)[1])
        for F in range(4):
            b0 = c.acc(t, 2 * F)[1]
            a(f"v_permlane16_swap_b32 v{b0}, v{b0+2}\nv_permlane16_swap_b32 v{b0+1}, v{b0+3}")
        for F in range(4):
            b0 = c.acc(t, 2 * F)[1]
            a(f"buffer_store_dwordx4 v[{b0}:{b0+3}], v{vE}, s[{SO}:{SO+3}], s{sE} offen offset:{64*F}")
        if t < c.MT - 1: a(f"s_add_u32 s{sE}, s{sE}, 32768")
    a.lab(tag + "_end")

def gemm_side(a, name, table, trace=False, cs=None, cw=None):
    cs = cs or Cfg(8); cw = cw or Cfg(4, sc1=True)
    assert cs.lds <= L_TK and cw.lds <= L_TK
    n = name + "_g"
    tab = list(table) + [(T_END, 0)]
    nt = len(tab)
    by = [(t << 5) | i for t, i in tab] + [0, 0, 0]
    for k in range((nt + 3) // 4):
        wv = by[4 * k] | (by[4 * k + 1] << 8) | (by[4 * k + 2] << 16) | (by[4 * k + 3] << 24)
        a(f"s_mov_b32 s{sE}, {wv}\nv_writelane_b32 v1, s{sE}, {k}")
    assert (nt + 3) // 4 <= 64
    a(f"""v_accvgpr_write_b32 a{aTAB}, v1
    s_lshr_b32 s{sQ}, s{sG}, 5
    s_and_b32 s{sTK}, s{sG}, 31
    s_lshr_b32 s{sWM}, s{sW}, 1
    s_and_b32 s{sWN}, s{sW}, 1
    s_mov_b32 s{sSL}, -1
    s_mov_b32 s{SA}, s{WS}
    s_mov_b32 s{SA+1}, s{WS+1}
    s_mov_b32 s{SA+3}, 0x20000
    s_mov_b32 s{SB_+3}, 0x20000
    s_load_dwordx2 s[{SO}:{SO+1}], s[0:1], {A_OUT}
    s_mov_b32 s{SO+2}, {2048 * 1024 * 2}
    s_mov_b32 s{SO+3}, 0x20000""")
    if trace: a(f"s_lshl_b32 s{sTRC}, s{sG}, 9\ns_add_u32 s{sTRC}, s{sTRC}, {GTRACE_OFF}")
    def stamp(i):
        if trace: a(f"s_memrealtime s[{sTRC+2}:{sTRC+3}]\ns_waitcnt lgkmcnt(0)\ns_mov_b32 s{sTRC+4+i}, s{sTRC+2}")
        if trace and i in (1, 2): a(f"s_memtime s[{sTRC+2}:{sTRC+3}]\ns_waitcnt lgkmcnt(0)\n" + (f"s_mov_b32 s{sTRC+8}, s{sTRC+2}" if i == 1 else f"s_sub_u32 s{sTRC+8}, s{sTRC+2}, s{sTRC+8}"))
    a.lab(n + "_task")
    stamp(0)
    a(f"""s_min_u32 s{sTK}, s{sTK}, {nt - 1}
    v_accvgpr_read_b32 v1, a{aTAB}
    s_lshr_b32 s{sE}, s{sTK}, 2
    s_and_b32 s{sE+1}, s{sTK}, 3
    s_lshl_b32 s{sE+1}, s{sE+1}, 3
    v_readlane_b32 s{sE}, v1, s{sE}
    s_lshr_b32 s{sE}, s{sE}, s{sE+1}
    s_bfe_u32 s{sTYP}, s{sE}, 0x30005
    s_and_b32 s{sE}, s{sE}, 31
    s_mov_b32 s{SA+2}, {WS_BYTES}
    s_cmp_eq_u32 s{sTYP}, {T_END}
    s_cbranch_scc1 {n}_done
    s_cmp_ge_u32 s{sTYP}, {T_F2}
    s_cbranch_scc1 {n}_fw
    s_cmp_eq_u32 s{sTYP}, {T_F1}
    s_cbranch_scc1 {n}_f1
    s_lshr_b32 s{sB}, s{sE}, 2
    s_and_b32 s{sN}, s{sE}, 3
    s_lshl_b32 s{sE}, s{sQ}, 2
    s_add_u32 s{sN}, s{sN}, s{sE}
    s_mov_b32 s{sROW}, 8192
    s_mov_b32 s{sE+2}, 524288
    s_mov_b32 s{sE+4}, 14
    s_lshl_b32 s{sFLG}, s{sB}, 4
    s_add_u32 s{sFLG}, s{sFLG}, s{sN}
    s_lshl_b32 s{sFLG}, s{sFLG}, 6
    s_add_u32 s{sFLG}, s{sFLG}, {CTRL_OFF + C_KV}
    s_lshl_b32 s{sE+3}, s{sB}, 1
    s_add_u32 s{sE+3}, s{sE+3}, s{sWM}
    s_lshl_b32 s{sE+3}, s{sE+3}, 6
    s_add_u32 s{sE+3}, s{sE+3}, {CTRL_OFF + C_QA}
    s_mov_b32 s{sE}, {A_WK}
    s_mov_b32 s{sOUT}, {K_OFF}
    s_cmp_eq_u32 s{sTYP}, {T_V}
    s_cselect_b32 s{sE}, {A_WV}, s{sE}
    s_cselect_b32 s{sOUT}, {VT_OFF}, s{sOUT}
    s_cmp_eq_u32 s{sTYP}, {T_QA}
    s_cselect_b32 s{sE}, {A_WQ}, s{sE}
    s_cselect_b32 s{sOUT}, {O_OFF}, s{sOUT}
    s_cselect_b32 s{sFLG}, s{sE+3}, s{sFLG}
    s_cselect_b32 s{sE+2}, 262144, s{sE+2}
    s_cselect_b32 s{sE+4}, 13, s{sE+4}
    s_branch {n}_std
    {n}_f1:
    s_mul_i32 s{sE+1}, s{sQ}, 28
    s_add_u32 s{sE}, s{sE}, s{sE+1}
    s_and_b32 s{sB}, s{sE}, 7
    s_lshr_b32 s{sN}, s{sE}, 3
    s_mov_b32 s{sROW}, 7168
    s_mov_b32 s{sE+2}, 229376
    s_mov_b32 s{sE+4}, 13
    s_lshl_b32 s{sFLG}, s{sB}, 6
    s_add_u32 s{sFLG}, s{sFLG}, {CTRL_OFF + C_F1}
    s_mov_b32 s{sE}, {A_W1}
    s_mov_b32 s{sOUT}, {H1_OFF}
    {n}_std:
    s_load_dwordx2 s[{SB_}:{SB_+1}], s[0:1], s{sE}
    s_lshl_b32 s{SB_+2}, s{sROW}, 10
    s_mov_b32 s{sRBA}, 65536
    s_lshl_b32 s{sOA}, s{sB}, 19
    s_lshl_b32 s{sOB}, s{sN}, 9
    s_lshl_b32 s{sE}, s{sB}, 1
    s_add_u32 s{sE}, s{sE}, s{sWM}
    s_mul_i32 s{sE}, s{sE}, s{sE+2}
    s_lshl_b32 s{sE}, s{sE}, 2
    s_add_u32 s{sOUT}, s{sOUT}, s{sE}
    s_lshl_b32 s{sE}, s{sN}, 1
    s_add_u32 s{sE}, s{sE}, s{sWN}
    s_lshl_b32 s{sE}, s{sE}, s{sE+4}
    s_add_u32 s{sOUT}, s{sOUT}, s{sE}
    s_mov_b32 s{sCNT}, {32 // cs.NS}""")
    assert XN_OFF == 0
    setup(a, cs)
    a("s_waitcnt lgkmcnt(0)")
    cold_start(a, cs)
    stamp(1)
    a(f"s_cmp_eq_u32 s{sTYP}, {T_V}\ns_cbranch_scc1 {n}_v")
    main_loop(a, cs, "T", n + "_T")
    stamp(2)
    get_sel(a, n + "_s1")
    take_ticket(a, n + "_tk1")
    a(f"s_cmp_eq_u32 s{sTYP}, {T_QA}\ns_cbranch_scc1 {n}_qa\ns_cmp_eq_u32 s{sTYP}, {T_F1}\ns_cbranch_scc1 {n}_ef1")
    near_out(a)
    epi_store(a, cs, "frag", 524288)
    a(f"s_branch {n}_next")
    a.lab(n + "_ef1")
    epi_store(a, cs, "silu", 229376)
    a(f"s_branch {n}_next")
    a.lab(n + "_qa")
    epi_qa(a, cs, n + "_qa")
    a(f"s_branch {n}_next")
    a.lab(n + "_v")
    main_loop(a, cs, "N", n + "_N")
    stamp(2)
    get_sel(a, n + "_s2")
    take_ticket(a, n + "_tk2")
    near_out(a)
    epi_store(a, cs, "vt", 524288)
    a(f"s_branch {n}_next")
    a.lab(n + "_fw")
    a(f"""s_mov_b32 s{sB}, s{sE}
    s_mov_b32 s{sN}, s{sQ}
    s_mov_b32 s{sROW}, 2048
    s_mov_b32 s{sNC}, 1
    s_lshl_b32 s{sFLG}, s{sB}, 2
    s_add_u32 s{sFLG}, s{sFLG}, s{sN}
    s_lshl_b32 s{sFLG}, s{sFLG}, 2
    s_add_u32 s{sFLG}, s{sFLG}, s{sW}
    s_lshl_b32 s{sFLG}, s{sFLG}, 6
    s_add_u32 s{sFLG}, s{sFLG}, {CTRL_OFF + C_FW}
    s_lshl_b32 s{sOB}, s{sN}, 9""")
    fw_addr(a)
    a(f"""s_cmp_eq_u32 s{sTYP}, {T_F2}
    s_cbranch_scc0 {n}_wo
    s_load_dwordx2 s[{SB_}:{SB_+1}], s[0:1], {A_W2}
    s_mov_b32 s{SB_+2}, {3584 * 2048}
    s_mov_b32 s{sRBA}, 229376
    s_mul_i32 s{sOA}, s{sB}, {4 * 229376}
    s_add_u32 s{sOA}, s{sOA}, {H1_OFF}
    s_mov_b32 s{sCNT}, {112 // cw.NS}
    s_add_u32 s{sE}, s{sOUT}, {XF_OFF}""")
    lanes_frag(a, vE, vE + 1)
    fw_load(a, cw, sE, False)
    a(f"""s_lshr_b32 s{sE}, s{sB}, 1
    s_lshl_b32 s{sE}, s{sE}, 6
    s_add_u32 s{sE}, s{sE}, {CTRL_OFF + C_F1}
    s_mov_b32 s{sE+1}, 56
    s_branch {n}_fw2
    {n}_wo:
    s_load_dwordx2 s[{SB_}:{SB_+1}], s[0:1], {A_WO}
    s_mov_b32 s{SB_+2}, {4096 * 2048}
    s_mov_b32 s{sRBA}, 262144
    s_lshl_b32 s{sOA}, s{sB}, 20
    s_add_u32 s{sOA}, s{sOA}, {O_OFF}
    s_mov_b32 s{sCNT}, {128 // cw.NS}
    s_lshl_b32 s{sE}, s{sB}, 6
    s_add_u32 s{sE}, s{sE}, {CTRL_OFF + C_QA}
    s_mov_b32 s{sE+1}, 32
    {n}_fw2:""")
    poll(a, n + "_pfw", sE, f"s{sE+1}")
    setup(a, cw)
    a("s_waitcnt lgkmcnt(0)")
    cold_start(a, cw)
    stamp(1)
    main_loop(a, cw, "T", n + "_W")
    stamp(2)
    take_ticket(a, n + "_tk3")
    epi_fw(a, cw, n + "_efw")
    a.lab(n + "_next")
    lane0(a, 2, 3)
    a(f"""v_mov_b32 v3, 1
    s_waitcnt vmcnt(0)
    buffer_atomic_add v3, v2, {ws}, s{sFLG} offen sc1""")
    if trace:
        stamp(3)
        a(f"s_cmp_lg_u32 s{sW}, 0\ns_cbranch_scc1 {n}_ntr")
        for i in range(4): a(f"v_mov_b32 v{4+i}, s{sTRC+4+i}")
        a(f"s_lshl_b32 s{sE}, s{sTK}, 8\ns_or_b32 s{sE}, s{sE}, s{sTYP}\nv_mov_b32 v8, s{sE}\nv_mov_b32 v9, s{sTRC+8}")
        a(f"buffer_store_dwordx4 v[4:7], v2, {ws}, s{sTRC} offen\nbuffer_store_dwordx2 v[8:9], v2, {ws}, s{sTRC} offen offset:16\ns_add_u32 s{sTRC}, s{sTRC}, 32")
        a.lab(n + "_ntr")
    a(f"""s_cmp_lg_u32 s{sW}, 0
    s_cbranch_scc1 {n}_nw
    v_mov_b32 v2, {L_TK}
    v_readfirstlane_b32 s{sE}, v{vTKT}
    v_mov_b32 v{vTKT}, s{sE}
    ds_write_b32 v2, v{vTKT}
    s_waitcnt lgkmcnt(0)
    {n}_nw:
    s_barrier
    v_mov_b32 v2, {L_TK}
    ds_read_b32 v{vTKT}, v2
    s_waitcnt lgkmcnt(0)
    v_readfirstlane_b32 s{sTK}, v{vTKT}
    s_add_u32 s{sTK}, s{sTK}, 32
    s_branch {n}_task""")
    a.lab(n + "_done")
```

```python
from asmlib import *
from layout import *
from g2 import Cfg, pieces, reads, rebias, VM, lanes_frag, lanes_vt, getreg, pack, ACC0, PAD, CSC, NEG
import g2

WS = 4
sW, sG, sBUD = 14, 16, 17
sTYP, sB, sN, sFLG, sNC, sOUT, sCUR, sNXT = 18, 19, 20, 21, 22, 23, 24, 25
sDEP, sDMK, sCOLD, sPFL = 26, 27, 28, 29
sWM, sWN, sSL, sQ = 32, 33, 34, 35
sSV, sPI = 59, 61
sLST = 36
SA, SB_ = 44, 48
sOA, sOB, sWB, sSTB, sCNT = 52, 53, 54, 55, 56
sRBA, sROW, sWA = 57, 58, 60
sE = 62
SO = 72
sTRC = 76
sWP = 86
assert (g2.SA, g2.SB_, g2.sOA, g2.sOB, g2.sWB, g2.sSTB, g2.sWA) == (SA, SB_, sOA, sOB, sWB, sSTB, 61)
g2.sWA = sWA
vAR, vBR, vDA, vDB, vE = 1, 2, 4, 6, 10
vFA, vFD, vDL, vDV, vORD = 10, 11, 13, 14, 15
aSTA, aSEL = 240, 248
ws = f"s[{WS}:{WS+3}]"
T_K, T_V, T_QA, T_F1, T_F2, T_WO, T_F2E, T_KH, T_VH, T_QS, T_TW, T_SUM, T_END = 0, 1, 2, 3, 4, 5, 6, 7, 8, 9, 10, 11, 15
TN = {0: "K", 1: "V", 2: "QA", 3: "F1", 4: "F2", 5: "WO", 6: "F2E", 7: "KH", 8: "VH", 9: "QS", 10: "TW", 11: "SUM", 15: "END"}
NLIST = 10
LDS_BYTES = 4 * 33792
def desc(t, b=0, n=0, k0=0, kl=0):
    return t | b << 4 | n << 7 | k0 << 11 | kl << 15
def with_sum(d, b, n): return d | 1 << 26 | b << 27 | n << 30
def bfe(a, d, s, off, w): a(f"s_bfe_u32 s{d}, s{s}, {hex(w << 16 | off)}")

def lane_setup(a, c):
    a(f"""
    v_lshrrev_b32 v{vE}, 4, v0                    ; g
    v_and_b32 v{vE+1}, 15, v0
    s_mul_i32 s{sE}, s{sWM}, {c.MT // 2 * 2048}
    v_lshl_add_u32 v{vAR}, v{vE}, 9, s{sE}
    v_lshl_add_u32 v{vAR}, v{vE+1}, 4, v{vAR}
    v_lshrrev_b32 v{vE+1}, 5, v0
    v_lshlrev_b32 v{vE+1}, 4, v{vE+1}
    v_and_b32 v{vE}, 1, v{vE}
    v_lshl_add_u32 v{vE+1}, v{vE}, 2, v{vE+1}
    v_bfe_u32 v{vE}, v0, 2, 2
    v_add_u32 v{vE+1}, v{vE+1}, v{vE}             ; k row
    v_bfe_u32 v{vE+2}, v0, 1, 1
    v_lshlrev_b32 v{vE+2}, 5, v{vE+2}
    v_and_b32 v{vE+3}, 1, v0
    v_lshl_add_u32 v{vE+2}, v{vE+3}, 3, v{vE+2}
    s_mov_b32 s{sE}, {PAD}
    v_lshrrev_b32 v{vE+3}, 1, v{vE+1}
    v_mad_u32_u24 v{vE+2}, v{vE+3}, s{sE}, v{vE+2}
    v_and_b32 v{vE+3}, 1, v{vE+1}
    v_lshl_add_u32 v{vE+2}, v{vE+3}, 9, v{vE+2}
    v_lshl_add_u32 v{vBR}, v{vE+3}, 4, v{vE+2}
    s_lshl_b32 s{sE}, s{sWN}, 8
    s_add_u32 s{sE}, s{sE}, {c.AB}
    v_add_u32 v{vBR}, s{sE}, v{vBR}
    v_xor_b32 v{vBR+1}, 16, v{vBR}
    s_mul_i32 s{sWA}, s{sW}, {c.PA * 1024}
    s_mul_i32 s{sWB}, s{sW}, {c.PB * PAD}
    s_add_u32 s{sWB}, s{sWB}, {c.AB}
    """)

def stream_lanes(a, c, t=12):
    a(f"""s_mul_i32 s{sE}, s{sW}, {c.PA // 2}
    s_mul_i32 s{sE}, s{sE}, s{sRBA}
    v_lshl_add_u32 v{vDA}, v0, 4, s{sE}""")
    if c.PA == 4: a(f"s_sub_u32 s{sE}, s{sRBA}, 2048\nv_add_u32 v{vDA+1}, s{sE}, v{vDA}")
    a(f"""v_lshrrev_b32 v{t}, 5, v0
    v_and_b32 v{vDB}, 31, v0
    v_xor_b32 v{vDB}, v{vDB}, v{t}
    v_lshlrev_b32 v{vDB}, 4, v{vDB}
    s_lshl_b32 s{sE}, s{sW}, 3
    v_add_u32 v{t}, s{sE}, v{t}
    v_mad_u32_u24 v{vDB}, v{t}, s{sROW}, v{vDB}
    s_lshl_b32 s{sE}, s{sROW}, 1
    s_sub_u32 s{sE}, s{sE}, {PAD}
    v_add_u32 v{vDB+1}, s{sE}, v{vDB}
    v_add_u32 v{vDB+2}, s{sE}, v{vDB+1}
    v_add_u32 v{vDB+3}, s{sE}, v{vDB+2}
    s_lshl_b32 s{sSTB}, s{sROW}, 5""")

def stream_switch(a, c, d, lab):
    t, b, n, k = sE + 1, sE + 2, sE + 3, sE + 4
    a(f"s_and_b32 s{t}, s{d}, 15")
    bfe(a, b, d, 4, 3); bfe(a, n, d, 7, 4); bfe(a, k, d, 11, 4)
    a(f"""s_mov_b32 s{SA+2}, {WS_BYTES}
    s_lshl_b32 s{sOB}, s{n}, 9
    s_sub_u32 s{sE}, s{t}, {T_F2}
    s_cmp_lt_u32 s{sE}, 3
    s_cbranch_scc1 {lab}_fw
    s_lshl_b32 s{sOA}, s{b}, 19
    s_mov_b32 s{sRBA}, 65536
    s_mov_b64 s[{SB_}:{SB_+1}], s[{sWP+4}:{sWP+5}]
    s_cmp_eq_u32 s{t}, {T_K}
    s_cselect_b64 s[{SB_}:{SB_+1}], s[{sWP}:{sWP+1}], s[{SB_}:{SB_+1}]
    s_cmp_eq_u32 s{t}, {T_V}
    s_cselect_b64 s[{SB_}:{SB_+1}], s[{sWP+2}:{sWP+3}], s[{SB_}:{SB_+1}]
    s_cmp_eq_u32 s{t}, {T_F1}
    s_cselect_b64 s[{SB_}:{SB_+1}], s[{sWP+6}:{sWP+7}], s[{SB_}:{SB_+1}]
    s_cselect_b32 s{sROW}, 7168, 0
    s_cselect_b32 s{sE}, 0, 8192
    s_or_b32 s{sROW}, s{sROW}, s{sE}
    s_lshl_b32 s{SB_+2}, s{sROW}, 10
    s_branch {lab}_l
    {lab}_fw:
    s_lshl_b32 s{sE}, s{k}, 19
    s_add_u32 s{sOB}, s{sOB}, s{sE}
    s_mov_b32 s{sROW}, 2048
    s_cmp_eq_u32 s{t}, {T_WO}
    s_cselect_b64 s[{SB_}:{SB_+1}], s[{sWP+10}:{sWP+11}], s[{sWP+8}:{sWP+9}]
    s_mov_b32 s{SB_+2}, {3584 * 2048}
    s_cselect_b32 s{SB_+2}, {4096 * 2048}, s{SB_+2}
    s_mov_b32 s{sRBA}, 229376
    s_cselect_b32 s{sRBA}, 262144, s{sRBA}
    s_mov_b32 s{sOA}, {H1_OFF}
    s_cselect_b32 s{sOA}, {O_OFF}, s{sOA}
    s_mul_i32 s{sE}, s{b}, s{sRBA}
    s_lshl_b32 s{sE}, s{sE}, 3
    s_add_u32 s{sOA}, s{sOA}, s{sE}
    s_lshl_b32 s{sE}, s{k}, 14
    s_add_u32 s{sOA}, s{sOA}, s{sE}
    {lab}_l:""")
    stream_lanes(a, c)

def lane0(a, v, tmp, sp=sE):
    a(f"v_mov_b32 v{v}, {OOB}\nv_mov_b32 v{tmp}, 0\nv_cmp_eq_u32 s[{sp}:{sp+1}], 0, v0\nv_cndmask_b32 v{v}, v{v}, v{tmp}, s[{sp}:{sp+1}]")
def fw_flag(a, d, b=sB, n=sN):
    a(f"""s_lshl_b32 s{d}, s{b}, 2
    s_add_u32 s{d}, s{d}, s{n}
    s_lshl_b32 s{d}, s{d}, 2
    s_add_u32 s{d}, s{d}, s{sW}
    s_lshl_b32 s{d}, s{d}, 6
    s_add_u32 s{d}, s{d}, {CTRL_OFF + C_FW}""")
DEPLD = f"buffer_load_dword v{vDV}, v{vDL}, {ws}, s{sDEP} offen sc1"
def notready(a):
    a(f"v_cmp_gt_u32 s[{sE}:{sE+1}], 4, v{vDV}\ns_and_b32 s{sE}, s{sE}, s{sDMK}")

def hook(a, c, lab, form):
    a(f"s_cmp_eq_u32 s{sCNT}, 1\ns_cbranch_scc0 {lab}_s")
    notready(a)
    a(f"""s_cselect_b32 s{sCOLD}, 1, s{sCOLD}
    s_cmp_eq_u32 s{sCOLD}, 0
    s_cbranch_scc1 {lab}_w
    s_mov_b32 s{SA+2}, 0
    s_mov_b32 s{SB_+2}, 0
    s_branch {lab}_s
    {lab}_w:""")
    stream_switch(a, c, sNXT, lab)
    a.lab(lab + "_s")
    a(DEPLD)

def stage(a, c, slot, form, first=False, top=None, pre=None):
    p = slot & 1
    fill = [[] for _ in range(c.M)]
    nslot = (slot + 1) % c.NS
    items = reads(c, nslot, p ^ 1) + rebias(c, nslot, (nslot + 1) % c.NS)
    pc = pieces(c, slot)
    span = c.M - c.r0 - 4
    st = min(c.rstep, span / len(items))
    dg = [min(c.M - 1, (i * c.M) // c.P + 1) for i in range(len(pc))]
    for i, x in enumerate(items):
        fill[min(c.M - 1, c.r0 + int(i * st))].append(x)
    for gp, x in zip(dg, pc):
        if "m0" in x[0] and gp > 0 and not any(y.startswith("buffer") for y in fill[gp - 1] + fill[gp]):
            fill[gp - 1].append(x[0]); x = x[1:]
        fill[gp] += x[:1] if x[0].startswith("buffer") else x[:2]
        rest = x[1:] if x[0].startswith("buffer") else x[2:]
        fill[min(c.M - 1, gp + 1)] += rest
    if top == "relax":
        L = a.newlab("rx")
        a(f"s_waitcnt vmcnt({(c.NS - 2) * c.P + 32}) lgkmcnt(0)\ns_cbranch_vccnz {L}\ns_waitcnt vmcnt({(c.NS - 2) * c.P})\n{L}:\ns_barrier")
    else:
        a(f"s_waitcnt vmcnt({(c.NS - 2) * c.P}) lgkmcnt(0)\ns_barrier")
    if pre: pre()
    n = 0
    for t in range(c.MT):
        for f0 in range(c.NT):
            f = f0 if t % 2 == 0 else c.NT - 1 - f0
            A, B = (c.wf(p, f), c.xf(p, t)) if form == "T" else (c.xf(p, t), c.wf(p, f))
            a(f"v_mfma_f32_16x16x32_bf16 {c.accs(t, f)}, {A}, {B}, {'0' if first else c.accs(t, f)}")
            for x in fill[n]: a(x)
            n += 1

PUB = f"buffer_atomic_add v{vFD}, v{vFA}, {ws}, s{sPFL} offen sc1"
def main_loop(a, c, form, tag):
    def pub():
        L = a.newlab("pb")
        a(f"s_cbranch_vccz {L}\n{PUB}\ns_mov_b64 vcc, 0\n{L}:")
    a.lab(tag + "_f")
    stage(a, c, 0, form, True, "relax", lambda: a(DEPLD))
    a(".p2align 3")
    a.lab(tag + "_l")
    stage(a, c, 1, form, top="relax"); stage(a, c, 2, form, top="relax"); stage(a, c, 3, form, pre=pub)
    a(f"s_sub_u32 s{sCNT}, s{sCNT}, 1\ns_cmp_eq_u32 s{sCNT}, 0\ns_cbranch_scc1 {tag}_x")
    a.lab(tag + "_c")
    stage(a, c, 0, form, pre=lambda: hook(a, c, tag + "_h", form))
    a(f"s_branch {tag}_l")
    a.lab(tag + "_x")
    a(f"v_readlane_b32 s{sSV}, v{vDV}, 32")

def half_loop(a, c, form, tag):
    L = f"{tag}_l"
    kill = lambda: a(f"s_cmp_eq_u32 s{sCNT}, 1\ns_cselect_b32 s{SA+2}, 0, s{SA+2}\ns_cselect_b32 s{SB_+2}, 0, s{SB_+2}\n{DEPLD}")
    stage(a, c, 0, form, True)
    a(".p2align 3")
    a.lab(L)
    for s in range(1, c.NS): stage(a, c, s, form)
    a(f"s_sub_u32 s{sCNT}, s{sCNT}, 1\ns_cmp_eq_u32 s{sCNT}, 0\ns_cbranch_scc1 {tag}_x")
    stage(a, c, 0, form, pre=kill)
    a(f"s_branch {L}")
    a.lab(f"{tag}_x")
    a(f"""v_readfirstlane_b32 s{sE}, v{vDV}
    s_and_b32 s{sE+1}, s{sE}, 2
    s_lshl_b32 s{sE+1}, s{sE+1}, 12
    s_cmp_eq_u32 s{sE}, 0
    s_cselect_b32 s{sSL}, s{sSL}, s{sE+1}""")

def cold_dma(a, c):
    for s in range(c.NS):
        for g in pieces(c, s):
            for x in g: a(x)

def spin(a, lab, out):
    a(f"""s_cmp_eq_u32 s{sBUD}, 0
    s_cbranch_scc1 {out}
    s_sub_u32 s{sBUD}, s{sBUD}, 1
    s_branch {lab}""")
def poll(a, lab, soff, val, n=1, va=vE, vd=12):
    x = {1: "dword", 2: "dwordx2"}[n]
    d = f"v{vd}" if n == 1 else f"v[{vd}:{vd+n-1}]"
    a(f"v_mov_b32 v{va}, 0")
    a.lab(lab)
    a(f"buffer_load_{x} {d}, v{va}, {ws}, s{soff} offen sc1\ns_waitcnt vmcnt(0)")
    if n == 2: a(f"v_and_b32 v{vd+1}, 32, v{vd+1}\nv_lshlrev_b32 v{vd+1}, 1, v{vd+1}\nv_max_u32 v{vd}, v{vd}, v{vd+1}")
    a(f"v_readfirstlane_b32 s{sE+9}, v{vd}\ns_cmp_ge_u32 s{sE+9}, {val}\ns_cbranch_scc1 {lab}_d")
    spin(a, lab, lab + "_d")
    a.lab(lab + "_d")
def get_sel(a, lab):
    a(f"s_cmp_lg_u32 s{sSL}, -1\ns_cbranch_scc1 {lab}_k\ns_mov_b32 s{sE}, {CTRL_OFF + C_SEL}")
    poll(a, lab, sE, 1)
    a(f"s_and_b32 s{sSL}, s{sE+9}, 2\ns_lshl_b32 s{sSL}, s{sSL}, 12")
    a.lab(lab + "_k")

def tile_out(a, base, rmul, csh, half=False):
    a(f"""s_lshl_b32 s{sE}, s{sB}, 1
    s_add_u32 s{sE}, s{sE}, s{sWM}
    s_mul_i32 s{sE}, s{sE}, {rmul}
    s_lshl_b32 s{sE+1}, s{sN}, 1
    s_add_u32 s{sE+1}, s{sE+1}, s{sWN}
    s_lshl_b32 s{sE+1}, s{sE+1}, {csh}
    s_add_u32 s{sOUT}, s{sE}, s{sE+1}""")
    if base: a(f"s_add_u32 s{sOUT}, s{sOUT}, {base}")
def epi_store(a, c, kind, rstride, sbase=sOUT):
    if kind == "vt":
        lanes_vt(a, vE, vE + 1)
        prs = [((t, f), (t + 1, f)) for t in range(0, c.MT, 2) for f in range(c.NT)]
    else:
        lanes_frag(a, vE, vE + 1)
        prs = [((t, f), (t, f + 1)) for t in range(c.MT) for f in range(0, c.NT, 2)]
        prs.sort(key=lambda p: (p[0][0] >> 1, p[0][1] >> 2, p[0][0] & 1))
    if kind == "silu":
        a(f"s_mov_b32 s{sE+2}, 0xbfb8aa3b\ns_mov_b32 s{sE+3}, 0xbfb8aa3b\ns_mov_b32 s{sE+4}, 1.0\ns_mov_b32 s{sE+5}, 1.0")
    cur = None
    for (t, f), (t2, f2) in prs:
        base = (t >> 1) * rstride + (f >> 2) * 4096
        off = ((f >> 1) & 1) * 2048 + ((f & 1) * 128 if kind == "vt" else (t & 1) * 256)
        if base != cur: a(f"s_add_u32 s{sE}, s{sbase}, {base}"); cur = base
        b0 = getreg(a, c, t, f, ACC0); b1 = getreg(a, c, t2, f2, ACC0 + 4)
        if kind == "silu":
            for b in (b0, b1):
                for o, q in ((0, 12), (2, 14)): a(f"v_pk_mul_f32 v[{q}:{q+1}], v[{b+o}:{b+o+1}], s[{sE+2}:{sE+3}]")
                for q in (12, 13, 14, 15): a(f"v_exp_f32 v{q}, v{q}")
                for q in (12, 14): a(f"v_pk_add_f32 v[{q}:{q+1}], v[{q}:{q+1}], s[{sE+4}:{sE+5}]")
                for q in (12, 13, 14, 15): a(f"v_rcp_f32 v{q}, v{q}")
                for o, q in ((0, 12), (2, 14)): a(f"v_pk_mul_f32 v[{b+o}:{b+o+1}], v[{b+o}:{b+o+1}], v[{q}:{q+1}]")
        pack(a, b0, b0, b1)
        a(f"buffer_store_dwordx4 v[{b0}:{b0+3}], v{vE}, {ws}, s{sE} offen offset:{off} sc1")
def row_flag(a, base):
    a(f"s_lshl_b32 s{sFLG}, s{sB}, 4\ns_add_u32 s{sFLG}, s{sFLG}, s{sN}\ns_lshl_b32 s{sFLG}, s{sFLG}, {6 if base == C_KV else 2}\ns_add_u32 s{sFLG}, s{sFLG}, {CTRL_OFF + base}")
def epi_kv(a, c, v, lab):
    get_sel(a, lab)
    if c.MT == 8:
        tile_out(a, VT_OFF if v else K_OFF, 4 * 524288, 14)
        a(f"s_lshl_b32 s{sE}, s{sWM}, 13")
    else:
        tile_out(a, VT_OFF if v else K_OFF, 2 * 524288, 14)
        a(f"s_and_b32 s{sE}, s{sB}, 1\ns_lshl_b32 s{sE}, s{sE}, 13\ns_lshr_b32 s{sB}, s{sB}, 1")
    a(f"s_xor_b32 s{sE}, s{sE}, s{sSL}\ns_add_u32 s{sOUT}, s{sOUT}, s{sE}")
    row_flag(a, C_KV)
    epi_store(a, c, "vt" if v else "frag", 524288)

def epi_park(a, c):
    tile_out(a, Y_OFF, 4 * 65536, 13)
    a(f"s_lshl_b32 s{sE}, s{sQ}, 22\ns_add_u32 s{sOUT}, s{sOUT}, s{sE}")
    fw_flag(a, sFLG)
    epi_store(a, c, "frag", 65536)

def sum_fields(a, b, n): bfe(a, b, sCUR, 27, 3); bfe(a, n, sCUR, 30, 2)
def sum_part(a, tag):
    sb, sn, sR, sC = sE + 4, sE + 5, sE + 6, sE + 7
    D, L = 176, 16
    sum_fields(a, sb, sn)
    a(f"s_cmp_ge_u32 s{sSV}, 4\ns_cbranch_scc1 {tag}_k")
    fw_flag(a, sE, sb, sn)
    poll(a, tag + "_p", sE, 4)
    a.lab(tag + "_k")
    lanes_frag(a, vE, vE + 1)
    a(f"""s_lshl_b32 s{sR}, s{sb}, 1
    s_add_u32 s{sR}, s{sR}, s{sWM}
    s_lshl_b32 s{sR}, s{sR}, 2
    s_add_u32 s{sR}, s{sR}, s{sQ}
    s_lshl_b32 s{sR}, s{sR}, 16
    s_lshl_b32 s{sC}, s{sn}, 1
    s_add_u32 s{sC}, s{sC}, s{sWN}
    s_lshl_b32 s{sE}, s{sC}, 13
    s_add_u32 s{sE}, s{sE}, s{sR}""")
    n = 0; order = []
    for src in range(5):
        for Fh in range(2):
            a(f"s_add_u32 s{sE+1}, s{sE}, {(XF_OFF if src == 0 else Y_OFF + (src - 1) * 4 * MB) + 4096 * Fh}")
            for t in range(2):
                for F in (2 * Fh, 2 * Fh + 1):
                    a(f"buffer_load_dwordx4 v[{L+4*n}:{L+4*n+3}], v{vE}, {ws}, s{sE+1} offen offset:{2048*(F&1)+256*t}")
                    order.append((src, t, F)); n += 1
    a(f"""v_and_b32 v{vE}, 15, v0
    v_lshlrev_b32 v{vE}, 11, v{vE}
    v_lshrrev_b32 v{vE+1}, 4, v0
    v_lshl_add_u32 v{vE}, v{vE+1}, 4, v{vE}
    s_lshl_b32 s{sC}, s{sC}, 8
    s_add_u32 s{sR}, s{sR}, s{sC}""")
    acc = lambda t, F, e: D + 32 * t + 8 * F + 4 * e
    for n, (src, t, F) in enumerate(order):
        if n % 2 == 0: a(f"s_waitcnt vmcnt({38 - n})")
        for e in range(2):
            d = f"v[{acc(t,F,e)}:{acc(t,F,e)+3}]"
            a(f"v_mfma_f32_16x16x32_bf16 {d}, a[{aSEL+4*e}:{aSEL+4*e+3}], v[{L+4*n}:{L+4*n+3}], {d if src else 0}")
    for t in range(2):
        bs = [acc(t, F, 0) for F in range(4)]
        for b0 in bs: pack(a, b0, b0, b0 + 4)
        for b0 in bs: a(f"v_permlane16_swap_b32 v{b0}, v{b0+2}\nv_permlane16_swap_b32 v{b0+1}, v{b0+3}")
        for F, b0 in enumerate(bs): a(f"buffer_store_dwordx4 v[{b0}:{b0+3}], v{vE}, s[{SO}:{SO+3}], s{sR} offen offset:{64*F}")
        if t == 0: a(f"s_add_u32 s{sR}, s{sR}, 32768")

sPA, sPT = 30, 31
def epi_qa(a, c, tag, stream=False):
    a("s_waitcnt lgkmcnt(0)")
    for i in range(8): a(f"v_accvgpr_write_b32 a{aSTA+i}, v{2+i}")
    tile_out(a, O_OFF, 4 * 262144, 13)
    if not stream: row_flag(a, C_QA)
    vKA, vVA, vKM, vVM = 2, 3, 4, 5
    vMD, vMM, vM0, vM1, vS0, vS1 = 6, 12, 10, 11, 10, 11
    sKA, sVA, sKM, sVM, sC = sE, sE + 2, sE + 4, sE + 5, sE + 6
    a(f"""s_lshl_b32 s{sE}, s{sN}, 1
    s_add_u32 s{sE}, s{sE}, s{sWN}              ; head
    s_lshl_b32 s{sE+1}, s{sB}, 1
    s_add_u32 s{sE+1}, s{sE+1}, s{sWM}
    s_lshr_b32 s{sE+2}, s{sE}, 3
    s_lshl_b32 s{sE+2}, s{sE+2}, 8
    s_add_u32 s{sPA}, s{sE+2}, {CTRL_OFF + C_PROG}
    s_lshl_b32 s{sPT}, s{sE+1}, 2""")
    if stream:
        a(f"""s_and_b32 s{sFLG}, s{sPT}, 31
        s_lshl_b32 s{sFLG}, s{sFLG}, 2
        s_lshr_b32 s{sE+3}, s{sN}, 2
        s_add_u32 s{sFLG}, s{sFLG}, s{sE+3}
        s_lshl_b32 s{sFLG}, s{sFLG}, 6
        s_add_u32 s{sFLG}, s{sFLG}, {CTRL_OFF + C_OS}
        s_lshl_b32 s{sE+3}, s{sB}, 3""")
    else: a(f"s_add_u32 s{sE+3}, s{sPT}, 4")
    poll(a, tag + "_pp", sPA, f"s{sE+3}", 2)
    assert (KM_OFF >> 21) % 2 == 0 and (VM_OFF >> 21) % 2 == 0 and (K_OFF >> 21) % 2 == 0 and (VT_OFF >> 21) % 2 == 0
    a(f"""s_lshl_b32 s{sE+2}, s{sE+1}, 19
    s_lshr_b32 s{sE+3}, s{sE}, 2
    s_lshl_b32 s{sE+3}, s{sE+3}, 14
    s_add_u32 s{sE+2}, s{sE+2}, s{sE+3}
    s_and_b32 s{sE+3}, s{sE}, 3
    s_lshl_b32 s{sE+3}, s{sE+3}, 11
    s_add_u32 s{sE+2}, s{sE+2}, s{sE+3}
    s_lshl_b32 s{sE+3}, s{sB}, 12
    s_xor_b32 s{sE+3}, s{sE+3}, s{sSL}
    s_and_b32 s{sE+3}, s{sE+3}, 8192
    s_add_u32 s{sE+2}, s{sE+2}, s{sE+3}
    s_add_u32 s{sKM}, s{sE+2}, {KM_OFF}
    s_add_u32 s{sVM}, s{sE+2}, {VM_OFF}
    s_lshl_b32 s{sE+1}, s{sE+1}, 21
    s_lshl_b32 s{sE}, s{sE}, 14
    s_add_u32 s{sE}, s{sE}, s{sE+1}
    s_lshl_b32 s{sE+1}, s{sWM}, 13
    s_xor_b32 s{sE+1}, s{sE+1}, s{sSL}
    s_add_u32 s{sE}, s{sE}, s{sE+1}
    s_add_u32 s{sVA}, s{sE}, {VT_OFF}
    s_add_u32 s{sVA+1}, s{sVA}, 4096
    s_add_u32 s{sKA}, s{sE}, {K_OFF}
    s_add_u32 s{sKA+1}, s{sKA}, 4096
    s_mov_b32 s{sC}, {CSC}
    s_mov_b32 s{sC+1}, {CSC}""")
    lanes_frag(a, vKA, 10); lanes_vt(a, vVA, 10)
    a(f"""v_lshrrev_b32 v10, 4, v0                ; g
    v_and_b32 v11, 15, v0                         ; m
    v_lshlrev_b32 v{vKM}, 7, v10
    v_lshl_add_u32 v{vKM}, v11, 4, v{vKM}
    v_mov_b32 v12, {OOB}
    v_cmp_gt_u32 vcc, 8, v11
    v_cndmask_b32 v{vKM}, v12, v{vKM}, vcc
    v_lshrrev_b32 v13, 3, v11
    v_lshlrev_b32 v13, 8, v13
    v_lshl_add_u32 v13, v10, 3, v13
    v_and_b32 v14, 7, v0
    v_lshl_add_u32 v{vVM}, v14, 4, v13
    v_cmp_gt_u32 vcc, 2, v10
    v_cndmask_b32 v{vVM}, v12, v{vVM}, vcc""")
    vm = VM(a)
    sets = (144, 0)
    Kr = lambda s, kt, F: sets[s & 1] + 16 * kt + 4 * F
    KMr = lambda s, F: sets[s & 1] + 32 + 4 * F
    Vr = lambda s, F, e: sets[s & 1] + 48 + 12 * F + 6 * e
    def loadKM(s):
        return [(f"buffer_load_dwordx4 a[{KMr(s,F)}:{KMr(s,F)+3}], v{vKM}, {ws}, s{sKM} offen offset:{512*F} sc1", ("KM", s)) for F in range(4)] + [(f"s_add_u32 s{sKM}, s{sKM}, 131072", None)]
    def loadVM(s):
        return [(f"buffer_load_dwordx2 a[{Vr(s,F,e)}:{Vr(s,F,e)+1}], v{vVM}, {ws}, s{sVM} offen offset:{512*F+128*e} sc1", ("VM", s)) for F in range(4) for e in range(2)] + [(f"s_add_u32 s{sVM}, s{sVM}, 131072", None)]
    def loadK(s):
        r = [] if stream else loadKM(s)
        for F in range(4):
            for kt in range(2):
                r.append((f"buffer_load_dwordx4 a[{Kr(s,kt,F)}:{Kr(s,kt,F)+3}], v{vKA}, {ws}, s{sKA+(F>>1)} offen offset:{2048*(F&1)+256*kt}", ("K", s)))
        r.append((f"s_add_u32 s{sKA}, s{sKA}, 524288\ns_add_u32 s{sKA+1}, s{sKA+1}, 524288", None))
        return r
    def loadV(s):
        r = [] if stream else loadVM(s)
        for F in range(4):
            for e in range(2):
                b = Vr(s, F, e)
                r.append((f"buffer_load_dwordx4 a[{b+2}:{b+5}], v{vVA}, {ws}, s{sVA+(F>>1)} offen offset:{2048*(F&1)+128*e}", ("V", s)))
        r.append((f"s_add_u32 s{sVA}, s{sVA}, 524288\ns_add_u32 s{sVA+1}, s{sVA+1}, 524288", None))
        return r
    def emit(x):
        if x[1] is None: a(x[0])
        else: vm.op(*x)
    for x in loadK(0) + loadV(0): emit(x)
    a(f"v_mov_b32 v12, {NEG}\nv_lshlrev_b32 v13, 2, v10")
    for i in range(4):
        a(f"v_add_u32 v14, {i}, v13\nv_cmp_gt_u32 vcc, v14, v11\nv_cndmask_b32 v{vMD+i}, 0, v12, vcc")
    a(f"v_cmp_le_u32 vcc, 2, v10\nv_cndmask_b32 v12, 0, v12, vcc\nv_mov_b32 v13, v12\nv_mov_b32 v14, v12\nv_mov_b32 v15, v12")
    free = []; Q = {}
    pend = loadK(1) + loadV(1)
    for t in range(8):
        for F in range(4):
            k0, b0 = c.acc(t, 2 * F); k1, b1 = c.acc(t, 2 * F + 1)
            if k0 == "v":
                pack(a, b0, b0, b1); Q[t, F] = b0; free.append(b1)
            else:
                x, y = free.pop(0), free.pop(0)
                getreg(a, c, t, 2 * F, x); getreg(a, c, t, 2 * F + 1, y)
                pack(a, x, x, y); Q[t, F] = x; free.append(y)
            if t >= 1 and pend: emit(pend.pop(0))
            if t >= 4 and pend: emit(pend.pop(0))
    for x in pend: emit(x)
    R = lambda b, n=4: f"v[{b}:{b+n-1}]"
    A = lambda b, n=4: f"a[{b}:{b+n-1}]"
    if stream:
        X, Y = free.pop(), free.pop()
        lane0(a, X + 1, X, sE + 8)
        a(f"v_mov_b32 v{Y}, 1\ns_add_u32 s{sPT}, s{sPT}, 1")
        poll(a, tag + "_p0", sPA, f"s{sPT}", 2, va=X, vd=X + 2)
        a(f"s_mov_b32 s{sNC}, s{sE+9}")
        vm.q = []
        for z in loadKM(0) + loadVM(0): emit(z)
    FLAG = lambda: f"buffer_atomic_add v{Y}, v{X+1}, {ws}, s{sFLG} offen sc1\ns_add_u32 s{sFLG}, s{sFLG}, 256"
    for s in range(4):
        t0, t1 = 2 * s, 2 * s + 1
        D0, M0, E0, E1, M1 = [free.pop(0) for _ in range(5)]
        vm.wait(("KM" if stream else "K", s))
        for F in range(4):
            for d, kr, q, seed in ((D0, Kr(s, 0, F), Q[t0, F], R(vMD)), (M0, KMr(s, F), Q[t0, F], R(vMM)), (E0, Kr(s, 0, F), Q[t1, F], "0"),
                                   (E1, Kr(s, 1, F), Q[t1, F], R(vMD)), (M1, KMr(s, F), Q[t1, F], R(vMM))):
                a(f"v_mfma_f32_16x16x32_bf16 {R(d)}, {A(kr)}, {R(q)}, {seed if F == 0 else R(d)}")
        if s < 2:
            for x in loadK(s + 2): emit(x)
        for F in range(4): free += [Q[t0, F], Q[t1, F]]
        g0 = [D0 + i for i in range(4)] + [M0 + i for i in range(4)]
        g1 = [E0 + i for i in range(4)] + [E1 + i for i in range(4)] + [M1 + i for i in range(4)]
        def both(op3, op2, r0, r1):
            for r, g in ((r0, g0), (r1, g1)):
                a(f"{op3} v{r}, v{g[0]}, v{g[1]}, v{g[2]}")
                k = 3
                while k + 1 < len(g): a(f"{op3} v{r}, v{r}, v{g[k]}, v{g[k+1]}"); k += 2
                a(f"{op2} v{r}, v{r}, v{g[k]}")
        def across(op, r0, r1):
            a(f"""v_permlane32_swap_b32 v{r0}, v{r1}
            {op} v{r0}, v{r0}, v{r1}
            v_mov_b32 v{r1}, v{r0}
            v_permlane16_swap_b32 v{r0}, v{r1}
            {op} v{r0}, v{r0}, v{r1}""")
        both("v_max3_f32", "v_max_f32", vM0, vM1)
        across("v_max_f32", vM0, vM1)
        a(f"v_mul_f32 v{vM0}, s{sC}, v{vM0}\nv_mov_b32 v{vM1}, v{vM0}\nv_permlane32_swap_b32 v{vM0}, v{vM1}")
        for g, hi in ((g0, 0), (g1, 1)):
            for k in range(0, len(g), 2):
                a(f"v_pk_fma_f32 {R(g[k],2)}, {R(g[k],2)}, s[{sC}:{sC+1}], {R(vM0,2)} op_sel:[0,0,{hi}] op_sel_hi:[1,1,{hi}] neg_lo:[0,0,1] neg_hi:[0,0,1]")
        for r in g0 + g1: a(f"v_exp_f32 v{r}, v{r}")
        x, y = free.pop(0), free.pop(0)
        a(f"v_pk_add_f32 {R(x,2)}, {R(D0,2)}, {R(D0+2,2)}\nv_pk_add_f32 {R(x+2,2)}, {R(M0,2)}, {R(M0+2,2)}")
        a(f"v_pk_add_f32 {R(y,2)}, {R(E0,2)}, {R(E0+2,2)}\nv_pk_add_f32 {R(y+2,2)}, {R(E1,2)}, {R(E1+2,2)}")
        a(f"v_pk_add_f32 {R(x,2)}, {R(x,2)}, {R(x+2,2)}\nv_pk_add_f32 {R(y,2)}, {R(y,2)}, {R(y+2,2)}")
        a(f"v_pk_add_f32 {R(y+2,2)}, {R(M1,2)}, {R(M1+2,2)}\nv_add_f32 v{vS0}, v{x}, v{x+1}\nv_pk_add_f32 {R(y,2)}, {R(y,2)}, {R(y+2,2)}")
        a(f"v_add_f32 v{vS1}, v{y}, v{y+1}")
        across("v_add_f32", vS0, vS1)
        a(f"v_rcp_f32 v{vS0}, v{vS0}\nv_mov_b32 v{vS1}, v{vS0}\nv_permlane32_swap_b32 v{vS0}, v{vS1}")
        for g, hi in ((g0, 0), (g1, 1)):
            for k in range(0, len(g), 2):
                a(f"v_pk_mul_f32 {R(g[k],2)}, {R(g[k],2)}, {R(vS0,2)} op_sel:[0,{hi}] op_sel_hi:[1,{hi}]")
        pack(a, x, M0, D0)
        pack(a, y, E0, E1)
        a(f"v_cvt_pk_bf16_f32 v{M1}, v{M1}, v{M1+1}\nv_cvt_pk_bf16_f32 v{M1+1}, v{M1+2}, v{M1+3}")
        free += [D0, M0, E0, E1]
        vm.wait(("VM" if stream else "V", s))
        O = {(tt, F, e): free.pop(0) for F in range(4) for e in range(2) for tt in range(2)}
        for F in range(4):
            for e in range(2):
                a(f"v_mfma_f32_16x16x16_bf16 {R(O[1,F,e])}, {A(Vr(s,F,e),2)}, {R(M1,2)}, 0")
        for F in range(4):
            for e in range(2):
                a(f"v_mfma_f32_16x16x32_bf16 {R(O[0,F,e])}, {A(Vr(s,F,e))}, {R(x)}, 0")
        a(f"s_add_u32 s{sE+8}, s{sOUT}, {262144 * s}\ns_add_u32 s{sE+9}, s{sOUT}, {262144 * s + 4096}")
        def out(tt, F):
            b0 = O[tt, F, 0]
            pack(a, b0, b0, O[tt, F, 1])
            vm.op(f"buffer_store_dwordx4 {R(b0)}, v{vKA}, {ws}, s{sE+8+(F>>1)} offen offset:{2048*(F&1)+256*tt} sc1", "st")
        for F in range(4):
            for e in range(2):
                a(f"v_mfma_f32_16x16x32_bf16 {R(O[1,F,e])}, {A(Vr(s,F,e)+2)}, {R(y)}, {R(O[1,F,e])}")
            if F >= 1: out(0, F - 1)
        if s < 2:
            for z in loadV(s + 2): emit(z)
        out(0, 3)
        for F in range(4): out(1, F)
        free += [x, y, M1] + list(O.values())
        if stream and s < 3:
            nx = [z[0] for z in loadKM(s + 1) + loadVM(s + 1)]
            a(f"s_add_u32 s{sPT}, s{sPT}, 1\ns_cmp_ge_u32 s{sNC}, s{sPT}\ns_cbranch_scc0 {tag}_w{s}")
            for z in nx: a(z)
            a(f"s_waitcnt vmcnt(12)\n{FLAG()}\ns_branch {tag}_j{s}\n{tag}_w{s}:\ns_waitcnt vmcnt(0)\n{FLAG()}")
            poll(a, f"{tag}_p{s+1}", sPA, f"s{sPT}", 2, va=X, vd=X + 2)
            a(f"s_mov_b32 s{sNC}, s{sE+9}")
            for z in nx: a(z)
            a.lab(f"{tag}_j{s}")
            vm.q = [("KM", s + 1)] * 4 + [("VM", s + 1)] * 8
        elif stream: a(f"s_waitcnt vmcnt(0)\n{FLAG()}")
    for i in range(8): a(f"v_accvgpr_read_b32 v{2+i}, a{aSTA+i}")


def tail_wo(a, tag, trace=None):
    sU, sSG, sO, sY, sP, sXX, sYY, sOO = sTYP, sB, sN, sFLG, sNC, sOA, sOB, sSTB
    vA_, vL, vP_, vTH, vR, vO, vF, vY, vD, vB, vX, vFX = 1, 2, 3, 4, 5, 6, 7, 8, 16, 32, 196, 200
    bfe(a, sU, sCUR, 4, 5); bfe(a, sE + 8, sCUR, 9, 1); bfe(a, sSG, sCUR, 20, 6)
    a(f"""s_mov_b64 s[{SB_}:{SB_+1}], s[{sWP+10}:{sWP+11}]
    s_mov_b32 s{SB_+2}, {4096 * 2048}
    v_lshrrev_b32 v10, 2, v0
    v_and_b32 v11, 3, v0
    v_lshlrev_b32 v11, 4, v11
    v_lshl_add_u32 v{vA_}, v10, 11, v11
    s_lshl_b32 s{sOB}, s{sW}, 21
    s_lshl_b32 s{sE}, s{sU}, 6
    s_add_u32 s{sOB}, s{sOB}, s{sE}
    s_lshl_b32 s{sWA}, s{sW}, 15
    v_lshrrev_b32 v12, 4, v0                      ; g
    v_lshrrev_b32 v13, 5, v0
    v_lshlrev_b32 v13, 4, v13
    v_and_b32 v14, 1, v12
    v_lshl_add_u32 v13, v14, 2, v13
    v_and_b32 v10, 3, v10
    v_add_u32 v13, v13, v10                       ; k row
    v_lshl_add_u32 v{vR}, v13, 6, s{sWA}
    v_bfe_u32 v13, v0, 1, 1
    v_lshl_add_u32 v{vR}, v13, 5, v{vR}
    v_and_b32 v13, 1, v0
    v_lshl_add_u32 v{vR}, v13, 3, v{vR}
    s_waitcnt lgkmcnt(0)
    s_barrier""")
    def dma(bt):
        a(f"s_add_u32 m0, s{sWA}, {(bt & 1) * 16384}")
        for i in range(16):
            a(f"buffer_load_dwordx4 v{vA_}, s[{SB_}:{SB_+3}], s{sOB} offen lds\ns_add_u32 s{sOB}, s{sOB}, 32768")
            if i < 15: a("s_add_u32 m0, m0, 1024")
    def trr(bt):
        for ks in range(8):
            for e in range(2):
                for h in range(2):
                    r = 64 * bt + 8 * ks + 4 * e + 2 * h
                    a(f"ds_read_b64_tr_b16 a[{r}:{r+1}], v{vR} offset:{(bt & 1) * 16384 + 2048 * ks + 512 * h + 16 * e}")
            if ks & 1: a("s_waitcnt lgkmcnt(4)")
        a("s_waitcnt lgkmcnt(0)")
    dma(0); dma(1)
    for bt in range(4):
        a(f"s_waitcnt vmcnt({16 if bt < 3 else 0})"); trr(bt)
        if bt < 2: dma(bt + 2)
    lanes_frag(a, vF, 10)
    a(f"""s_lshl_b32 s{sE}, s{sE+8}, 8
    v_add_u32 v{vF}, s{sE}, v{vF}
    v_and_b32 v10, 15, v0
    v_lshlrev_b32 v10, 11, v10
    v_lshl_add_u32 v{vO}, v12, 4, v10
    s_lshl_b32 s{sE}, s{sE+8}, 15
    s_lshl_b32 s{sE+1}, s{sU}, 6
    s_add_u32 s{sE}, s{sE}, s{sE+1}
    v_add_u32 v{vO}, s{sE}, v{vO}
    v_lshlrev_b32 v{vL}, 4, v0
    v_add_u32 v{vR}, s{sWA}, v{vL}
    v_mov_b32 v{vP_}, {OOB}
    v_mov_b32 v{vTH}, 0
    v_writelane_b32 v{vTH}, 8, 0
    v_writelane_b32 v{vTH}, 4, 1
    s_lshr_b32 s{sE}, s{sU}, 3
    s_lshl_b32 s{sE}, s{sE}, 8
    s_bfe_u32 s{sE+1}, s{sU}, 0x10002
    s_lshl_b32 s{sE+1}, s{sE+1}, 6
    s_add_u32 s{sP}, s{sE}, s{sE+1}
    s_add_u32 s{sP}, s{sP}, {C_FW}
    s_mov_b32 s{sDEP}, {CTRL_OFF}
    s_lshl_b32 s{sE}, s{sU}, 11
    s_add_u32 s{sXX}, s{sE}, {XF_OFF}
    s_cmp_eq_u32 s{sW}, 0
    s_cselect_b32 s{sE+1}, 0, {OOB}
    v_or_b32 v{vFX}, s{sE+1}, v{vF}
    s_lshl_b32 s{sYY}, s{sW}, 22
    s_add_u32 s{sYY}, s{sYY}, s{sE}
    s_add_u32 s{sYY}, s{sYY}, {Y_OFF}
    s_lshl_b32 s{sOO}, s{sW}, 16
    s_add_u32 s{sOO}, s{sOO}, {O_OFF}""")
    def flagaddr(sg):
        a(f"""s_and_b32 s{sE}, s{sg}, 31
        s_lshl_b32 s{sE}, s{sE}, 2
        s_add_u32 s{sE}, s{sE}, s{sW}
        s_lshl_b32 s{sE}, s{sE}, 6
        s_add_u32 s{sE}, s{sE}, {C_OS}
        v_writelane_b32 v{vP_}, s{sE}, 0
        s_lshr_b32 s{sE}, s{sg}, 3
        s_lshl_b32 s{sE}, s{sE}, 10
        s_bfe_u32 s{sE+1}, s{sg}, 0x10002
        s_lshl_b32 s{sE+1}, s{sE+1}, 7
        s_add_u32 s{sE}, s{sE}, s{sE+1}
        s_add_u32 s{sE}, s{sE}, s{sP}
        v_writelane_b32 v{vP_}, s{sE}, 1""")
    FL = lambda v: f"buffer_load_dword v{v}, v{vP_}, {ws}, s{sDEP} offen sc1"
    def early(sg):
        a(f"s_add_u32 s{sE+2}, s{sg}, 1")
        flagaddr(sE + 2)
        a(f"""{FL(12)}
        s_lshl_b32 s{sY}, s{sg}, 16
        s_add_u32 s{sE}, s{sY}, s{sXX}
        buffer_load_dwordx4 v[{vX}:{vX+3}], v{vFX}, {ws}, s{sE} offen
        s_add_u32 s{sE}, s{sY}, s{sYY}
        buffer_load_dwordx4 v[{vY}:{vY+3}], v{vF}, {ws}, s{sE} offen
        s_lshl_b32 s{sO}, s{sg}, 18
        s_add_u32 s{sO}, s{sO}, s{sOO}""")
    def frag(ks):
        a(f"buffer_load_dwordx4 v[{vB+4*ks}:{vB+4*ks+3}], v{vF}, {ws}, s{sO} offen offset:{2048*(ks&1)}")
        if ks & 1 and ks < 31: a(f"s_add_u32 s{sO}, s{sO}, 4096")
    def loads(sg):
        early(sg)
        for ks in range(32): frag(ks)
        a(FL(14))
    def wait(lab):
        a(f"{lab}:\n{FL(12)}\ns_waitcnt vmcnt(0)\nv_cmp_gt_u32 vcc, v{vTH}, v12\ns_cbranch_vccz {lab}_d")
        spin(a, lab, lab + "_d")
        a.lab(lab + "_d")
    def mm(ks):
        for e in range(2):
            d = vD + 8 * (ks & 1) + 4 * e
            a(f"v_mfma_f32_16x16x32_bf16 v[{d}:{d+3}], a[{8*ks+4*e}:{8*ks+4*e+3}], v[{vB+4*ks}:{vB+4*ks+3}], v[{d}:{d+3}]")
    def known(v): a(f"v_cmp_gt_u32 vcc, v{vTH}, v{v}\ns_cmp_eq_u32 s{sE+6}, 64\ns_cselect_b64 vcc, -1, vcc")
    flagaddr(sSG)
    wait(tag + "_w0")
    loads(sSG)
    a(f"{tag}_top:\ns_add_u32 s{sE+6}, s{sSG}, 1\ns_waitcnt vmcnt(33)")
    for k, src in enumerate((vY, vX)):
        for i in range(4): a(f"v_lshlrev_b32 v{vD+8*k+2*i}, 16, v{src+i}\nv_and_b32 v{vD+8*k+2*i+1}, 0xffff0000, v{src+i}")
    known(12)
    a(f"s_cbranch_vccnz {tag}_n")
    early(sE + 6)
    for ks in range(32):
        a(f"s_waitcnt vmcnt({34 if ks else 35})"); mm(ks)
        if ks: frag(ks - 1)
    frag(31)
    a(f"{FL(14)}\ns_nop 7\ns_branch {tag}_r\n{tag}_n:")
    for ks in range(32):
        a(f"s_waitcnt vmcnt({32 - ks})"); mm(ks)
    a("s_waitcnt vmcnt(0)\ns_nop 4")
    known(14)
    a(f"s_cbranch_vccnz {tag}_r")
    loads(sE + 6)
    a.lab(tag + "_r")
    for i in range(0, 8, 2): a(f"v_pk_add_f32 v[{vD+i}:{vD+i+1}], v[{vD+i}:{vD+i+1}], v[{vD+8+i}:{vD+9+i}]")
    a(f"""ds_write_b128 v{vR}, v[{vD}:{vD+3}]
    ds_write_b128 v{vR}, v[{vD+4}:{vD+7}] offset:1024
    v_xor_b32 v{vR}, 2048, v{vR}
    s_waitcnt lgkmcnt(0)
    s_barrier
    s_and_b32 s{sE}, s{sSG}, 3
    s_cmp_lg_u32 s{sE}, s{sW}
    s_cbranch_scc1 {tag}_s""")
    T = 164
    for w in range(4):
        if w == 2: a(f"v_add_u32 v13, 65536, v{vL}")
        for e in range(2): a(f"ds_read_b128 v[{T+8*w+4*e}:{T+8*w+4*e+3}], v{vL if w < 2 else 13} offset:{32768*(w&1)+1024*e}")
    for w in range(1, 4):
        a(f"s_waitcnt lgkmcnt({6 - 2 * w})")
        for i in range(0, 8, 2): a(f"v_pk_add_f32 v[{T+i}:{T+i+1}], v[{T+i}:{T+i+1}], v[{T+8*w+i}:{T+8*w+i+1}]")
    pack(a, T, T, T + 4)
    a(f"""v_permlane16_swap_b32 v{T}, v{T+2}
    v_permlane16_swap_b32 v{T+1}, v{T+3}
    s_lshl_b32 s{sE}, s{sSG}, 16
    buffer_store_dwordx4 v[{T}:{T+3}], v{vO}, s[{SO}:{SO+3}], s{sE} offen""")
    if trace: trace(sSG)
    a(f"""{tag}_s:
    v_xor_b32 v{vL}, 2048, v{vL}
    s_mov_b32 s{sSG}, s{sE+6}
    s_cbranch_vccz {tag}_top
    s_cmp_eq_u32 s{sSG}, 64
    s_cbranch_scc1 {tag}_x""")
    wait(tag + "_w1")
    loads(sSG)
    a(f"s_branch {tag}_top\n{tag}_x:")

def load_lists(a, lists, lab):
    def rec(lo, hi):
        if hi - lo == 1:
            l = list(lists[lo]) + [T_END] * (NLIST - len(lists[lo]))
            assert len(l) == NLIST and l[-1] == T_END
            a(f"s_mov_b32 s{sCUR}, {hex(l[0])}\ns_mov_b32 s{sNXT}, {hex(l[1])}")
            for i in range(8):
                if l[2 + i] != T_END: a(f"s_mov_b32 s{sLST+i}, {hex(l[2+i])}")
            a(f"s_branch {lab}_d")
            return
        m = (lo + hi) // 2
        a(f"s_cmp_ge_u32 s{sG}, {m}\ns_cbranch_scc1 {lab}_{m}_{hi}")
        rec(lo, m); a.lab(f"{lab}_{m}_{hi}"); rec(m, hi)
    for i in range(8): a(f"s_mov_b32 s{sLST+i}, {T_END}")
    rec(0, len(lists))
    a.lab(lab + "_d")

def next_dep(a):
    t = sE + 1
    a(f"s_and_b32 s{t}, s{sNXT}, 15")
    bfe(a, sE + 2, sNXT, 4, 3); bfe(a, sE + 3, sNXT, 11, 4); bfe(a, sE + 4, sNXT, 15, 5)
    a(f"""s_lshl_b32 s{sE+2}, s{sE+2}, 4
    s_add_u32 s{sE+2}, s{sE+2}, s{sE+3}
    s_lshl_b32 s{sE+2}, s{sE+2}, 2
    s_mov_b32 s{sDEP}, {CTRL_OFF + C_F1}
    s_cmp_eq_u32 s{t}, {T_WO}
    s_cselect_b32 s{sDEP}, {CTRL_OFF + C_QA}, s{sDEP}
    s_add_u32 s{sDEP}, s{sDEP}, s{sE+2}
    s_bfm_b32 s{sDMK}, s{sE+4}, 0
    s_cmp_ge_u32 s{t}, {T_TW}
    s_cselect_b32 s{sCOLD}, 1, 0
    v_lshlrev_b32 v{vDL}, 2, v0""")
    sum_fields(a, sE + 1, sE + 2)
    fw_flag(a, sE, sE + 1, sE + 2)
    a(f"s_sub_u32 s{sE}, s{sE}, s{sDEP}\nv_writelane_b32 v{vDL}, s{sE}, 32")
def cur_fields(a):
    a(f"s_and_b32 s{sTYP}, s{sCUR}, 15")
    bfe(a, sB, sCUR, 4, 3); bfe(a, sN, sCUR, 7, 4); bfe(a, sCNT, sCUR, 15, 5)
    a(f"s_lshl_b32 s{sCNT}, s{sCNT}, 1\ns_cmp_eq_u32 s{sCNT}, 0\ns_cselect_b32 s{sCNT}, 8, s{sCNT}")

def gemm_side(a, name, lists, trace=False, cs=None, ch=None):
    cs = cs or Cfg(8); ch = ch or Cfg(4)
    assert cs.lds <= LDS_BYTES and XN_OFF == 0
    n = name + "_g"
    for i, k in enumerate((A_WK, A_WV, A_WQ, A_W1, A_W2, A_WO)): a(f"s_load_dwordx2 s[{sWP+2*i}:{sWP+2*i+1}], s[0:1], {k}")
    a(f"""s_load_dwordx2 s[{SO}:{SO+1}], s[0:1], {A_OUT}
    s_lshr_b32 s{sQ}, s{sG}, 5
    s_lshr_b32 s{sWM}, s{sW}, 1
    s_and_b32 s{sWN}, s{sW}, 1
    s_mov_b32 s{sSL}, -1
    s_mov_b32 s{SA}, s{WS}
    s_mov_b32 s{SA+1}, s{WS+1}
    s_mov_b32 s{SA+2}, {WS_BYTES}
    s_mov_b32 s{SA+3}, 0x20000
    s_mov_b32 s{SB_+2}, {8 * MB}
    s_mov_b32 s{SB_+3}, 0x20000
    s_mov_b32 s{SO+2}, {2048 * 1024 * 2}
    s_mov_b32 s{SO+3}, 0x20000""")
    load_lists(a, lists, n + "_ll")
    if trace: a(f"s_lshl_b32 s{sTRC}, s{sG}, 9\ns_add_u32 s{sTRC}, s{sTRC}, {GTRACE_OFF}")
    def stamp(i):
        if trace: a(f"s_memrealtime s[{sTRC+2}:{sTRC+3}]\ns_waitcnt lgkmcnt(0)\ns_mov_b32 s{sTRC+4+i}, s{sTRC+2}")
        if trace and i in (1, 2): a(f"s_memtime s[{sTRC+2}:{sTRC+3}]\ns_waitcnt lgkmcnt(0)\n" + (f"s_mov_b32 s{sTRC+8}, s{sTRC+2}" if i == 1 else f"s_sub_u32 s{sTRC+8}, s{sTRC+2}, s{sTRC+8}"))
    def trace_out(lab):
        if not trace: return
        stamp(3)
        a(f"s_cmp_lg_u32 s{sW}, 0\ns_cbranch_scc1 {lab}")
        lane0(a, 14, 15)
        for i in range(0, 4, 2): a(f"v_mov_b32 v12, s{sTRC+4+i}\nv_mov_b32 v13, s{sTRC+5+i}\nbuffer_store_dwordx2 v[12:13], v14, {ws}, s{sTRC} offen offset:{4*i}\ns_nop 1")
        a(f"v_mov_b32 v12, s{sCUR}\nv_mov_b32 v13, s{sTRC+8}\nbuffer_store_dwordx2 v[12:13], v14, {ws}, s{sTRC} offen offset:16\ns_add_u32 s{sTRC}, s{sTRC}, 32")
        a.lab(lab)
    stamp(0)
    cur_fields(a)
    lane_setup(a, ch)
    a(f"""s_lshl_b32 s{sOA}, s{sB}, 18
    s_lshl_b32 s{sOB}, s{sN}, 9
    s_mov_b32 s{sRBA}, 65536
    s_mov_b32 s{sROW}, 8192
    s_waitcnt lgkmcnt(0)
    s_cmp_eq_u32 s{sTYP}, {T_KH}
    s_cselect_b64 s[{SB_}:{SB_+1}], s[{sWP}:{sWP+1}], s[{sWP+2}:{sWP+3}]""")
    stream_lanes(a, ch)
    cold_dma(a, ch)
    a(f"""v_and_b32 v10, 15, v0
    v_lshrrev_b32 v11, 4, v0
    v_lshrrev_b32 v12, 2, v10
    v_and_b32 v13, 1, v0
    v_lshlrev_b32 v13, 4, v13
    v_mov_b32 v14, 0x3f80
    v_lshlrev_b32 v14, v13, v14
    v_cmp_eq_u32 vcc, v11, v12
    v_cndmask_b32 v14, 0, v14, vcc
    v_bfe_u32 v13, v0, 1, 1
    v_cmp_eq_u32 vcc, 0, v13
    v_cndmask_b32 v12, 0, v14, vcc
    v_cndmask_b32 v13, v14, 0, vcc
    v_mov_b32 v14, 0""")
    for r, v in enumerate((12, 13, 14, 14, 14, 14, 12, 13)): a(f"v_accvgpr_write_b32 a{aSEL+r}, v{v}")
    a(f"s_waitcnt vmcnt({(ch.NS - 1) * ch.P})\ns_barrier")
    a(f"s_mov_b32 s{sDEP}, {CTRL_OFF + C_SEL}\nv_mov_b32 v{vDL}, 0")
    for x in reads(ch, 0, 0) + rebias(ch, 0, 1): a(x)
    stamp(1)
    a(f"s_cmp_eq_u32 s{sTYP}, {T_KH}\ns_cbranch_scc0 {n}_vh")
    for v, form in enumerate("TN"):
        if v: a.lab(n + "_vh")
        half_loop(a, ch, form, f"{n}_h{form}")
        stamp(2)
        epi_kv(a, ch, v, f"{n}_e{form}")
        a(f"s_waitcnt vmcnt({ch.M // 2}) lgkmcnt(0)\ns_barrier")
        lane_setup(a, cs)
        stream_switch(a, cs, sNXT, f"{n}_w{form}")
        cold_dma(a, cs)
        lane0(a, vFA, vFD)
        a(f"""v_mov_b32 v{vFD}, 1
        s_mov_b32 s{sPFL}, s{sFLG}
        s_waitcnt vmcnt({cs.NS * cs.P})
        {PUB}
        s_mov_b64 vcc, 0
        s_mov_b32 s{sCOLD}, 0
        s_waitcnt vmcnt({(cs.NS - 1) * cs.P + 1})
        s_branch {n}_nx2""")
    main_loop(a, cs, "N", n + "_N")
    stamp(2)
    epi_kv(a, cs, 1, n + "_ev")
    a(f"s_branch {n}_nx0")
    main_loop(a, cs, "T", n + "_T")
    stamp(2)
    a(f"""s_cmp_eq_u32 s{sTYP}, {T_F2}
    s_cbranch_scc1 {n}_nx2
    s_cmp_eq_u32 s{sTYP}, {T_K}
    s_cbranch_scc1 {n}_ek
    s_cmp_eq_u32 s{sTYP}, {T_F1}
    s_cbranch_scc1 {n}_ef
    s_cmp_eq_u32 s{sTYP}, {T_QA}
    s_cbranch_scc1 {n}_eq
    s_cmp_eq_u32 s{sTYP}, {T_QS}
    s_cbranch_scc1 {n}_es""")
    epi_park(a, cs)
    a(f"s_branch {n}_nx1\n{n}_eq:")
    epi_qa(a, cs, n + "_qa")
    a(f"s_branch {n}_nx1\n{n}_es:")
    epi_qa(a, cs, n + "_qs", True)
    a(f"s_mov_b32 s{sPI}, 0\ns_branch {n}_nx3\n{n}_ef:")
    tile_out(a, H1_OFF, 4 * 229376, 13)
    row_flag(a, C_F1)
    epi_store(a, cs, "silu", 229376)
    a(f"s_branch {n}_nx1\n{n}_ek:")
    epi_kv(a, cs, 0, n + "_eks")
    a(f"""{n}_nx0:
    s_mov_b32 s{sPI}, 2
    s_branch {n}_nx3
    {n}_nx1:
    s_mov_b32 s{sPI}, 1
    {n}_nx3:
    s_bitcmp1_b32 s{sCUR}, 26
    s_cbranch_scc0 {n}_nx4
    {n}_sum:""")
    sum_part(a, n + "_sm")
    a.lab(n + "_nx4")
    lane0(a, vFA, vFD)
    a(f"v_mov_b32 v{vFD}, s{sPI}\ns_mov_b32 s{sPFL}, s{sFLG}\ns_cmp_lg_u32 s{sPI}, 0\ns_cselect_b64 vcc, -1, 0")
    a.lab(n + "_nx2")
    trace_out(n + "_ntr")
    stamp(0)
    a(f"""s_mov_b32 s{sE+8}, s{sTYP}
    s_mov_b32 s{sCUR}, s{sNXT}
    s_mov_b32 s{sNXT}, s{sLST}""")
    for i in range(7): a(f"s_mov_b32 s{sLST+i}, s{sLST+i+1}")
    a(f"s_mov_b32 s{sLST+7}, {T_END}")
    cur_fields(a)
    a(f"""s_cmp_eq_u32 s{sCOLD}, 0
    s_cbranch_scc1 {n}_warm
    s_waitcnt vmcnt(0)
    s_cbranch_vccz {n}_np
    {PUB}
    s_mov_b64 vcc, 0
    {n}_np:
    s_cmp_eq_u32 s{sTYP}, {T_END}
    s_cbranch_scc1 {n}_done
    s_cmp_eq_u32 s{sTYP}, {T_TW}
    s_cbranch_scc1 {n}_tw
    s_mov_b32 s{sPI}, 0
    s_mov_b32 s{sSV}, 0
    s_cmp_eq_u32 s{sTYP}, {T_SUM}
    s_cbranch_scc1 {n}_sum
    v_lshlrev_b32 v{vDL}, 2, v0
    {n}_dp:
    {DEPLD}
    s_waitcnt vmcnt(0)""")
    notready(a)
    a(f"s_cbranch_scc0 {n}_dpd")
    spin(a, n + "_dp", n + "_dpd")
    a.lab(n + "_dpd")
    stream_switch(a, cs, sCUR, n + "_wc")
    cold_dma(a, cs)
    a(f"s_waitcnt vmcnt({(cs.NS - 1) * cs.P})")
    a.lab(n + "_warm")
    next_dep(a)
    a(f"""s_sub_u32 s{sE}, s{sTYP}, {T_F2}
    s_cmp_lt_u32 s{sE}, 3
    s_cbranch_scc1 {n}_redo
    s_cmp_eq_u32 s{sE+8}, {T_QA}
    s_cbranch_scc1 {n}_redo
    s_cmp_lt_u32 s{sE+8}, {T_KH}
    s_cbranch_scc1 {n}_go
    {n}_redo:
    s_waitcnt lgkmcnt(0)
    s_barrier""")
    for x in reads(cs, 0, 0) + rebias(cs, 0, 1): a(x)
    a.lab(n + "_go")
    stamp(1)
    a(f"""s_cmp_eq_u32 s{sTYP}, {T_V}
    s_cbranch_scc1 {n}_N_f
    s_cmp_eq_u32 s{sE+8}, {T_F2}
    s_cbranch_scc1 {n}_T_c
    s_branch {n}_T_f""")
    a.lab(n + "_tw")
    stamp(1)
    def twtr(sg):
        a(f"""s_memrealtime s[{sTRC+2}:{sTRC+3}]
        s_lshl_b32 s{sE}, s{sG}, 8
        s_lshl_b32 s{sE+1}, s{sg}, 2
        s_add_u32 s{sE}, s{sE}, s{sE+1}
        s_add_u32 s{sE}, s{sE}, {GTRACE_OFF + MB}
        s_waitcnt lgkmcnt(0)
        v_mov_b32 v13, s{sTRC+2}
        v_mov_b32 v15, 0
        buffer_store_dword v13, v15, {ws}, s{sE} offen""")
    tail_wo(a, n + "_tw", twtr if trace else None)
    stamp(2)
    trace_out(n + "_ntw")
    a.lab(n + "_done")
```

```python
from asmlib import *
from layout import *
from prep import srd

WS = 4
T0 = 8
sX, sJ, sW, sMODE, sG = 12, 13, 14, 15, 16
sBUD = 17
sSTEP, sCUR, sPREV, sRST, sTOK, sKM = 18, 19, 20, 21, 22, 23
sT = 24
sKVF = 32
sTR = 40

def probe(a, name, n=4):
    a(f"""s_cmp_lg_u32 s2, 0
    s_cbranch_scc1 {name}_rwait
    s_cmp_lg_u32 s{sW}, 1
    s_cbranch_scc1 {name}_rwait
    v_mov_b32 v4, -1
    v_mov_b32 v5, -1
    v_mov_b32 v6, -1
    v_mov_b32 v7, -1
    v_lshlrev_b32 v2, 4, v0
    s_mov_b32 s{sT+1}, {PART_OFF}
    s_mov_b32 s{sT+2}, -1
    s_mov_b32 s{sT+3}, -1""")
    for i in range(2 * n):
        a(f"""s_memtime s[34:35]
        s_waitcnt lgkmcnt(0)
        buffer_store_dwordx4 v[4:7], v2, s[{WS}:{WS+3}], s{sT+1} offen sc1
        s_waitcnt vmcnt(0)
        s_memtime s[36:37]
        s_waitcnt lgkmcnt(0)
        s_sub_u32 s36, s36, s34
        s_min_u32 s{sT+2+(i&1)}, s{sT+2+(i&1)}, s36
        s_xor_b32 s{sT+1}, s{sT+1}, 8192""")
    a(f"""s_cmp_lt_u32 s{sT+3}, s{sT+2}
    s_cselect_b32 s{sT+4}, {'1, 2' if PART_OFF >> 21 & 1 else '2, 1'}
    s_sub_u32 s{sT+5}, 3, s{sT+4}
    s_bitcmp1_b32 s{sT}, 2
    s_cselect_b32 s{sT+4}, s{sT+5}, s{sT+4}
    v_mov_b32 v3, s{sT+4}
    v_mov_b32 v2, 0
    s_mov_b32 s{sT+1}, {CTRL_OFF + C_SEL}
    buffer_store_dword v3, v2, s[{WS}:{WS+3}], s{sT+1} offen sc1
    s_branch {name}_rwait""")

def roles(a, name, early=False):
    a(f"s_cmp_ge_u32 s2, 256\ns_cbranch_scc1 {name}_end")
    srd(a, WS, A_WS, WS_BYTES)
    a(f"""
    v_lshrrev_b32 v1, 6, v0
    s_mov_b32 s{sBUD}, 0x100000
    v_readfirstlane_b32 s{sW}, v1
    v_and_b32 v0, 63, v0
    s_getreg_b32 s{sT}, hwreg(HW_REG_XCC_ID, 0, 4)
    s_waitcnt lgkmcnt(0)
    s_cmp_eq_u32 s{sW}, 0
    s_cbranch_scc1 {name}_rtk""")
    if early: probe(a, name)
    else: a(f"s_branch {name}_rwait")
    a(f"""{name}_rtk:
    s_mov_b32 s{sT+1}, {CTRL_OFF + C_TICKET}
    s_lshl_b32 s{sT+2}, s{sT}, 8
    v_mov_b32 v2, {OOB}
    v_mov_b32 v3, s{sT+2}
    v_cmp_eq_u32 vcc, 0, v0
    v_cndmask_b32 v2, v2, v3, vcc
    v_mov_b32 v1, 1
    buffer_atomic_add v1, v2, s[{WS}:{WS+3}], s{sT+1} offen sc0 sc1
    v_and_b32 v2, 15, v0
    v_lshlrev_b32 v2, 8, v2
    s_waitcnt vmcnt(0)
    v_readfirstlane_b32 s{sT+3}, v1          ; ticket
    {name}_rspin:
    buffer_load_dword v3, v2, s[{WS}:{WS+3}], s{sT+1} offen sc1
    s_waitcnt vmcnt(0)
    v_mov_b32 v4, v3
    v_add_u32_dpp v4, v4, v4 row_shr:1 row_mask:0xf bank_mask:0xf bound_ctrl:0
    v_add_u32_dpp v4, v4, v4 row_shr:2 row_mask:0xf bank_mask:0xf bound_ctrl:0
    v_add_u32_dpp v4, v4, v4 row_shr:4 row_mask:0xf bank_mask:0xf bound_ctrl:0
    v_add_u32_dpp v4, v4, v4 row_shr:8 row_mask:0xf bank_mask:0xf bound_ctrl:0
    v_readlane_b32 s{sT+4}, v4, 15
    s_cmp_ge_u32 s{sT+4}, 256
    s_cbranch_scc1 {name}_rgot
    s_cmp_eq_u32 s{sBUD}, 0
    s_cbranch_scc1 {name}_rgot
    s_sub_u32 s{sBUD}, s{sBUD}, 1
    s_branch {name}_rspin
    {name}_rgot:
    v_sub_u32 v4, v4, v3
    v_cmp_le_u32 vcc, 32, v3
    v_readlane_b32 s{sT+4}, v4, s{sT}
    s_and_b32 s{sT+5}, vcc_lo, 15
    s_add_u32 s{sT+4}, s{sT+4}, s{sT+3}
    s_cmp_eq_u32 s{sT+5}, 15
    s_cselect_b32 s{sMODE}, 1, 0
    s_cbranch_scc1 {name}_rfast
    s_lshr_b32 s{sX}, s{sT+4}, 5
    s_and_b32 s{sJ}, s{sT+4}, 31
    s_sub_u32 s{sG}, s{sT+4}, 128
    s_cselect_b32 s{sG}, -1, s{sG}
    s_branch {name}_rpub
    {name}_rfast:
    s_mov_b32 s{sX}, s{sT}
    s_mov_b32 s{sJ}, s{sT+3}
    s_add_u32 s{sT+5}, s{sT}, 1
    s_min_u32 s{sT+5}, s{sT+5}, 4
    s_lshl_b32 s{sT+5}, s{sT+5}, 5
    s_sub_u32 s{sG}, s{sT+4}, s{sT+5}
    s_cmp_lt_u32 s{sT}, 4
    s_cselect_b32 s{sT+5}, 32, 0
    s_cmp_lt_u32 s{sT+3}, s{sT+5}
    s_cselect_b32 s{sG}, -1, s{sG}
    {name}_rpub:
    v_mov_b32 v4, s{sX}
    v_mov_b32 v5, s{sJ}
    v_mov_b32 v6, s{sMODE}
    v_mov_b32 v7, s{sG}
    v_mov_b32 v1, 0
    ds_write_b128 v1, v[4:7]
    s_waitcnt lgkmcnt(0)
    {name}_rwait:
    s_barrier
    v_mov_b32 v1, 0
    ds_read_b128 v[4:7], v1
    s_waitcnt lgkmcnt(0)
    v_readfirstlane_b32 s{sX}, v4
    v_readfirstlane_b32 s{sJ}, v5
    v_readfirstlane_b32 s{sMODE}, v6
    v_readfirstlane_b32 s{sG}, v7
    s_and_b32 s{sX}, s{sX}, 3
    s_and_b32 s{sJ}, s{sJ}, 31
    s_barrier
    """)

vL = 0
vCOL, vG = 1, 2
vIDX = 3
vSENT = 4
vA = 8
vQ0, vQ1, vK0, vK1, vV0, vV1, vO0, vO1 = 24, 28, 32, 36, 40, 44, 48, 52
vMEMR, vOR, vPW, vXW, vLIN, vOPW, vOPR = 56, 57, 58, 59, 60, 61, 62
vA1, vA2, vA3, vA4, vTOK = 63, 64, 65, 66, 67
vT = 68
vKT = 72
vP = 80
vX = 112
vD = 116
vR = 128
vB0, vB1 = 132, 136
vONE = 140
vPB = 144
L_X, L_V, L_O = 0, 16384, 24576
XROW = 36
CSC = 0x3e0293ee

def vr(b, n=4): return f"v[{b}:{b+n-1}]"
def ar(b, n=8): return f"a[{b}:{b+n-1}]"

def rec_prologue(a, name):
    a(f"""
    v_and_b32 v{vCOL}, 15, v0
    v_lshrrev_b32 v{vG}, 4, v0
    s_lshl_b32 s{sT}, s{sX}, 5
    s_add_u32 s{sT}, s{sT}, s{sJ}            ; cu = 32x + j
    s_lshl_b32 s{sT+1}, s{sW}, 15
    v_lshrrev_b32 v8, 2, v0
    v_and_b32 v9, 3, v0
    v_lshlrev_b32 v9, 4, v9
    v_lshl_add_u32 v10, v8, 13, v9
    v_lshl_add_u32 v11, v8, 11, v9
    s_lshl_b32 s{sT+2}, s{sW}, 21
    s_lshl_b32 s{sT+3}, s{sT}, 6
    s_add_u32 s{sT+2}, s{sT+2}, s{sT+3}
    s_lshl_b32 s{sT+3}, s{sX}, 21
    s_lshl_b32 s{sT+4}, s{sW}, 19
    s_add_u32 s{sT+3}, s{sT+3}, s{sT+4}
    s_lshl_b32 s{sT+4}, s{sJ}, 6
    s_add_u32 s{sT+3}, s{sT+3}, s{sT+4}
    v_lshrrev_b32 v12, 2, v{vCOL}            ; r
    v_and_b32 v13, 3, v0
    v_lshlrev_b32 v13, 3, v13
    v_add_u32 v13, s{sT+1}, v13
    v_lshl_add_u32 v14, v{vG}, 3, v12
    v_lshl_add_u32 v14, v14, 6, v13          ; qkv
    v_and_b32 v15, 1, v{vG}
    v_lshlrev_b32 v15, 4, v15
    v_lshrrev_b32 v16, 1, v{vG}
    v_lshl_add_u32 v15, v16, 3, v15          ; e0
    v_and_b32 v16, 1, v12
    v_add_u32 v15, v15, v16
    v_lshrrev_b32 v16, 1, v12
    v_lshl_add_u32 v15, v16, 2, v15
    v_lshl_add_u32 v15, v15, 6, v13          ; wo
    """)
    def dma(karg, nbytes, region, vaddr, sbase, step):
        srd(a, T0, karg, nbytes)
        a(f"s_add_u32 m0, s{sT+1}, {region}\ns_mov_b32 s{sT+5}, s{sbase}\ns_waitcnt lgkmcnt(0)")
        for i in range(16):
            a(f"buffer_load_dwordx4 v{vaddr}, s[{T0}:{T0+3}], s{sT+5} offen lds")
            if i < 15: a(f"s_add_u32 m0, m0, 1024\ns_add_u32 s{sT+5}, s{sT+5}, {step}")
    def trr(abase, region, vaddr, bstep):
        for T in range(2):
            for s in range(4):
                for hh in range(2):
                    for b in range(2):
                        r = abase + T * 32 + s * 8 + hh * 4 + b * 2
                        a(f"ds_read_b64_tr_b16 a[{r}:{r+1}], v{vaddr} offset:{region + (64*s + 32*hh + bstep*b) * 64 + 32 * T}")
                a("s_waitcnt lgkmcnt(4)")
        a("s_waitcnt lgkmcnt(0)")
    W8 = 8 * MB
    dma(A_WQ, W8, 0, 10, sT + 2, 16 * 8192)
    dma(A_WK, W8, 16384, 10, sT + 2, 16 * 8192)
    a("s_waitcnt vmcnt(16)"); trr(0, 0, 14, 4)
    dma(A_WV, W8, 0, 10, sT + 2, 16 * 8192)
    a("s_waitcnt vmcnt(16)"); trr(64, 16384, 14, 4)
    dma(A_WO, W8, 16384, 11, sT + 3, 16 * 2048)
    a("s_waitcnt vmcnt(16)"); trr(128, 0, 14, 4)
    a("s_waitcnt vmcnt(0)"); trr(192, 16384, 15, 2)
    srd(a, T0, A_MEM0, 16384)
    a(f"""
    v_and_b32 v{vT}, 7, v0
    v_lshlrev_b32 v{vT}, 11, v{vT}
    v_lshl_add_u32 v{vT}, v{vG}, 5, v{vT}
    v_bfe_u32 v{vT+1}, v0, 3, 1
    v_lshl_add_u32 v{vT}, v{vT+1}, 2, v{vT}
    s_lshl_b32 s{sT+5}, s{sW}, 9
    s_waitcnt lgkmcnt(0)
    """)
    for s in range(4):
        for t in range(4):
            a(f"buffer_load_dword v{vA+4*s+t}, v{vT}, s[{T0}:{T0+3}], s{sT+5} offen offset:{128*s+8*t}")
    a(f"""
    v_mov_b32 v{vIDX}, 0x4444
    v_mov_b32 v{vT}, 0xeeee
    v_cmp_le_u32 vcc, 8, v{vCOL}
    v_cndmask_b32 v{vIDX}, v{vIDX}, v{vT}, vcc
    """)
    for i in range(4):
        a(f"v_mov_b32 v{vSENT+i}, -1\nv_mov_b32 v{vONE+i}, 0x3f803f80\nv_mov_b32 v{vR+i}, 0\nv_mov_b32 v{vB0+i}, 0\nv_mov_b32 v{vB1+i}, 0")
    for r in range(vQ0, vO1 + 4): a(f"v_mov_b32 v{r}, 0")
    a(f"""
    v_lshlrev_b32 v{vLIN}, 4, v0             ; lane*16
    s_lshl_b32 s{sT+1}, s{sX}, 14
    s_lshl_b32 s{sT+2}, s{sW}, 12
    s_add_u32 s{sT+2}, s{sT+2}, s{sT+1}
    v_add_u32 v{vMEMR}, s{sT+2}, v{vLIN}
    v_add_u32 v{vOR}, {R_O}, v{vMEMR}
    s_lshl_b32 s{sT+2}, s{sJ}, 12
    s_lshl_b32 s{sT+3}, s{sX}, 10
    s_add_u32 s{sT+2}, s{sT+2}, s{sT+3}
    s_lshl_b32 s{sT+3}, s{sW}, 8
    s_add_u32 s{sT+2}, s{sT+2}, s{sT+3}
    s_add_u32 s{sT+2}, s{sT+2}, {R_PART}
    v_lshl_add_u32 v{vPW}, v0, 2, s{sT+2}
    v_and_b32 v{vT}, 1, v{vG}
    v_mul_u32_u24 v{vT}, {4*XROW*4}, v{vT}
    v_lshrrev_b32 v{vT+1}, 1, v{vG}
    v_lshl_add_u32 v{vT+1}, v{vT+1}, 4, v{vCOL}
    v_lshl_add_u32 v{vT}, v{vT+1}, 2, v{vT}
    s_mul_i32 s{sT+2}, s{sW}, {16*XROW*4}
    v_add_u32 v{vXW}, s{sT+2}, v{vT}
    v_lshrrev_b32 v{vT}, 3, v{vCOL}
    v_lshlrev_b32 v{vT}, 5, v{vT}
    v_xor_b32 v{vT}, v{vT}, v{vLIN}
    s_lshl_b32 s{sT+2}, s{sW}, 10
    v_add_u32 v{vOPW}, s{sT+2}, v{vT}
    v_bfe_u32 v{vT}, v0, 1, 2                ; t = 2half + (i>>1)
    v_lshlrev_b32 v{vT+1}, 2, v{vT}
    v_and_b32 v{vT+2}, 1, v0
    v_add_u32 v{vT+1}, v{vT+1}, v{vT+2}      ; 4t + u
    s_and_b32 s{sT+2}, s{sW}, 1
    s_lshl_b32 s{sT+2}, s{sT+2}, 1
    v_and_b32 v{vT}, 2, v{vT}                ; t1<<1
    v_xor_b32 v{vT}, s{sT+2}, v{vT}
    v_add_u32 v{vT+1}, v{vT+1}, v{vT}        ; n'
    v_bfe_u32 v{vT}, v0, 3, 2
    v_lshl_add_u32 v{vT+1}, v{vT+1}, 2, v{vT}
    v_lshrrev_b32 v{vT}, 5, v0
    v_lshl_add_u32 v{vT+1}, v{vT}, 6, v{vT+1}
    s_lshr_b32 s{sT+2}, s{sW}, 1
    s_lshl_b32 s{sT+2}, s{sT+2}, 9
    v_lshl_add_u32 v{vOPR}, v{vT+1}, 2, s{sT+2}
    s_mov_b32 s{sSTEP}, 0
    s_mov_b32 s{sTOK}, 0
    s_mov_b32 s{sKM}, 0
    s_mov_b32 s{sCUR}, {RING_OFF}
    s_mov_b32 s{sPREV}, {RING_OFF + 3 * SLOT}
    s_mov_b32 s{sRST}, {RING_OFF + 2 * SLOT}
    v_and_b32 v{vT+2}, 1, v{vG}              ; hi
    v_lshrrev_b32 v{vT+3}, 1, v{vG}          ; g>>1
    """)

def kv_wait(a, lab):
    a(f"v_mov_b32 v{vT+1}, 0")
    a.lab(lab)
    a(f"""buffer_load_dword v{vT}, v{vT+1}, s[{WS}:{WS+3}], s{sKVF} offen sc1
    s_waitcnt vmcnt(0)
    v_readfirstlane_b32 s{sT+6}, v{vT}
    s_cmp_ge_u32 s{sT+6}, 8
    s_cbranch_scc1 {lab}_d
    s_cmp_eq_u32 s{sBUD}, 0
    s_cbranch_scc1 {lab}_d
    s_sub_u32 s{sBUD}, s{sBUD}, 1
    s_branch {lab}""")
    a.lab(lab + "_d")

def role_prologue(a, w, kv=None):
    cu = sT
    if kv and w > 0:
        a(f"s_lshr_b32 s{sKVF}, s{cu}, 3\ns_lshl_b32 s{sKVF}, s{sKVF}, 6\ns_add_u32 s{sKVF}, s{sKVF}, {CTRL_OFF + C_KV}")
        kv_wait(a, f"{kv}_kv0_{w}")
    sel = lambda dst, cond: a(f"v_mov_b32 v{vT}, {OOB}\n{cond}\nv_cndmask_b32 v{dst}, v{vT}, v{dst}, vcc")
    if w < 3:
        a(f"""
        v_mul_u32_u24 v{vA1}, {XROW*4}, v{vCOL}
        v_lshl_add_u32 v{vA1}, v{vT+3}, 6, v{vA1}
        v_lshl_add_u32 v{vA1}, v{vT+2}, 4, v{vA1}
        s_mul_i32 s{sT+2}, s{cu}, 1280
        s_add_u32 s{sT+2}, s{sT+2}, {R_SP + (1024 - 256 if w == 0 else 512 * (w - 1))}
        v_lshl_add_u32 v{vA2}, v{vG}, 3, v{vCOL}
        v_lshl_add_u32 v{vA2}, v{vA2}, 4, s{sT+2}
        """)
        sel(vA2, f"v_cmp_gt_u32 vcc, 8, v{vCOL}")
        if w == 0:
            sel(vA2, f"v_cmp_le_u32 vcc, 32, v0")
            a(f"""
            s_lshl_b32 s{sT+2}, s{cu}, 9
            s_add_u32 s{sT+2}, s{sT+2}, {KM_OFF - 128}
            v_lshlrev_b32 v{vA3}, 7, v{vG}
            v_lshl_add_u32 v{vA3}, v{vCOL}, 4, v{vA3}
            v_add_u32 v{vA3}, s{sT+2}, v{vA3}
            """)
            sel(vA3, f"v_cmp_le_u32 vcc, 8, v{vCOL}")
            a(f"""
            s_lshl_b32 s{sT+2}, s{sJ}, 12
            s_add_u32 s{sT+2}, s{sT+2}, {R_PART}
            v_add_u32 v{vA4}, s{sT+2}, v{vLIN}
            s_lshl_b32 s{sT+2}, s{sJ}, 9
            s_add_u32 s{sT+2}, s{sT+2}, s{sT+1}
            v_lshl_add_u32 v{vTOK}, v0, 3, s{sT+2}
            """)
        else:
            a(f"""
            s_lshl_b32 s{sT+2}, s{cu}, 11
            s_add_u32 s{sT+2}, s{sT+2}, {K_OFF + 256 * (w - 1)}
            v_lshlrev_b32 v{vTOK}, 9, v{vG}
            v_lshl_add_u32 v{vTOK}, v{vCOL}, 4, v{vTOK}
            v_add_u32 v{vTOK}, s{sT+2}, v{vTOK}
            buffer_load_dwordx4 {vr(vKT)}, v{vTOK}, s[{WS}:{WS+3}], s{sTOK} offen sc1
            s_lshl_b32 s{sT+2}, s{cu}, 2
            s_add_u32 s{sT+2}, s{sT+2}, {CTRL_OFF + C_PROG}
            v_mov_b32 v{vA3}, s{sT+2}
            """)
            sel(vA3, "v_cmp_eq_u32 vcc, 0, v0")
    else:
        a(f"""
        s_and_b32 s{sT+2}, s{cu}, 0x7c
        s_mul_i32 s{sT+2}, s{sT+2}, 1280
        s_add_u32 s{sT+2}, s{sT+2}, {R_SP}
        v_lshl_add_u32 v{vA1}, v{vG}, 3, v{vCOL}
        v_lshlrev_b32 v{vA1}, 4, v{vA1}
        v_add_u32 v{vA2}, 512, v{vA1}
        v_lshl_add_u32 v{vT}, v{vT+2}, 3, v{vCOL}
        v_lshlrev_b32 v{vT}, 4, v{vT}
        v_add_u32 v{vT}, {1024 - 128}, v{vT}
        v_cmp_gt_u32 vcc, 8, v{vCOL}
        v_cndmask_b32 v{vA1}, v{vT}, v{vA1}, vcc
        v_cndmask_b32 v{vA2}, v{vT}, v{vA2}, vcc
        v_add_u32 v{vA1}, s{sT+2}, v{vA1}
        v_add_u32 v{vA2}, s{sT+2}, v{vA2}
        ; o write
        s_lshl_b32 s{sT+2}, s{sJ}, 9
        s_add_u32 s{sT+2}, s{sT+2}, s{sT+1}
        s_add_u32 s{sT+2}, s{sT+2}, {R_O}
        v_lshl_add_u32 v{vA3}, v{vG}, 3, v{vCOL}       ; (g>>1)*16 + (g&1)*8 + q
        v_lshl_add_u32 v{vA3}, v{vA3}, 4, s{sT+2}
        """)
        sel(vA3, f"v_cmp_gt_u32 vcc, 8, v{vCOL}")
        a(f"""
        s_lshl_b32 s{sT+2}, s{cu}, 9
        s_add_u32 s{sT+2}, s{sT+2}, {VM_OFF}
        v_lshl_add_u32 v{vA4}, v{vT+3}, 4, v{vCOL}
        v_lshlrev_b32 v{vA4}, 3, v{vA4}
        v_lshl_add_u32 v{vA4}, v{vT+2}, 8, v{vA4}
        v_add_u32 v{vA4}, s{sT+2}, v{vA4}
        s_lshl_b32 s{sT+2}, s{cu}, 11
        s_add_u32 s{sT+2}, s{sT+2}, {VT_OFF}
        v_lshlrev_b32 v{vTOK}, 9, v{vG}
        v_lshl_add_u32 v{vTOK}, v{vCOL}, 4, v{vTOK}
        v_add_u32 v{vTOK}, s{sT+2}, v{vTOK}
        buffer_load_dwordx4 {vr(vKT)}, v{vTOK}, s[{WS}:{WS+3}], s{sTOK} offen sc1
        buffer_load_dwordx4 {vr(vKT+4)}, v{vTOK}, s[{WS}:{WS+3}], s{sTOK} offen offset:256 sc1
        """)
    a("s_waitcnt vmcnt(0)\ns_barrier")

def rec_loop(a, name, w, fast, trace=False, nsteps=64, kv=False):
    p = f"{name}_{'f' if fast else 's'}{w}"
    loc = "" if fast else " sc1"
    ws = f"s[{WS}:{WS+3}]"
    trn = [0]
    def stamp():
        if not trace: return
        i = trn[0]; trn[0] += 1
        a(f"s_memtime s[36:37]\ns_waitcnt lgkmcnt(0)\ns_sub_u32 s38, s36, s39\ns_add_u32 s{sTR+i}, s{sTR+i}, s38\ns_mov_b32 s39, s36")
    def retry(lab, done):
        a(f"s_cmp_eq_u32 s{sBUD}, 0\ns_cbranch_scc1 {done}\ns_sub_u32 s{sBUD}, s{sBUD}, 1\ns_branch {lab}")
    def gather(tag, vaddr, soff):
        lab, done = f"{p}_{tag}", f"{p}_{tag}d"
        a.lab(lab)
        for s in range(4):
            a(f"buffer_load_dwordx4 {vr(vA+4*s)}, v{vaddr}, {ws}, s{soff} offen offset:{1024*s} sc1")
        a(f"""s_waitcnt vmcnt(3)
        v_max_u32 v{vT}, v{vA}, v{vA+2}
        s_waitcnt vmcnt(2)
        v_max3_u32 v{vT}, v{vT}, v{vA+4}, v{vA+6}
        s_waitcnt vmcnt(1)
        v_max3_u32 v{vT}, v{vT}, v{vA+8}, v{vA+10}
        s_waitcnt vmcnt(0)
        v_max3_u32 v{vT}, v{vT}, v{vA+12}, v{vA+14}
        v_cmp_eq_u32 vcc, -1, v{vT}
        s_cbranch_vccz {done}""")
        retry(lab, done); a.lab(done)
    def smf(acc, wb, T, s): a(f"v_smfmac_f32_16x16x64_bf16 {vr(acc)}, {vr(vA+4*s)}, {ar(wb+32*T+8*s)}, v{vIDX}")
    def fold(t0, t1):
        return [f"v_permlane32_swap_b32 v{t0+i}, v{t1+i}" for i in range(4)] + [f"v_add_f32 v{t0+i}, v{t0+i}, v{t1+i}" for i in range(4)]
    def xw(t0, rowoff):
        return [f"ds_write2_b32 v{vXW}, v{t0+i}, v{t0+i+1} offset0:{(rowoff+i)*XROW - (0)} offset1:{(rowoff+i+1)*XROW}" for i in (0, 2)]
    if trace:
        for i in range(16): a(f"s_mov_b32 s{sTR+i}, 0")
        a("s_memtime s[36:37]\ns_waitcnt lgkmcnt(0)\ns_mov_b32 s39, s36")
    a(f"s_branch {p}_qkv")
    a.lab(f"{p}_top")
    gather("pm", vMEMR, sPREV)
    a.lab(f"{p}_qkv")
    stamp()
    for s in range(4):
        smf(vQ0, 0, 0, s); smf(vQ1, 0, 1, s)
    fq = fold(vQ0, vQ1) + xw(vQ0, 0)
    k = 0
    for s in range(4):
        for T in range(2):
            smf(vK0 + 4 * T, 64, T, s)
            if 2 * s + T >= 2:
                for _ in range(2):
                    if k < len(fq): a(fq[k]); k += 1
    assert k == len(fq)
    smf(vV0, 128, 0, 0); smf(vV1, 128, 1, 0)
    a(f"v_add_u32 v{vT}, {8*XROW*4}, v{vXW}")
    for x in fold(vK0, vK1): a(x)
    for i in (0, 2): a(f"ds_write2_b32 v{vT}, v{vK0+i}, v{vK0+i+1} offset0:{i*XROW} offset1:{(i+1)*XROW}")
    a("s_waitcnt lgkmcnt(0)\ns_barrier")
    if w < 3:
        for pw in range(4):
            for b in range(2):
                a(f"ds_read_b128 {vr(vP+8*pw+4*b)}, v{vA1} offset:{L_X + pw*16*XROW*4 + 32*b}")
    for s in range(1, 4):
        smf(vV0, 128, 0, s); smf(vV1, 128, 1, s)
    if w < 3:
        a("s_waitcnt lgkmcnt(4)")
        for i in range(8): a(f"v_add_f32 v{vP+i}, v{vP+i}, v{vP+8+i}")
        a("s_waitcnt lgkmcnt(0)")
        for i in range(8): a(f"v_add_f32 v{vP+16+i}, v{vP+16+i}, v{vP+24+i}")
        for i in range(0, 8, 2):
            a(f"v_add_f32 v{vP+i}, v{vP+i}, v{vP+16+i}\nv_add_f32 v{vP+i+1}, v{vP+i+1}, v{vP+17+i}")
            a(f"v_cvt_pk_bf16_f32 v{vX+i//2}, v{vP+i}, v{vP+i+1}")
        a(f"v_mfma_f32_16x16x32_bf16 {vr(vD)}, {vr(vX if w == 0 else vKT)}, {vr(vX)}, 0")
        for x in fold(vV0, vV1): a(x)
        a(f"buffer_store_dwordx4 {vr(vD)}, v{vA2}, {ws}, s{sCUR} offen{loc}")
        if w == 0: a(f"buffer_store_dwordx4 {vr(vX)}, v{vA3}, {ws}, s{sKM} offen sc1")
        a(f"ds_write_b128 v{vLIN}, {vr(vV0)} offset:{L_V + 1024*w}")
        stamp()
        a("s_waitcnt lgkmcnt(0)\ns_barrier")
        for r in range(vQ0, vV1 + 4): a(f"v_mov_b32 v{r}, 0")
        a(f"s_cmp_eq_u32 s{sSTEP}, {nsteps-1}\ns_cbranch_scc1 {p}_fin")
        a("s_barrier")
    else:
        for x in fold(vV0, vV1): a(x)
        for r in range(vQ0, vK1 + 4): a(f"v_mov_b32 v{r}, 0")
        a("s_barrier")
        for pw in range(3): a(f"ds_read_b128 {vr(vP+4*pw)}, v{vLIN} offset:{L_V + 1024*pw}")
        a("s_waitcnt lgkmcnt(1)")
        for i in range(4): a(f"v_add_f32 v{vP+i}, v{vP+i}, v{vP+4+i}")
        a("s_waitcnt lgkmcnt(0)")
        for i in range(4): a(f"v_add_f32 v{vP+8+i}, v{vP+8+i}, v{vV0+i}")
        for i in range(4): a(f"v_add_f32 v{vP+i}, v{vP+i}, v{vP+8+i}")
        a(f"v_cvt_pk_bf16_f32 v{vR}, v{vP}, v{vP+1}\nv_cvt_pk_bf16_f32 v{vR+1}, v{vP+2}, v{vP+3}")
        a(f"buffer_store_dwordx2 {vr(vR,2)}, v{vA4}, {ws}, s{sKM} offen sc1")
        for r in range(vV0, vV1 + 4): a(f"v_mov_b32 v{r}, 0")
        a(f"s_cmp_eq_u32 s{sSTEP}, {nsteps-1}\ns_cbranch_scc1 {p}_fin")
        stamp()
        lab, done = f"{p}_ps", f"{p}_psd"
        a.lab(lab)
        for pw in range(4):
            a(f"buffer_load_dwordx4 {vr(vP+8*pw)}, v{vA1}, {ws}, s{sCUR} offen offset:{1280*pw} sc1")
            a(f"buffer_load_dwordx4 {vr(vP+8*pw+4)}, v{vA2}, {ws}, s{sCUR} offen offset:{1280*pw} sc1")
        a("s_waitcnt vmcnt(4)")
        for i in range(8): a(f"v_add_f32 v{vP+i}, v{vP+i}, v{vP+8+i}")
        a("s_waitcnt vmcnt(2)")
        for i in range(8): a(f"v_add_f32 v{vP+i}, v{vP+i}, v{vP+16+i}")
        a("s_waitcnt vmcnt(0)")
        for i in (0, 2, 4, 6): a(f"v_add_f32 v{vP+i}, v{vP+i}, v{vP+24+i}")
        a(f"v_cmp_u_f32 vcc, v{vP}, v{vP+2}\nv_cmp_u_f32 s[{sT+6}:{sT+7}], v{vP+4}, v{vP+6}")
        for i in (1, 3, 5, 7): a(f"v_add_f32 v{vP+i}, v{vP+i}, v{vP+24+i}")
        a(f"s_or_b64 vcc, vcc, s[{sT+6}:{sT+7}]\ns_cbranch_scc0 {done}")
        retry(lab, done); a.lab(done)
        stamp()
        m, t = vT, vT + 1
        a(f"""v_max3_f32 v{m}, v{vP}, v{vP+1}, v{vP+2}
        v_max3_f32 v{t}, v{vP+3}, v{vP+4}, v{vP+5}
        v_max3_f32 v{m}, v{m}, v{vP+6}, v{vP+7}
        v_max_f32 v{m}, v{m}, v{t}
        v_max_f32_dpp v{m}, v{m}, v{m} row_ror:8 row_mask:0xf bank_mask:0xf
        v_mov_b32 v{t}, v{m}
        v_permlane16_swap_b32 v{m}, v{t}
        v_max_f32 v{m}, v{m}, v{t}
        v_mov_b32 v{t}, v{m}
        v_permlane32_swap_b32 v{m}, v{t}
        v_max_f32 v{m}, v{m}, v{t}
        s_mov_b32 s{sT+6}, {CSC}
        v_mul_f32 v{m}, s{sT+6}, v{m}""")
        for i in range(8): a(f"v_fma_f32 v{vP+i}, v{vP+i}, s{sT+6}, -v{m}")
        for i in range(8): a(f"v_exp_f32 v{vP+i}, v{vP+i}")
        for i in range(4): a(f"v_cvt_pk_bf16_f32 v{vPB+i}, v{vP+2*i}, v{vP+2*i+1}")
        a(f"v_mfma_f32_16x16x32_bf16 {vr(vD+8)}, {vr(vONE)}, {vr(vPB)}, 0")
        for i in range(2): a(f"v_mov_b32_dpp v{vB0+i}, v{vPB+i} row_ror:8 row_mask:0x3 bank_mask:0xf")
        a(f"v_mfma_f32_16x16x32_bf16 {vr(vD)}, {vr(vKT)}, {vr(vPB)}, 0")
        a(f"v_mfma_f32_16x16x32_bf16 {vr(vD+8)}, {vr(vONE)}, {vr(vB0)}, {vr(vD+8)}")
        for i in range(2): a(f"v_mov_b32_dpp v{vB1+i}, v{vPB+i} row_ror:8 row_mask:0xc bank_mask:0xf")
        a(f"v_mfma_f32_16x16x32_bf16 {vr(vD+4)}, {vr(vKT+4)}, {vr(vPB)}, 0")
        a(f"v_mfma_f32_16x16x32_bf16 {vr(vD)}, {vr(vR)}, {vr(vB0)}, {vr(vD)}")
        a(f"v_mfma_f32_16x16x32_bf16 {vr(vD+4)}, {vr(vR)}, {vr(vB1)}, {vr(vD+4)}")
        a(f"v_rcp_f32 v{m}, v{vD+8}")
        for i in range(0, 8, 2):
            a(f"v_mul_f32 v{vD+i}, v{vD+i}, v{m}\nv_mul_f32 v{vD+i+1}, v{vD+i+1}, v{m}")
            a(f"v_cvt_pk_bf16_f32 v{vX+i//2}, v{vD+i}, v{vD+i+1}")
        a(f"buffer_store_dwordx4 {vr(vX)}, v{vA3}, {ws}, s{sCUR} offen{loc}")
        stamp()
        a("s_barrier")
    gather("po", vOR, sCUR)
    stamp()
    for s in range(4):
        smf(vO0, 192, 0, s); smf(vO1, 192, 1, s)
    for x in fold(vO0, vO1): a(x)
    a(f"ds_write_b128 v{vOPW}, {vr(vO0)} offset:{L_O}\ns_waitcnt lgkmcnt(0)\ns_barrier")
    for pw in range(4): a(f"ds_read_b32 v{vP+pw}, v{vOPR} offset:{L_O + 1024*pw}")
    a(f"""s_waitcnt lgkmcnt(2)
    v_add_f32 v{vP}, v{vP}, v{vP+1}
    s_waitcnt lgkmcnt(0)
    v_add_f32 v{vP+2}, v{vP+2}, v{vP+3}
    v_add_f32 v{vP}, v{vP}, v{vP+2}
    buffer_store_dword v{vP}, v{vPW}, {ws}, s{sCUR} offen sc1""")
    stamp()
    a(f"buffer_store_dword v{vSENT}, v{vPW}, {ws}, s{sRST} offen sc1")
    for r in range(vO0, vO1 + 4): a(f"v_mov_b32 v{r}, 0")
    a(f"s_add_u32 s{sTOK}, s{sTOK}, 262144\ns_add_u32 s{sKM}, s{sKM}, 65536\ns_add_u32 s{sSTEP}, s{sSTEP}, 1")
    if kv and w > 0:
        a(f"s_and_b32 s{sT+6}, s{sSTEP}, 7\ns_cbranch_scc1 {p}_kv_d\ns_add_u32 s{sKVF}, s{sKVF}, 1024")
        kv_wait(a, f"{p}_kv")
    if w < 3:
        a(f"buffer_store_dwordx4 {vr(vSENT)}, v{vA2}, {ws}, s{sRST} offen{loc}")
    if w in (1, 2):
        a(f"buffer_load_dwordx4 {vr(vKT)}, v{vTOK}, {ws}, s{sTOK} offen sc1")
    if w == 1:
        a(f"v_mov_b32 v{vT}, s{sSTEP}\nbuffer_store_dword v{vT}, v{vA3}, {ws}, 0 offen sc1")
    if w == 3:
        a(f"buffer_store_dwordx4 {vr(vSENT)}, v{vA3}, {ws}, s{sRST} offen{loc}")
        a(f"buffer_load_dwordx4 {vr(vKT)}, v{vTOK}, {ws}, s{sTOK} offen sc1")
        a(f"buffer_load_dwordx4 {vr(vKT+4)}, v{vTOK}, {ws}, s{sTOK} offen offset:256 sc1")
    if w == 0:
        a(f"buffer_store_dwordx2 {vr(vSENT,2)}, v{vTOK}, {ws}, s{sRST} offen{loc}")
        lab, done = f"{p}_pp", f"{p}_ppd"
        a.lab(lab)
        for x in range(4): a(f"buffer_load_dwordx4 {vr(vP+4*x)}, v{vA4}, {ws}, s{sCUR} offen offset:{1024*x} sc1")
        a("s_waitcnt vmcnt(2)")
        for i in range(4): a(f"v_add_f32 v{vP+i}, v{vP+i}, v{vP+4+i}")
        a("s_waitcnt vmcnt(0)")
        for i in range(4): a(f"v_add_f32 v{vP+8+i}, v{vP+8+i}, v{vP+12+i}")
        for i in range(4): a(f"v_add_f32 v{vP+i}, v{vP+i}, v{vP+8+i}")
        a(f"v_cmp_u_f32 vcc, v{vP}, v{vP+1}\nv_cmp_u_f32 s[{sT+6}:{sT+7}], v{vP+2}, v{vP+3}")
        a(f"v_cvt_pk_bf16_f32 v{vX}, v{vP}, v{vP+1}\nv_cvt_pk_bf16_f32 v{vX+1}, v{vP+2}, v{vP+3}")
        a(f"s_or_b64 vcc, vcc, s[{sT+6}:{sT+7}]\ns_cbranch_scc0 {done}")
        retry(lab, done); a.lab(done)
        a(f"buffer_store_dwordx2 {vr(vX,2)}, v{vTOK}, {ws}, s{sCUR} offen{loc}")
    a(f"""s_mov_b32 s{sPREV}, s{sCUR}
    s_and_b32 s{sT+6}, s{sSTEP}, 3
    s_lshl_b32 s{sCUR}, s{sT+6}, 19
    s_xor_b32 s{sRST}, s{sCUR}, {2*SLOT}
    s_add_u32 s{sCUR}, s{sCUR}, {RING_OFF}
    s_add_u32 s{sRST}, s{sRST}, {RING_OFF}""")
    stamp()
    a(f"s_barrier\ns_branch {p}_top")
    a.lab(f"{p}_fin")
    a("s_waitcnt vmcnt(0)\ns_barrier")
    if w == 1:
        a(f"v_mov_b32 v{vT}, {nsteps}\nbuffer_store_dword v{vT}, v{vA3}, {ws}, 0 offen sc1")
    if trace:
        a(f"s_lshl_b32 s{sT+6}, s{sX}, 5\ns_add_u32 s{sT+6}, s{sT+6}, s{sJ}\ns_lshl_b32 s{sT+6}, s{sT+6}, 8\ns_add_u32 s{sT+6}, s{sT+6}, {TRACE_OFF + 64*w}")
        a(f"v_mov_b32 v{vT+1}, 0")
        for i in range(12):
            a(f"v_mov_b32 v{vT}, s{sTR+i}\nbuffer_store_dword v{vT}, v{vT+1}, {ws}, s{sT+6} offen offset:{4*i}")
        a(f"v_mov_b32 v{vT}, s{sBUD}\nbuffer_store_dword v{vT}, v{vT+1}, {ws}, s{sT+6} offen offset:60")
    a(f"s_branch {name}_recdone")

def rec_all(a, name, trace=False, modes=(True, False), kv=False):
    rec_prologue(a, name)
    for w in range(3):
        a(f"s_cmp_eq_u32 s{sW}, {w}\ns_cbranch_scc1 {name}_rp{w}")
    for w in (3, 0, 1, 2):
        if w != 3: a.lab(f"{name}_rp{w}")
        role_prologue(a, w, name if kv else None)
        if len(modes) == 2:
            a(f"s_cmp_eq_u32 s{sMODE}, 0\ns_cbranch_scc1 {name}_safe{w}")
        rec_loop(a, name, w, modes[0], trace, kv=kv)
        if len(modes) == 2:
            a.lab(f"{name}_safe{w}")
            rec_loop(a, name, w, modes[1], trace, kv=kv)

def gen_rec_only(name, trace=False, force_safe=False, mfma_w=0):
    a = Asm(mfma_w)
    roles(a, name)
    if force_safe: a(f"s_mov_b32 s{sMODE}, 0")
    a(f"s_cmp_lg_u32 s{sG}, -1\ns_cbranch_scc1 {name}_end")
    rec_all(a, name, trace)
    a(f"{name}_recdone:\ns_waitcnt vmcnt(0)\n{name}_end:\ns_endpgm")
    return khead(name) + a.finish(True)
```

```python
from asmlib import *
from layout import *
from prep import srd
from rec import roles, WS, T0, sX, sJ, sW, sMODE, sG, sBUD, sT
sSTEP, sCUR, sRST, sPCUR, sPRST, sKM = 18, 19, 20, 21, 22, 23
sPEND, sCSC, sTK, sTV, sKVF, sSEL = 32, 33, 62, 63, 64, 65
sTB = 68
vTR, vFL, vOPW = 74, 75, 196
OPW = 1280
sMB = 66
sTR = 40
vCOL, vG, vIDX = 1, 2, 3
vSENT = 4
vA = 8
vQ0, vQ1, vK0, vK1, vV0, vV1, vO0, vO1 = 24, 28, 32, 36, 40, 44, 48, 52
vMEMR, vOR, vXW, vLIN, vOPR, vPW, vPR, vMW = 56, 57, 58, 59, 60, 61, 62, 65
vA1, vA2, vA3, vA4, vA5, vA6, vA7, vA8 = range(66, 74)
vT = 76
vKT, vVT = 80, 88
vF, vX, vD = 96, 100, 104
vR0, vR1, vBM, vONE, vPB, vS, vSO = 116, 120, 124, 128, 132, 136, 144
vP = 148
L_X, L_V, L_O, L_T, L_SEL = 0, 12288, 16384, 24576, 22528
XROW = 40
KVT = 16
CSC = 0x3e0293ee
ws = f"s[{WS}:{WS+3}]"
def vr(b, n=4): return f"v[{b}:{b+n-1}]"
def ar(b, n=8): return f"a[{b}:{b+n-1}]"
def pk(d, x, y): return f"v_pk_add_f32 {vr(d,2)}, {vr(x,2)}, {vr(y,2)}"

def rec_prologue(a, name, sel=0):
    a(f"""
    v_and_b32 v{vCOL}, 15, v0
    v_lshrrev_b32 v{vG}, 4, v0
    s_lshl_b32 s{sT}, s{sX}, 5
    s_add_u32 s{sT}, s{sT}, s{sJ}            ; cu = 32x + j
    s_lshl_b32 s{sT+1}, s{sW}, 15
    v_lshrrev_b32 v8, 2, v0
    v_and_b32 v9, 3, v0
    v_lshlrev_b32 v9, 4, v9
    v_lshl_add_u32 v10, v8, 13, v9
    v_lshl_add_u32 v11, v8, 11, v9
    s_lshl_b32 s{sT+2}, s{sW}, 21
    s_lshl_b32 s{sT+3}, s{sT}, 6
    s_add_u32 s{sT+2}, s{sT+2}, s{sT+3}
    s_lshl_b32 s{sT+3}, s{sX}, 21
    s_lshl_b32 s{sT+4}, s{sW}, 19
    s_add_u32 s{sT+3}, s{sT+3}, s{sT+4}
    s_lshl_b32 s{sT+4}, s{sJ}, 6
    s_add_u32 s{sT+3}, s{sT+3}, s{sT+4}
    v_and_b32 v13, 3, v0
    v_lshlrev_b32 v13, 3, v13
    v_add_u32 v13, s{sT+1}, v13
    v_bfe_u32 v16, v0, 3, 1                  ; h
    v_bfe_u32 v17, v0, 2, 1                  ; u
    v_lshl_add_u32 v14, v16, 4, v17
    v_lshl_add_u32 v14, v{vG}, 2, v14        ; 16h + 4g + u
    v_lshl_add_u32 v14, v14, 6, v13
    v_lshl_add_u32 v15, v16, 2, v17
    v_and_b32 v18, 1, v{vG}
    v_lshl_add_u32 v15, v18, 4, v15
    v_lshrrev_b32 v18, 1, v{vG}
    v_lshl_add_u32 v15, v18, 3, v15          ; 16(g&1) + 8(g>>1) + 4h + u
    v_lshl_add_u32 v15, v15, 6, v13
    """)
    def dma(karg, nbytes, region, vaddr, sbase, step):
        srd(a, T0, karg, nbytes)
        a(f"s_add_u32 m0, s{sT+1}, {region}\ns_mov_b32 s{sT+5}, s{sbase}\ns_waitcnt lgkmcnt(0)")
        for i in range(16):
            a(f"buffer_load_dwordx4 v{vaddr}, s[{T0}:{T0+3}], s{sT+5} offen lds")
            if i < 15: a(f"s_add_u32 m0, m0, 1024\ns_add_u32 s{sT+5}, s{sT+5}, {step}")
    def trr(abase, region, vaddr):
        for T in range(2):
            for s in range(4):
                for d in range(4):
                    r = abase + T * 32 + s * 8 + 2 * d
                    a(f"ds_read_b64_tr_b16 a[{r}:{r+1}], v{vaddr} offset:{region + (64*s + 32*(d>>1) + 2*(d&1)) * 64 + 32 * T}")
                a("s_waitcnt lgkmcnt(4)")
        a("s_waitcnt lgkmcnt(0)")
    W8 = 8 * MB
    dma(A_WK, W8, 0, 10, sT + 2, 16 * 8192)
    dma(A_WV, W8, 16384, 10, sT + 2, 16 * 8192)
    a("s_waitcnt vmcnt(16)"); trr(64, 0, 14)
    dma(A_WQ, W8, 0, 10, sT + 2, 16 * 8192)
    a("s_waitcnt vmcnt(16)"); trr(128, 16384, 14)
    dma(A_WO, W8, 16384, 11, sT + 3, 16 * 2048)
    a("s_waitcnt vmcnt(16)"); trr(0, 0, 14)
    a("s_waitcnt vmcnt(0)"); trr(192, 16384, 15)
    srd(a, T0, A_MEM0, 16384)
    a(f"""
    v_lshrrev_b32 v{vT}, 2, v{vCOL}
    v_and_b32 v{vT+1}, 1, v0
    v_lshl_add_u32 v{vT}, v{vT}, 1, v{vT+1}
    v_lshlrev_b32 v{vT}, 11, v{vT}
    v_lshrrev_b32 v{vT+3}, 1, v{vG}          ; g>>1
    v_and_b32 v{vT+2}, 1, v{vG}              ; g&1
    v_lshl_add_u32 v{vT}, v{vT+3}, 6, v{vT}
    v_lshl_add_u32 v{vT}, v{vT+2}, 4, v{vT}
    v_bfe_u32 v{vT+1}, v0, 1, 1              ; h
    v_lshl_add_u32 v{vT}, v{vT+1}, 5, v{vT}
    s_lshl_b32 s{sT+5}, s{sW}, 9
    s_waitcnt lgkmcnt(0)
    """)
    for s in range(4):
        a(f"buffer_load_dwordx4 {vr(vA+4*s)}, v{vT}, s[{T0}:{T0+3}], s{sT+5} offen offset:{128*s}")
    a(f"""
    v_mov_b32 v{vIDX}, 0x4444
    v_mov_b32 v{vT}, 0xeeee
    v_cmp_eq_u32 s[{sMB}:{sMB+1}], 1, v{vT+1}
    v_cndmask_b32 v{vIDX}, v{vIDX}, v{vT}, s[{sMB}:{sMB+1}]
    """)
    for i in range(4):
        a(f"v_mov_b32 v{vSENT+i}, -1\nv_mov_b32 v{vONE+i}, 0x3f803f80\nv_mov_b32 v{vR0+i}, 0\nv_mov_b32 v{vR1+i}, 0\nv_mov_b32 v{vBM+i}, 0")
    for r in range(vQ0, vO1 + 4): a(f"v_mov_b32 v{r}, 0")
    a(f"""
    v_lshlrev_b32 v{vLIN}, 4, v0             ; lane*16
    s_movk_i32 s{sT+6}, 288
    s_movk_i32 s{sT+7}, 640
    s_lshl_b32 s{sT+1}, s{sX}, 14
    s_lshl_b32 s{sT+2}, s{sW}, 12
    s_add_u32 s{sT+2}, s{sT+2}, s{sT+1}
    v_add_u32 v{vMEMR}, s{sT+2}, v{vLIN}
    v_add_u32 v{vOR}, {R_O}, v{vMEMR}
    v_mul_u32_u24 v{vT}, {4*XROW*4}, v{vG}
    v_lshl_add_u32 v{vT}, v{vCOL}, 2, v{vT}
    s_mul_i32 s{sT+2}, s{sW}, {16*XROW*4}
    v_add_u32 v{vXW}, s{sT+2}, v{vT}
    s_lshl_b32 s{sT+4}, s{sJ}, 9
    s_add_u32 s{sT+4}, s{sT+4}, s{sT+1}      ; x*16K + j*512
    v_lshl_add_u32 v{vMW}, v0, 3, s{sT+4}
    s_mul_i32 s{sT+2}, s{sW}, {OPW}
    s_add_u32 s{sT+2}, s{sT+2}, {L_O}
    v_lshl_add_u32 v{vOPW}, v0, 2, s{sT+2}
    v_and_b32 v{vOPR}, 1, v0
    v_lshlrev_b32 v{vOPR}, 4, v{vOPR}
    v_bfe_u32 v{vT}, v0, 1, 1
    v_mad_u32_u24 v{vOPR}, v{vT}, s{sT+6}, v{vOPR}
    v_bfe_u32 v{vT}, v0, 2, 1
    v_mad_u32_u24 v{vOPR}, v{vT}, s{sT+7}, v{vOPR}
    v_bfe_u32 v{vT}, v0, 3, 2
    v_lshl_add_u32 v{vOPR}, v{vT}, 6, v{vOPR}
    v_lshl_add_u32 v{vOPR}, v{vT+3}, 5, v{vOPR}
    s_lshr_b32 s{sT+2}, s{sJ}, 1
    s_lshl_b32 s{sT+2}, s{sT+2}, 14
    s_and_b32 s{sT+3}, s{sJ}, 1
    s_lshl_b32 s{sT+3}, s{sT+3}, 12
    s_add_u32 s{sT+5}, s{sT+2}, s{sT+3}
    v_add_u32 v{vT}, s{sT+5}, v{vLIN}
    """)
    for i in range(4):
        a(f"s_add_u32 s{sT+2}, s{sX}, {i}\ns_and_b32 s{sT+2}, s{sT+2}, 3\ns_lshl_b32 s{sT+2}, s{sT+2}, 10\nv_add_u32 v{vPW+i}, s{sT+2}, v{vT}")
    a(f"""
    s_mov_b32 s{sSTEP}, 0
    s_mov_b32 s{sKM}, 0
    s_mov_b32 s{sPEND}, 0
    s_mov_b32 s{sCSC}, {CSC}
    s_mov_b32 s{sCUR}, {RING_OFF}
    s_mov_b32 s{sRST}, {RING_OFF + 2 * SLOT}
    s_mov_b32 s{sPCUR}, {PART_OFF}
    s_mov_b32 s{sPRST}, {PART_OFF + 2 * PSLOT}
    """)

def kv_wait(a, lab):
    a(f"v_mov_b32 v{vT+1}, 0")
    a.lab(lab)
    a(f"""buffer_load_dword v{vT}, v{vT+1}, {ws}, s{sKVF} offen sc1
    s_waitcnt vmcnt(0)
    v_readfirstlane_b32 s{sT+6}, v{vT}
    s_cmp_ge_u32 s{sT+6}, {KVT}
    s_cbranch_scc1 {lab}_d
    s_cmp_eq_u32 s{sBUD}, 0
    s_cbranch_scc1 {lab}_d
    s_sub_u32 s{sBUD}, s{sBUD}, 1
    s_branch {lab}""")
    a.lab(lab + "_d")

def near(a, d, s):
    a(f"s_lshr_b32 s{d}, s{s}, 8\ns_xor_b32 s{d}, s{d}, s{sSEL}\ns_and_b32 s{d}, s{d}, 8192\ns_add_u32 s{d}, s{d}, s{s}")
def tok_dma(a):
    near(a, sT + 5, sTK)
    a(f"s_add_u32 s{sT+4}, s{sT+5}, {VT_OFF - K_OFF}")
    for i, (so, o) in enumerate(((sT + 5, 0), (sT + 5, 256), (sT + 4, 0), (sT + 4, 256))):
        a(f"s_add_u32 m0, s{sTB}, {1024 * i - o}\nbuffer_load_dwordx4 v{vA1}, {ws}, s{so} offen offset:{o} sc1 lds")
    a(f"s_add_u32 s{sTK}, s{sTK}, 524288\ns_xor_b32 s{sTB}, s{sTB}, 4096")
def tok_read(a):
    for i in range(4): a(f"ds_read_b128 {vr(vKT+4*i)}, v{vTR} offset:{L_T + 1024*i}")
    a(f"v_xor_b32 v{vTR}, 4096, v{vTR}")

def probe(a, name):
    a(f"""s_mov_b32 s{sT+6}, {CTRL_OFF + C_SEL}
    v_mov_b32 v{vT+1}, 0
    {name}_pw:
    buffer_load_dword v{vT}, v{vT+1}, {ws}, s{sT+6} offen sc1
    s_waitcnt vmcnt(0)
    v_readfirstlane_b32 s{sT+7}, v{vT}
    s_cmp_lg_u32 s{sT+7}, 0
    s_cbranch_scc1 {name}_pd
    s_cmp_eq_u32 s{sBUD}, 0
    s_cbranch_scc1 {name}_pd
    s_sub_u32 s{sBUD}, s{sBUD}, 1
    s_branch {name}_pw
    {name}_pd:
    s_and_b32 s{sSEL}, s{sT+7}, 2
    s_lshl_b32 s{sSEL}, s{sSEL}, 12""")

def role_prologue(a, w, name, kv=None, sel=None, pf=False):
    cu = sT
    def msk(dst, hi):
        a(f"v_mov_b32 v{vT}, {OOB}")
        a(f"v_cndmask_b32 v{dst}, v{vT}, v{dst}, s[{sMB}:{sMB+1}]" if hi else f"v_cndmask_b32 v{dst}, v{dst}, v{vT}, s[{sMB}:{sMB+1}]")
    def xread(dst):
        a(f"""v_mul_u32_u24 v{dst}, {XROW*4}, v{vCOL}
        v_lshl_add_u32 v{dst}, v{vT+3}, 6, v{dst}
        v_lshl_add_u32 v{dst}, v{vT+2}, 4, v{dst}""")
    a(f"""s_lshl_b32 s{sT+6}, s{cu}, 10
    s_add_u32 s{sT+6}, s{sT+6}, {R_ST}
    s_lshr_b32 s{sT+7}, s{cu}, 2
    s_lshl_b32 s{sT+7}, s{sT+7}, 10
    s_add_u32 s{sT+7}, s{sT+7}, {R_SM}
    s_and_b32 s{sT+3}, s{cu}, 3
    s_lshl_b32 s{sT+3}, s{sT+3}, 2""")
    if w == 0:
        xread(vA1)
        a(f"s_sub_u32 s{sT+2}, s{sT+6}, 32\nv_add_u32 v{vA2}, s{sT+2}, v{vLIN}"); msk(vA2, True)
        a(f"s_add_u32 s{sT+2}, s{sT+7}, s{sT+3}\ns_sub_u32 s{sT+2}, s{sT+2}, 32\nv_add_u32 v{vA3}, s{sT+2}, v{vLIN}"); msk(vA3, True)
        for k in range(1, 4):
            a(f"""s_add_u32 s{sT+2}, s{cu}, {k}
            s_and_b32 s{sT+2}, s{sT+2}, 3
            s_and_b32 s{sT+1}, s{cu}, 0x7c
            s_or_b32 s{sT+2}, s{sT+2}, s{sT+1}
            s_lshl_b32 s{sT+2}, s{sT+2}, 10
            s_add_u32 s{sT+2}, s{sT+2}, {R_ST}
            v_add_u32 v{vA4+k-1}, s{sT+2}, v{vLIN}""")
        a(f"""v_add_u32 v{vA7}, s{sT+7}, v{vLIN}
        v_lshl_add_u32 v{vA8}, v{vT+3}, 4, v{vCOL}
        v_lshl_add_u32 v{vA8}, v{vT+2}, 1, v{vA8}      ; 16(g>>1) + 4a + 2(g&1) + b
        s_add_u32 s{sT+2}, s{sT+4}, {R_O}
        v_lshl_add_u32 v{vA8}, v{vA8}, 4, s{sT+2}""")
        msk(vA8, False)
    elif w == 1:
        xread(vA1)
        a(f"""s_lshr_b32 s{sT+2}, s{cu}, 4
        s_lshl_b32 s{sT+2}, s{sT+2}, 14
        s_and_b32 s{sT+1}, s{cu}, 15
        s_lshl_b32 s{sT+1}, s{sT+1}, 9
        s_add_u32 s{sT+2}, s{sT+2}, s{sT+1}
        s_add_u32 s{sT+2}, s{sT+2}, {KM_OFF}
        v_lshrrev_b32 v{vA2}, 2, v{vCOL}
        v_and_b32 v{vT}, 1, v0
        v_lshl_add_u32 v{vA2}, v{vA2}, 1, v{vT}        ; key
        v_lshl_add_u32 v{vA2}, v{vG}, 3, v{vA2}
        v_lshl_add_u32 v{vA2}, v{vA2}, 4, s{sT+2}""")
        msk(vA2, False)
        a(f"""v_add_u32 v{vA3}, s{sT+6}, v{vLIN}
        s_add_u32 s{sT+2}, s{sT+7}, s{sT+3}
        v_add_u32 v{vA4}, s{sT+2}, v{vLIN}""")
    elif w == 2:
        a(f"""s_lshr_b32 s{sT+2}, s{cu}, 4
        s_lshl_b32 s{sT+2}, s{sT+2}, 14
        s_and_b32 s{sT+1}, s{cu}, 15
        s_lshl_b32 s{sT+1}, s{sT+1}, 9
        s_add_u32 s{sT+2}, s{sT+2}, s{sT+1}
        s_add_u32 s{sT+2}, s{sT+2}, {VM_OFF}
        v_add_u32 v{vA1}, s{sT+2}, v{vLIN}
        v_mov_b32 v{vT}, {OOB}
        v_cmp_gt_u32 vcc, 32, v0
        v_cndmask_b32 v{vA1}, v{vT}, v{vA1}, vcc
        v_lshl_add_u32 v{vA2}, v0, 3, s{sT+4}
        v_add_u32 v{vA3}, {R_O}, v{vA2}
        s_lshl_b32 s{sT+2}, s{sX}, 8
        s_add_u32 s{sT+2}, s{sT+2}, {CTRL_OFF + C_PROG}
        s_cmp_eq_u32 s{sJ}, 0
        s_cselect_b32 s{sT+2}, s{sT+2}, {OOB}
        v_mov_b32 v{vA4}, s{sT+2}
        v_mov_b32 v{vT}, {OOB}
        v_cmp_eq_u32 vcc, 0, v0
        v_cndmask_b32 v{vA4}, v{vT}, v{vA4}, vcc""")
    else:
        a(f"""s_lshr_b32 s{sT+2}, s{cu}, 2
        s_lshl_b32 s{sT+2}, s{sT+2}, 14
        s_and_b32 s{sT+3}, s{cu}, 3
        s_lshl_b32 s{sT+3}, s{sT+3}, 11
        s_add_u32 s{sT+2}, s{sT+2}, s{sT+3}
        v_lshlrev_b32 v{vA1}, 9, v{vG}
        v_lshl_add_u32 v{vA1}, v{vCOL}, 4, v{vA1}
        v_add_u32 v{vA1}, s{sT+2}, v{vA1}
        s_mov_b32 s{sTK}, {K_OFF}
        s_lshl_b32 s{sT+2}, s{sX}, 8
        s_add_u32 s{sT+2}, s{sT+2}, {CTRL_OFF + C_PROG + 4}
        v_mov_b32 v{vA3}, s{sT+2}
        v_mov_b32 v{vT}, {OOB}
        v_cmp_eq_u32 vcc, 0, v0
        v_cndmask_b32 v{vA3}, v{vT}, v{vA3}, vcc""")
    a("s_waitcnt vmcnt(0)\ns_barrier")
    if w == 3:
        if sel is None: probe(a, name)
        else: a(f"s_mov_b32 s{sSEL}, {8192 * sel}")
        a(f"v_mov_b32 v{vT}, s{sSEL}\nv_mov_b32 v{vT+1}, {L_SEL}\nds_write_b32 v{vT+1}, v{vT}")
    if pf: a("s_barrier")
    if w == 3:
        if kv:
            a(f"s_lshr_b32 s{sKVF}, s{cu}, 3\ns_lshl_b32 s{sKVF}, s{sKVF}, 6\ns_add_u32 s{sKVF}, s{sKVF}, {CTRL_OFF + C_KV}")
            kv_wait(a, f"{kv}_kv0")
        a(f"s_mov_b32 s{sTB}, {L_T}\nv_mov_b32 v{vFL}, {KVT}")
        tok_dma(a); tok_dma(a)
        a("s_waitcnt vmcnt(0) lgkmcnt(0)")
    elif pf and w < 2:
        srd(a, T0, (A_W1, A_W2)[w], 1024 * 3584 * 2)
        a(f"s_mul_i32 s{sT+2}, s{cu}, 57344\ns_mov_b32 m0, {32768 + 1024 * w}\ns_waitcnt lgkmcnt(0)")
        for i in range(14):
            for k in range(4): a(f"buffer_load_dwordx4 v{vLIN}, s[{T0}:{T0+3}], s{sT+2} offen offset:{1024*k} lds")
            a(f"s_add_u32 s{sT+2}, s{sT+2}, 4096")
        a("s_waitcnt vmcnt(0)")
    a(f"s_barrier\nv_mov_b32 v{vT}, {L_SEL}\nds_read_b32 v{vT}, v{vT}\ns_waitcnt lgkmcnt(0)")
    a(f"v_readfirstlane_b32 s{sSEL}, v{vT}\nv_xor_b32 v{vT}, {PART_OFF >> 8 & 8192}, v{vT}")
    for r in [vPW, vPR, vPR + 1, vPR + 2]: a(f"v_add_u32 v{r}, v{vT}, v{r}")
    if w == 0:
        a(f"v_mov_b32 v{vTR}, v{vLIN}")
        tok_read(a)

def rec_loop(a, name, w, fast, trace=None, nsteps=64, ns_s=2, kv=False, exp=()):
    p = f"{name}_{'f' if fast else 's'}{w}"
    loc = "" if fast else " sc1"
    cold = []
    trn = [0]
    def stamp(i):
        if trace is not None: a(f"s_memtime s[{70+2*i}:{71+2*i}]")
    def smf(acc, wb, T, s): return f"v_smfmac_f32_16x16x64_bf16 {vr(acc)}, {vr(vA+4*rot(s))}, {ar(wb+32*T+8*rot(s))}, v{vIDX}"
    def ld(vaddr, s): return f"buffer_load_dwordx4 {vr(vA+4*rot(s))}, v{vaddr}, {ws}, s{sCUR} offen offset:{1024*rot(s)} sc1"
    def budget(out): return f"s_cmp_eq_u32 s{sBUD}, 0\ns_cbranch_scc1 {out}\ns_sub_u32 s{sBUD}, s{sBUD}, 1"
    def cnt(i): return f"s_add_u32 s{sTR+i}, s{sTR+i}, 1" if trace is not None else ""
    rot = (lambda s: (s + w) & 3) if "rot" in exp else (lambda s: s ^ (w & 1)) if "rot2" in exp else (lambda s: s)
    def stages(tag, vaddr, mm, ci, tail=0):
        q = f"{p}_{tag}"
        chk = lambda s: f"v_cmp_eq_u32 vcc, -1, v{vA+4*rot(s)}"
        a("s_waitcnt vmcnt(3)")
        if tag == "a": stamp(0)
        a(f"{chk(0)}\ns_cbranch_vccnz {q}m0")
        rest = {0: []}
        for s in range(4):
            M = mm(s)
            if s == 3:
                for x in M: a(x)
                break
            k = len(M) // 2
            for x in M[:k]: a(x)
            a(f"s_waitcnt vmcnt({2-s})\n{chk(s+1)}")
            k2 = len(M) - 1
            for x in M[k:k2]: a(x)
            a(f"s_cbranch_vccnz {q}m{s+1}")
            rest[s + 1] = M[k2:]
            for x in M[k2:]: a(x)
        a.lab(f"{q}b")
        c = ""
        for s in range(4):
            c += f"{q}m{s}:\n" + "\n".join(rest[s]) + f"\ns_mov_b32 s{sPEND}, {15 & ~((1 << s) - 1)}\n{budget(f'{q}h{4-s}{s}')}\n{cnt(ci)}\n{ld(vaddr, s)}\ns_branch {q}l{4-s}{(s+1)&3}\n"
        for n in range(1, 5):
            for s in range(4):
                c += f"{q}l{n}{s}:\n"
                if n < 4: c += f"s_bitcmp1_b32 s{sPEND}, {s}\ns_cbranch_scc0 {q}l{n}{(s+1)&3}\n"
                c += f"s_waitcnt vmcnt({n-1})\n{chk(s)}\ns_cbranch_vccz {q}h{n}{s}\n{budget(f'{q}h{n}{s}')}\n{cnt(ci+1)}\n{ld(vaddr, s)}\n"
            c += f"s_branch {q}l{n}0\n"
            for s in range(4):
                c += f"{q}h{n}{s}:\n" + "\n".join(mm(s)) + "\n"
                c += f"s_bitset0_b32 s{sPEND}, {s}\ns_branch {q}l{n-1}{(s+1)&3}\n" if n > 1 else (f"s_nop {tail-1}\n" if tail else "") + f"s_branch {q}b\n"
        cold.append(c)
    def zero(r0, r1):
        for r in range(r0, r1, 2): a(f"v_mov_b64 {vr(r,2)}, 0")
    mf = lambda d, x, y, c: a(f"v_mfma_f32_16x16x32_bf16 {vr(d)}, {vr(x)}, {vr(y)}, {vr(d) if c else 0}")
    def xreduce(fill=()):
        for pw in range(4):
            for b in range(2):
                a(f"ds_read_b128 {vr(vP+8*pw+4*b)}, v{vA1} offset:{L_X + pw*16*XROW*4 + 32*b}")
        for x in fill: a(x)
        a("s_waitcnt lgkmcnt(4)")
        for i in range(0, 8, 2): a(pk(vP + i, vP + i, vP + 8 + i))
        a("s_waitcnt lgkmcnt(2)")
        for i in range(0, 8, 2): a(pk(vP + i, vP + i, vP + 16 + i))
        a("s_waitcnt lgkmcnt(1)")
        for i in range(0, 4, 2): a(pk(vP + i, vP + i, vP + 24 + i))
        a("s_waitcnt lgkmcnt(0)")
        for i in range(4, 8, 2): a(pk(vP + i, vP + i, vP + 24 + i))
        for i in range(0, 8, 2): a(f"v_cvt_pk_bf16_f32 v{vX+i//2}, v{vP+i}, v{vP+i+1}")
    def vreduce(tmp):
        o = [x for x in range(4) if x != w]
        for k in range(3): a(f"ds_read_b128 {vr(tmp+4*k)}, v{vLIN} offset:{L_V + 1024*o[k]}")
        src = {w: vF, o[0]: tmp, o[1]: tmp + 4, o[2]: tmp + 8}
        a("s_waitcnt lgkmcnt(0)")
        for i in (0, 2): a(pk(tmp + 12 + i, src[0] + i, src[1] + i))
        for i in (0, 2): a(pk(vF + i, src[2] + i, src[3] + i))
        for i in (0, 2): a(pk(vF + i, vF + i, tmp + 12 + i))
        a(f"v_cvt_pk_bf16_f32 v{vR0}, v{vF}, v{vF+1}\nv_cvt_pk_bf16_f32 v{vR1}, v{vF+2}, v{vF+3}")
    def kvm():
        if "nokm" in exp or w not in (1, 2): return
        near(a, sT + 5, sKM)
        a(f"buffer_store_dwordx4 {vr(vX)}, v{vA2 if w == 1 else vA1}, {ws}, s{sT+5} offen sc1\ns_add_u32 s{sKM}, s{sKM}, 131072")
    def slow():
        if "wb1" in exp and w in (1, 2):
            a(f"s_cmp_eq_u32 s{sSTEP}, 0\ns_cbranch_scc1 {p}_nkm")
            kvm()
            if w == 2: a(f"v_mov_b32 v{vT}, s{sSTEP}\nv_add_u32 v{vT}, -1, v{vT}\nbuffer_store_dword v{vT}, v{vA4}, {ws}, 0 offen sc1")
            a.lab(f"{p}_nkm")
        else: kvm()
        if w == 1 and "w1r" not in exp: a(f"buffer_store_dwordx4 {vr(vSENT)}, v{vPW}, {ws}, s{sPRST} offen sc1")
        if w == 3 and "notok" not in exp:
            a(f"s_cmp_ge_u32 s{sSTEP}, {nsteps-2}\ns_cbranch_scc1 {p}_ntk")
            if kv:
                a(f"v_readfirstlane_b32 s{sT+6}, v{vFL}\ns_cmp_lt_u32 s{sT+6}, {KVT}\ns_cbranch_scc1 {p}_kvw\n{p}_kv_d:")
                c = Asm(); kv_wait(c, f"{p}_kv"); cold.append(f"{p}_kvw:\n" + "\n".join(c.lines[:-1]) )
            tok_dma(a)
            if kv:
                a(f"""s_add_u32 s{sT+6}, s{sSTEP}, 3
                s_and_b32 s{sT+6}, s{sT+6}, 7
                s_cselect_b32 s{sT+6}, 0, 1024
                s_add_u32 s{sKVF}, s{sKVF}, s{sT+6}
                v_mov_b32 v{vT+1}, 0
                buffer_load_dword v{vFL}, v{vT+1}, {ws}, s{sKVF} offen sc1""")
            a.lab(f"{p}_ntk")
    if trace is not None:
        for i in range(16): a(f"s_mov_b32 s{sTR+i}, 0")
        a(f"v_and_b32 v201, 31, v0\nv_lshlrev_b32 v201, 2, v201\nv_add_u32 v201, {65536 + 8192*w}, v201\nv_mov_b32 v200, 98304\nv_cmp_gt_u32 vcc, 32, v0\nv_cndmask_b32 v201, v200, v201, vcc\nv_mov_b32 v200, 0")
    a.lab(f"{p}_top")
    stages("a", vMEMR, lambda s: [smf(vQ0, 0, 0, s), smf(vQ1, 0, 1, s), smf(vK0, 64, 0, s), smf(vK1, 64, 1, s)], 1)
    stamp(1)
    if w == 1:
        a(f"buffer_store_dwordx4 {vr(vSENT)}, v{vA3}, {ws}, s{sRST} offen{loc}")
        a(f"buffer_store_dword v{vSENT}, v{vA4}, {ws}, s{sRST} offen{loc}")
    if w == 2:
        if "prs" not in exp: a(f"buffer_store_dwordx2 {vr(vSENT,2)}, v{vA2}, {ws}, s{sRST} offen{loc}")
        a(f"buffer_store_dwordx2 {vr(vSENT,2)}, v{vA3}, {ws}, s{sRST} offen{loc}")
    V = [smf(vV0 + 4 * T, 128, T, s) for s in range(4) for T in range(2)]
    a(V[0])
    a(pk(vQ0, vQ0, vQ0 + 2)); a(pk(vQ1, vQ1, vQ1 + 2))
    for T in range(2): a(f"ds_write2_b32 v{vXW}, v{vQ0+4*T}, v{vQ0+4*T+1} offset0:{2*XROW+16*T} offset1:{3*XROW+16*T}")
    a(V[1])
    a(pk(vK0, vK0, vK0 + 2)); a(pk(vK1, vK1, vK1 + 2))
    for T in range(2): a(f"ds_write2_b32 v{vXW}, v{vK0+4*T}, v{vK0+4*T+1} offset0:{16*T} offset1:{XROW+16*T}")
    a(f"""s_and_b32 s{sT+6}, s{sSTEP}, 3
    s_lshl_b32 s{sCUR}, s{sT+6}, 19
    s_add_u32 s{sCUR}, s{sCUR}, {RING_OFF}""")
    for x in V[2:4]: a(x)
    a("s_waitcnt lgkmcnt(0)\ns_barrier")
    stamp(2)
    if "wb1" in exp: slow()
    vfold = [pk(vF, vV0, vV0 + 2), pk(vF + 2, vV1, vV1 + 2)]
    if w == 0:
        xreduce(V[4:])
        mf(vD, vKT, vX, 0); mf(vD + 4, vKT + 4, vX, 0); mf(vD + 8, vX, vX, 0)
        for x in vfold: a(x)
        a(f"buffer_store_dwordx4 {vr(vD)}, v{vA2}, {ws}, s{sCUR} offen{loc}")
        a(f"buffer_store_dwordx4 {vr(vD+4)}, v{vA2}, {ws}, s{sCUR} offen offset:32{loc}")
        a(f"buffer_store_dword v{vD+8}, v{vA3}, {ws}, s{sCUR} offen{loc}")
        a(f"buffer_store_dword v{vD+9}, v{vA3}, {ws}, s{sCUR} offen offset:32{loc}")
        stamp(3)
        def sld(k):
            b = vP + 16 * k
            return "\n".join(f"buffer_load_dwordx4 {vr(b+4*i)}, v{vA4+i}, {ws}, s{sCUR} offen sc1" for i in range(4))
        def schk(k, o, done, neg=False):
            b = vP + 16 * k
            return f"""s_waitcnt vmcnt({o+3})
            {pk(vS, vSO, b)}
            {pk(vS+2, vSO+2, b+2)}
            s_waitcnt vmcnt({o+2})
            {pk(vS, vS, b+4)}
            {pk(vS+2, vS+2, b+6)}
            s_waitcnt vmcnt({o+1})
            {pk(vS, vS, b+8)}
            {pk(vS+2, vS+2, b+10)}
            s_waitcnt vmcnt({o})
            {pk(vS+4, b+12, b+14)}
            v_add_f32 v{vS+4}, v{vS+4}, v{vS+5}
            v_cmp_u_f32 vcc, v{vS}, v{vS+4}
            s_cbranch_{'vccnz' if neg else 'vccz'} {done}"""
        if "acks" not in exp and "sb2" not in exp: a(sld(0))
        a(f"ds_write_b128 v{vLIN}, {vr(vF)} offset:{L_V}")
        a(f"s_mov_b64 vcc, s[{sMB}:{sMB+1}]")
        for i in range(4): a(f"v_cndmask_b32_dpp v{vSO+i}, v{vD+i}, v{vD+4+i}, vcc quad_perm:[2,3,2,3] row_mask:0xf bank_mask:0xf")
        a("s_waitcnt lgkmcnt(0)\ns_barrier")
        stamp(4)
        a(f"s_cmp_eq_u32 s{sSTEP}, {nsteps-1}\ns_cbranch_scc1 {p}_fin")
        if "sb2" in exp: a(sld(0))
        vreduce(vP + 32)
        if ns_s == 2: a(sld(1))
        zero(vQ0, vV1 + 4)
        stamp(5)
        if "acks" in exp: a("s_waitcnt vmcnt(0)"); stamp(6); a(sld(0))
        else: stamp(6)
        o = 4 * (ns_s - 1)
        a(schk(0, o, f"{p}_ps", True))
        c = f"{p}_ps:\n"
        if ns_s == 2:
            for k in range(2): c += f"{budget(f'{p}_psd')}\n{cnt(5)}\n{sld(k)}\n{schk(k ^ 1, o, f'{p}_psd')}\n"
        else:
            c += f"{budget(f'{p}_psd')}\n{cnt(5)}\n{sld(0)}\n{schk(0, 0, f'{p}_psd')}\n"
        cold.append(c + f"s_branch {p}_ps")
        a.lab(f"{p}_psd")
        stamp(7)
        m, t = vT, vT + 1
        D = "quad_perm:[2,3,0,1] row_mask:0xf bank_mask:0xf"
        a(f"""v_max3_f32 v{m}, v{vS}, v{vS+1}, v{vS+4}
        v_max3_f32 v{m}, v{m}, v{vS+2}, v{vS+3}
        v_max_f32_dpp v{m}, v{m}, v{m} {D}
        v_mov_b32 v{t}, v{m}
        v_permlane16_swap_b32 v{m}, v{t}
        v_max_f32 v{m}, v{m}, v{t}
        v_mov_b32 v{t}, v{m}
        v_permlane32_swap_b32 v{m}, v{t}
        v_max_f32 v{m}, v{m}, v{t}
        v_mul_f32 v{m}, s{sCSC}, v{m}""")
        for i in range(5): a(f"v_fma_f32 v{vS+i}, v{vS+i}, s{sCSC}, -v{m}")
        for i in range(5): a(f"v_exp_f32 v{vS+i}, v{vS+i}")
        a(f"""v_cvt_pk_bf16_f32 v{vPB}, v{vS}, v{vS+1}
        v_cvt_pk_bf16_f32 v{vPB+1}, v{vS+2}, v{vS+3}
        v_mov_b32_dpp v{t}, v{vS+4} {D}
        v_mov_b32_dpp v{vPB+2}, v{vPB} {D}
        v_mov_b32_dpp v{vPB+3}, v{vPB+1} {D}
        v_cvt_pk_bf16_f32 v{vBM}, v{vS+4}, v{t}""")
        mf(vD + 8, vONE, vPB, 0); mf(vD + 8, vONE, vBM, 1)
        mf(vD, vVT, vPB, 0); mf(vD, vR0, vBM, 1); mf(vD + 4, vVT + 4, vPB, 0)
        a(f"v_rcp_f32 v{m}, v{vD+8}")
        mf(vD + 4, vR1, vBM, 1)
        for i in range(0, 8, 2):
            a(f"v_pk_mul_f32 {vr(vD+i,2)}, {vr(vD+i,2)}, {vr(m,2)} op_sel_hi:[1,0]")
            a(f"v_cvt_pk_bf16_f32 v{vX+i//2}, v{vD+i}, v{vD+i+1}")
        a(f"buffer_store_dwordx4 {vr(vX)}, v{vA8}, {ws}, s{sCUR} offen{loc}")
        stamp(8)
        if "acko" in exp: a("s_waitcnt vmcnt(0)")
    else:
        for x in V[4:]: a(x)
        for x in vfold: a(x)
        a(f"ds_write_b128 v{vLIN}, {vr(vF)} offset:{L_V + 1024*w}")
        stamp(3)
        a("s_waitcnt lgkmcnt(0)\ns_barrier")
        stamp(4)
        if w == 1: xreduce()
        elif w == 2:
            vreduce(vP)
            a(f"""v_permlane16_swap_b32 v{vR0}, v{vR1}
            v_mov_b32 v{vX}, v{vR0}
            v_mov_b32 v{vX+1}, v{vR1}
            v_mov_b32 v{vX+2}, v{vR0}
            v_mov_b32 v{vX+3}, v{vR1}
            v_permlane32_swap_b32 v{vX}, v{vX+2}
            v_permlane32_swap_b32 v{vX+1}, v{vX+3}""")
        a(f"s_cmp_eq_u32 s{sSTEP}, {nsteps-1}\ns_cbranch_scc1 {p}_fin")
        zero(vQ0, vV1 + 4)
        for i in range(5, 9): stamp(i)
    a("s_barrier")
    stamp(9)
    for s in range(4): a(ld(vOR, s))
    stages("o", vOR, lambda s: [smf(vO0, 192, 0, s), smf(vO1, 192, 1, s)], 3)
    stamp(10)
    a(pk(vF, vO0, vO0 + 2)); a(pk(vF + 2, vO1, vO1 + 2))
    a(f"ds_write2_b32 v{vOPW}, v{vF}, v{vF+1} offset0:0 offset1:72\nds_write2_b32 v{vOPW}, v{vF+2}, v{vF+3} offset0:160 offset1:232")
    if "w2c" not in exp and "wb1" not in exp: slow()
    a("s_waitcnt lgkmcnt(0)\ns_barrier")
    stamp(11)
    book = f"""s_add_u32 s{sSTEP}, s{sSTEP}, 1
    s_mov_b32 s{sT+7}, s{sPCUR}
    s_and_b32 s{sT+6}, s{sSTEP}, 3
    s_lshl_b32 s{sPCUR}, s{sT+6}, {PSLOT.bit_length() - 1}
    s_xor_b32 s{sPRST}, s{sPCUR}, {2*PSLOT}
    s_add_u32 s{sPCUR}, s{sPCUR}, {PART_OFF}
    s_add_u32 s{sPRST}, s{sPRST}, {PART_OFF}
    s_xor_b32 s{sT+6}, s{sT+6}, 2
    s_lshl_b32 s{sRST}, s{sT+6}, 19
    s_add_u32 s{sRST}, s{sRST}, {RING_OFF}"""
    if w == 0:
        for pw in range(4): a(f"ds_read_b128 {vr(vP+4*pw)}, v{vOPR} offset:{L_O + OPW*pw}")
        if "prs" in exp: a(f"buffer_store_dwordx2 {vr(vSENT,2)}, v{vMW}, {ws}, s{sRST} offen{loc}")
        a(f"""s_waitcnt lgkmcnt(2)
        {pk(vP, vP, vP+4)}
        {pk(vP+2, vP+2, vP+6)}
        s_waitcnt lgkmcnt(0)
        {pk(vP+8, vP+8, vP+12)}
        {pk(vP+10, vP+10, vP+14)}
        {pk(vF, vP, vP+8)}
        {pk(vF+2, vP+2, vP+10)}
        buffer_store_dwordx4 {vr(vF)}, v{vPW}, {ws}, s{sPCUR} offen sc1""")
        stamp(12)
        def pld(k, so): return "\n".join(f"buffer_load_dwordx4 {vr(vP+12*k+4*i)}, v{vPR+i}, {ws}, s{so} offen sc1" for i in range(3))
        def pchk(k, o, lab, neg):
            b = vP + 12 * k
            return f"""s_waitcnt vmcnt({o+1})
            {pk(b, b, b+4)}
            {pk(b+2, b+2, b+6)}
            s_waitcnt vmcnt({o})
            {pk(b+8, b+8, vF)}
            {pk(b+10, b+10, vF+2)}
            {pk(b, b, b+8)}
            {pk(b+2, b+2, b+10)}
            v_cmp_u_f32 vcc, v{b}, v{b+3}
            v_cvt_pk_bf16_f32 v{vX}, v{b}, v{b+1}
            v_cvt_pk_bf16_f32 v{vX+1}, v{b+2}, v{b+3}
            s_cbranch_{'vccnz' if neg else 'vccz'} {lab}"""
        when = [c for c in "012" if "p" + c in exp] or ["2"]
        np_ = len(when); k = 0
        if "0" in when: a(pld(k, sPCUR)); k += 1
        tok_read(a)
        zero(vO0, vO1 + 4)
        a(book)
        if "1" in when: a(f"s_waitcnt vmcnt({1 + 3 * k})"); a(pld(k, sT + 7)); k += 1
        if "2" in when: a(f"s_waitcnt vmcnt({3 * k})"); stamp(13); a(pld(k, sT + 7)); k += 1
        else: stamp(13)
        o = 3 * (np_ - 1)
        a(pchk(0, o, f"{p}_ppr", True))
        c = f"{p}_ppr:\n"
        for k in range(np_): c += f"{budget(f'{p}_ppd')}\n{cnt(6)}\n{pld(k, sT + 7)}\n{pchk((k + 1) % np_, o, f'{p}_ppd', False)}\n"
        cold.append(c + f"s_branch {p}_ppr")
        a(f"""{p}_ppd:
        buffer_store_dwordx2 {vr(vX,2)}, v{vMW}, {ws}, s{sCUR} offen{loc}""")
        stamp(14)
        if "ackm" in exp: a("s_waitcnt vmcnt(0)")
        a("s_waitcnt lgkmcnt(0)")
    else:
        if "w2c" in exp: slow()
        if w == 2 and "wb1" not in exp: a(f"v_mov_b32 v{vT}, s{sSTEP}\nbuffer_store_dword v{vT}, v{vA4}, {ws}, 0 offen sc1")
        zero(vO0, vO1 + 4)
        a(book)
        for i in (12, 13, 14): stamp(i)
    a("s_barrier")
    stamp(15)
    for s in range(4): a(ld(vMEMR, s))
    if trace is not None:
        a("s_memrealtime s[36:37]\ns_waitcnt lgkmcnt(0)")
        for i in range(16): a(f"v_writelane_b32 v200, s{70+2*i}, {i}")
        a("v_writelane_b32 v200, s36, 16")
        for i in range(1, 7): a(f"v_writelane_b32 v200, s{sTR+i}, {16+i}")
        a(f"ds_write_b32 v201, v200\nv_add_u32 v201, 128, v201")
    a(f"s_branch {p}_top")
    for c in cold: a(c)
    a.lab(f"{p}_fin")
    kvm()
    a("s_waitcnt vmcnt(0)\ns_barrier")
    if w == 3:
        a(f"v_mov_b32 v{vT}, 1\nbuffer_atomic_add v{vT}, v{vA3}, {ws}, 0 offen sc1")
    if trace is not None:
        a(f"s_lshl_b32 s{sT+6}, s{sX}, 5\ns_add_u32 s{sT+6}, s{sT+6}, s{sJ}\ns_lshl_b32 s{sT+6}, s{sT+6}, 15\ns_add_u32 s{sT+6}, s{sT+6}, {TRACE_OFF + 8192*w}")
        for i in range(8):
            a(f"v_add_u32 v201, {65536 + 8192*w + 1024*i}, v{vLIN}\nds_read_b128 v[204:207], v201\ns_waitcnt lgkmcnt(0)\nbuffer_store_dwordx4 v[204:207], v{vLIN}, {ws}, s{sT+6} offen\ns_add_u32 s{sT+6}, s{sT+6}, 1024\ns_waitcnt vmcnt(0)")
    a(f"s_branch {name}_recdone")

def rec_all(a, name, modes=(True, False), sel=None, kv=False, pf=False, **kw):
    rec_prologue(a, name)
    for w in range(3):
        a(f"s_cmp_eq_u32 s{sW}, {w}\ns_cbranch_scc1 {name}_rp{w}")
    for w in (3, 0, 1, 2):
        if w != 3: a.lab(f"{name}_rp{w}")
        role_prologue(a, w, name, name if kv else None, sel, pf)
        if len(modes) == 2:
            a(f"s_cmp_eq_u32 s{sMODE}, 0\ns_cbranch_scc1 {name}_safe{w}")
        rec_loop(a, name, w, modes[0], kv=kv, **kw)
        if len(modes) == 2:
            a.lab(f"{name}_safe{w}")
            rec_loop(a, name, w, modes[1], kv=kv, **kw)

def gen_rec_only(name, force_safe=False, mfma_w=3, **kw):
    a = Asm(mfma_w)
    roles(a, name, True)
    if force_safe: a(f"s_mov_b32 s{sMODE}, 0")
    a(f"s_cmp_lg_u32 s{sG}, -1\ns_cbranch_scc1 {name}_end")
    rec_all(a, name, **kw)
    a(f"{name}_recdone:\ns_waitcnt vmcnt(0)\n{name}_end:\ns_endpgm")
    return khead(name) + a.finish(True)
```

```python
import sys
from asmlib import *; from layout import *; from prep import gen_prep
from rec import roles, sG
from rec3 import rec_all
import g3
from g3 import desc, T_K, T_V, T_QA, T_F1, T_F2, T_WO, T_F2E, T_KH, T_VH, T_QS, T_TW, T_SUM, with_sum
TW0 = 48
def f1_range(b, q):
    n = [e >> 3 for e in range(28 * q, 28 * q + 28) if e & 7 == b]
    return n[0], len(n)
def column(task, q, r):
    ty, i = task[:2]
    if ty == 'K': return [desc(T_K, i, 4 * q + r)]
    if ty == 'V': return [desc(T_V, i, 4 * q + r)]
    if ty == 'QA': return [desc(T_QA, i, 4 * q + r)]
    if ty == 'QS': return [desc(T_QS, i, 4 * q + r)]
    if ty == 'F1':
        tiles = [(b, f1_range(b, q)[0] + k) for b in range(8) for k in range(f1_range(b, q)[1])]
        b, n = tiles[4 * i + r]
        return [desc(T_F1, b, n)]
    if ty == 'FW':
        k0, kl = f1_range(i, q)
        return [desc(T_F2, i, r, k0, kl), desc(T_WO, i, r, 4 * q, 4)]
    if ty == 'F2':
        k0, kl = f1_range(i, q)
        return [desc(T_F2E, i, r, k0, kl)]
    if ty == 'TW': return [T_TW | (16 * q + 4 * i + r) << 4 | TW0 << 20]
    if ty == 'S': return [with_sum(T_SUM, i, r)]
    raise ValueError(ty)
def lists_of(cols):
    L = []
    for q in range(4):
        for c in range(8):
            for r in range(4):
                l = [desc(T_VH if c & 1 else T_KH, c >> 1, 4 * q + r)]
                for t in cols[c]:
                    if t[0] == '+S': l[-1] = with_sum(l[-1], t[1], r)
                    else: l += column(t, q, r)
                assert (l[1] & 15) in (T_K, T_V, T_QA, T_F1)
                L.append(l)
    return L
def parse(s): return [[(x.rstrip("0123456789") if not x.startswith(("F1", "F2")) else x[:2], int(x[-1])) for x in c.split()] for c in s.split("|")]
PLAN_A = "K2 K4 K6 QA3 QA6 FW6 | V2 V4 V6 FW2 QA7 | K3 K5 K7 QA4 FW5 | V3 V5 V7 FW3 FW7 | F10 F14 F16 QA5 | F11 F15 QA2 FW4 | F12 QA0 FW0 | F13 QA1 FW1"
PLAN_D = "K6 F10 V5 F27 QS6 +S2 S0 S1 S3 | K4 QA1 F14 QA4 QS7 | V4 F11 FW2 FW4 S4 | K3 F15 V6 FW3 TW2 | V2 F16 K7 FW0 TW1 | V3 QA0 QA3 V7 FW5 S5 | K2 F12 K5 FW1 TW0 | F13 QA2 F26 QA5 TW3"
HEAD = open("cdna_kernels/" + KNAME + ".s.ref").read().split("; Override launch")[0]
def mk(trace=False, force_safe=False, mfma_w=3, plan=PLAN_D, rtrace=None, cs=None, pf=True, exp=('acko', 'sb2', 'prs', 'p1')):
    name = KNAME + "_kernel"; n = "m"
    a = Asm(mfma_w)
    roles(a, n, True)
    if force_safe: a("s_mov_b32 s15, 0")
    a(f"s_cmp_lg_u32 s{sG}, -1\ns_cbranch_scc1 {n}_gemm")
    rec_all(a, n, kv=True, pf=pf, trace=rtrace, exp=exp)
    a.lab(n + "_gemm")
    g3.gemm_side(a, n, lists_of(parse(plan)), trace, cs=g3.Cfg(**cs) if cs else None)
    a(f"{n}_recdone:\ns_waitcnt vmcnt(0)\n{n}_end:\ns_endpgm")
    s = HEAD + f"; @launch kernel=prep_kernel grid=(256,1,1) block=(256,1,1) lds=256\n; @launch kernel={name} grid=(256,1,1) block=(256,1,1) lds={g3.LDS_BYTES}\n"
    s += '.amdgcn_target "amdgcn-amd-amdhsa--gfx950"\n.text\n' + gen_prep("prep_kernel") + khead(name) + a.finish(True)
    s += '.section .rodata,"a"\n.p2align 6\n' + kdesc("prep_kernel", 128, 128) + ".p2align 6\n" + kdesc(name)
    return s
if __name__ == "__main__":
    out = sys.argv[1] if len(sys.argv) > 1 else "main.s"
    open(out, "w").write(mk(**(eval(sys.argv[2]) if len(sys.argv) > 2 else {})))
```

```python
from asmlib import *
from layout import *
from g2 import Cfg, pieces, reads, rebias, VM, lanes_frag, lanes_vt, getreg, pack, ACC0, PAD, CSC, NEG
import g2
from start import sSELV, XS

WS = 4
sW, sG, sBUD = 14, 16, 17
sTYP, sB, sN, sFLG, sNC, sOUT, sCUR, sNXT = 18, 19, 20, 21, 22, 23, 24, 25
sDEP, sDMK, sCOLD, sPFL = 26, 27, 28, 29
sWM, sWN, sSL, sQ = 32, 33, 34, 35
sSV, sPI = 59, 61
sLST = 36
SA, SB_ = 44, 48
sOA, sOB, sWB, sSTB, sCNT = 52, 53, 54, 55, 56
sRBA, sROW, sWA = 57, 58, 60
sE = 62
SO = 72
sTRC = 76
sWP = 86
assert (g2.SA, g2.SB_, g2.sOA, g2.sOB, g2.sWB, g2.sSTB, g2.sWA) == (SA, SB_, sOA, sOB, sWB, sSTB, 61)
g2.sWA = sWA
vAR, vBR, vDA, vDB, vE = 1, 2, 4, 6, 10
vFA, vFD, vDL, vDV, vORD = 10, 11, 13, 14, 15
aSTA, aSEL = 240, 248
ws = f"s[{WS}:{WS+3}]"
T_K, T_V, T_QA, T_F1, T_F2, T_WO, T_F2E, T_KH, T_VH, T_QS, T_TW, T_SUM, T_END = 0, 1, 2, 3, 4, 5, 6, 7, 8, 9, 10, 11, 15
TN = {0: "K", 1: "V", 2: "QA", 3: "F1", 4: "F2", 5: "WO", 6: "F2E", 7: "QT", 8: "VH", 9: "QS", 10: "TW", 11: "SUM", 15: "END"}
NLIST = 10
T_QT = T_KH
PLAIN = ""; LOCAL = False
sLOC, sMODE = 13, 15
LDS_BYTES = 4 * 33792
def desc(t, b=0, n=0, k0=0, kl=0):
    return t | b << 4 | n << 7 | k0 << 11 | kl << 15
def with_sum(d, b, n): return d | 1 << 26 | b << 27 | n << 30
def bfe(a, d, s, off, w): a(f"s_bfe_u32 s{d}, s{s}, {hex(w << 16 | off)}")

def lane_setup(a, c):
    a(f"""
    v_lshrrev_b32 v{vE}, 4, v0                    ; g
    v_and_b32 v{vE+1}, 15, v0
    s_mul_i32 s{sE}, s{sWM}, {c.MT // 2 * 2048}
    v_lshl_add_u32 v{vAR}, v{vE}, 9, s{sE}
    v_lshl_add_u32 v{vAR}, v{vE+1}, 4, v{vAR}
    v_lshrrev_b32 v{vE+1}, 5, v0
    v_lshlrev_b32 v{vE+1}, 4, v{vE+1}
    v_and_b32 v{vE}, 1, v{vE}
    v_lshl_add_u32 v{vE+1}, v{vE}, 2, v{vE+1}
    v_bfe_u32 v{vE}, v0, 2, 2
    v_add_u32 v{vE+1}, v{vE+1}, v{vE}             ; k row
    v_bfe_u32 v{vE+2}, v0, 1, 1
    v_lshlrev_b32 v{vE+2}, 5, v{vE+2}
    v_and_b32 v{vE+3}, 1, v0
    v_lshl_add_u32 v{vE+2}, v{vE+3}, 3, v{vE+2}
    s_mov_b32 s{sE}, {PAD}
    v_lshrrev_b32 v{vE+3}, 1, v{vE+1}
    v_mad_u32_u24 v{vE+2}, v{vE+3}, s{sE}, v{vE+2}
    v_and_b32 v{vE+3}, 1, v{vE+1}
    v_lshl_add_u32 v{vE+2}, v{vE+3}, 9, v{vE+2}
    v_lshl_add_u32 v{vBR}, v{vE+3}, 4, v{vE+2}
    s_lshl_b32 s{sE}, s{sWN}, 8
    s_add_u32 s{sE}, s{sE}, {c.AB}
    v_add_u32 v{vBR}, s{sE}, v{vBR}
    v_xor_b32 v{vBR+1}, 16, v{vBR}
    s_mul_i32 s{sWA}, s{sW}, {c.PA * 1024}
    s_mul_i32 s{sWB}, s{sW}, {c.PB * PAD}
    s_add_u32 s{sWB}, s{sWB}, {c.AB}
    """)

def stream_lanes(a, c, t=12):
    a(f"""s_mul_i32 s{sE}, s{sW}, {c.PA // 2}
    s_mul_i32 s{sE}, s{sE}, s{sRBA}
    v_lshl_add_u32 v{vDA}, v0, 4, s{sE}""")
    if c.PA == 4: a(f"s_sub_u32 s{sE}, s{sRBA}, 2048\nv_add_u32 v{vDA+1}, s{sE}, v{vDA}")
    a(f"""v_lshrrev_b32 v{t}, 5, v0
    v_and_b32 v{vDB}, 31, v0
    v_xor_b32 v{vDB}, v{vDB}, v{t}
    v_lshlrev_b32 v{vDB}, 4, v{vDB}
    s_lshl_b32 s{sE}, s{sW}, 3
    v_add_u32 v{t}, s{sE}, v{t}
    v_mad_u32_u24 v{vDB}, v{t}, s{sROW}, v{vDB}
    s_lshl_b32 s{sE}, s{sROW}, 1
    s_sub_u32 s{sE}, s{sE}, {PAD}
    v_add_u32 v{vDB+1}, s{sE}, v{vDB}
    v_add_u32 v{vDB+2}, s{sE}, v{vDB+1}
    v_add_u32 v{vDB+3}, s{sE}, v{vDB+2}
    s_lshl_b32 s{sSTB}, s{sROW}, 5""")

def stream_switch(a, c, d, lab):
    t, b, n, k = sE + 1, sE + 2, sE + 3, sE + 4
    a(f"s_and_b32 s{t}, s{d}, 15")
    bfe(a, b, d, 4, 3); bfe(a, n, d, 7, 4); bfe(a, k, d, 11, 4)
    a(f"""s_mov_b32 s{SA+2}, {WS_BYTES}
    s_lshl_b32 s{sOB}, s{n}, 9
    s_sub_u32 s{sE}, s{t}, {T_F2}
    s_cmp_lt_u32 s{sE}, 3
    s_cbranch_scc1 {lab}_fw
    s_lshl_b32 s{sOA}, s{b}, 19
    s_mov_b32 s{sRBA}, 65536
    s_mov_b64 s[{SB_}:{SB_+1}], s[{sWP+4}:{sWP+5}]
    s_cmp_eq_u32 s{t}, {T_K}
    s_cselect_b64 s[{SB_}:{SB_+1}], s[{sWP}:{sWP+1}], s[{SB_}:{SB_+1}]
    s_cmp_eq_u32 s{t}, {T_V}
    s_cselect_b64 s[{SB_}:{SB_+1}], s[{sWP+2}:{sWP+3}], s[{SB_}:{SB_+1}]
    s_cmp_eq_u32 s{t}, {T_F1}
    s_cselect_b64 s[{SB_}:{SB_+1}], s[{sWP+6}:{sWP+7}], s[{SB_}:{SB_+1}]
    s_cselect_b32 s{sROW}, 7168, 0
    s_cselect_b32 s{sE}, 0, 8192
    s_or_b32 s{sROW}, s{sROW}, s{sE}
    s_lshl_b32 s{SB_+2}, s{sROW}, 10
    s_branch {lab}_l
    {lab}_fw:
    s_lshl_b32 s{sE}, s{k}, 19
    s_add_u32 s{sOB}, s{sOB}, s{sE}
    s_mov_b32 s{sROW}, 2048
    s_cmp_eq_u32 s{t}, {T_WO}
    s_cselect_b64 s[{SB_}:{SB_+1}], s[{sWP+10}:{sWP+11}], s[{sWP+8}:{sWP+9}]
    s_mov_b32 s{SB_+2}, {3584 * 2048}
    s_cselect_b32 s{SB_+2}, {4096 * 2048}, s{SB_+2}
    s_mov_b32 s{sRBA}, 229376
    s_cselect_b32 s{sRBA}, 262144, s{sRBA}
    s_mov_b32 s{sOA}, {H1_OFF}
    s_cselect_b32 s{sOA}, {O_OFF}, s{sOA}
    s_mul_i32 s{sE}, s{b}, s{sRBA}
    s_lshl_b32 s{sE}, s{sE}, 3
    s_add_u32 s{sOA}, s{sOA}, s{sE}
    s_lshl_b32 s{sE}, s{k}, 14
    s_add_u32 s{sOA}, s{sOA}, s{sE}
    {lab}_l:""")
    stream_lanes(a, c)

def lane0(a, v, tmp, sp=sE):
    a(f"v_mov_b32 v{v}, {OOB}\nv_mov_b32 v{tmp}, 0\nv_cmp_eq_u32 s[{sp}:{sp+1}], 0, v0\nv_cndmask_b32 v{v}, v{v}, v{tmp}, s[{sp}:{sp+1}]")
def fw_flag(a, d, b=sB, n=sN):
    a(f"""s_lshl_b32 s{d}, s{b}, 2
    s_add_u32 s{d}, s{d}, s{n}
    s_lshl_b32 s{d}, s{d}, 2
    s_add_u32 s{d}, s{d}, s{sW}
    s_lshl_b32 s{d}, s{d}, 6
    s_add_u32 s{d}, s{d}, {CTRL_OFF + C_FW}""")
DEPLD = f"buffer_load_dword v{vDV}, v{vDL}, {ws}, s{sDEP} offen sc1"
def notready(a):
    a(f"v_cmp_gt_u32 s[{sE}:{sE+1}], 4, v{vDV}\ns_and_b32 s{sE}, s{sE}, s{sDMK}")

def hook(a, c, lab, form):
    a(f"s_cmp_eq_u32 s{sCNT}, 1\ns_cbranch_scc0 {lab}_s")
    notready(a)
    a(f"""s_cselect_b32 s{sCOLD}, 1, s{sCOLD}
    s_cmp_eq_u32 s{sCOLD}, 0
    s_cbranch_scc1 {lab}_w
    s_mov_b32 s{SA+2}, 0
    s_mov_b32 s{SB_+2}, 0
    s_branch {lab}_s
    {lab}_w:""")
    stream_switch(a, c, sNXT, lab)
    a.lab(lab + "_s")
    a(DEPLD)

def stage(a, c, slot, form, first=False, top=None, pre=None):
    p = slot & 1
    fill = [[] for _ in range(c.M)]
    nslot = (slot + 1) % c.NS
    items = reads(c, nslot, p ^ 1) + rebias(c, nslot, (nslot + 1) % c.NS)
    pc = pieces(c, slot)
    span = c.M - c.r0 - 4
    st = min(c.rstep, span / len(items))
    dg = [min(c.M - 1, (i * c.M) // c.P + 1) for i in range(len(pc))]
    for i, x in enumerate(items):
        fill[min(c.M - 1, c.r0 + int(i * st))].append(x)
    for gp, x in zip(dg, pc):
        if "m0" in x[0] and gp > 0 and not any(y.startswith("buffer") for y in fill[gp - 1] + fill[gp]):
            fill[gp - 1].append(x[0]); x = x[1:]
        fill[gp] += x[:1] if x[0].startswith("buffer") else x[:2]
        rest = x[1:] if x[0].startswith("buffer") else x[2:]
        fill[min(c.M - 1, gp + 1)] += rest
    if top == "relax":
        L = a.newlab("rx")
        a(f"s_waitcnt vmcnt({(c.NS - 2) * c.P + 32}) lgkmcnt(0)\ns_cbranch_vccnz {L}\ns_waitcnt vmcnt({(c.NS - 2) * c.P})\n{L}:\ns_barrier")
    else:
        a(f"s_waitcnt vmcnt({(c.NS - 2) * c.P}) lgkmcnt(0)\ns_barrier")
    if pre: pre()
    n = 0
    for t in range(c.MT):
        for f0 in range(c.NT):
            f = f0 if t % 2 == 0 else c.NT - 1 - f0
            A, B = (c.wf(p, f), c.xf(p, t)) if form == "T" else (c.xf(p, t), c.wf(p, f))
            a(f"v_mfma_f32_16x16x32_bf16 {c.accs(t, f)}, {A}, {B}, {'0' if first else c.accs(t, f)}")
            for x in fill[n]: a(x)
            n += 1

def publish(a):
    L, L2 = a.newlab("pb"), a.newlab("pl")
    x = f"buffer_atomic_add v{vFD}, v{vFA}, {ws}, s{sPFL} offen"
    a(f"s_cbranch_vccz {L}\ns_mov_b64 vcc, 0")
    if LOCAL: a(f"s_cmp_eq_u32 s{sLOC}, 0\ns_cbranch_scc1 {L2}\n{x}\ns_branch {L}\n{L2}:")
    a(f"{x} sc1\n{L}:")
def dep_lanes(a):
    a(f"v_lshlrev_b32 v{vDL}, 2, v0\nv_mov_b32 v{vDV}, {OOB}\nv_cmp_gt_u32 s[{sE+6}:{sE+7}], 4, v0\nv_cndmask_b32 v{vDL}, v{vDV}, v{vDL}, s[{sE+6}:{sE+7}]")
def main_loop(a, c, form, tag):
    pub = lambda: publish(a)
    a.lab(tag + "_f")
    stage(a, c, 0, form, True, "relax", lambda: a(DEPLD))
    a(".p2align 3")
    a.lab(tag + "_l")
    stage(a, c, 1, form, top="relax"); stage(a, c, 2, form, top="relax"); stage(a, c, 3, form, pre=pub)
    a(f"s_sub_u32 s{sCNT}, s{sCNT}, 1\ns_cmp_eq_u32 s{sCNT}, 0\ns_cbranch_scc1 {tag}_x")
    a.lab(tag + "_c")
    stage(a, c, 0, form, pre=lambda: hook(a, c, tag + "_h", form))
    a(f"s_branch {tag}_l")
    a.lab(tag + "_x")
    a(f"v_readlane_b32 s{sSV}, v{vDV}, 32")

def cold_dma(a, c):
    for s in range(c.NS):
        for g in pieces(c, s):
            for x in g: a(x)

def spin(a, lab, out):
    a(f"""s_cmp_eq_u32 s{sBUD}, 0
    s_cbranch_scc1 {out}
    s_sub_u32 s{sBUD}, s{sBUD}, 1
    s_branch {lab}""")
def poll(a, lab, soff, val, n=1, va=vE, vd=12):
    x = {1: "dword", 2: "dwordx2"}[n]
    d = f"v{vd}" if n == 1 else f"v[{vd}:{vd+n-1}]"
    a(f"v_mov_b32 v{va}, 0")
    a.lab(lab)
    a(f"buffer_load_{x} {d}, v{va}, {ws}, s{soff} offen sc1\ns_waitcnt vmcnt(0)")
    if n == 2: a(f"v_and_b32 v{vd+1}, 32, v{vd+1}\nv_lshlrev_b32 v{vd+1}, 1, v{vd+1}\nv_max_u32 v{vd}, v{vd}, v{vd+1}")
    a(f"v_readfirstlane_b32 s{sE+9}, v{vd}\ns_cmp_ge_u32 s{sE+9}, {val}\ns_cbranch_scc1 {lab}_d")
    spin(a, lab, lab + "_d")
    a.lab(lab + "_d")
def tile_out(a, base, rmul, csh, half=False):
    a(f"""s_lshl_b32 s{sE}, s{sB}, 1
    s_add_u32 s{sE}, s{sE}, s{sWM}
    s_mul_i32 s{sE}, s{sE}, {rmul}
    s_lshl_b32 s{sE+1}, s{sN}, 1
    s_add_u32 s{sE+1}, s{sE+1}, s{sWN}
    s_lshl_b32 s{sE+1}, s{sE+1}, {csh}
    s_add_u32 s{sOUT}, s{sE}, s{sE+1}""")
    if base: a(f"s_add_u32 s{sOUT}, s{sOUT}, {base}")
def epi_store(a, c, kind, rstride, sbase=sOUT):
    if kind == "vt":
        lanes_vt(a, vE, vE + 1)
        prs = [((t, f), (t + 1, f)) for t in range(0, c.MT, 2) for f in range(c.NT)]
    else:
        lanes_frag(a, vE, vE + 1)
        prs = [((t, f), (t, f + 1)) for t in range(c.MT) for f in range(0, c.NT, 2)]
        prs.sort(key=lambda p: (p[0][0] >> 1, p[0][1] >> 2, p[0][0] & 1))
    if kind == "silu":
        a(f"s_mov_b32 s{sE+2}, 0xbfb8aa3b\ns_mov_b32 s{sE+3}, 0xbfb8aa3b\ns_mov_b32 s{sE+4}, 1.0\ns_mov_b32 s{sE+5}, 1.0")
    cur = None
    for (t, f), (t2, f2) in prs:
        base = (t >> 1) * rstride + (f >> 2) * 4096
        off = ((f >> 1) & 1) * 2048 + ((f & 1) * 128 if kind == "vt" else (t & 1) * 256)
        if base != cur: a(f"s_add_u32 s{sE}, s{sbase}, {base}"); cur = base
        b0 = getreg(a, c, t, f, ACC0); b1 = getreg(a, c, t2, f2, ACC0 + 4)
        if kind == "silu":
            for b in (b0, b1):
                for o, q in ((0, 12), (2, 14)): a(f"v_pk_mul_f32 v[{q}:{q+1}], v[{b+o}:{b+o+1}], s[{sE+2}:{sE+3}]")
                for q in (12, 13, 14, 15): a(f"v_exp_f32 v{q}, v{q}")
                for q in (12, 14): a(f"v_pk_add_f32 v[{q}:{q+1}], v[{q}:{q+1}], s[{sE+4}:{sE+5}]")
                for q in (12, 13, 14, 15): a(f"v_rcp_f32 v{q}, v{q}")
                for o, q in ((0, 12), (2, 14)): a(f"v_pk_mul_f32 v[{b+o}:{b+o+1}], v[{b+o}:{b+o+1}], v[{q}:{q+1}]")
        pack(a, b0, b0, b1)
        a(f"buffer_store_dwordx4 v[{b0}:{b0+3}], v{vE}, {ws}, s{sE} offen offset:{off}{'' if kind == 'silu' and 'h' in PLAIN else ' sc1'}")
def row_flag(a, base):
    a(f"s_lshl_b32 s{sFLG}, s{sB}, 4\ns_add_u32 s{sFLG}, s{sFLG}, s{sN}\ns_lshl_b32 s{sFLG}, s{sFLG}, {6 if base == C_KV else 2}\ns_add_u32 s{sFLG}, s{sFLG}, {CTRL_OFF + base}")
    if base != C_KV: a(f"s_lshl_b32 s{sE}, s{sQ}, 9\ns_add_u32 s{sFLG}, s{sFLG}, s{sE}")
def epi_kv(a, c, v, lab):
    if c.MT == 8:
        tile_out(a, VT_OFF if v else K_OFF, 4 * 524288, 14)
        a(f"s_lshl_b32 s{sE}, s{sWM}, 13")
    else:
        tile_out(a, VT_OFF if v else K_OFF, 2 * 524288, 14)
        a(f"s_and_b32 s{sE}, s{sB}, 1\ns_lshl_b32 s{sE}, s{sE}, 13\ns_lshr_b32 s{sB}, s{sB}, 1")
    a(f"s_xor_b32 s{sE}, s{sE}, s{sSL}\ns_add_u32 s{sOUT}, s{sOUT}, s{sE}")
    row_flag(a, C_KV)
    epi_store(a, c, "vt" if v else "frag", 524288)

def epi_park(a, c):
    tile_out(a, Y_OFF, 4 * 65536, 13)
    a(f"s_lshl_b32 s{sE}, s{sQ}, 22\ns_add_u32 s{sOUT}, s{sOUT}, s{sE}")
    fw_flag(a, sFLG)
    epi_store(a, c, "frag", 65536)

def sum_fields(a, b, n): bfe(a, b, sCUR, 27, 3); bfe(a, n, sCUR, 30, 2)
def sum_part(a, tag):
    sb, sn, sR, sC = sE + 4, sE + 5, sE + 6, sE + 7
    D, L = 176, 16
    sum_fields(a, sb, sn)
    a(f"s_cmp_ge_u32 s{sSV}, 4\ns_cbranch_scc1 {tag}_k")
    fw_flag(a, sE, sb, sn)
    poll(a, tag + "_p", sE, 4)
    a.lab(tag + "_k")
    lanes_frag(a, vE, vE + 1)
    a(f"""s_lshl_b32 s{sR}, s{sb}, 1
    s_add_u32 s{sR}, s{sR}, s{sWM}
    s_lshl_b32 s{sR}, s{sR}, 2
    s_add_u32 s{sR}, s{sR}, s{sQ}
    s_lshl_b32 s{sR}, s{sR}, 16
    s_lshl_b32 s{sC}, s{sn}, 1
    s_add_u32 s{sC}, s{sC}, s{sWN}
    s_lshl_b32 s{sE}, s{sC}, 13
    s_add_u32 s{sE}, s{sE}, s{sR}""")
    a(f"""v_and_b32 v12, 15, v0
    v_lshlrev_b32 v12, 11, v12
    v_lshrrev_b32 v{vE+1}, 4, v0
    v_lshl_add_u32 v12, v{vE+1}, 4, v12
    s_lshl_b32 s{sC}, s{sC}, 8
    s_add_u32 s{sR}, s{sR}, s{sC}
    s_add_u32 s{sC}, s{sR}, 32768""")
    n = 0; order = []
    for src in range(5):
        for Fh in range(2):
            if src: a(f"s_add_u32 s{sE+1}, s{sE}, {Y_OFF + (src - 1) * 4 * MB + 4096 * Fh}")
            for t in range(2):
                for F in (2 * Fh, 2 * Fh + 1):
                    if src: a(f"buffer_load_dwordx4 v[{L+4*n}:{L+4*n+3}], v{vE}, {ws}, s{sE+1} offen offset:{2048*(F&1)+256*t}")
                    else: a(f"buffer_load_dwordx4 v[{L+4*n}:{L+4*n+3}], v12, s[{XS}:{XS+3}], s{sC if t else sR} offen offset:{64*F}")
                    order.append((src, t, F)); n += 1
    acc = lambda t, F, e: D + 32 * t + 8 * F + 4 * e
    for n, (src, t, F) in enumerate(order):
        if n % 2 == 0:
            a(f"s_waitcnt vmcnt({38 - n})")
            if src == 0:
                for b0 in (L + 4 * n, L + 4 * n + 4): a(f"v_permlane16_swap_b32 v{b0}, v{b0+2}\nv_permlane16_swap_b32 v{b0+1}, v{b0+3}")
        for e in range(2):
            d = f"v[{acc(t,F,e)}:{acc(t,F,e)+3}]"
            a(f"v_mfma_f32_16x16x32_bf16 {d}, a[{aSEL+4*e}:{aSEL+4*e+3}], v[{L+4*n}:{L+4*n+3}], {d if src else 0}")
    for t in range(2):
        bs = [acc(t, F, 0) for F in range(4)]
        for b0 in bs: pack(a, b0, b0, b0 + 4)
        for b0 in bs: a(f"v_permlane16_swap_b32 v{b0}, v{b0+2}\nv_permlane16_swap_b32 v{b0+1}, v{b0+3}")
        for F, b0 in enumerate(bs): a(f"buffer_store_dwordx4 v[{b0}:{b0+3}], v12, s[{SO}:{SO+3}], s{sC if t else sR} offen offset:{64*F}")

sPA, sPT = 30, 31
def epi_qa(a, c, tag, stream=False):
    a("s_waitcnt lgkmcnt(0)")
    for i in range(8): a(f"v_accvgpr_write_b32 a{aSTA+i}, v{2+i}")
    tile_out(a, O_OFF, 4 * 262144, 13)
    if not stream: row_flag(a, C_QA)
    vKA, vVA, vKM, vVM = 2, 3, 4, 5
    vMD, vMM, vM0, vM1, vS0, vS1 = 6, 12, 10, 11, 10, 11
    sKA, sVA, sKM, sVM, sC = sE, sE + 2, sE + 4, sE + 5, sE + 6
    a(f"""s_lshl_b32 s{sE}, s{sN}, 1
    s_add_u32 s{sE}, s{sE}, s{sWN}              ; head
    s_lshl_b32 s{sE+1}, s{sB}, 1
    s_add_u32 s{sE+1}, s{sE+1}, s{sWM}
    s_lshr_b32 s{sE+2}, s{sE}, 3
    s_lshl_b32 s{sE+2}, s{sE+2}, 8
    s_add_u32 s{sPA}, s{sE+2}, {CTRL_OFF + C_PROG}
    s_lshl_b32 s{sPT}, s{sE+1}, 2""")
    if stream:
        a(f"""s_and_b32 s{sFLG}, s{sPT}, 31
        s_lshl_b32 s{sFLG}, s{sFLG}, 2
        s_lshr_b32 s{sE+3}, s{sN}, 2
        s_add_u32 s{sFLG}, s{sFLG}, s{sE+3}
        s_lshl_b32 s{sFLG}, s{sFLG}, 6
        s_add_u32 s{sFLG}, s{sFLG}, {CTRL_OFF + C_OS}
        s_lshl_b32 s{sE+3}, s{sB}, 3""")
    else: a(f"s_add_u32 s{sE+3}, s{sPT}, 4")
    poll(a, tag + "_pp", sPA, f"s{sE+3}", 2)
    assert (KM_OFF >> 21) % 2 == 0 and (VM_OFF >> 21) % 2 == 0 and (K_OFF >> 21) % 2 == 0 and (VT_OFF >> 21) % 2 == 0
    a(f"""s_lshl_b32 s{sE+2}, s{sE+1}, 19
    s_lshr_b32 s{sE+3}, s{sE}, 2
    s_lshl_b32 s{sE+3}, s{sE+3}, 14
    s_add_u32 s{sE+2}, s{sE+2}, s{sE+3}
    s_and_b32 s{sE+3}, s{sE}, 3
    s_lshl_b32 s{sE+3}, s{sE+3}, 11
    s_add_u32 s{sE+2}, s{sE+2}, s{sE+3}
    s_lshl_b32 s{sE+3}, s{sB}, 12
    s_xor_b32 s{sE+3}, s{sE+3}, s{sSL}
    s_and_b32 s{sE+3}, s{sE+3}, 8192
    s_add_u32 s{sE+2}, s{sE+2}, s{sE+3}
    s_add_u32 s{sKM}, s{sE+2}, {KM_OFF}
    s_add_u32 s{sVM}, s{sE+2}, {VM_OFF}
    s_lshl_b32 s{sE+1}, s{sE+1}, 21
    s_lshl_b32 s{sE}, s{sE}, 14
    s_add_u32 s{sE}, s{sE}, s{sE+1}
    s_lshl_b32 s{sE+1}, s{sWM}, 13
    s_xor_b32 s{sE+1}, s{sE+1}, s{sSL}
    s_add_u32 s{sE}, s{sE}, s{sE+1}
    s_add_u32 s{sVA}, s{sE}, {VT_OFF}
    s_add_u32 s{sVA+1}, s{sVA}, 4096
    s_add_u32 s{sKA}, s{sE}, {K_OFF}
    s_add_u32 s{sKA+1}, s{sKA}, 4096
    s_mov_b32 s{sC}, {CSC}
    s_mov_b32 s{sC+1}, {CSC}""")
    lanes_frag(a, vKA, 10); lanes_vt(a, vVA, 10)
    a(f"""v_lshrrev_b32 v10, 4, v0                ; g
    v_and_b32 v11, 15, v0                         ; m
    v_lshlrev_b32 v{vKM}, 7, v10
    v_lshl_add_u32 v{vKM}, v11, 4, v{vKM}
    v_mov_b32 v12, {OOB}
    v_cmp_gt_u32 vcc, 8, v11
    v_cndmask_b32 v{vKM}, v12, v{vKM}, vcc
    v_lshrrev_b32 v13, 3, v11
    v_lshlrev_b32 v13, 8, v13
    v_lshl_add_u32 v13, v10, 3, v13
    v_and_b32 v14, 7, v0
    v_lshl_add_u32 v{vVM}, v14, 4, v13
    v_cmp_gt_u32 vcc, 2, v10
    v_cndmask_b32 v{vVM}, v12, v{vVM}, vcc""")
    vm = VM(a)
    sets = (144, 0)
    Kr = lambda s, kt, F: sets[s & 1] + 16 * kt + 4 * F
    KMr = lambda s, F: sets[s & 1] + 32 + 4 * F
    Vr = lambda s, F, e: sets[s & 1] + 48 + 12 * F + 6 * e
    def loadKM(s):
        return [(f"buffer_load_dwordx4 a[{KMr(s,F)}:{KMr(s,F)+3}], v{vKM}, {ws}, s{sKM} offen offset:{512*F} sc1", ("KM", s)) for F in range(4)] + [(f"s_add_u32 s{sKM}, s{sKM}, 131072", None)]
    def loadVM(s):
        return [(f"buffer_load_dwordx2 a[{Vr(s,F,e)}:{Vr(s,F,e)+1}], v{vVM}, {ws}, s{sVM} offen offset:{512*F+128*e} sc1", ("VM", s)) for F in range(4) for e in range(2)] + [(f"s_add_u32 s{sVM}, s{sVM}, 131072", None)]
    def loadK(s):
        r = [] if stream else loadKM(s)
        for F in range(4):
            for kt in range(2):
                r.append((f"buffer_load_dwordx4 a[{Kr(s,kt,F)}:{Kr(s,kt,F)+3}], v{vKA}, {ws}, s{sKA+(F>>1)} offen offset:{2048*(F&1)+256*kt}", ("K", s)))
        r.append((f"s_add_u32 s{sKA}, s{sKA}, 524288\ns_add_u32 s{sKA+1}, s{sKA+1}, 524288", None))
        return r
    def loadV(s):
        r = [] if stream else loadVM(s)
        for F in range(4):
            for e in range(2):
                b = Vr(s, F, e)
                r.append((f"buffer_load_dwordx4 a[{b+2}:{b+5}], v{vVA}, {ws}, s{sVA+(F>>1)} offen offset:{2048*(F&1)+128*e}", ("V", s)))
        r.append((f"s_add_u32 s{sVA}, s{sVA}, 524288\ns_add_u32 s{sVA+1}, s{sVA+1}, 524288", None))
        return r
    def emit(x):
        if x[1] is None: a(x[0])
        else: vm.op(*x)
    for x in loadK(0) + loadV(0): emit(x)
    a(f"v_mov_b32 v12, {NEG}\nv_lshlrev_b32 v13, 2, v10")
    for i in range(4):
        a(f"v_add_u32 v14, {i}, v13\nv_cmp_gt_u32 vcc, v14, v11\nv_cndmask_b32 v{vMD+i}, 0, v12, vcc")
    a(f"v_cmp_le_u32 vcc, 2, v10\nv_cndmask_b32 v12, 0, v12, vcc\nv_mov_b32 v13, v12\nv_mov_b32 v14, v12\nv_mov_b32 v15, v12")
    free = []; Q = {}
    pend = loadK(1) + loadV(1)
    for t in range(8):
        for F in range(4):
            k0, b0 = c.acc(t, 2 * F); k1, b1 = c.acc(t, 2 * F + 1)
            if k0 == "v":
                pack(a, b0, b0, b1); Q[t, F] = b0; free.append(b1)
            else:
                x, y = free.pop(0), free.pop(0)
                getreg(a, c, t, 2 * F, x); getreg(a, c, t, 2 * F + 1, y)
                pack(a, x, x, y); Q[t, F] = x; free.append(y)
            if t >= 1 and pend: emit(pend.pop(0))
            if t >= 4 and pend: emit(pend.pop(0))
    for x in pend: emit(x)
    R = lambda b, n=4: f"v[{b}:{b+n-1}]"
    A = lambda b, n=4: f"a[{b}:{b+n-1}]"
    if stream:
        X, Y = free.pop(), free.pop()
        lane0(a, X + 1, X, sE + 8)
        a(f"s_cmp_eq_u32 s{sTYP}, {T_QT}\ns_cselect_b32 s{sE+8}, {OOB}, 0\nv_or_b32 v{X+1}, s{sE+8}, v{X+1}")
        a(f"v_mov_b32 v{Y}, 1\ns_add_u32 s{sPT}, s{sPT}, 1")
        poll(a, tag + "_p0", sPA, f"s{sPT}", 2, va=X, vd=X + 2)
        a(f"s_mov_b32 s{sNC}, s{sE+9}")
        vm.q = []
        for z in loadKM(0) + loadVM(0): emit(z)
    FLAG = lambda: f"buffer_atomic_add v{Y}, v{X+1}, {ws}, s{sFLG} offen sc1\ns_add_u32 s{sFLG}, s{sFLG}, 256"
    for s in range(4):
        t0, t1 = 2 * s, 2 * s + 1
        D0, M0, E0, E1, M1 = [free.pop(0) for _ in range(5)]
        vm.wait(("KM" if stream else "K", s))
        for F in range(4):
            for d, kr, q, seed in ((D0, Kr(s, 0, F), Q[t0, F], R(vMD)), (M0, KMr(s, F), Q[t0, F], R(vMM)), (E0, Kr(s, 0, F), Q[t1, F], "0"),
                                   (E1, Kr(s, 1, F), Q[t1, F], R(vMD)), (M1, KMr(s, F), Q[t1, F], R(vMM))):
                a(f"v_mfma_f32_16x16x32_bf16 {R(d)}, {A(kr)}, {R(q)}, {seed if F == 0 else R(d)}")
        if s < 2:
            for x in loadK(s + 2): emit(x)
        for F in range(4): free += [Q[t0, F], Q[t1, F]]
        g0 = [D0 + i for i in range(4)] + [M0 + i for i in range(4)]
        g1 = [E0 + i for i in range(4)] + [E1 + i for i in range(4)] + [M1 + i for i in range(4)]
        def both(op3, op2, r0, r1):
            for r, g in ((r0, g0), (r1, g1)):
                a(f"{op3} v{r}, v{g[0]}, v{g[1]}, v{g[2]}")
                k = 3
                while k + 1 < len(g): a(f"{op3} v{r}, v{r}, v{g[k]}, v{g[k+1]}"); k += 2
                a(f"{op2} v{r}, v{r}, v{g[k]}")
        def across(op, r0, r1):
            a(f"""v_permlane32_swap_b32 v{r0}, v{r1}
            {op} v{r0}, v{r0}, v{r1}
            v_mov_b32 v{r1}, v{r0}
            v_permlane16_swap_b32 v{r0}, v{r1}
            {op} v{r0}, v{r0}, v{r1}""")
        both("v_max3_f32", "v_max_f32", vM0, vM1)
        across("v_max_f32", vM0, vM1)
        a(f"v_mul_f32 v{vM0}, s{sC}, v{vM0}\nv_mov_b32 v{vM1}, v{vM0}\nv_permlane32_swap_b32 v{vM0}, v{vM1}")
        for g, hi in ((g0, 0), (g1, 1)):
            for k in range(0, len(g), 2):
                a(f"v_pk_fma_f32 {R(g[k],2)}, {R(g[k],2)}, s[{sC}:{sC+1}], {R(vM0,2)} op_sel:[0,0,{hi}] op_sel_hi:[1,1,{hi}] neg_lo:[0,0,1] neg_hi:[0,0,1]")
        for r in g0 + g1: a(f"v_exp_f32 v{r}, v{r}")
        x, y = free.pop(0), free.pop(0)
        a(f"v_pk_add_f32 {R(x,2)}, {R(D0,2)}, {R(D0+2,2)}\nv_pk_add_f32 {R(x+2,2)}, {R(M0,2)}, {R(M0+2,2)}")
        a(f"v_pk_add_f32 {R(y,2)}, {R(E0,2)}, {R(E0+2,2)}\nv_pk_add_f32 {R(y+2,2)}, {R(E1,2)}, {R(E1+2,2)}")
        a(f"v_pk_add_f32 {R(x,2)}, {R(x,2)}, {R(x+2,2)}\nv_pk_add_f32 {R(y,2)}, {R(y,2)}, {R(y+2,2)}")
        a(f"v_pk_add_f32 {R(y+2,2)}, {R(M1,2)}, {R(M1+2,2)}\nv_add_f32 v{vS0}, v{x}, v{x+1}\nv_pk_add_f32 {R(y,2)}, {R(y,2)}, {R(y+2,2)}")
        a(f"v_add_f32 v{vS1}, v{y}, v{y+1}")
        across("v_add_f32", vS0, vS1)
        a(f"v_rcp_f32 v{vS0}, v{vS0}\nv_mov_b32 v{vS1}, v{vS0}\nv_permlane32_swap_b32 v{vS0}, v{vS1}")
        for g, hi in ((g0, 0), (g1, 1)):
            for k in range(0, len(g), 2):
                a(f"v_pk_mul_f32 {R(g[k],2)}, {R(g[k],2)}, {R(vS0,2)} op_sel:[0,{hi}] op_sel_hi:[1,{hi}]")
        pack(a, x, M0, D0)
        pack(a, y, E0, E1)
        a(f"v_cvt_pk_bf16_f32 v{M1}, v{M1}, v{M1+1}\nv_cvt_pk_bf16_f32 v{M1+1}, v{M1+2}, v{M1+3}")
        free += [D0, M0, E0, E1]
        vm.wait(("VM" if stream else "V", s))
        O = {(tt, F, e): free.pop(0) for F in range(4) for e in range(2) for tt in range(2)}
        for F in range(4):
            for e in range(2):
                a(f"v_mfma_f32_16x16x16_bf16 {R(O[1,F,e])}, {A(Vr(s,F,e),2)}, {R(M1,2)}, 0")
        for F in range(4):
            for e in range(2):
                a(f"v_mfma_f32_16x16x32_bf16 {R(O[0,F,e])}, {A(Vr(s,F,e))}, {R(x)}, 0")
        a(f"s_add_u32 s{sE+8}, s{sOUT}, {262144 * s}\ns_add_u32 s{sE+9}, s{sOUT}, {262144 * s + 4096}")
        def out(tt, F):
            b0 = O[tt, F, 0]
            pack(a, b0, b0, O[tt, F, 1])
            vm.op(f"buffer_store_dwordx4 {R(b0)}, v{vKA}, {ws}, s{sE+8+(F>>1)} offen offset:{2048*(F&1)+256*tt}{'' if 'o' in PLAIN and not stream else ' sc1'}", "st")
        for F in range(4):
            for e in range(2):
                a(f"v_mfma_f32_16x16x32_bf16 {R(O[1,F,e])}, {A(Vr(s,F,e)+2)}, {R(y)}, {R(O[1,F,e])}")
            if F >= 1: out(0, F - 1)
        if s < 2:
            for z in loadV(s + 2): emit(z)
        out(0, 3)
        for F in range(4): out(1, F)
        free += [x, y, M1] + list(O.values())
        if stream and s < 3:
            nx = [z[0] for z in loadKM(s + 1) + loadVM(s + 1)]
            a(f"s_add_u32 s{sPT}, s{sPT}, 1\ns_cmp_ge_u32 s{sNC}, s{sPT}\ns_cbranch_scc0 {tag}_w{s}")
            for z in nx: a(z)
            a(f"s_waitcnt vmcnt(12)\n{FLAG()}\ns_branch {tag}_j{s}\n{tag}_w{s}:\ns_waitcnt vmcnt(0)\n{FLAG()}")
            poll(a, f"{tag}_p{s+1}", sPA, f"s{sPT}", 2, va=X, vd=X + 2)
            a(f"s_mov_b32 s{sNC}, s{sE+9}")
            for z in nx: a(z)
            a.lab(f"{tag}_j{s}")
            vm.q = [("KM", s + 1)] * 4 + [("VM", s + 1)] * 8
        elif stream: a(f"s_waitcnt vmcnt(0)\n{FLAG()}")
    for i in range(8): a(f"v_accvgpr_read_b32 v{2+i}, a{aSTA+i}")


def tail_wo(a, tag, trace=None):
    sU, sSG, sO, sY, sP, sXX, sYY, sOO = sTYP, sB, sN, sFLG, sNC, sOA, sOB, sSTB
    vA_, vL, vP_, vTH, vR, vO, vF, vY, vD, vB, vX, vFX = 1, 2, 3, 4, 5, 6, 7, 8, 16, 32, 196, 200
    bfe(a, sU, sCUR, 4, 5); bfe(a, sE + 8, sCUR, 9, 1); bfe(a, sSG, sCUR, 20, 6)
    a(f"""s_mov_b64 s[{SB_}:{SB_+1}], s[{sWP+10}:{sWP+11}]
    s_mov_b32 s{SB_+2}, {4096 * 2048}
    v_lshrrev_b32 v10, 2, v0
    v_and_b32 v11, 3, v0
    v_lshlrev_b32 v11, 4, v11
    v_lshl_add_u32 v{vA_}, v10, 11, v11
    s_lshl_b32 s{sOB}, s{sW}, 21
    s_lshl_b32 s{sE}, s{sU}, 6
    s_add_u32 s{sOB}, s{sOB}, s{sE}
    s_lshl_b32 s{sWA}, s{sW}, 15
    v_lshrrev_b32 v12, 4, v0                      ; g
    v_lshrrev_b32 v13, 5, v0
    v_lshlrev_b32 v13, 4, v13
    v_and_b32 v14, 1, v12
    v_lshl_add_u32 v13, v14, 2, v13
    v_and_b32 v10, 3, v10
    v_add_u32 v13, v13, v10                       ; k row
    v_lshl_add_u32 v{vR}, v13, 6, s{sWA}
    v_bfe_u32 v13, v0, 1, 1
    v_lshl_add_u32 v{vR}, v13, 5, v{vR}
    v_and_b32 v13, 1, v0
    v_lshl_add_u32 v{vR}, v13, 3, v{vR}
    s_waitcnt lgkmcnt(0)
    s_barrier""")
    def dma(bt):
        a(f"s_add_u32 m0, s{sWA}, {(bt & 1) * 16384}")
        for i in range(16):
            a(f"buffer_load_dwordx4 v{vA_}, s[{SB_}:{SB_+3}], s{sOB} offen lds\ns_add_u32 s{sOB}, s{sOB}, 32768")
            if i < 15: a("s_add_u32 m0, m0, 1024")
    def trr(bt):
        for ks in range(8):
            for e in range(2):
                for h in range(2):
                    r = 64 * bt + 8 * ks + 4 * e + 2 * h
                    a(f"ds_read_b64_tr_b16 a[{r}:{r+1}], v{vR} offset:{(bt & 1) * 16384 + 2048 * ks + 512 * h + 16 * e}")
            if ks & 1: a("s_waitcnt lgkmcnt(4)")
        a("s_waitcnt lgkmcnt(0)")
    dma(0); dma(1)
    for bt in range(4):
        a(f"s_waitcnt vmcnt({16 if bt < 3 else 0})"); trr(bt)
        if bt < 2: dma(bt + 2)
    lanes_frag(a, vF, 10)
    a(f"""s_lshl_b32 s{sE}, s{sE+8}, 8
    v_add_u32 v{vF}, s{sE}, v{vF}
    v_and_b32 v10, 15, v0
    v_lshlrev_b32 v10, 11, v10
    v_lshl_add_u32 v{vO}, v12, 4, v10
    s_lshl_b32 s{sE}, s{sE+8}, 15
    s_lshl_b32 s{sE+1}, s{sU}, 6
    s_add_u32 s{sE}, s{sE}, s{sE+1}
    v_add_u32 v{vO}, s{sE}, v{vO}
    v_lshlrev_b32 v{vL}, 4, v0
    v_add_u32 v{vR}, s{sWA}, v{vL}
    v_mov_b32 v{vP_}, {OOB}
    v_mov_b32 v{vTH}, 0
    v_writelane_b32 v{vTH}, 8, 0
    v_writelane_b32 v{vTH}, 4, 1
    s_lshr_b32 s{sE}, s{sU}, 3
    s_lshl_b32 s{sE}, s{sE}, 8
    s_bfe_u32 s{sE+1}, s{sU}, 0x10002
    s_lshl_b32 s{sE+1}, s{sE+1}, 6
    s_add_u32 s{sP}, s{sE}, s{sE+1}
    s_add_u32 s{sP}, s{sP}, {C_FW}
    s_mov_b32 s{sDEP}, {CTRL_OFF}
    s_lshl_b32 s{sE}, s{sU}, 11
    s_cmp_eq_u32 s{sW}, 0
    s_cselect_b32 s{sE+1}, 0, {OOB}
    v_or_b32 v{vFX}, s{sE+1}, v{vO}
    s_lshl_b32 s{sYY}, s{sW}, 22
    s_add_u32 s{sYY}, s{sYY}, s{sE}
    s_add_u32 s{sYY}, s{sYY}, {Y_OFF}
    s_lshl_b32 s{sOO}, s{sW}, 16
    s_add_u32 s{sOO}, s{sOO}, {O_OFF}""")
    def flagaddr(sg):
        a(f"""s_and_b32 s{sE}, s{sg}, 31
        s_lshl_b32 s{sE}, s{sE}, 2
        s_add_u32 s{sE}, s{sE}, s{sW}
        s_lshl_b32 s{sE}, s{sE}, 6
        s_add_u32 s{sE}, s{sE}, {C_OS}
        v_writelane_b32 v{vP_}, s{sE}, 0
        s_lshr_b32 s{sE}, s{sg}, 3
        s_lshl_b32 s{sE}, s{sE}, 10
        s_bfe_u32 s{sE+1}, s{sg}, 0x10002
        s_lshl_b32 s{sE+1}, s{sE+1}, 7
        s_add_u32 s{sE}, s{sE}, s{sE+1}
        s_add_u32 s{sE}, s{sE}, s{sP}
        v_writelane_b32 v{vP_}, s{sE}, 1""")
    FL = lambda v: f"buffer_load_dword v{v}, v{vP_}, {ws}, s{sDEP} offen sc1"
    def early(sg):
        a(f"s_add_u32 s{sE+2}, s{sg}, 1")
        flagaddr(sE + 2)
        a(f"""{FL(12)}
        s_lshl_b32 s{sY}, s{sg}, 16
        buffer_load_dwordx4 v[{vX}:{vX+3}], v{vFX}, s[{XS}:{XS+3}], s{sY} offen
        s_add_u32 s{sE}, s{sY}, s{sYY}
        buffer_load_dwordx4 v[{vY}:{vY+3}], v{vF}, {ws}, s{sE} offen
        s_lshl_b32 s{sO}, s{sg}, 18
        s_add_u32 s{sO}, s{sO}, s{sOO}""")
    def frag(ks):
        a(f"buffer_load_dwordx4 v[{vB+4*ks}:{vB+4*ks+3}], v{vF}, {ws}, s{sO} offen offset:{2048*(ks&1)}")
        if ks & 1 and ks < 31: a(f"s_add_u32 s{sO}, s{sO}, 4096")
    def loads(sg):
        early(sg)
        for ks in range(32): frag(ks)
        a(FL(14))
    def wait(lab):
        a(f"{lab}:\n{FL(12)}\ns_waitcnt vmcnt(0)\nv_cmp_gt_u32 vcc, v{vTH}, v12\ns_cbranch_vccz {lab}_d")
        spin(a, lab, lab + "_d")
        a.lab(lab + "_d")
    def mm(ks):
        for e in range(2):
            d = vD + 8 * (ks & 1) + 4 * e
            a(f"v_mfma_f32_16x16x32_bf16 v[{d}:{d+3}], a[{8*ks+4*e}:{8*ks+4*e+3}], v[{vB+4*ks}:{vB+4*ks+3}], v[{d}:{d+3}]")
    def known(v): a(f"v_cmp_gt_u32 vcc, v{vTH}, v{v}\ns_cmp_eq_u32 s{sE+6}, 64\ns_cselect_b64 vcc, -1, vcc")
    flagaddr(sSG)
    wait(tag + "_w0")
    loads(sSG)
    a(f"{tag}_top:\ns_add_u32 s{sE+6}, s{sSG}, 1\ns_waitcnt vmcnt(33)")
    a(f"v_permlane16_swap_b32 v{vX}, v{vX+2}\nv_permlane16_swap_b32 v{vX+1}, v{vX+3}")
    for k, src in enumerate((vY, vX)):
        for i in range(4): a(f"v_lshlrev_b32 v{vD+8*k+2*i}, 16, v{src+i}\nv_and_b32 v{vD+8*k+2*i+1}, 0xffff0000, v{src+i}")
    known(12)
    a(f"s_cbranch_vccnz {tag}_n")
    early(sE + 6)
    for ks in range(32):
        a(f"s_waitcnt vmcnt({34 if ks else 35})"); mm(ks)
        if ks: frag(ks - 1)
    frag(31)
    a(f"{FL(14)}\ns_nop 7\ns_branch {tag}_r\n{tag}_n:")
    for ks in range(32):
        a(f"s_waitcnt vmcnt({32 - ks})"); mm(ks)
    a("s_waitcnt vmcnt(0)\ns_nop 4")
    known(14)
    a(f"s_cbranch_vccnz {tag}_r")
    loads(sE + 6)
    a.lab(tag + "_r")
    for i in range(0, 8, 2): a(f"v_pk_add_f32 v[{vD+i}:{vD+i+1}], v[{vD+i}:{vD+i+1}], v[{vD+8+i}:{vD+9+i}]")
    a(f"""ds_write_b128 v{vR}, v[{vD}:{vD+3}]
    ds_write_b128 v{vR}, v[{vD+4}:{vD+7}] offset:1024
    v_xor_b32 v{vR}, 2048, v{vR}
    s_waitcnt lgkmcnt(0)
    s_barrier
    s_and_b32 s{sE}, s{sSG}, 3
    s_cmp_lg_u32 s{sE}, s{sW}
    s_cbranch_scc1 {tag}_s""")
    T = 164
    for w in range(4):
        if w == 2: a(f"v_add_u32 v13, 65536, v{vL}")
        for e in range(2): a(f"ds_read_b128 v[{T+8*w+4*e}:{T+8*w+4*e+3}], v{vL if w < 2 else 13} offset:{32768*(w&1)+1024*e}")
    for w in range(1, 4):
        a(f"s_waitcnt lgkmcnt({6 - 2 * w})")
        for i in range(0, 8, 2): a(f"v_pk_add_f32 v[{T+i}:{T+i+1}], v[{T+i}:{T+i+1}], v[{T+8*w+i}:{T+8*w+i+1}]")
    pack(a, T, T, T + 4)
    a(f"""v_permlane16_swap_b32 v{T}, v{T+2}
    v_permlane16_swap_b32 v{T+1}, v{T+3}
    s_lshl_b32 s{sE}, s{sSG}, 16
    buffer_store_dwordx4 v[{T}:{T+3}], v{vO}, s[{SO}:{SO+3}], s{sE} offen""")
    if trace: trace(sSG)
    a(f"""{tag}_s:
    v_xor_b32 v{vL}, 2048, v{vL}
    s_mov_b32 s{sSG}, s{sE+6}
    s_cbranch_vccz {tag}_top
    s_cmp_eq_u32 s{sSG}, 64
    s_cbranch_scc1 {tag}_x""")
    wait(tag + "_w1")
    loads(sSG)
    a(f"s_branch {tag}_top\n{tag}_x:")

def load_lists(a, lists, lab):
    def rec(lo, hi):
        if hi - lo == 1:
            l = list(lists[lo]) + [T_END] * (NLIST - len(lists[lo]))
            assert len(l) == NLIST and l[-1] == T_END
            a(f"s_mov_b32 s{sCUR}, {hex(l[0])}\ns_mov_b32 s{sNXT}, {hex(l[1])}")
            for i in range(8):
                if l[2 + i] != T_END: a(f"s_mov_b32 s{sLST+i}, {hex(l[2+i])}")
            a(f"s_branch {lab}_d")
            return
        m = (lo + hi) // 2
        a(f"s_cmp_ge_u32 s{sG}, {m}\ns_cbranch_scc1 {lab}_{m}_{hi}")
        rec(lo, m); a.lab(f"{lab}_{m}_{hi}"); rec(m, hi)
    for i in range(8): a(f"s_mov_b32 s{sLST+i}, {T_END}")
    rec(0, len(lists))
    a.lab(lab + "_d")

def next_dep(a):
    t = sE + 1
    a(f"s_and_b32 s{t}, s{sNXT}, 15")
    bfe(a, sE + 2, sNXT, 4, 3); bfe(a, sE + 3, sNXT, 11, 4); bfe(a, sE + 4, sNXT, 15, 5)
    a(f"""s_lshl_b32 s{sE+2}, s{sE+2}, 4
    s_add_u32 s{sE+2}, s{sE+2}, s{sE+3}
    s_lshl_b32 s{sE+2}, s{sE+2}, 2
    s_mov_b32 s{sDEP}, {CTRL_OFF + C_F1}
    s_cmp_eq_u32 s{t}, {T_WO}
    s_cselect_b32 s{sDEP}, {CTRL_OFF + C_QA}, s{sDEP}
    s_add_u32 s{sDEP}, s{sDEP}, s{sE+2}
    s_lshl_b32 s{sE+2}, s{sQ}, 9
    s_add_u32 s{sDEP}, s{sDEP}, s{sE+2}
    s_bfm_b32 s{sDMK}, s{sE+4}, 0
    s_cmp_ge_u32 s{t}, {T_TW}
    s_cselect_b32 s{sCOLD}, 1, 0""")
    dep_lanes(a)
    sum_fields(a, sE + 1, sE + 2)
    fw_flag(a, sE, sE + 1, sE + 2)
    a(f"s_sub_u32 s{sE}, s{sE}, s{sDEP}\nv_writelane_b32 v{vDL}, s{sE}, 32")
def cur_fields(a):
    a(f"s_and_b32 s{sTYP}, s{sCUR}, 15")
    bfe(a, sB, sCUR, 4, 3); bfe(a, sN, sCUR, 7, 4); bfe(a, sCNT, sCUR, 15, 5)
    a(f"s_lshl_b32 s{sCNT}, s{sCNT}, 1\ns_cmp_eq_u32 s{sCNT}, 0\ns_cselect_b32 s{sCNT}, 8, s{sCNT}")

def gemm_side(a, name, lists, trace=False, cs=None):
    cs = cs or Cfg(8)
    assert cs.lds <= LDS_BYTES and XN_OFF == 0
    n = name + "_g"
    for i, k in enumerate((A_WK, A_WV, A_WQ, A_W1, A_W2, A_WO)): a(f"s_load_dwordx2 s[{sWP+2*i}:{sWP+2*i+1}], s[0:1], {k}")
    a(f"""s_load_dwordx2 s[{SO}:{SO+1}], s[0:1], {A_OUT}
    s_lshr_b32 s{sQ}, s{sG}, 5
    s_lshr_b32 s{sWM}, s{sW}, 1
    s_and_b32 s{sWN}, s{sW}, 1
    s_and_b32 s{sSL}, s{sSELV}, 2
    s_lshl_b32 s{sSL}, s{sSL}, 12
    s_mov_b32 s{SA}, s{WS}
    s_mov_b32 s{SA+1}, s{WS+1}
    s_mov_b32 s{SA+2}, {WS_BYTES}
    s_mov_b32 s{SA+3}, 0x20000
    s_mov_b32 s{SB_+2}, {8 * MB}
    s_mov_b32 s{SB_+3}, 0x20000
    s_mov_b32 s{SO+2}, {2048 * 1024 * 2}
    s_mov_b32 s{SO+3}, 0x20000""")
    load_lists(a, lists, n + "_ll")
    if trace: a(f"s_lshl_b32 s{sTRC}, s{sG}, 9\ns_add_u32 s{sTRC}, s{sTRC}, {GTRACE_OFF}")
    def stamp(i):
        if trace: a(f"s_memrealtime s[{sTRC+2}:{sTRC+3}]\ns_waitcnt lgkmcnt(0)\ns_mov_b32 s{sTRC+4+i}, s{sTRC+2}")
        if trace and i in (1, 2): a(f"s_memtime s[{sTRC+2}:{sTRC+3}]\ns_waitcnt lgkmcnt(0)\n" + (f"s_mov_b32 s{sTRC+8}, s{sTRC+2}" if i == 1 else f"s_sub_u32 s{sTRC+8}, s{sTRC+2}, s{sTRC+8}"))
    def trace_out(lab):
        if not trace: return
        stamp(3)
        a(f"s_cmp_lg_u32 s{sW}, 0\ns_cbranch_scc1 {lab}")
        lane0(a, 14, 15)
        for i in range(0, 4, 2): a(f"v_mov_b32 v12, s{sTRC+4+i}\nv_mov_b32 v13, s{sTRC+5+i}\nbuffer_store_dwordx2 v[12:13], v14, {ws}, s{sTRC} offen offset:{4*i}\ns_nop 1")
        a(f"v_mov_b32 v12, s{sCUR}\nv_mov_b32 v13, s{sTRC+8}\nbuffer_store_dwordx2 v[12:13], v14, {ws}, s{sTRC} offen offset:16\ns_nop 1\nv_mov_b32 v12, s{sTRC+1}\nv_mov_b32 v13, s{sTRC+9}\nbuffer_store_dwordx2 v[12:13], v14, {ws}, s{sTRC} offen offset:24\ns_add_u32 s{sTRC}, s{sTRC}, 32")
        a.lab(lab)
    stamp(0)
    cur_fields(a)
    lane_setup(a, cs)
    a("s_waitcnt lgkmcnt(0)")
    stream_switch(a, cs, sCUR, n + "_w0")
    cold_dma(a, cs)
    a(f"""v_and_b32 v10, 15, v0
    v_lshrrev_b32 v11, 4, v0
    v_lshrrev_b32 v12, 2, v10
    v_and_b32 v13, 1, v0
    v_lshlrev_b32 v13, 4, v13
    v_mov_b32 v14, 0x3f80
    v_lshlrev_b32 v14, v13, v14
    v_cmp_eq_u32 vcc, v11, v12
    v_cndmask_b32 v14, 0, v14, vcc
    v_bfe_u32 v13, v0, 1, 1
    v_cmp_eq_u32 vcc, 0, v13
    v_cndmask_b32 v12, 0, v14, vcc
    v_cndmask_b32 v13, v14, 0, vcc
    v_mov_b32 v14, 0""")
    for r, v in enumerate((12, 13, 14, 14, 14, 14, 12, 13)): a(f"v_accvgpr_write_b32 a{aSEL+r}, v{v}")
    a(f"""s_mov_b64 vcc, 0
    s_mov_b32 s{sE+8}, {T_QA}
    s_waitcnt vmcnt({(cs.NS - 1) * cs.P})
    s_branch {n}_warm""")
    main_loop(a, cs, "N", n + "_N")
    stamp(2)
    epi_kv(a, cs, 1, n + "_ev")
    a(f"s_branch {n}_nx0")
    main_loop(a, cs, "T", n + "_T")
    stamp(2)
    a(f"""s_cmp_eq_u32 s{sTYP}, {T_F2}
    s_cbranch_scc1 {n}_nx2
    s_cmp_eq_u32 s{sTYP}, {T_K}
    s_cbranch_scc1 {n}_ek
    s_cmp_eq_u32 s{sTYP}, {T_F1}
    s_cbranch_scc1 {n}_ef
    s_cmp_eq_u32 s{sTYP}, {T_QA}
    s_cbranch_scc1 {n}_eq
    s_cmp_ge_u32 s{sTYP}, {T_QT}
    s_cbranch_scc1 {n}_es""")
    epi_park(a, cs)
    a(f"s_branch {n}_nx1\n{n}_eq:")
    epi_qa(a, cs, n + "_qa")
    a(f"s_branch {n}_nx1\n{n}_es:")
    epi_qa(a, cs, n + "_qs", True)
    row_flag(a, C_QA)
    a(f"s_cmp_eq_u32 s{sTYP}, {T_QT}\ns_cselect_b32 s{sPI}, 1, 0\ns_branch {n}_nx3\n{n}_ef:")
    tile_out(a, H1_OFF, 4 * 229376, 13)
    row_flag(a, C_F1)
    epi_store(a, cs, "silu", 229376)
    a(f"s_branch {n}_nx1\n{n}_ek:")
    epi_kv(a, cs, 0, n + "_eks")
    a(f"""{n}_nx0:
    s_mov_b32 s{sPI}, 2
    s_branch {n}_nx3
    {n}_nx1:
    s_mov_b32 s{sPI}, 1
    {n}_nx3:
    s_bitcmp1_b32 s{sCUR}, 26
    s_cbranch_scc0 {n}_nx4
    {n}_sum:""")
    sum_part(a, n + "_sm")
    a.lab(n + "_nx4")
    lane0(a, vFA, vFD)
    a(f"s_and_b32 s{sLOC}, s{sTYP}, 14\ns_cmp_eq_u32 s{sLOC}, 2\ns_cselect_b32 s{sLOC}, s{sMODE}, 0")
    a(f"v_mov_b32 v{vFD}, s{sPI}\ns_mov_b32 s{sPFL}, s{sFLG}\ns_cmp_lg_u32 s{sPI}, 0\ns_cselect_b64 vcc, -1, 0")
    a.lab(n + "_nx2")
    trace_out(n + "_ntr")
    stamp(0)
    a(f"""s_mov_b32 s{sE+8}, s{sTYP}
    s_mov_b32 s{sCUR}, s{sNXT}
    s_mov_b32 s{sNXT}, s{sLST}""")
    for i in range(7): a(f"s_mov_b32 s{sLST+i}, s{sLST+i+1}")
    a(f"s_mov_b32 s{sLST+7}, {T_END}")
    cur_fields(a)
    a(f"""s_cmp_eq_u32 s{sCOLD}, 0
    s_cbranch_scc1 {n}_warm
    s_waitcnt vmcnt(0)""")
    def xst(r):
        if trace: a(f"s_memrealtime s[{sTRC+2}:{sTRC+3}]\ns_waitcnt lgkmcnt(0)\ns_mov_b32 s{r}, s{sTRC+2}")
    xst(sTRC + 1)
    publish(a)
    a(f"""s_cmp_eq_u32 s{sTYP}, {T_END}
    s_cbranch_scc1 {n}_done
    s_cmp_eq_u32 s{sTYP}, {T_TW}
    s_cbranch_scc1 {n}_tw
    s_mov_b32 s{sPI}, 0
    s_mov_b32 s{sSV}, 0
    s_cmp_eq_u32 s{sTYP}, {T_SUM}
    s_cbranch_scc1 {n}_sum""")
    dep_lanes(a)
    a(f"""{n}_dp:
    {DEPLD}
    s_waitcnt vmcnt(0)""")
    notready(a)
    a(f"s_cbranch_scc0 {n}_dpd")
    spin(a, n + "_dp", n + "_dpd")
    a.lab(n + "_dpd")
    xst(sTRC + 9)
    stream_switch(a, cs, sCUR, n + "_wc")
    cold_dma(a, cs)
    a(f"s_waitcnt vmcnt({(cs.NS - 1) * cs.P})")
    a.lab(n + "_warm")
    next_dep(a)
    a(f"""s_sub_u32 s{sE}, s{sTYP}, {T_F2}
    s_cmp_lt_u32 s{sE}, 3
    s_cbranch_scc1 {n}_redo
    s_cmp_eq_u32 s{sE+8}, {T_QA}
    s_cbranch_scc1 {n}_redo
    s_cmp_lt_u32 s{sE+8}, {T_KH}
    s_cbranch_scc1 {n}_go
    {n}_redo:
    s_waitcnt lgkmcnt(0)
    s_barrier""")
    for x in reads(cs, 0, 0) + rebias(cs, 0, 1): a(x)
    a.lab(n + "_go")
    stamp(1)
    a(f"""s_cmp_eq_u32 s{sTYP}, {T_V}
    s_cbranch_scc1 {n}_N_f
    s_cmp_eq_u32 s{sE+8}, {T_F2}
    s_cbranch_scc1 {n}_T_c
    s_branch {n}_T_f""")
    a.lab(n + "_tw")
    stamp(1)
    def twtr(sg):
        a(f"""s_memrealtime s[{sTRC+2}:{sTRC+3}]
        s_lshl_b32 s{sE}, s{sG}, 8
        s_lshl_b32 s{sE+1}, s{sg}, 2
        s_add_u32 s{sE}, s{sE}, s{sE+1}
        s_add_u32 s{sE}, s{sE}, {GTRACE_OFF + MB}
        s_waitcnt lgkmcnt(0)
        v_mov_b32 v13, s{sTRC+2}
        v_mov_b32 v15, 0
        buffer_store_dword v13, v15, {ws}, s{sE} offen""")
    tail_wo(a, n + "_tw", twtr if trace else None)
    stamp(2)
    trace_out(n + "_ntw")
    a.lab(n + "_done")
```

```python
from asmlib import *
from layout import *

def srd(a, s, karg_off, nbytes, tmp=None):
    a(f"s_load_dwordx2 s[{s}:{s+1}], s[0:1], {karg_off}")
    a(f"s_mov_b32 s{s+2}, {nbytes}")
    a(f"s_mov_b32 s{s+3}, 0x20000")

def gen_prep(name, trace=False):
    a = Asm()
    a(f"s_cmp_ge_u32 s2, 256\ns_cbranch_scc1 {name}_end")
    if trace: a("s_memrealtime s[20:21]")
    srd(a, 4, A_WS, WS_BYTES); srd(a, 8, A_X, 2048 * 1024 * 2)
    a("""
    v_and_b32 v1, 63, v0
    v_lshrrev_b32 v2, 6, v0            ; wave
    v_and_b32 v3, 7, v1                ; r
    v_lshrrev_b32 v4, 3, v1            ; p
    s_lshl_b32 s12, s2, 3
    v_add_u32 v5, s12, v3              ; row
    v_lshlrev_b32 v6, 11, v5           ; row*2048
    v_lshlrev_b32 v7, 9, v2
    v_lshl_add_u32 v7, v4, 4, v7
    v_add_u32 v6, v6, v7
    s_waitcnt lgkmcnt(0)
    """)
    for i in range(4):
        a(f"buffer_load_dwordx4 v[{16+4*i}:{19+4*i}], v6, s[8:11], 0 offen offset:{128*i}")
    a("""
    v_mov_b32 v8, -1
    v_mov_b32 v9, -1
    v_mov_b32 v10, -1
    v_mov_b32 v11, -1
    v_mov_b32 v12, 0
    s_lshl_b32 s12, s2, 12
    v_lshl_add_u32 v13, v0, 4, s12
    """)
    for i in range(CLR_MB):
        a(f"s_mov_b32 s13, {RING_OFF + i * MB}\nbuffer_store_dwordx4 v[8:11], v13, s[4:7], s13 offen")
    a(f"""
    s_lshl_b32 s12, s2, 8
    v_and_b32 v14, 63, v0
    v_lshl_add_u32 v14, v14, 2, s12
    s_mov_b32 s13, {CTRL_OFF}
    buffer_store_dword v12, v14, s[4:7], s13 offen
    """)
    a(f"""
    v_lshrrev_b32 v7, 5, v5            ; rb
    v_lshlrev_b32 v7, 16, v7
    v_and_b32 v15, 31, v5
    v_lshl_add_u32 v7, v15, 4, v7
    v_lshl_add_u32 v7, v2, 14, v7
    v_lshl_add_u32 v7, v4, 9, v7       ; (p>>1)*1024 + (p&1)*512 = p*512
    s_waitcnt vmcnt({CLR_MB + 1})
    """)
    for i in range(4):
        b = 80 + 4 * i; r = 16 + 4 * i
        for k in range(4): a(f"v_mov_b32 v{b+k}, v{r+k}")
        a(f"v_mov_b32_dpp v{b+2}, v{r} row_ror:8 row_mask:0xf bank_mask:0x3")
        a(f"v_mov_b32_dpp v{b+3}, v{r+1} row_ror:8 row_mask:0xf bank_mask:0x3")
        a(f"v_mov_b32_dpp v{b}, v{r+2} row_ror:8 row_mask:0xf bank_mask:0xc")
        a(f"v_mov_b32_dpp v{b+1}, v{r+3} row_ror:8 row_mask:0xf bank_mask:0xc")
        a(f"s_mov_b32 s13, {XF_OFF + 4096 * i}\nbuffer_store_dwordx4 v[{b}:{b+3}], v7, s[4:7], s13 offen")
    for d in range(16):
        a(f"v_lshlrev_b32 v{32+2*d}, 16, v{16+d}\nv_and_b32 v{33+2*d}, 0xffff0000, v{16+d}")
    def tree(dst, fn):
        pass
    a("v_add_f32 v64, v32, v33\nv_add_f32 v65, v34, v35")
    for d in range(4, 32, 2):
        a(f"v_add_f32 v64, v64, v{32+d}\nv_add_f32 v65, v65, v{33+d}")
    a("v_add_f32 v64, v64, v65")
    def xlane_sum(r, t):
        a(f"v_add_f32_dpp v{r}, v{r}, v{r} row_ror:8 row_mask:0xf bank_mask:0xf")
        a(f"v_mov_b32 v{t}, v{r}\nv_permlane16_swap_b32 v{r}, v{t}\nv_add_f32 v{r}, v{r}, v{t}")
        a(f"v_mov_b32 v{t}, v{r}\nv_permlane32_swap_b32 v{r}, v{t}\nv_add_f32 v{r}, v{r}, v{t}")
    def xwave_sum(r, base):
        a(f"v_lshlrev_b32 v66, 4, v3\nv_lshl_add_u32 v67, v2, 2, v66\nds_write_b32 v67, v{r} offset:{base}\ns_waitcnt lgkmcnt(0)\ns_barrier")
        a(f"ds_read_b128 v[68:71], v66 offset:{base}\ns_waitcnt lgkmcnt(0)")
        a(f"v_add_f32 v68, v68, v69\nv_add_f32 v70, v70, v71\nv_add_f32 v{r}, v68, v70")
    xlane_sum(64, 65); xwave_sum(64, 0)
    a("v_mul_f32 v64, 0x3a800000, v64")
    a("v_sub_f32 v72, v32, v64\nv_sub_f32 v73, v33, v64\nv_mul_f32 v74, v72, v72\nv_mul_f32 v75, v73, v73")
    for d in range(2, 32, 2):
        a(f"v_sub_f32 v72, v{32+d}, v64\nv_sub_f32 v73, v{33+d}, v64\nv_fmac_f32 v74, v72, v72\nv_fmac_f32 v75, v73, v73")
    a("v_add_f32 v74, v74, v75")
    xlane_sum(74, 65); xwave_sum(74, 128)
    a("""
    v_mul_f32 v74, 0x3a800000, v74     ; var
    v_cvt_pk_bf16_f32 v74, v74, v64
    v_and_b32 v64, 0xffff0000, v74
    v_lshlrev_b32 v74, 16, v74
    v_add_f32 v74, 0x3727c5ac, v74     ; + 1e-5
    v_cvt_pk_bf16_f32 v74, v74, v74
    v_lshlrev_b32 v74, 16, v74
    v_sqrt_f32 v74, v74
    v_cvt_pk_bf16_f32 v74, v74, v74
    v_lshlrev_b32 v74, 16, v74
    v_rcp_f32 v74, v74
    """)
    for d in range(16):
        x, y = 32 + 2 * d, 33 + 2 * d
        a(f"""v_sub_f32 v{x}, v{x}, v64
        v_sub_f32 v{y}, v{y}, v64
        v_cvt_pk_bf16_f32 v{16+d}, v{x}, v{y}
        v_lshlrev_b32 v{x}, 16, v{16+d}
        v_and_b32 v{y}, 0xffff0000, v{16+d}
        v_mul_f32 v{x}, v{x}, v74
        v_mul_f32 v{y}, v{y}, v74
        v_cvt_pk_bf16_f32 v{16+d}, v{x}, v{y}""")
    for i in range(4):
        b = 16 + 4 * i
        a(f"v_mov_b32 v76, v{b+2}\nv_mov_b32 v77, v{b+3}")
        a(f"v_mov_b32_dpp v{b+2}, v{b} row_ror:8 row_mask:0xf bank_mask:0x3")
        a(f"v_mov_b32_dpp v{b+3}, v{b+1} row_ror:8 row_mask:0xf bank_mask:0x3")
        a(f"v_mov_b32_dpp v{b}, v76 row_ror:8 row_mask:0xf bank_mask:0xc")
        a(f"v_mov_b32_dpp v{b+1}, v77 row_ror:8 row_mask:0xf bank_mask:0xc")
        a(f"s_mov_b32 s13, {XN_OFF + 4096 * i}\nbuffer_store_dwordx4 v[{b}:{b+3}], v7, s[4:7], s13 offen")
    if trace:
        a(f"""s_waitcnt vmcnt(0)
        s_memrealtime s[22:23]
        s_lshl_b32 s24, s2, 4
        s_add_u32 s24, s24, {GTRACE_OFF + 2 * MB + 4096}
        s_waitcnt lgkmcnt(0)
        v_mov_b32 v4, s20
        v_mov_b32 v5, s22
        v_mov_b32 v7, 0
        buffer_store_dwordx2 v[4:5], v7, s[4:7], s24 offen""")
    a(f"{name}_end:\ns_endpgm")
    return khead(name) + a.finish()
```

```python
from asmlib import *
from layout import *
from prep import srd
from rec import WS, T0, sX, sJ, sW, sMODE, sG, sBUD, sT
from start import DB, XS, M_ROWS, arrive, first_rows, line_addr, line_load, verdict, ln_out, sPASS, sSELV, WKS, WVS, WQS, WOS, M0S
sSTEP, sCUR, sRST, sPCUR, sPRST, sKM = 18, 19, 20, 21, 22, 23
sPEND, sCSC, sTK, sTV, sKVF, sSEL = 32, 33, 62, 63, 64, 65
sTB = 68
vTR, vFL, vOPW = 74, 75, 240
OPW = 1280
sMB = 66
sTR = 40
vCOL, vG, vIDX = 1, 2, 3
vSENT = 4
vA = 8
vQ0, vQ1, vK0, vK1, vV0, vV1, vO0, vO1 = 24, 28, 32, 36, 40, 44, 48, 52
vMEMR, vOR, vXW, vLIN, vOPR, vPW, vPR, vMW = 56, 57, 58, 59, 60, 61, 62, 65
vA1, vA2, vA3, vA4, vA5, vA6, vA7, vA8 = range(66, 74)
vT = 76
vKT, vVT = 80, 88
vF, vX, vD = 96, 100, 104
vR0, vR1, vBM, vONE, vPB, vS, vSO = 116, 120, 124, 128, 132, 136, 144
vP = 148
L_X, L_V, L_O, L_T, L_KP, L_XW, L_P0 = 0, 12288, 16384, 24576, 32768, 65536, 131072
XROW = 40
KVT = 16
CSC = 0x3e0293ee
ws = f"s[{WS}:{WS+3}]"
def vr(b, n=4): return f"v[{b}:{b+n-1}]"
def ar(b, n=8): return f"a[{b}:{b+n-1}]"
def pk(d, x, y): return f"v_pk_add_f32 {vr(d,2)}, {vr(x,2)}, {vr(y,2)}"

vM0, vXR, vX1, vACC, vRT, vKR, vXL, vRW, vRR, vST, vDUM = 128, 144, 208, 24, 88, 120, 241, 242, 243, 244, 245
vXR, vX1, vACC = 144, 24, 208
vQA, vOA, vQP, vOP = 10, 11, 12, 255
sPQ, sPO = 64, 68
sLB, sQO, sOO = 33, 32, 63
sXO, sKV, sXP, sXB, sXQ = 60, 61, 63, 69, 59
XOFF = lambda j: 2048 * (j >> 1 & 1) + 256 * (j & 1)
def kvmm(j, x):
    kb, t = j >> 1, j & 1; r = []
    for T in range(2):
        d = vr(vACC + 8 * t + 4 * T)
        r.append(f"v_mfma_f32_16x16x32_bf16 {d}, {ar(64 + 32 * T + 4 * kb, 4)}, {vr(x)}, {d if kb else 0}")
        d = vr(vACC + 16 + 8 * T + 4 * t)
        r.append(f"v_mfma_f32_16x16x32_bf16 {d}, {vr(x)}, {ar(128 + 32 * T + 4 * kb, 4)}, {d if kb else 0}")
    return r
def shares(): return [f"ds_write_b128 v{vRW}, {vr(vACC + 8 * q + 4 * h)} offset:{8192 * q + 1024 * h}" for q in (0, 2, 1, 3) for h in range(2)]
def merge(m, f, k=1, lead=0):
    m, f, r = list(m), list(f), []
    for i, x in enumerate(m):
        r.append(x)
        if i >= lead: r += f[:k]; f = f[k:]
    return r + f
def sr(b): return f"s[{b}:{b+3}]"
def rec_pre(a, pf):
    a(f"""
    s_lshl_b32 s{sT}, s{sX}, 5
    s_add_u32 s{sT}, s{sT}, s{sJ}            ; cu = 32x + j
    s_lshl_b32 s{sLB}, s{sW}, 15
    s_lshl_b32 s{sQO}, s{sW}, 21
    s_lshl_b32 s{sT}, s{sT}, 6
    s_add_u32 s{sQO}, s{sQO}, s{sT}
    s_lshr_b32 s{sT}, s{sJ}, 1
    s_lshl_b32 s{sT}, s{sT}, 2
    s_add_u32 s{sT}, s{sT}, s{sW}
    s_lshl_b32 s{sPQ}, s{sT}, 17
    s_lshl_b32 s{sPO}, s{sT}, 15
    s_lshl_b32 s{sT}, s{sX}, 11
    s_add_u32 s{sPQ}, s{sPQ}, s{sT}
    s_lshl_b32 s{sT}, s{sX}, 21
    s_add_u32 s{sPO}, s{sPO}, s{sT}
    v_and_b32 v8, 3, v0
    v_lshlrev_b32 v8, 9, v8
    v_add_u32 v8, 384, v8
    s_lshl_b32 s{sT}, s{sJ}, 31
    v_or_b32 v8, s{sT}, v8
    v_lshrrev_b32 v9, 2, v0
    v_lshl_add_u32 v{vQP}, v9, 13, v8
    v_lshl_add_u32 v{vOP}, v9, 11, v8
    v_lshrrev_b32 v8, 2, v0
    v_and_b32 v9, 3, v0
    v_lshlrev_b32 v9, 4, v9
    v_lshl_add_u32 v{vQA}, v8, 13, v9
    v_lshl_add_u32 v{vOA}, v8, 11, v9
    s_lshl_b32 s{sT}, s{sX}, 21
    s_lshl_b32 s{sOO}, s{sW}, 19
    s_add_u32 s{sOO}, s{sOO}, s{sT}
    s_lshl_b32 s{sT}, s{sJ}, 6
    s_add_u32 s{sOO}, s{sOO}, s{sT}""")
def n_pre(pf): return 0
def touch(R): return f"buffer_load_dword v{vDUM}, v{vOP if R == WOS else vQP}, {sr(R)}, s{sPO if R == WOS else sPQ} offen"

vGL = 16
def rec_prologue(a, name, stamp=lambda i: None, pf=0):
    def trr(abase, region, vaddr):
        for T in range(2):
            for s in range(4):
                for d in range(4):
                    r = abase + T * 32 + s * 8 + 2 * d
                    a(f"ds_read_b64_tr_b16 a[{r}:{r+1}], v{vaddr} offset:{region + (64*s + 32*(d>>1) + 2*(d&1)) * 64 + 32 * T}")
                a("s_waitcnt lgkmcnt(4)")
        a("s_waitcnt lgkmcnt(0)")
    ln_out(a, name, True)
    a.lab(name + "_noln")
    arrive(a, name + "_ra", 0, True)
    a.lab(name + "_dma")
    stamp(-1)
    def wdma(R, region, v, so, step, after=None):
        a(f"s_add_u32 m0, s{sLB}, {region}\ns_mov_b32 s{sT+2}, s{so}")
        for i in range(16):
            a(f"buffer_load_dwordx4 v{v}, {sr(R)}, s{sT+2} offen lds")
            if i < 15: a(f"s_add_u32 m0, m0, 1024\ns_add_u32 s{sT+2}, s{sT+2}, {step}")
            if after: after(i)
    def met():
        line_addr(a, vGL)
        first_rows(a, name, name + "_rm")
        stamp(1)
    if pf & 4: a("s_waitcnt vmcnt(0)"); met()
    a(touch(WKS) + "\n" + touch(WVS))
    wdma(WKS, 0, vQA, sQO, 16 * 8192)
    if pf & 2: a("s_waitcnt vmcnt(16)"); met()
    wdma(WVS, 16384, vQA, sQO, 16 * 8192)
    a(f"""
    v_and_b32 v{vCOL}, 15, v0
    v_lshrrev_b32 v{vG}, 4, v0
    s_lshl_b32 s{sT}, s{sX}, 5
    s_add_u32 s{sT}, s{sT}, s{sJ}
    v_and_b32 v13, 3, v0
    v_lshlrev_b32 v13, 3, v13
    v_add_u32 v13, s{sLB}, v13
    v_bfe_u32 v48, v0, 3, 1                  ; h
    v_bfe_u32 v49, v0, 2, 1                  ; u
    v_lshl_add_u32 v14, v48, 4, v49
    v_lshl_add_u32 v14, v{vG}, 2, v14        ; 16h + 4g + u
    v_lshl_add_u32 v14, v14, 6, v13
    v_lshl_add_u32 v15, v48, 2, v49
    v_and_b32 v50, 1, v{vG}
    v_lshl_add_u32 v15, v50, 4, v15
    v_lshrrev_b32 v50, 1, v{vG}
    v_lshl_add_u32 v15, v50, 3, v15          ; 16(g&1) + 8(g>>1) + 4h + u
    v_lshl_add_u32 v15, v15, 6, v13
    v_lshrrev_b32 v48, 2, v{vCOL}
    v_and_b32 v49, 1, v0
    v_lshl_add_u32 v48, v48, 1, v49
    v_lshlrev_b32 v48, 11, v48
    v_lshl_add_u32 v48, v50, 6, v48
    v_and_b32 v49, 1, v{vG}
    v_lshl_add_u32 v48, v49, 4, v48
    v_bfe_u32 v49, v0, 1, 1
    v_lshl_add_u32 v48, v49, 5, v48
    s_lshl_b32 s{sT+5}, s{sW}, 9
    """)
    for s in range(4): a(f"buffer_load_dwordx4 {vr(vM0+4*s)}, v48, {sr(M0S)}, s{sT+5} offen offset:{128*s}")
    a(f"""v_lshlrev_b32 v{vXL}, 9, v{vG}
    v_lshl_add_u32 v{vXL}, v{vCOL}, 4, v{vXL}
    s_lshl_b32 s{sT+5}, s{sW}, 11
    s_add_u32 s{sT+5}, s{sT+5}, {L_P0}
    v_lshl_add_u32 v{vRW}, v0, 4, s{sT+5}
    s_lshl_b32 s{sT+5}, s{sW}, 13
    s_add_u32 s{sT+5}, s{sT+5}, {L_P0}
    v_lshl_add_u32 v{vRR}, v0, 4, s{sT+5}
    s_lshr_b32 s{sT+5}, s{sT}, 2
    s_lshl_b32 s{sT+5}, s{sT+5}, 14
    s_and_b32 s{sT+6}, s{sT}, 3
    s_lshl_b32 s{sT+6}, s{sT+6}, 11
    s_add_u32 s{sT+5}, s{sT+5}, s{sT+6}
    v_add_u32 v{vST}, s{sT+5}, v{vXL}
    s_mov_b32 s{sKV}, {K_OFF}
    s_lshl_b32 s{sXO}, s{sPASS}, 2
    s_add_u32 s{sXO}, s{sXO}, s{sX}
    s_lshl_b32 s{sXO}, s{sXO}, 5
    s_add_u32 s{sXO}, s{sXO}, s{sW}
    s_lshl_b32 s{sXO}, s{sXO}, 14
    s_add_u32 s{sXO}, s{sXO}, {XR_OFF}""")
    stamp(-1)
    a("s_waitcnt vmcnt(20)")
    trr(64, 0, 14)
    a(touch(WQS))
    if not pf & 6: met()
    def xld(b, j):
        a(f"buffer_load_dwordx4 {vr(b + 4 * j)}, v{vXL}, {ws}, s{sXO} offen offset:{XOFF(j)}")
        if j & 3 == 3: a(f"s_add_u32 s{sXO}, s{sXO}, {4096 if j < 15 else 65536 - 3 * 4096}")
    def rows(i):
        for j in (2 * i, 2 * i + 1): xld(vX1 if j >> 4 else vXR, j & 15)
        if i == 7:
            stamp(-1)
            a("s_waitcnt vmcnt(29)")
            stamp(-1)
            trr(128, 16384, 14)
    wdma(WQS, 0, vQA, sQO, 16 * 8192, rows)
    a(touch(WOS))
    stamp(-1)
    wdma(WOS, 16384, vOA, sOO, 16 * 2048)
    a("s_waitcnt vmcnt(41)")
    stamp(0)
    for j in range(16):
        for x in kvmm(j, vXR + 4 * j): a(x)
        if j: xld(vXR, j - 1)
    xld(vXR, 15)
    a("s_barrier")
    for x in shares(): a(x)
    a("s_waitcnt lgkmcnt(0)\ns_barrier")
    stamp(-1)
    for q in range(4):
        for h in range(2): a(f"ds_read_b128 {vr(vRT + 8 * q + 4 * h)}, v{vRR} offset:{2048 * q + 1024 * h}")
    f = []
    for q in range(1, 4): f += [f"s_waitcnt lgkmcnt({6 - 2 * q})"] + [pk(vRT + i, vRT + i, vRT + 8 * q + i) for i in range(0, 8, 2)]
    f += [f"v_cvt_pk_bf16_f32 v{vKR+i}, v{vRT+2*i}, v{vRT+2*i+1}" for i in range(4)]
    a("s_waitcnt vmcnt(33)")
    for x in merge(sum((kvmm(j, vX1 + 4 * j) for j in range(16)), []), f, 1, 12): a(x)
    a(f"s_cmp_ge_u32 s{sW}, 2\ns_cbranch_scc1 {name}_kvs\nv_permlane32_swap_b32 v{vKR}, v{vKR+2}\nv_permlane32_swap_b32 v{vKR+1}, v{vKR+3}\n{name}_kvs:")
    stamp(-1)
    stamp(-1)
    trr(0, 0, 14)
    a(line_load(vGL))
    a("s_waitcnt vmcnt(17)")
    stamp(-1)
    trr(192, 16384, 15)
    a("s_waitcnt vmcnt(0)")
    stamp(-1)
    verdict(a, name, name + "_rv", vGL)
    a(f"s_and_b32 s{sSEL}, s{sSELV}, 2\ns_lshl_b32 s{sSEL}, s{sSEL}, 12")
    near(a, sT + 5, sKV)
    a(f"""s_lshr_b32 s{sT+6}, s{sW}, 1
    s_lshl_b32 s{sT+6}, s{sT+6}, 17
    s_and_b32 s{sT+7}, s{sW}, 1
    s_or_b32 s{sT+6}, s{sT+6}, s{sT+7}
    s_lshl_b32 s{sT+6}, s{sT+6}, 8
    s_add_u32 s{sT+5}, s{sT+5}, s{sT+6}
    buffer_store_dwordx4 {vr(vKR)}, v{vST}, {ws}, s{sT+5} offen sc1
    s_add_u32 s{sKV}, s{sKV}, 524288""")
    assert VT_OFF - K_OFF == 1 << 25
    for i in range(4): a(f"v_mov_b32 v{vKT+i}, v{vKR+i}")
    stamp(2)
    for i in range(0, 16, 2): a(f"v_mov_b64 {vr(vA+i,2)}, {vr(vM0+i,2)}")
    a(f"""s_lshl_b32 s{sT}, s{sX}, 5
    s_add_u32 s{sT}, s{sT}, s{sJ}
    v_lshrrev_b32 v{vT+3}, 1, v{vG}          ; g>>1
    v_and_b32 v{vT+2}, 1, v{vG}              ; g&1
    v_bfe_u32 v{vT+1}, v0, 1, 1""")
    a(f"""
    v_mov_b32 v{vIDX}, 0x4444
    v_mov_b32 v{vT}, 0xeeee
    v_cmp_eq_u32 s[{sMB}:{sMB+1}], 1, v{vT+1}
    v_cndmask_b32 v{vIDX}, v{vIDX}, v{vT}, s[{sMB}:{sMB+1}]
    """)
    for i in range(4):
        a(f"v_mov_b32 v{vSENT+i}, -1\nv_mov_b32 v{vONE+i}, 0x3f803f80\nv_mov_b32 v{vR0+i}, 0\nv_mov_b32 v{vR1+i}, 0\nv_mov_b32 v{vBM+i}, 0")
    for r in range(vQ0, vO1 + 4): a(f"v_mov_b32 v{r}, 0")
    a(f"""
    v_lshlrev_b32 v{vLIN}, 4, v0             ; lane*16
    s_movk_i32 s{sT+6}, 288
    s_movk_i32 s{sT+7}, 640
    s_lshl_b32 s{sT+1}, s{sX}, 14
    s_lshl_b32 s{sT+2}, s{sW}, 12
    s_add_u32 s{sT+2}, s{sT+2}, s{sT+1}
    v_add_u32 v{vMEMR}, s{sT+2}, v{vLIN}
    v_add_u32 v{vOR}, {R_O}, v{vMEMR}
    v_mul_u32_u24 v{vT}, {4*XROW*4}, v{vG}
    v_lshl_add_u32 v{vT}, v{vCOL}, 2, v{vT}
    s_mul_i32 s{sT+2}, s{sW}, {16*XROW*4}
    v_add_u32 v{vXW}, s{sT+2}, v{vT}
    s_lshl_b32 s{sT+4}, s{sJ}, 9
    s_add_u32 s{sT+4}, s{sT+4}, s{sT+1}      ; x*16K + j*512
    v_lshl_add_u32 v{vMW}, v0, 3, s{sT+4}
    s_mul_i32 s{sT+2}, s{sW}, {OPW}
    s_add_u32 s{sT+2}, s{sT+2}, {L_O}
    v_lshl_add_u32 v{vOPW}, v0, 2, s{sT+2}
    v_and_b32 v{vOPR}, 1, v0
    v_lshlrev_b32 v{vOPR}, 4, v{vOPR}
    v_bfe_u32 v{vT}, v0, 1, 1
    v_mad_u32_u24 v{vOPR}, v{vT}, s{sT+6}, v{vOPR}
    v_bfe_u32 v{vT}, v0, 2, 1
    v_mad_u32_u24 v{vOPR}, v{vT}, s{sT+7}, v{vOPR}
    v_bfe_u32 v{vT}, v0, 3, 2
    v_lshl_add_u32 v{vOPR}, v{vT}, 6, v{vOPR}
    v_lshl_add_u32 v{vOPR}, v{vT+3}, 5, v{vOPR}
    s_lshr_b32 s{sT+2}, s{sJ}, 1
    s_lshl_b32 s{sT+2}, s{sT+2}, 14
    s_and_b32 s{sT+3}, s{sJ}, 1
    s_lshl_b32 s{sT+3}, s{sT+3}, 12
    s_add_u32 s{sT+5}, s{sT+2}, s{sT+3}
    v_add_u32 v{vT}, s{sT+5}, v{vLIN}
    """)
    for i in range(4):
        a(f"s_add_u32 s{sT+2}, s{sX}, {i}\ns_and_b32 s{sT+2}, s{sT+2}, 3\ns_lshl_b32 s{sT+2}, s{sT+2}, 10\nv_add_u32 v{vPW+i}, s{sT+2}, v{vT}")
    a(f"""
    s_mov_b32 s{sSTEP}, 0
    s_mov_b32 s{sKM}, 0
    s_mov_b32 s{sPEND}, 0
    s_mov_b32 s{sCSC}, {CSC}
    s_mov_b32 s{sCUR}, {RING_OFF}
    s_mov_b32 s{sRST}, {RING_OFF + 2 * SLOT}
    s_mov_b32 s{sPCUR}, {PART_OFF}
    s_mov_b32 s{sPRST}, {PART_OFF + 2 * PSLOT}
    """)

def kv_wait(a, lab):
    a(f"v_mov_b32 v{vT+1}, 0")
    a.lab(lab)
    a(f"""buffer_load_dword v{vT}, v{vT+1}, {ws}, s{sKVF} offen sc1
    s_waitcnt vmcnt(0)
    v_readfirstlane_b32 s{sT+6}, v{vT}
    s_cmp_ge_u32 s{sT+6}, {KVT}
    s_cbranch_scc1 {lab}_d
    s_cmp_eq_u32 s{sBUD}, 0
    s_cbranch_scc1 {lab}_d
    s_sub_u32 s{sBUD}, s{sBUD}, 1
    s_branch {lab}""")
    a.lab(lab + "_d")

def near(a, d, s):
    a(f"s_lshr_b32 s{d}, s{s}, 8\ns_xor_b32 s{d}, s{d}, s{sSEL}\ns_and_b32 s{d}, s{d}, 8192\ns_add_u32 s{d}, s{d}, s{s}")
def tok_dma(a):
    near(a, sT + 5, sTK)
    a(f"s_add_u32 s{sT+4}, s{sT+5}, {VT_OFF - K_OFF}")
    for i, (so, o) in enumerate(((sT + 5, 0), (sT + 5, 256), (sT + 4, 0), (sT + 4, 256))):
        a(f"s_add_u32 m0, s{sTB}, {1024 * i - o}\nbuffer_load_dwordx4 v{vA1}, {ws}, s{so} offen offset:{o} sc1 lds")
    a(f"s_add_u32 s{sTK}, s{sTK}, 524288\ns_xor_b32 s{sTB}, s{sTB}, 4096")
def tok_read(a):
    for i in range(4): a(f"ds_read_b128 {vr(vKT+4*i)}, v{vTR} offset:{L_T + 1024*i}")
    a(f"v_xor_b32 v{vTR}, 4096, v{vTR}")

def role_prologue(a, w, name, nkv):
    cu = sT
    def msk(dst, hi):
        a(f"v_mov_b32 v{vT}, {OOB}")
        a(f"v_cndmask_b32 v{dst}, v{vT}, v{dst}, s[{sMB}:{sMB+1}]" if hi else f"v_cndmask_b32 v{dst}, v{dst}, v{vT}, s[{sMB}:{sMB+1}]")
    def xread(dst):
        a(f"""v_mul_u32_u24 v{dst}, {XROW*4}, v{vCOL}
        v_lshl_add_u32 v{dst}, v{vT+3}, 6, v{dst}
        v_lshl_add_u32 v{dst}, v{vT+2}, 4, v{dst}""")
    a(f"""s_lshl_b32 s{sT+6}, s{cu}, 10
    s_add_u32 s{sT+6}, s{sT+6}, {R_ST}
    s_lshr_b32 s{sT+7}, s{cu}, 2
    s_lshl_b32 s{sT+7}, s{sT+7}, 10
    s_add_u32 s{sT+7}, s{sT+7}, {R_SM}
    s_and_b32 s{sT+3}, s{cu}, 3
    s_lshl_b32 s{sT+3}, s{sT+3}, 2""")
    if w == 0:
        xread(vA1)
        a(f"s_sub_u32 s{sT+2}, s{sT+6}, 32\nv_add_u32 v{vA2}, s{sT+2}, v{vLIN}"); msk(vA2, True)
        a(f"s_add_u32 s{sT+2}, s{sT+7}, s{sT+3}\ns_sub_u32 s{sT+2}, s{sT+2}, 32\nv_add_u32 v{vA3}, s{sT+2}, v{vLIN}"); msk(vA3, True)
        for k in range(1, 4):
            a(f"""s_add_u32 s{sT+2}, s{cu}, {k}
            s_and_b32 s{sT+2}, s{sT+2}, 3
            s_and_b32 s{sT+1}, s{cu}, 0x7c
            s_or_b32 s{sT+2}, s{sT+2}, s{sT+1}
            s_lshl_b32 s{sT+2}, s{sT+2}, 10
            s_add_u32 s{sT+2}, s{sT+2}, {R_ST}
            v_add_u32 v{vA4+k-1}, s{sT+2}, v{vLIN}""")
        a(f"""v_add_u32 v{vA7}, s{sT+7}, v{vLIN}
        v_lshl_add_u32 v{vA8}, v{vT+3}, 4, v{vCOL}
        v_lshl_add_u32 v{vA8}, v{vT+2}, 1, v{vA8}      ; 16(g>>1) + 4a + 2(g&1) + b
        s_add_u32 s{sT+2}, s{sT+4}, {R_O}
        v_lshl_add_u32 v{vA8}, v{vA8}, 4, s{sT+2}""")
        msk(vA8, False)
    elif w == 1:
        xread(vA1)
        a(f"""s_lshr_b32 s{sT+2}, s{cu}, 4
        s_lshl_b32 s{sT+2}, s{sT+2}, 14
        s_and_b32 s{sT+1}, s{cu}, 15
        s_lshl_b32 s{sT+1}, s{sT+1}, 9
        s_add_u32 s{sT+2}, s{sT+2}, s{sT+1}
        s_add_u32 s{sT+2}, s{sT+2}, {KM_OFF}
        v_lshrrev_b32 v{vA2}, 2, v{vCOL}
        v_and_b32 v{vT}, 1, v0
        v_lshl_add_u32 v{vA2}, v{vA2}, 1, v{vT}        ; key
        v_lshl_add_u32 v{vA2}, v{vG}, 3, v{vA2}
        v_lshl_add_u32 v{vA2}, v{vA2}, 4, s{sT+2}""")
        msk(vA2, False)
        a(f"""v_add_u32 v{vA3}, s{sT+6}, v{vLIN}
        s_add_u32 s{sT+2}, s{sT+7}, s{sT+3}
        v_add_u32 v{vA4}, s{sT+2}, v{vLIN}""")
    elif w == 2:
        a(f"""s_lshr_b32 s{sT+2}, s{cu}, 4
        s_lshl_b32 s{sT+2}, s{sT+2}, 14
        s_and_b32 s{sT+1}, s{cu}, 15
        s_lshl_b32 s{sT+1}, s{sT+1}, 9
        s_add_u32 s{sT+2}, s{sT+2}, s{sT+1}
        s_add_u32 s{sT+2}, s{sT+2}, {VM_OFF}
        v_add_u32 v{vA1}, s{sT+2}, v{vLIN}
        v_mov_b32 v{vT}, {OOB}
        v_cmp_gt_u32 vcc, 32, v0
        v_cndmask_b32 v{vA1}, v{vT}, v{vA1}, vcc
        v_lshl_add_u32 v{vA2}, v0, 3, s{sT+4}
        v_add_u32 v{vA3}, {R_O}, v{vA2}
        s_lshl_b32 s{sT+2}, s{sX}, 8
        s_add_u32 s{sT+2}, s{sT+2}, {CTRL_OFF + C_PROG}
        s_cmp_eq_u32 s{sJ}, 0
        s_cselect_b32 s{sT+2}, s{sT+2}, {OOB}
        v_mov_b32 v{vA4}, s{sT+2}
        v_mov_b32 v{vT}, {OOB}
        v_cmp_eq_u32 vcc, 0, v0
        v_cndmask_b32 v{vA4}, v{vT}, v{vA4}, vcc""")
    else:
        a(f"""s_lshr_b32 s{sT+2}, s{cu}, 2
        s_lshl_b32 s{sT+2}, s{sT+2}, 14
        s_and_b32 s{sT+3}, s{cu}, 3
        s_lshl_b32 s{sT+3}, s{sT+3}, 11
        s_add_u32 s{sT+2}, s{sT+2}, s{sT+3}
        v_lshlrev_b32 v{vA1}, 9, v{vG}
        v_lshl_add_u32 v{vA1}, v{vCOL}, 4, v{vA1}
        v_add_u32 v{vA1}, s{sT+2}, v{vA1}
        s_mov_b32 s{sTK}, {K_OFF + nkv * 524288}
        s_lshl_b32 s{sT+2}, s{sX}, 8
        s_add_u32 s{sT+2}, s{sT+2}, {CTRL_OFF + C_PROG + 4}
        v_mov_b32 v{vA3}, s{sT+2}
        v_mov_b32 v{vT}, {OOB}
        v_cmp_eq_u32 vcc, 0, v0
        v_cndmask_b32 v{vA3}, v{vT}, v{vA3}, vcc""")
    a("s_barrier")
    a(f"ds_write_b128 v{vLIN}, {vr(vKT)} offset:{L_T + 1024 * w}\nv_add_u32 v{vRW}, {L_KP - L_P0 & 0xffffffff}, v{vRW}")
    for x in shares(): a(x)
    if w == 0:
        a(f"v_add_u32 v{vXL}, {L_XW}, v{vLIN}")
        for j in range(16): a(f"ds_write_b128 v{vXL}, {vr(vXR + 4 * j)} offset:{1024 * j}")
    else: a(f"v_add_u32 v{vTR}, 4096, v{vLIN}\ns_mov_b32 s{sXB}, {L_XW + 16384}\ns_sub_u32 s{sXQ}, s{sXO}, 65536")
    if w == 3:
        a(f"""s_lshr_b32 s{sKVF}, s{cu}, 3
        s_lshl_b32 s{sKVF}, s{sKVF}, 6
        s_add_u32 s{sKVF}, s{sKVF}, {CTRL_OFF + C_KV + 1024 * (nkv // 8 - 1)}
        s_mov_b32 s{sTB}, {L_T}
        v_mov_b32 v{vFL}, 0
        s_add_u32 s{sXP}, s{sXO}, {65536 - 3 * 16384}
        s_lshl_b32 s{sT+6}, s{sJ}, 11
        v_lshl_add_u32 v{vA2}, v0, 7, s{sT+6}
        v_mov_b32 v{vT}, {OOB}
        v_cmp_gt_u32 vcc, 16, v0
        v_cndmask_b32 v{vA2}, v{vT}, v{vA2}, vcc
        s_mov_b64 s[{XS}:{XS+1}], s[{DB}:{DB+1}]
        s_mov_b64 s[{XS+2}:{XS+3}], s[{DB+2}:{DB+3}]""")
        line_addr(a, vA4); a(line_load(vA4, XS))
    a(f"s_xor_b32 s{sT+6}, s{sSEL}, {PART_OFF >> 8 & 8192}\ns_waitcnt lgkmcnt(0)\ns_barrier")
    for r in [vPW, vPR, vPR + 1, vPR + 2]: a(f"v_add_u32 v{r}, s{sT+6}, v{r}")
    if w == 0:
        a(f"v_mov_b32 v{vTR}, v{vLIN}")
        tok_read(a)

def rec_loop(a, name, w, fast, trace=None, nsteps=64, ns_s=2, nkv=64, nb=(6, 4, 6), xs=None, exp=()):
    p = f"{name}_{'f' if fast else 's'}{w}"
    loc = "" if fast else " sc1"
    cold = []
    trn = [0]
    def stamp(i):
        if trace is not None: a(f"s_memtime s[{70+2*i}:{71+2*i}]")
    def smf(acc, wb, T, s): return f"v_smfmac_f32_16x16x64_bf16 {vr(acc)}, {vr(vA+4*rot(s))}, {ar(wb+32*T+8*rot(s))}, v{vIDX}"
    def ld(vaddr, s): return f"buffer_load_dwordx4 {vr(vA+4*rot(s))}, v{vaddr}, {ws}, s{sCUR} offen offset:{1024*rot(s)} sc1"
    def budget(out): return f"s_cmp_eq_u32 s{sBUD}, 0\ns_cbranch_scc1 {out}\ns_sub_u32 s{sBUD}, s{sBUD}, 1"
    def cnt(i): return f"s_add_u32 s{sTR+i}, s{sTR+i}, 1" if trace is not None else ""
    rot = (lambda s: (s + w) & 3) if "rot" in exp else (lambda s: s ^ (w & 1)) if "rot2" in exp else (lambda s: s)
    def stages(tag, vaddr, mm, ci, tail=0):
        q = f"{p}_{tag}"
        chk = lambda s: f"v_cmp_eq_u32 vcc, -1, v{vA+4*rot(s)}"
        a("s_waitcnt vmcnt(3)")
        if tag == "a": stamp(0)
        a(f"{chk(0)}\ns_cbranch_vccnz {q}m0")
        rest = {0: []}
        for s in range(4):
            M = mm(s)
            if s == 3:
                for x in M: a(x)
                break
            k = len(M) // 2
            for x in M[:k]: a(x)
            a(f"s_waitcnt vmcnt({2-s})\n{chk(s+1)}")
            k2 = len(M) - 1
            for x in M[k:k2]: a(x)
            a(f"s_cbranch_vccnz {q}m{s+1}")
            rest[s + 1] = M[k2:]
            for x in M[k2:]: a(x)
        a.lab(f"{q}b")
        c = ""
        for s in range(4):
            c += f"{q}m{s}:\n" + "\n".join(rest[s]) + f"\ns_mov_b32 s{sPEND}, {15 & ~((1 << s) - 1)}\n{budget(f'{q}h{4-s}{s}')}\n{cnt(ci)}\n{ld(vaddr, s)}\ns_branch {q}l{4-s}{(s+1)&3}\n"
        for n in range(1, 5):
            for s in range(4):
                c += f"{q}l{n}{s}:\n"
                if n < 4: c += f"s_bitcmp1_b32 s{sPEND}, {s}\ns_cbranch_scc0 {q}l{n}{(s+1)&3}\n"
                c += f"s_waitcnt vmcnt({n-1})\n{chk(s)}\ns_cbranch_vccz {q}h{n}{s}\n{budget(f'{q}h{n}{s}')}\n{cnt(ci+1)}\n{ld(vaddr, s)}\n"
            c += f"s_branch {q}l{n}0\n"
            for s in range(4):
                c += f"{q}h{n}{s}:\n" + "\n".join(mm(s)) + "\n"
                c += f"s_bitset0_b32 s{sPEND}, {s}\ns_branch {q}l{n-1}{(s+1)&3}\n" if n > 1 else (f"s_nop {tail-1}\n" if tail else "") + f"s_branch {q}b\n"
        cold.append(c)
    def zero(r0, r1):
        for r in range(r0, r1, 2): a(f"v_mov_b64 {vr(r,2)}, 0")
    mf = lambda d, x, y, c: a(f"v_mfma_f32_16x16x32_bf16 {vr(d)}, {vr(x)}, {vr(y)}, {vr(d) if c else 0}")
    def xreduce(fill=(), vP=vP):
        for pw in range(4):
            for b in range(2):
                a(f"ds_read_b128 {vr(vP+8*pw+4*b)}, v{vA1} offset:{L_X + pw*16*XROW*4 + 32*b}")
        for x in fill: a(x)
        a("s_waitcnt lgkmcnt(4)")
        for i in range(0, 8, 2): a(pk(vP + i, vP + i, vP + 8 + i))
        a("s_waitcnt lgkmcnt(2)")
        for i in range(0, 8, 2): a(pk(vP + i, vP + i, vP + 16 + i))
        a("s_waitcnt lgkmcnt(1)")
        for i in range(0, 4, 2): a(pk(vP + i, vP + i, vP + 24 + i))
        a("s_waitcnt lgkmcnt(0)")
        for i in range(4, 8, 2): a(pk(vP + i, vP + i, vP + 24 + i))
        for i in range(0, 8, 2): a(f"v_cvt_pk_bf16_f32 v{vX+i//2}, v{vP+i}, v{vP+i+1}")
    def vreduce(tmp):
        o = [x for x in range(4) if x != w]
        for k in range(3): a(f"ds_read_b128 {vr(tmp+4*k)}, v{vLIN} offset:{L_V + 1024*o[k]}")
        src = {w: vF, o[0]: tmp, o[1]: tmp + 4, o[2]: tmp + 8}
        a("s_waitcnt lgkmcnt(0)")
        for i in (0, 2): a(pk(tmp + 12 + i, src[0] + i, src[1] + i))
        for i in (0, 2): a(pk(vF + i, src[2] + i, src[3] + i))
        for i in (0, 2): a(pk(vF + i, vF + i, tmp + 12 + i))
        a(f"v_cvt_pk_bf16_f32 v{vR0}, v{vF}, v{vF+1}\nv_cvt_pk_bf16_f32 v{vR1}, v{vF+2}, v{vF+3}")
    def kvm():
        if "nokm" in exp or w not in (1, 2): return
        near(a, sT + 5, sKM)
        a(f"buffer_store_dwordx4 {vr(vX)}, v{vA2 if w == 1 else vA1}, {ws}, s{sT+5} offen sc1\ns_add_u32 s{sKM}, s{sKM}, 131072")
    def slow():
        if "wb1" in exp and w in (1, 2):
            a(f"s_cmp_eq_u32 s{sSTEP}, 0\ns_cbranch_scc1 {p}_nkm")
            kvm()
            if w == 2: a(f"v_mov_b32 v{vT}, s{sSTEP}\nv_add_u32 v{vT}, -1, v{vT}\nbuffer_store_dword v{vT}, v{vA4}, {ws}, 0 offen sc1")
            a.lab(f"{p}_nkm")
        else: kvm()
        if w == 1 and "w1r" not in exp: a(f"buffer_store_dwordx4 {vr(vSENT)}, v{vPW}, {ws}, s{sPRST} offen sc1")
        if w and "nokvs" not in exp:
            own(0)
            near(a, sT + 5, sKV)
            a(f"s_add_u32 s{sT+4}, s{sT+5}, {VT_OFF - K_OFF}\ns_add_u32 s{sKV}, s{sKV}, 524288")
            for k, q in enumerate(PC[w]): a(f"buffer_store_dwordx4 {vr(vKP + 4 * k)}, v{vST}, {ws}, s{sT + 5 - (q >> 1)} offen offset:{256 * (q & 1)} sc1")
            if w == 3 and fast:
                a(f"s_cmp_eq_u32 s{sSTEP}, 3\ns_cbranch_scc1 {p}_rw\n{p}_rwd:")
                cold.append(f"""{p}_rw:
                v_cmp_ne_u32 vcc, 0, v{vA5}
                s_and_b32 s{sT+6}, vcc_lo, {M_ROWS}
                s_cmp_eq_u32 s{sT+6}, {M_ROWS}
                s_cbranch_scc1 {p}_rwd
                {budget(f'{p}_rwd')}
                {line_load(vA4, XS)}
                s_waitcnt vmcnt(0)
                s_branch {p}_rw""")
            if w == 3 and "notouch" not in exp:
                a(f"""buffer_load_dword v{vDUM}, v{vA2}, {ws}, s{sXP} offen
                s_add_u32 s{sXP}, s{sXP}, 65536
                s_cmp_eq_u32 s{sSTEP}, 3
                s_cselect_b32 s{sXP}, {XG_OFF + 8 * 65536}, s{sXP}""")
            emit(sum(xat(2), []))
            own()
        if w == 3 and nkv < 64:
            a(f"""s_sub_u32 s{sT+6}, s{sSTEP}, {nkv-3}
            s_cmp_ge_u32 s{sT+6}, {nsteps-2-(nkv-3)}
            s_cbranch_scc1 {p}_ntk
            s_cmp_eq_u32 s{sT+6}, 0
            s_cbranch_scc1 {p}_kvf""")
            a(f"v_readfirstlane_b32 s{sT+6}, v{vFL}\ns_cmp_lt_u32 s{sT+6}, {KVT}\ns_cbranch_scc1 {p}_kvw\n{p}_kv_d:")
            c = Asm(); kv_wait(c, f"{p}_kv"); cold.append(f"{p}_kvw:\n" + "\n".join(c.lines[:-1]) )
            tok_dma(a)
            a(f"""{p}_kvf:
            s_add_u32 s{sT+6}, s{sSTEP}, 3
            s_and_b32 s{sT+6}, s{sT+6}, 7
            s_cselect_b32 s{sT+6}, 0, 1024
            s_add_u32 s{sKVF}, s{sKVF}, s{sT+6}
            v_mov_b32 v{vT+1}, 0
            buffer_load_dword v{vFL}, v{vT+1}, {ws}, s{sKVF} offen sc1""")
            a.lab(f"{p}_ntk")
    PC = {1: (0,), 2: (2,), 3: (1, 3)}
    vKP, vRD = 136, 104
    nown = [0]
    def own(inc=None):
        if nkv == 64: return
        if inc is None: a.lab(f"{p}_ow{nown[0]}"); nown[0] += 1
        else: a(f"s_cmp_ge_u32 s{sSTEP}, {nkv - 1 + inc}\ns_cbranch_scc1 {p}_ow{nown[0]}")
    def emit(l):
        for x in l: a(x)
    MM = lambda js, reg: sum((kvmm(j, reg(j)) for j in js), [])
    def xld(j, dma=False):
        cur = not dma and j >= nb[0] and xs
        r = [f"s_add_u32 s{sT+4}, s{sXQ if cur else sXO}, {4096 * (j >> 2) - w * 16384 * dma & 0xffffffff}"]
        if dma: return r + [f"s_add_u32 m0, s{sXB}, {1024 * j - XOFF(j)}", f"buffer_load_dwordx4 v{vXL}, {ws}, s{sT+4} offen offset:{XOFF(j)} lds"]
        return r + [f"buffer_load_dwordx4 {vr(vXR + 4 * j)}, v{vXL}, {ws}, s{sT+4} offen offset:{XOFF(j)}"]
    def xat(pos):
        if not xs or not w or "nox" in exp: return []
        order = list(range(nb[0], 16)) + list(range(nb[0]))
        o0 = sum(x[0] for x in xs[:pos]); d0 = sum(x[1] for x in xs[:pos])
        assert sum(x[0] for x in xs) == 16 and sum(x[1] for x in xs) == 16 and xs[0][0] + xs[1][0] >= 16 - nb[0] >= xs[0][0]
        return [xld(j) for j in order[o0:o0 + xs[pos][0]]] + [xld(j, True) for j in range(d0, d0 + xs[pos][1]) if j % 3 == w % 3]
    def kv_b():
        if "nokvb" in exp: return
        own(0)
        js = list(range(nb[0])); h = len(js) // len(PC[w])
        for k, q in enumerate(PC[w]):
            for ww in range(4):
                for hh in range(2): a(f"ds_read_b128 {vr(vRD + 8 * ww + 4 * hh)}, v{vLIN} offset:{L_KP + 8192 * q + 2048 * ww + 1024 * hh}")
            f = []
            for ww in range(1, 4): f += [f"s_waitcnt lgkmcnt({6 - 2 * ww})"] + [pk(vRD + i, vRD + i, vRD + 8 * ww + i) for i in range(0, 8, 2)]
            r = vKP + 4 * k
            f += [f"v_cvt_pk_bf16_f32 v{r+i}, v{vRD+2*i}, v{vRD+2*i+1}" for i in range(4)]
            if q < 2: f += [f"v_permlane32_swap_b32 v{r}, v{r+2}", f"v_permlane32_swap_b32 v{r+1}, v{r+3}"]
            f += [f"ds_write_b128 v{vTR}, {vr(r)} offset:{L_T + 1024 * q}"]
            jj = js[k * h:(k + 1) * h] if k + 1 < len(PC[w]) else js[k * h:]
            emit(merge(MM(jj, lambda j: vXR + 4 * j), f, 3, min(6, 4 * len(jj) - 4)))
        if "xb" in exp:
            for j in js: emit(xld(j))
        emit(sum(xat(1), []))
        own()
        a(f"v_xor_b32 v{vTR}, 4096, v{vTR}")
    def kv_d():
        if "nokvd" in exp: return
        own(0)
        js = list(range(nb[0], 16))
        ld_ = [] if "xb" in exp else [xld(j) for j in range(nb[0])]
        dm = [xld(j, True) for j in range(16)] if w == 3 else []
        if "nox" in exp: ld_ = []; dm = []
        if xs:
            ld_ = []; dm = []
            emit(merge(MM(js, lambda j: vXR + 4 * j), ["\n".join(x) for x in xat(3)], 1, nb[3]))
            js = []
        for j in js:
            m = kvmm(j, vXR + 4 * j)
            f = []
            if j > js[0] and "nox" not in exp: f += xld(j - 1)
            if ld_: f += ld_.pop(0)
            a(m[0]); a(m[1]); emit(f); a(m[2])
            if dm: emit(dm.pop(0))
            a(m[3])
            if dm: emit(dm.pop(0))
        if "nox" not in exp and not xs: emit(xld(15))
        emit(sum(ld_ + dm, []))
        emit(shares())
        a(f"""s_mov_b32 s{sXQ}, s{sXO}
        s_add_u32 s{sXO}, s{sXO}, 65536
        s_cmp_eq_u32 s{sSTEP}, 4
        s_cselect_b32 s{sXO}, {XG_OFF + 8 * 65536 + 16384 * w}, s{sXO}""")
        a(f"s_xor_b32 s{sXB}, s{sXB}, 16384")
        own()
    n0, n1 = nb[1], nb[1] + nb[2]
    assert n0 <= 4 and 8 <= n1 <= n0 + 8
    W0 = lambda j: 180 + 4 * j if j < 4 else 164 + 4 * ((j - 4) & 7)
    xrd = lambda j: f"ds_read_b128 {vr(W0(j))}, v{vXL} offset:{1024 * j}"
    k0 = "nokv0" not in exp
    if trace is not None:
        for i in range(16): a(f"s_mov_b32 s{sTR+i}, 0")
        a(f"v_and_b32 v247, 31, v0\nv_lshlrev_b32 v247, 2, v247\nv_add_u32 v247, {98304 + 8192*w}, v247\nv_mov_b32 v246, 131072\nv_cmp_gt_u32 vcc, 32, v0\nv_cndmask_b32 v247, v246, v247, vcc\nv_mov_b32 v246, 0")
    a.lab(f"{p}_top")
    if w == 0 and k0 and "wsd" not in exp: own(0); emit(shares()); own()
    stages("a", vMEMR, lambda s: [smf(vQ0, 0, 0, s), smf(vQ1, 0, 1, s), smf(vK0, 64, 0, s), smf(vK1, 64, 1, s)], 1)
    stamp(1)
    if w == 1:
        a(f"buffer_store_dwordx4 {vr(vSENT)}, v{vA3}, {ws}, s{sRST} offen{loc}")
        a(f"buffer_store_dword v{vSENT}, v{vA4}, {ws}, s{sRST} offen{loc}")
    if w == 2:
        if "prs" not in exp: a(f"buffer_store_dwordx2 {vr(vSENT,2)}, v{vA2}, {ws}, s{sRST} offen{loc}")
        a(f"buffer_store_dwordx2 {vr(vSENT,2)}, v{vA3}, {ws}, s{sRST} offen{loc}")
    V = [smf(vV0 + 4 * T, 128, T, s) for s in range(4) for T in range(2)]
    a(V[0])
    a(pk(vQ0, vQ0, vQ0 + 2)); a(pk(vQ1, vQ1, vQ1 + 2))
    for T in range(2): a(f"ds_write2_b32 v{vXW}, v{vQ0+4*T}, v{vQ0+4*T+1} offset0:{2*XROW+16*T} offset1:{3*XROW+16*T}")
    a(V[1])
    a(pk(vK0, vK0, vK0 + 2)); a(pk(vK1, vK1, vK1 + 2))
    for T in range(2): a(f"ds_write2_b32 v{vXW}, v{vK0+4*T}, v{vK0+4*T+1} offset0:{16*T} offset1:{XROW+16*T}")
    a(f"""s_and_b32 s{sT+6}, s{sSTEP}, 3
    s_lshl_b32 s{sCUR}, s{sT+6}, 19
    s_add_u32 s{sCUR}, s{sCUR}, {RING_OFF}""")
    for x in V[2:4]: a(x)
    a("s_waitcnt lgkmcnt(0)\ns_barrier")
    stamp(2)
    if "wb1" in exp: slow()
    vfold = [pk(vF, vV0, vV0 + 2), pk(vF + 2, vV1, vV1 + 2)]
    if w == 0:
        xreduce(V[4:])
        mf(vD, vKT, vX, 0); mf(vD + 4, vKT + 4, vX, 0); mf(vD + 8, vX, vX, 0)
        for x in vfold: a(x)
        a(f"buffer_store_dwordx4 {vr(vD)}, v{vA2}, {ws}, s{sCUR} offen{loc}")
        a(f"buffer_store_dwordx4 {vr(vD+4)}, v{vA2}, {ws}, s{sCUR} offen offset:32{loc}")
        a(f"buffer_store_dword v{vD+8}, v{vA3}, {ws}, s{sCUR} offen{loc}")
        a(f"buffer_store_dword v{vD+9}, v{vA3}, {ws}, s{sCUR} offen offset:32{loc}")
        stamp(3)
        def sld(k):
            b = vP + 16 * k
            return "\n".join(f"buffer_load_dwordx4 {vr(b+4*i)}, v{vA4+i}, {ws}, s{sCUR} offen sc1" for i in range(4))
        def schk(k, o, done, neg=False):
            b = vP + 16 * k
            return f"""s_waitcnt vmcnt({o+3})
            {pk(vS, vSO, b)}
            {pk(vS+2, vSO+2, b+2)}
            s_waitcnt vmcnt({o+2})
            {pk(vS, vS, b+4)}
            {pk(vS+2, vS+2, b+6)}
            s_waitcnt vmcnt({o+1})
            {pk(vS, vS, b+8)}
            {pk(vS+2, vS+2, b+10)}
            s_waitcnt vmcnt({o})
            {pk(vS+4, b+12, b+14)}
            v_add_f32 v{vS+4}, v{vS+4}, v{vS+5}
            v_cmp_u_f32 vcc, v{vS}, v{vS+4}
            s_cbranch_{'vccnz' if neg else 'vccz'} {done}"""
        if "acks" not in exp and "sb2" not in exp: a(sld(0))
        a(f"ds_write_b128 v{vLIN}, {vr(vF)} offset:{L_V}")
        a(f"s_mov_b64 vcc, s[{sMB}:{sMB+1}]")
        for i in range(4): a(f"v_cndmask_b32_dpp v{vSO+i}, v{vD+i}, v{vD+4+i}, vcc quad_perm:[2,3,2,3] row_mask:0xf bank_mask:0xf")
        a("s_waitcnt lgkmcnt(0)\ns_barrier")
        stamp(4)
        a(f"s_cmp_eq_u32 s{sSTEP}, {nsteps-1}\ns_cbranch_scc1 {p}_fin")
        if "sb2" in exp: a(sld(0))
        vreduce(vP + 32)
        if ns_s == 2: a(sld(1))
        zero(vQ0, vV1 + 4)
        stamp(5)
        if "acks" in exp: a("s_waitcnt vmcnt(0)"); stamp(6); a(sld(0))
        else: stamp(6)
        o = 4 * (ns_s - 1)
        a(schk(0, o, f"{p}_ps", True))
        c = f"{p}_ps:\n"
        if ns_s == 2:
            for k in range(2): c += f"{budget(f'{p}_psd')}\n{cnt(5)}\n{sld(k)}\n{schk(k ^ 1, o, f'{p}_psd')}\n"
        else:
            c += f"{budget(f'{p}_psd')}\n{cnt(5)}\n{sld(0)}\n{schk(0, 0, f'{p}_psd')}\n"
        cold.append(c + f"s_branch {p}_ps")
        a.lab(f"{p}_psd")
        stamp(7)
        m, t = vT, vT + 1
        D = "quad_perm:[2,3,0,1] row_mask:0xf bank_mask:0xf"
        a(f"""v_max3_f32 v{m}, v{vS}, v{vS+1}, v{vS+4}
        v_max3_f32 v{m}, v{m}, v{vS+2}, v{vS+3}
        v_max_f32_dpp v{m}, v{m}, v{m} {D}
        v_mov_b32 v{t}, v{m}
        v_permlane16_swap_b32 v{m}, v{t}
        v_max_f32 v{m}, v{m}, v{t}
        v_mov_b32 v{t}, v{m}
        v_permlane32_swap_b32 v{m}, v{t}
        v_max_f32 v{m}, v{m}, v{t}
        v_mul_f32 v{m}, s{sCSC}, v{m}""")
        for i in range(5): a(f"v_fma_f32 v{vS+i}, v{vS+i}, s{sCSC}, -v{m}")
        for i in range(5): a(f"v_exp_f32 v{vS+i}, v{vS+i}")
        a(f"""v_cvt_pk_bf16_f32 v{vPB}, v{vS}, v{vS+1}
        v_cvt_pk_bf16_f32 v{vPB+1}, v{vS+2}, v{vS+3}
        v_mov_b32_dpp v{t}, v{vS+4} {D}
        v_mov_b32_dpp v{vPB+2}, v{vPB} {D}
        v_mov_b32_dpp v{vPB+3}, v{vPB+1} {D}
        v_cvt_pk_bf16_f32 v{vBM}, v{vS+4}, v{t}""")
        mf(vD + 8, vONE, vPB, 0); mf(vD + 8, vONE, vBM, 1)
        mf(vD, vVT, vPB, 0); mf(vD, vR0, vBM, 1); mf(vD + 4, vVT + 4, vPB, 0)
        a(f"v_rcp_f32 v{m}, v{vD+8}")
        mf(vD + 4, vR1, vBM, 1)
        for i in range(0, 8, 2):
            a(f"v_pk_mul_f32 {vr(vD+i,2)}, {vr(vD+i,2)}, {vr(m,2)} op_sel_hi:[1,0]")
            a(f"v_cvt_pk_bf16_f32 v{vX+i//2}, v{vD+i}, v{vD+i+1}")
        a(f"buffer_store_dwordx4 {vr(vX)}, v{vA8}, {ws}, s{sCUR} offen{loc}")
        stamp(8)
        if k0: emit(xrd(j) for j in range(4))
        if "acko" in exp: a("s_waitcnt vmcnt(0)")
    else:
        for x in V[4:]: a(x)
        for x in vfold: a(x)
        a(f"ds_write_b128 v{vLIN}, {vr(vF)} offset:{L_V + 1024*w}")
        if xat(0): own(0); emit(sum(xat(0), [])); own()
        stamp(3)
        a("s_waitcnt lgkmcnt(0)\ns_barrier")
        stamp(4)
        if w == 1: xreduce(vP=vRD)
        elif w == 2:
            vreduce(124)
            a(f"""v_permlane16_swap_b32 v{vR0}, v{vR1}
            v_mov_b32 v{vX}, v{vR0}
            v_mov_b32 v{vX+1}, v{vR1}
            v_mov_b32 v{vX+2}, v{vR0}
            v_mov_b32 v{vX+3}, v{vR1}
            v_permlane32_swap_b32 v{vX}, v{vX+2}
            v_permlane32_swap_b32 v{vX+1}, v{vX+3}""")
        a(f"s_cmp_eq_u32 s{sSTEP}, {nsteps-1}\ns_cbranch_scc1 {p}_fin")
        zero(vQ0, vV1 + 4)
        stamp(5)
        kv_b()
        for i in range(6, 9): stamp(i)
    a("s_barrier")
    stamp(9)
    for s in range(4): a(ld(vOR, s))
    if w == 0 and k0:
        own(0)
        a("s_waitcnt lgkmcnt(0)")
        emit(xrd(j) for j in range(4, 8))
        for j in range(n0): emit(kvmm(j, W0(j)) + [xrd(j + 8)])
        own()
    stages("o", vOR, lambda s: [smf(vO0, 192, 0, s), smf(vO1, 192, 1, s)], 3)
    stamp(10)
    a(pk(vF, vO0, vO0 + 2)); a(pk(vF + 2, vO1, vO1 + 2))
    a(f"ds_write2_b32 v{vOPW}, v{vF}, v{vF+1} offset0:0 offset1:72\nds_write2_b32 v{vOPW}, v{vF+2}, v{vF+3} offset0:160 offset1:232")
    if "w2c" not in exp and "wb1" not in exp: slow()
    a("s_waitcnt lgkmcnt(0)\ns_barrier")
    stamp(11)
    book = f"""s_add_u32 s{sSTEP}, s{sSTEP}, 1
    s_mov_b32 s{sT+7}, s{sPCUR}
    s_and_b32 s{sT+6}, s{sSTEP}, 3
    s_lshl_b32 s{sPCUR}, s{sT+6}, {PSLOT.bit_length() - 1}
    s_xor_b32 s{sPRST}, s{sPCUR}, {2*PSLOT}
    s_add_u32 s{sPCUR}, s{sPCUR}, {PART_OFF}
    s_add_u32 s{sPRST}, s{sPRST}, {PART_OFF}
    s_xor_b32 s{sT+6}, s{sT+6}, 2
    s_lshl_b32 s{sRST}, s{sT+6}, 19
    s_add_u32 s{sRST}, s{sRST}, {RING_OFF}"""
    if w == 0:
        for pw in range(4): a(f"ds_read_b128 {vr(vP+4*pw)}, v{vOPR} offset:{L_O + OPW*pw}")
        if "prs" in exp: a(f"buffer_store_dwordx2 {vr(vSENT,2)}, v{vMW}, {ws}, s{sRST} offen{loc}")
        a(f"""s_waitcnt lgkmcnt(2)
        {pk(vP, vP, vP+4)}
        {pk(vP+2, vP+2, vP+6)}
        s_waitcnt lgkmcnt(0)
        {pk(vP+8, vP+8, vP+12)}
        {pk(vP+10, vP+10, vP+14)}
        {pk(vF, vP, vP+8)}
        {pk(vF+2, vP+2, vP+10)}
        buffer_store_dwordx4 {vr(vF)}, v{vPW}, {ws}, s{sPCUR} offen sc1""")
        stamp(12)
        def pld(k, so): return "\n".join(f"buffer_load_dwordx4 {vr(vP+12*k+4*i)}, v{vPR+i}, {ws}, s{so} offen sc1" for i in range(3))
        def pchk(k, o, lab, neg):
            b = vP + 12 * k
            return f"""s_waitcnt vmcnt({o+1})
            {pk(b, b, b+4)}
            {pk(b+2, b+2, b+6)}
            s_waitcnt vmcnt({o})
            {pk(b+8, b+8, vF)}
            {pk(b+10, b+10, vF+2)}
            {pk(b, b, b+8)}
            {pk(b+2, b+2, b+10)}
            v_cmp_u_f32 vcc, v{b}, v{b+3}
            v_cvt_pk_bf16_f32 v{vX}, v{b}, v{b+1}
            v_cvt_pk_bf16_f32 v{vX+1}, v{b+2}, v{b+3}
            s_cbranch_{'vccnz' if neg else 'vccz'} {lab}"""
        when = [c for c in "012" if "p" + c in exp] or ["2"]
        np_ = len(when); k = 0
        if "0" in when: a(pld(k, sPCUR)); k += 1
        tok_read(a)
        zero(vO0, vO1 + 4)
        a(book)
        if k0:
            own(1)
            for j in range(n0, n1):
                emit(kvmm(j, W0(j)))
                if j < 8: a(xrd(j + 8))
            own()
        if "1" in when: a(f"s_waitcnt vmcnt({1 + 3 * k})"); a(pld(k, sT + 7)); k += 1
        if "2" in when: a(f"s_waitcnt vmcnt({3 * k})"); stamp(13); a(pld(k, sT + 7)); k += 1
        else: stamp(13)
        if k0:
            own(1)
            a("s_waitcnt lgkmcnt(0)")
            emit(MM(range(n1, 16), W0))
            if "wsd" in exp: emit(shares())
            own()
            a(f"v_xor_b32 v{vXL}, 16384, v{vXL}")
        o = 3 * (np_ - 1)
        a(pchk(0, o, f"{p}_ppr", True))
        c = f"{p}_ppr:\n"
        for k in range(np_): c += f"{budget(f'{p}_ppd')}\n{cnt(6)}\n{pld(k, sT + 7)}\n{pchk((k + 1) % np_, o, f'{p}_ppd', False)}\n"
        cold.append(c + f"s_branch {p}_ppr")
        a(f"""{p}_ppd:
        buffer_store_dwordx2 {vr(vX,2)}, v{vMW}, {ws}, s{sCUR} offen{loc}""")
        stamp(14)
        if "ackm" in exp: a("s_waitcnt vmcnt(0)")
        a("s_waitcnt lgkmcnt(0)")
    else:
        if "w2c" in exp: slow()
        if w == 2 and "wb1" not in exp: a(f"v_mov_b32 v{vT}, s{sSTEP}\nbuffer_store_dword v{vT}, v{vA4}, {ws}, 0 offen sc1")
        zero(vO0, vO1 + 4)
        stamp(12)
        kv_d()
        a(book)
        a("s_waitcnt lgkmcnt(0)")
        for i in (13, 14): stamp(i)
    a("s_barrier")
    stamp(15)
    for s in range(4): a(ld(vMEMR, s))
    if trace is not None:
        a("s_memrealtime s[36:37]\ns_waitcnt lgkmcnt(0)")
        for i in range(16): a(f"v_writelane_b32 v246, s{70+2*i}, {i}")
        a("v_writelane_b32 v246, s36, 16")
        for i in range(1, 7): a(f"v_writelane_b32 v246, s{sTR+i}, {16+i}")
        a(f"ds_write_b32 v247, v246\nv_add_u32 v247, 128, v247")
    a(f"s_branch {p}_top")
    for c in cold: a(c)
    a.lab(f"{p}_fin")
    kvm()
    a("s_waitcnt vmcnt(0)\ns_barrier")
    if w == 3:
        a(f"v_mov_b32 v{vT}, 1\nbuffer_atomic_add v{vT}, v{vA3}, {ws}, 0 offen sc1")
    if trace is not None:
        a(f"s_lshl_b32 s{sT+6}, s{sX}, 5\ns_add_u32 s{sT+6}, s{sT+6}, s{sJ}\ns_lshl_b32 s{sT+6}, s{sT+6}, 15\ns_add_u32 s{sT+6}, s{sT+6}, {TRACE_OFF + 8192*w}")
        for i in range(8):
            a(f"v_add_u32 v247, {98304 + 8192*w + 1024*i}, v{vLIN}\nds_read_b128 v[248:251], v247\ns_waitcnt lgkmcnt(0)\nbuffer_store_dwordx4 v[248:251], v{vLIN}, {ws}, s{sT+6} offen\ns_add_u32 s{sT+6}, s{sT+6}, 1024\ns_waitcnt vmcnt(0)")
    a(f"s_branch {name}_recdone")

def rec_all(a, name, stamp=lambda i: None, nkv=64, pf=0, **kw):
    rec_prologue(a, name, stamp, pf)
    for w in range(3):
        a(f"s_cmp_eq_u32 s{sW}, {w}\ns_cbranch_scc1 {name}_rp{w}")
    for w in (3, 0, 1, 2):
        if w != 3: a.lab(f"{name}_rp{w}")
        role_prologue(a, w, name, nkv)
        stamp(3)
        a(f"s_cmp_eq_u32 s{sMODE}, 0\ns_cbranch_scc1 {name}_safe{w}")
        rec_loop(a, name, w, True, nkv=nkv, **kw)
        a.lab(f"{name}_safe{w}")
        rec_loop(a, name, w, False, nkv=nkv, **kw)
```

```python
from asmlib import *
from layout import *
from prep import srd
from rec import WS, sX, sJ, sW, sMODE, sG, sBUD, sT
sXCC, sVOTE, sPASS, sSELV, sCLR = 56, 57, 58, 59, 38
DB, XS = 72, 8
WKS, WVS, WQS, WOS, M0S = 40, 44, 48, 52, 96
LN_L = 131072
D_DONE, D_BAD, D_GT, D_GA, D_ROWS = 32, 40, 41, 42, 43
M_ROWS = 15 << D_ROWS - D_DONE
ws = f"s[{WS}:{WS+3}]"; db = f"s[{DB}:{DB+3}]"
vRAW, vUN, vOUT = 16, 64, 7

def lane0(a, v, s):
    a(f"v_mov_b32 v{v}, {OOB}\nv_writelane_b32 v{v}, s{s}, 0")
def one(a, v, w, off):
    a(f"s_cmp_eq_u32 s{sW}, {w}\ns_cselect_b32 s{off}, s{off}, {OOB}")
    lane0(a, v, off)

MBOX = CTRL_OFF + CTRL_SIZE
def mbox(a, d, own=True):
    a(f"s_lshl_b32 s{d}, s{sXCC}, 5")
    if own: a(f"s_add_u32 s{d}, s{d}, s{sJ}")
    a(f"s_lshl_b32 s{d}, s{d}, 7\ns_add_u32 s{d}, s{d}, {MBOX}")
def post(a, va, vd, d):
    mbox(a, d, False)
    a(f"""v_lshl_add_u32 v{va}, v0, 7, s{d}
    v_mov_b32 v{va+2}, {OOB}
    v_cmp_gt_u32 vcc, 32, v0
    v_cndmask_b32 v{va}, v{va+2}, v{va}, vcc
    buffer_store_dword v{vd}, v{va}, {ws}, 0 offen""")
def rows_done(a, lab):
    a(f"""s_lshl_b32 s{sT+6}, s{sXCC}, 4
    s_add_u32 s{sT+6}, s{sT+6}, 8
    v_mov_b32 v97, 1""")
    lane0(a, 96, sT + 6)
    a(f"""buffer_atomic_add v97, v96, {db}, 0 offen sc0
    s_waitcnt vmcnt(0)
    v_readfirstlane_b32 s{sT+4}, v97
    v_mov_b32 v97, 1
    s_cmp_lg_u32 s{sT+4}, 31
    s_cbranch_scc1 {lab}""")
    post(a, 96, 97, sT + 6)

TR = False
def st(a, r):
    if TR: a(f"s_memrealtime s[{r}:{r+1}]\ns_waitcnt lgkmcnt(0)")

def entry(a, name, rec_pre, n_pre, force_safe=False, rec_early=None):
    a(f"s_cmp_ge_u32 s2, 256\ns_cbranch_scc1 {name}_end")
    srd(a, DB, A_DBG, 256); srd(a, WS, A_WS, WS_BYTES); srd(a, XS, A_X, 2048 * 1024 * 2)
    a(f"""
    v_lshrrev_b32 v2, 6, v0            ; wave
    v_and_b32 v0, 63, v0
    s_getreg_b32 s{sXCC}, hwreg(HW_REG_XCC_ID, 0, 4)
    v_readfirstlane_b32 s{sW}, v2
    v_mov_b32 v97, 1
    s_lshl_b32 s{sT}, s{sXCC}, 4
    s_cmp_lt_u32 s{sXCC}, 8
    s_cselect_b32 s{sT}, s{sT}, {OOB}
    s_waitcnt lgkmcnt(0)
    s_and_b32 s{sT+7}, s{DB}, 127
    s_cselect_b32 s{sT}, {OOB}, s{sT}""")
    one(a, 96, 0, sT)
    a(f"buffer_atomic_add v97, v96, {db}, 0 offen sc0")
    for s, k in ((WKS, A_WK), (WVS, A_WV), (WQS, A_WQ), (WOS, A_WO)): srd(a, s, k, 8 * MB)
    srd(a, M0S, A_MEM0, 16384)
    a(f"""v_mov_b32 v8, -1
    v_mov_b32 v9, -1
    v_mov_b32 v10, -1
    v_mov_b32 v11, -1
    v_mov_b32 v12, -1
    v_mov_b32 v255, -1
    s_mov_b32 s{sBUD}, 0x100000
    s_lshr_b32 s{sT}, s2, 3
    s_lshl_b32 s{sT}, s{sT}, 1
    s_xor_b32 s{sT+1}, s2, s{sW}
    s_and_b32 s{sT+1}, s{sT+1}, 1
    s_add_u32 s{sT}, s{sT}, s{sT+1}
    s_lshl_b32 s{sT}, s{sT}, 3
    s_and_b32 s{sT+1}, s2, 7
    s_add_u32 s{sT}, s{sT}, s{sT+1}
    s_add_u32 s{sT}, s{sT}, {PART_OFF >> 10}
    s_add_u32 s{sT+1}, s2, {RING_OFF >> 10}
    s_cmp_eq_u32 s{sW}, 0
    s_cselect_b32 s{sT}, s{sT+1}, s{sT}
    s_add_u32 s{sT+1}, s2, {RING_OFF + SLOT >> 10}
    s_cmp_eq_u32 s{sW}, 3
    s_cselect_b32 s{sT}, s{sT+1}, s{sT}
    s_lshl_b32 s{sCLR}, s{sT}, 10
    v_lshlrev_b32 v13, 4, v0
    buffer_store_dwordx4 v[8:11], v13, {ws}, s{sCLR} offen sc1
    s_cmp_eq_u32 s{sW}, 3
    s_cbranch_scc0 {name}_c1
    v_bfe_u32 v14, v0, 3, 1
    v_lshlrev_b32 v14, 19, v14
    v_and_b32 v15, 7, v0
    v_lshl_add_u32 v14, v15, 4, v14
    s_lshl_b32 s{sT}, s2, 7
    s_add_u32 s{sT}, s{sT}, {RING_OFF + R_SM}
    v_add_u32 v14, s{sT}, v14
    s_lshl_b32 s{sT}, s2, 8
    s_add_u32 s{sT}, s{sT}, {CTRL_OFF - 256}
    v_add_u32 v15, s{sT}, v13
    v_cmp_gt_u32 vcc, 16, v0
    v_cndmask_b32 v14, v15, v14, vcc
    v_cndmask_b32 v16, 0, v8, vcc
    v_mov_b32 v15, {OOB}
    v_mov_b32 v17, v16
    v_mov_b32 v18, v16
    v_mov_b32 v19, v16
    v_cmp_gt_u32 vcc, 32, v0
    v_cndmask_b32 v14, v15, v14, vcc
    buffer_store_dwordx4 v[16:19], v14, {ws}, 0 offen sc1
    {name}_c1:
    v_mov_b32 v98, {LN_L + 512}
    v_lshl_add_u32 v99, v2, 2, v98
    s_waitcnt vmcnt(0)
    v_readfirstlane_b32 s{sT}, v97
    v_mov_b32 v97, s{sT}
    ds_write_b32 v99, v97
    s_waitcnt lgkmcnt(0)
    s_barrier
    ds_read_b32 v100, v98
    s_and_b32 s{sX}, s{sXCC}, 3
    s_lshl_b32 s{sG}, s{sX}, 5
    s_mov_b32 s{sPASS}, 0
    s_mov_b32 s{sVOTE}, 1
    s_waitcnt lgkmcnt(0)
    v_readfirstlane_b32 s{sJ}, v100
    s_add_u32 s{sG}, s{sG}, s{sJ}
    s_cmp_lt_u32 s{sXCC}, 4
    s_cselect_b32 s{sG}, -1, s{sG}
    s_lshr_b32 s{sT}, s{sXCC}, 3
    s_or_b32 s{sT}, s{sT}, s{sT+7}
    s_cselect_b32 s{sJ}, 32, s{sJ}
    s_cmp_ge_u32 s{sXCC}, {(8, 0, 4)[force_safe]}
    s_cselect_b32 s{sT}, 31, 32
    s_cmp_lt_u32 s{sJ}, s{sT}
    s_cbranch_scc1 {name}_role
    s_mov_b32 s{sT}, {4 * D_BAD}
    v_mov_b32 v97, 1""")
    assert PART_OFF >> 21 & 1
    one(a, 96, 0, sT)
    a(f"""buffer_store_dword v97, v96, {db}, 0 offen sc1
    {name}_fb:
    s_load_dwordx2 s[{WQS}:{WQS+1}], s[0:1], {A_WQ}
    s_waitcnt vmcnt(0) lgkmcnt(0)
    s_barrier
    s_mov_b32 s{sT}, {4 * D_GT}
    v_mov_b32 v97, 1""")
    one(a, 96, 0, sT)
    a(f"""buffer_atomic_add v97, v96, {db}, 0 offen sc0 sc1
    v_mov_b32 v98, {LN_L + 512}
    s_waitcnt vmcnt(0)
    s_cmp_lg_u32 s{sW}, 0
    s_cbranch_scc1 {name}_fb1
    v_readfirstlane_b32 s{sT}, v97
    v_mov_b32 v97, s{sT}
    ds_write_b32 v98, v97
    s_waitcnt lgkmcnt(0)
    {name}_fb1:
    s_barrier
    ds_read_b32 v97, v98
    s_mov_b32 s{sPASS}, 1
    s_waitcnt lgkmcnt(0)
    v_readfirstlane_b32 s{sT}, v97
    s_bfe_u32 s{sX}, s{sT}, 0x20005
    s_and_b32 s{sJ}, s{sT}, 31
    s_and_b32 s{sT}, s{sT}, 255
    s_sub_u32 s{sG}, s{sT}, 128
    s_cselect_b32 s{sG}, -1, s{sG}
    {name}_role:""")
    st(a, 84)
    mbox(a, sT)
    a(f"s_cmp_eq_u32 s{sPASS}, 0\ns_cselect_b32 s{sT}, s{sT}, {OOB}\nv_mov_b32 v99, 0")
    one(a, 98, 3, sT)
    a(f"buffer_store_dword v99, v98, {ws}, 0 offen")
    a(f"""v_and_b32 v3, 15, v0               ; r
    v_lshrrev_b32 v4, 4, v0            ; p
    s_not_b32 s{sT+1}, s{sJ}
    s_lshl_b32 s{sT+1}, s{sT+1}, 31
    s_lshr_b32 s{sT}, s{sJ}, 1
    s_cmp_eq_u32 s{sG}, -1
    s_cselect_b32 s{sT}, s{sT}, s{sG}
    s_cselect_b32 s{sT+1}, s{sT+1}, 0
    s_lshl_b32 s{sT}, s{sT}, 4
    v_add_u32 v5, s{sT}, v3            ; row
    s_lshl_b32 s{sT}, s{sW}, 9
    s_or_b32 s{sT}, s{sT}, s{sT+1}
    v_lshl_add_u32 v6, v5, 11, s{sT}
    v_lshl_add_u32 v6, v4, 4, v6
    s_cmp_eq_u32 s{sG}, -1
    s_cbranch_scc1 {name}_x0
    s_cmp_lg_u32 s{sPASS}, 0
    s_cbranch_scc1 {name}_x
    s_memtime s[34:35]
    s_waitcnt lgkmcnt(0)
    buffer_store_dwordx4 v[8:11], v13, {ws}, s{sCLR} offen sc1
    s_branch {name}_x
    {name}_x0:
    s_lshl_b32 s{sT}, s{sXCC}, 4
    s_add_u32 s{sT}, s{sT}, 4
    s_cmp_eq_u32 s{sPASS}, 0
    s_cselect_b32 s{sT}, s{sT}, {OOB}
    v_mov_b32 v97, s{sVOTE}""")
    one(a, 96, 3, sT)
    a(f"buffer_atomic_add v97, v96, {db}, 0 offen sc0\n{name}_x:")
    for i in range(8): a(f"buffer_load_dwordx4 v[{vRAW+4*i}:{vRAW+3+4*i}], v6, s[{XS}:{XS+3}], 0 offen offset:{64*i}")
    a(f"""v_lshrrev_b32 v{vOUT}, 5, v5
    v_lshlrev_b32 v{vOUT}, 16, v{vOUT}
    v_and_b32 v15, 31, v5
    v_lshl_add_u32 v{vOUT}, v15, 4, v{vOUT}
    s_lshl_b32 s{sT}, s{sW}, 14
    s_or_b32 s{sT}, s{sT}, s{sT+1}
    v_add_u32 v{vOUT}, s{sT}, v{vOUT}
    s_cmp_lg_u32 s{sG}, -1
    s_cbranch_scc1 {name}_xw""")
    rec_pre()
    a(f"""s_and_b32 s{sT}, s{sJ}, 1
    s_or_b32 s{sT}, s{sT}, s{sPASS}
    s_cbranch_scc1 {name}_rows""")
    if not rec_early: a(f"s_branch {name}_rows")
    st(a, 92)
    a(f"s_cmp_lg_u32 s{sW}, 3\ns_cbranch_scc1 {name}_dma\ns_waitcnt vmcnt(8)")
    last(a, True)
    rows_done(a, name + "_dma")
    a(f"s_branch {name}_dma\n{name}_rows:\ns_waitcnt vmcnt(8)")
    last(a, True)
    a(f"s_bitcmp0_b32 s{sJ}, 0\ns_cbranch_scc1 {name}_noln")
    a(f"s_waitcnt vmcnt({n_pre + 1})")
    a(f"""s_branch {name}_xi
    {name}_xw:
    v_mov_b32 v98, {LN_L + 528}
    s_lshl_b32 s{sT}, s{sW}, 2
    v_add_u32 v99, s{sT}, v98
    s_waitcnt vmcnt(8)
    s_memtime s[36:37]
    s_waitcnt lgkmcnt(0)
    s_sub_u32 s36, s36, s34
    v_mov_b32 v97, s36
    ds_write_b32 v99, v97
    s_waitcnt vmcnt(0)
    {name}_xi:""")
    st(a, 88)
    U = vUN
    for d in range(32): a(f"v_lshlrev_b32 v{U+2*d}, 16, v{vRAW+d}\nv_and_b32 v{U+1+2*d}, 0xffff0000, v{vRAW+d}")
    a(f"v_pk_add_f32 v[48:49], v[{U}:{U+1}], v[{U+2}:{U+3}]\nv_pk_add_f32 v[50:51], v[{U+4}:{U+5}], v[{U+6}:{U+7}]")
    for d in range(8, 64, 4): a(f"v_pk_add_f32 v[48:49], v[48:49], v[{U+d}:{U+d+1}]\nv_pk_add_f32 v[50:51], v[50:51], v[{U+d+2}:{U+d+3}]")
    a("v_pk_add_f32 v[48:49], v[48:49], v[50:51]\nv_add_f32 v48, v48, v49")
    def xlane_sum(r, t):
        a(f"v_mov_b32 v{t}, v{r}\nv_permlane16_swap_b32 v{r}, v{t}\nv_add_f32 v{r}, v{r}, v{t}")
        a(f"v_mov_b32 v{t}, v{r}\nv_permlane32_swap_b32 v{r}, v{t}\nv_add_f32 v{r}, v{r}, v{t}")
    a(f"v_lshlrev_b32 v62, 4, v3\nv_add_u32 v62, {LN_L}, v62\ns_lshl_b32 s{sT}, s{sW}, 2\nv_add_u32 v63, s{sT}, v62")
    def xwave_sum(r, base):
        a(f"ds_write_b32 v63, v{r} offset:{base}\ns_waitcnt lgkmcnt(0)\ns_barrier")
        a(f"ds_read_b128 v[52:55], v62 offset:{base}\ns_waitcnt lgkmcnt(0)")
        a(f"v_add_f32 v52, v52, v53\nv_add_f32 v54, v54, v55\nv_add_f32 v{r}, v52, v54")
    xlane_sum(48, 49); xwave_sum(48, 0)
    a(f"""s_cmp_eq_u32 s{sG}, -1
    s_cbranch_scc1 {name}_nv
    v_mov_b32 v128, {LN_L + 532}
    ds_read2_b32 v[128:129], v128 offset0:0 offset1:1
    s_waitcnt lgkmcnt(0)
    v_readfirstlane_b32 s{sT+2}, v128
    v_readfirstlane_b32 s{sT+3}, v129
    s_sub_u32 s{sT+1}, s{sT+2}, s{sT+3}
    s_sub_u32 s{sT+4}, 0, s{sT+1}
    s_bitcmp1_b32 s2, 0
    s_cselect_b32 s{sT+1}, s{sT+1}, s{sT+4}
    s_mov_b32 s{sVOTE}, 0x101
    s_cmp_gt_i32 s{sT+1}, 128
    s_cselect_b32 s{sVOTE}, 0x201, s{sVOTE}
    s_cmp_lt_i32 s{sT+1}, -128
    s_cselect_b32 s{sVOTE}, 1, s{sVOTE}
    s_lshl_b32 s{sT+6}, s{sXCC}, 4
    s_add_u32 s{sT+6}, s{sT+6}, 4
    s_cmp_eq_u32 s{sPASS}, 0
    s_cselect_b32 s{sT+6}, s{sT+6}, {OOB}
    v_mov_b32 v131, s{sVOTE}""")
    one(a, 130, 3, sT + 6)
    a(f"buffer_atomic_add v131, v130, {db}, 0 offen sc0\n{name}_nv:")
    a("v_mul_f32 v48, 0x3a800000, v48")
    sub = lambda d, x: f"v_pk_add_f32 v[{d}:{d+1}], v[{x}:{x+1}], v[48:49] op_sel_hi:[1,0] neg_lo:[0,1] neg_hi:[0,1]"
    a(f"{sub(56, U)}\n{sub(50, U+2)}\nv_pk_mul_f32 v[58:59], v[56:57], v[56:57]\nv_pk_mul_f32 v[60:61], v[50:51], v[50:51]")
    for d in range(4, 64, 4):
        a(f"{sub(56, U+d)}\n{sub(50, U+2+d)}\nv_pk_fma_f32 v[58:59], v[56:57], v[56:57], v[58:59]\nv_pk_fma_f32 v[60:61], v[50:51], v[50:51], v[60:61]")
    a("v_pk_add_f32 v[58:59], v[58:59], v[60:61]\nv_add_f32 v58, v58, v59")
    xlane_sum(58, 49); xwave_sum(58, 256)
    a("""
    v_mul_f32 v58, 0x3a800000, v58     ; var
    v_cvt_pk_bf16_f32 v58, v58, v48
    v_and_b32 v48, 0xffff0000, v58
    v_lshlrev_b32 v58, 16, v58
    v_add_f32 v58, 0x3727c5ac, v58     ; + 1e-5
    v_cvt_pk_bf16_f32 v58, v58, v58
    v_lshlrev_b32 v58, 16, v58
    v_sqrt_f32 v58, v58
    v_cvt_pk_bf16_f32 v58, v58, v58
    v_lshlrev_b32 v58, 16, v58
    v_rcp_f32 v58, v58
    """)
    for d in range(32):
        x, y = U + 2 * d, U + 1 + 2 * d
        a(f"""{sub(x, x)}
        v_cvt_pk_bf16_f32 v{y}, v{x}, v{y}
        v_lshlrev_b32 v{x}, 16, v{y}
        v_and_b32 v{y}, 0xffff0000, v{y}
        v_pk_mul_f32 v[{x}:{y}], v[{x}:{y}], v[58:59] op_sel_hi:[1,0]""")
    a(f"s_cmp_lg_u32 s{sG}, -1\ns_cbranch_scc1 {name}_gemm")

def last(a, rec, va=96, vd=97):
    a(f"""v_readfirstlane_b32 s{sT+4}, v{vd}
    s_lshl_b32 s{sT+5}, s{sXCC}, 2
    s_add_u32 s{sT+5}, s{sT+5}, {4 * D_DONE}
    s_add_u32 s{sT+4}, s{sT+4}, s{sVOTE}
    s_and_b32 s{sT+6}, s{sT+4}, 255
    s_lshr_b32 s{sT+4}, s{sT+4}, 8
    s_add_u32 s{sT+4}, s{sT+4}, 256
    s_lshl_b32 s{sT+7}, s{sPASS}, 8
    s_or_b32 s{sT+6}, s{sT+6}, s{sT+7}
    s_cmp_eq_u32 s{sT+6}, 32
    s_cselect_b32 s{sT+5}, s{sT+5}, {OOB}
    v_mov_b32 v{vd}, s{sT+4}""")
    one(a, va, 3, sT + 5)
    a(f"buffer_store_dword v{vd}, v{va}, {db}, 0 offen sc1")

def ln_out(a, name, rec, nkv=8):
    order = (0, 2, 1, 3) if rec else (0, 1, 2, 3)
    if rec:
        a(f"""v_lshrrev_b32 v15, 1, v4
        v_and_b32 v4, 1, v4
        v_lshl_add_u32 v4, v4, 1, v15
        s_lshl_b32 s{sT}, s{sPASS}, 2
        s_add_u32 s{sT}, s{sT}, s{sX}
        s_lshl_b32 s{sT}, s{sT}, 19
        s_add_u32 s{sT}, s{sT}, {XR_OFF}""")
    else:
        a(f"""s_mov_b32 s{sT}, {XN_OFF}
        v_lshrrev_b32 v15, 1, v4
        v_and_b32 v14, 1, v4
        v_lshl_add_u32 v14, v14, 1, v15
        v_lshl_add_u32 v14, v14, 9, v{vOUT}""")
    a(f"v_lshl_add_u32 v{vOUT}, v4, 9, v{vOUT}")
    def put(i, m): return f"buffer_store_dwordx4 v[{vRAW+4*i}:{vRAW+4*i+3}], v{vOUT}, {ws}, s{sT} offen offset:{2048*(i&1)}{m}" + (f"\ns_add_u32 s{sT}, s{sT}, 4096" if i & 1 else "")
    for i in range(8):
        b = vRAW + 4 * i
        for q in range(4): a(f"v_cvt_pk_bf16_f32 v{b+order[q]}, v{vUN+8*i+2*q}, v{vUN+8*i+2*q+1}")
        if rec: a(f"v_permlane32_swap_b32 v{b}, v{b+1}\nv_permlane32_swap_b32 v{b+2}, v{b+3}")
        else: a(f"v_permlane16_swap_b32 v{b}, v{b+2}\nv_permlane16_swap_b32 v{b+1}, v{b+3}\n{put(i, ' sc1')}")
    if rec:
        a(f"s_cmp_lg_u32 s{sPASS}, 0\ns_cbranch_scc1 {name}_xs")
        for i in range(8): a(put(i, ""))
        a(f"s_branch {name}_xd\n{name}_xs:")
        for i in range(8): a(put(i, " sc1"))
        a.lab(name + "_xd")
    elif nkv > 8:
        a(f"s_sub_u32 s{sT}, s{sG}, 16\ns_cmp_ge_u32 s{sT}, {2 * nkv - 16}\ns_cbranch_scc1 {name}_x2\ns_mov_b32 s{sT}, {XG_OFF}")
        for i in range(8):
            b = 128 + 4 * i
            for q in range(4): a(f"v_cvt_pk_bf16_f32 v{b+(0, 2, 1, 3)[q]}, v{vUN+8*i+2*q}, v{vUN+8*i+2*q+1}")
            a(f"v_permlane32_swap_b32 v{b}, v{b+1}\nv_permlane32_swap_b32 v{b+2}, v{b+3}")
            a(f"buffer_store_dwordx4 v[{b}:{b+3}], v14, {ws}, s{sT} offen offset:{2048*(i&1)} sc1" + (f"\ns_add_u32 s{sT}, s{sT}, 4096" if i & 1 else ""))
        a.lab(name + "_x2")
    st(a, 90)

def arrive(a, lab, left, rec):
    a(f"s_waitcnt vmcnt({left})\ns_barrier")
    st(a, 92)
    a(f"""s_cmp_lg_u32 s{sW}, 3
    s_cbranch_scc1 {lab}
    s_cmp_eq_u32 s{sPASS}, 0
    s_cbranch_scc1 {lab}_f
    s_mov_b32 s{sT+6}, {4 * D_GA}
    v_mov_b32 v97, 1""")
    lane0(a, 96, sT + 6)
    a(f"""buffer_atomic_add v97, v96, {db}, 0 offen sc1
    s_branch {lab}
    {lab}_f:""")
    if rec: rows_done(a, lab)
    else:
        a(f"""s_lshl_b32 s{sT+6}, s{sXCC}, 4
        s_add_u32 s{sT+6}, s{sT+6}, 8
        v_mov_b32 v97, 1""")
        lane0(a, 96, sT + 6)
        a(f"""buffer_atomic_add v97, v96, {db}, 0 offen sc0
        s_lshl_b32 s{sT+5}, s{sX}, 2
        s_add_u32 s{sT+5}, s{sT+5}, {4 * D_ROWS}
        s_waitcnt vmcnt(0)
        v_readfirstlane_b32 s{sT+4}, v97
        v_mov_b32 v97, 1
        s_cmp_eq_u32 s{sT+4}, 31
        s_cselect_b32 s{sT+5}, s{sT+5}, {OOB}""")
        lane0(a, 96, sT + 5)
        a(f"buffer_store_dword v97, v96, {db}, 0 offen sc1")
    a.lab(lab)

def meet(a, name, lab):
    a(f"""v_mov_b32 v98, {LN_L + 576}
    s_cmp_lg_u32 s{sW}, 0
    s_cbranch_scc1 {lab}_w
    s_cmp_eq_u32 s{sJ}, 0
    s_cbranch_scc1 {lab}_s
    s_cmp_lg_u32 s{sPASS}, 0
    s_cbranch_scc1 {lab}_s""")
    mbox(a, sT + 7)
    a(f"""{lab}_m:
    s_mov_b32 s{sT+6}, 12
    {lab}_q:
    s_load_dword s{sSELV}, s[{WS}:{WS+1}], s{sT+7} glc
    s_waitcnt lgkmcnt(0)
    s_cmp_lg_u32 s{sSELV}, 0
    s_cbranch_scc1 {lab}_d
    s_sub_u32 s{sT+6}, s{sT+6}, 1
    s_cbranch_scc0 {lab}_q
    v_mov_b32 v96, {4 * D_BAD}
    buffer_load_dword v97, v96, {db}, 0 offen sc1
    s_mov_b32 s{sSELV}, 3
    s_waitcnt vmcnt(0)
    v_readfirstlane_b32 s{sT+6}, v97
    s_cmp_lg_u32 s{sT+6}, 0
    s_cbranch_scc1 {lab}_d
    s_mov_b32 s{sSELV}, 1
    s_cmp_eq_u32 s{sBUD}, 0
    s_cbranch_scc1 {lab}_d
    s_sub_u32 s{sBUD}, s{sBUD}, 1
    s_branch {lab}_m
    {lab}_s:""")
    line_addr(a, 96)
    a(f"""{lab}_l:
    {line_load(96)}
    s_waitcnt vmcnt(0)
    v_cmp_ne_u32 vcc, 0, v97
    v_readlane_b32 s{sT+6}, v97, {D_GA - D_DONE}
    s_mov_b32 s{sSELV}, 1
    s_cmp_eq_u32 s{sPASS}, 0
    s_cbranch_scc1 {lab}_f
    s_cmp_ge_u32 s{sT+6}, 256
    s_cbranch_scc1 {lab}_d
    s_branch {lab}_a
    {lab}_f:
    s_mov_b32 s{sSELV}, 3
    s_bitcmp1_b32 vcc_lo, {D_BAD - D_DONE}
    s_cbranch_scc1 {lab}_p
    s_and_b32 s{sT+5}, vcc_lo, {255 | M_ROWS}
    s_cmp_eq_u32 s{sT+5}, {255 | M_ROWS}
    s_cbranch_scc1 {lab}_v
    {lab}_a:
    s_mov_b32 s{sSELV}, 1
    s_cmp_eq_u32 s{sBUD}, 0
    s_cbranch_scc1 {lab}_d
    s_sub_u32 s{sBUD}, s{sBUD}, 1
    s_branch {lab}_l
    {lab}_v:
    v_add_u32_dpp v97, v97, v97 row_shr:1 row_mask:0xf bank_mask:0xf bound_ctrl:0
    v_add_u32_dpp v97, v97, v97 row_shr:2 row_mask:0xf bank_mask:0xf bound_ctrl:0
    v_add_u32_dpp v97, v97, v97 row_shr:4 row_mask:0xf bank_mask:0xf bound_ctrl:0
    v_readlane_b32 s{sT+5}, v97, 7
    s_cmp_gt_u32 s{sT+5}, {2048 + 128}
    s_cselect_b32 s{sSELV}, 2, 1
    {lab}_p:
    v_mov_b32 v97, s{sSELV}""")
    post(a, 100, 97, sT + 7)
    a(f"""{lab}_d:
    v_mov_b32 v97, s{sSELV}
    ds_write_b32 v98, v97
    s_waitcnt lgkmcnt(0)
    {lab}_w:
    s_barrier
    ds_read_b32 v97, v98
    s_xor_b32 s{sMODE}, s{sPASS}, 1
    s_waitcnt lgkmcnt(0)
    v_readfirstlane_b32 s{sSELV}, v97
    s_cmp_eq_u32 s{sSELV}, 3
    s_cbranch_scc1 {name}_fb
    s_barrier""")

def first_rows(a, name, lab):
    a(f"""v_mov_b32 v98, {LN_L + 576}
    s_cmp_lg_u32 s{sW}, 3
    s_cbranch_scc1 {lab}_w""")
    mbox(a, sT + 7)
    a(f"""s_cmp_eq_u32 s{sPASS}, 0
    s_cbranch_scc0 {lab}_l
    {lab}_k:
    s_mov_b32 s{sT+6}, 8
    {lab}_q:
    s_load_dword s{sT+5}, s[{WS}:{WS+1}], s{sT+7} glc
    s_mov_b32 s{sSELV}, 0
    s_waitcnt lgkmcnt(0)
    s_cmp_lg_u32 s{sT+5}, 0
    s_cbranch_scc1 {lab}_d
    s_sub_u32 s{sT+6}, s{sT+6}, 1
    s_cbranch_scc0 {lab}_q
    {lab}_l:
    v_mov_b32 v96, {4 * D_BAD}
    buffer_load_dwordx3 v[100:102], v96, {db}, 0 offen sc1
    s_waitcnt vmcnt(0)
    v_readfirstlane_b32 s{sT+5}, v100
    v_readfirstlane_b32 s{sT+6}, v102
    s_cmp_eq_u32 s{sPASS}, 0
    s_cselect_b32 s{sSELV}, 3, 0
    s_cselect_b32 s{sT+5}, s{sT+5}, 0
    s_cselect_b32 s{sT+6}, 0, s{sT+6}
    s_lshr_b32 s{sT+6}, s{sT+6}, 8
    s_or_b32 s{sT+5}, s{sT+5}, s{sT+6}
    s_cbranch_scc1 {lab}_d
    s_mov_b32 s{sSELV}, 0
    s_cmp_eq_u32 s{sBUD}, 0
    s_cbranch_scc1 {lab}_d
    s_sub_u32 s{sBUD}, s{sBUD}, 1
    s_cmp_eq_u32 s{sPASS}, 0
    s_cbranch_scc1 {lab}_k
    s_branch {lab}_l
    {lab}_d:
    v_mov_b32 v97, s{sSELV}
    ds_write_b32 v98, v97
    s_waitcnt lgkmcnt(0)
    {lab}_w:
    s_barrier
    ds_read_b32 v97, v98
    s_xor_b32 s{sMODE}, s{sPASS}, 1
    s_waitcnt lgkmcnt(0)
    v_readfirstlane_b32 s{sSELV}, v97
    s_cmp_eq_u32 s{sSELV}, 3
    s_cbranch_scc1 {name}_fb""")
    assert D_GA == D_BAD + 2
def line_addr(a, v):
    a(f"""v_lshlrev_b32 v{v}, 2, v0
    v_add_u32 v{v}, {4 * D_DONE}, v{v}
    v_mov_b32 v{v+1}, {OOB}
    v_cmp_gt_u32 vcc, 16, v0
    v_cndmask_b32 v{v}, v{v+1}, v{v}, vcc""")
def line_load(v, r=DB): return f"buffer_load_dword v{v+1}, v{v}, s[{r}:{r+3}], 0 offen sc1"
def verdict(a, name, lab, v):
    d = v + 1
    a(f"""s_mov_b32 s{sSELV}, 1
    s_cmp_lg_u32 s{sPASS}, 0
    s_cbranch_scc1 {lab}_d
    {lab}_l:
    v_cmp_ne_u32 vcc, 0, v{d}
    s_bitcmp1_b32 vcc_lo, {D_BAD - D_DONE}
    s_cbranch_scc1 {name}_fb
    s_and_b32 s{sT+5}, vcc_lo, 255
    s_cmp_eq_u32 s{sT+5}, 255
    s_cbranch_scc1 {lab}_v
    s_cmp_eq_u32 s{sBUD}, 0
    s_cbranch_scc1 {lab}_d
    s_sub_u32 s{sBUD}, s{sBUD}, 1
    {line_load(v)}
    s_waitcnt vmcnt(0)
    s_branch {lab}_l
    {lab}_v:
    v_add_u32_dpp v{d}, v{d}, v{d} row_shr:1 row_mask:0xf bank_mask:0xf bound_ctrl:0
    v_add_u32_dpp v{d}, v{d}, v{d} row_shr:2 row_mask:0xf bank_mask:0xf bound_ctrl:0
    v_add_u32_dpp v{d}, v{d}, v{d} row_shr:4 row_mask:0xf bank_mask:0xf bound_ctrl:0
    v_readlane_b32 s{sT+5}, v{d}, 7
    s_mov_b32 s{sVOTE}, s{sT+5}
    s_cmp_gt_u32 s{sT+5}, {2048 + 128}
    s_cselect_b32 s{sSELV}, 2, 1
    {lab}_d:""")

def gemm_entry(a, name, nkv=8):
    a(f"{name}_gemm:\ns_waitcnt vmcnt(0)")
    last(a, False, 130, 131)
    ln_out(a, name, False, nkv)
    arrive(a, name + "_ga", 0, False)
    meet(a, name, name + "_gm")
```

```python
import sys
from asmlib import *; from layout import *; from prep import gen_prep
from rec import sG
from rec5 import rec_all, rec_pre, n_pre
import start
import g4 as g3
from g4 import desc, T_K, T_V, T_QA, T_F1, T_F2, T_WO, T_F2E, T_KH, T_VH, T_QS, T_TW, T_SUM, with_sum
TW0 = 48
def f1_range(b, q):
    n = [e >> 3 for e in range(28 * q, 28 * q + 28) if e & 7 == b]
    return n[0], len(n)
def column(task, q, r):
    ty, i = task[:2]
    if ty == 'K': return [desc(T_K, i, 4 * q + r)]
    if ty == 'V': return [desc(T_V, i, 4 * q + r)]
    if ty == 'QA': return [desc(T_QA, i, 4 * q + r)]
    if ty == 'QT': return [desc(T_KH, i, 4 * q + r)]
    if ty == 'QS': return [desc(T_QS, i, 4 * q + r)]
    if ty == 'F1':
        tiles = [(b, f1_range(b, q)[0] + k) for b in range(8) for k in range(f1_range(b, q)[1])]
        b, n = tiles[4 * i + r]
        return [desc(T_F1, b, n)]
    if ty == 'FW':
        k0, kl = f1_range(i, q)
        return [desc(T_F2, i, r, k0, kl), desc(T_WO, i, r, 4 * q, 4)]
    if ty == 'F2':
        k0, kl = f1_range(i, q)
        return [desc(T_F2E, i, r, k0, kl)]
    if ty == 'TW': return [T_TW | (16 * q + 4 * i + r) << 4 | TW0 << 20]
    if ty == 'S': return [with_sum(T_SUM, i, r)]
    raise ValueError(ty)
def lists_of(cols, first=0):
    L = []
    for q in range(4):
        for c in range(8):
            for r in range(4):
                l = []
                for t in cols[c]:
                    if t[0] == '+S': l[-1] = with_sum(l[-1], t[1], r)
                    else: l += column(t, q, r)
                if first == 1: l[0] = desc(T_V if c >= 4 else T_K, q + 1, 4 * (c & 3) + r)
                if first == 2: l[0] = desc(T_V if c >= 4 else T_K, 1 + (q & 2) + (c >> 1 & 1), 8 * (q & 1) + 4 * (c & 1) + r)
                assert (l[0] & 15) in (T_K, T_V, T_QA, T_F1, T_KH)
                L.append(l)
    return L
def parse(s): return [[(x.rstrip("0123456789") if not x.startswith(("F1", "F2")) else x[:2], int(x[-1])) for x in c.split()] for c in s.split("|")]
PLAN_D = "K1 K6 F10 V5 F27 QS6 +S2 S0 S1 S3 | K4 QA1 F14 QA4 QS7 | V4 F11 FW2 FW4 S4 | K3 F15 V6 FW3 TW2 | V2 F16 K7 FW0 TW1 | V3 QA0 QA3 V7 FW5 S5 | K2 F12 K5 FW1 TW0 | V1 F13 QA2 F26 QA5 TW3"
PLANS = {64: "F10 QA1 FW1 QS6 S0 S1 | F11 QA2 FW2 QS7 | F12 FW0 FW4 S2 S3 S4 | F13 QA3 FW3 TW2 | F14 F26 QA4 TW1 | F15 F27 QA5 TW0 | F16 FW5 S5 | QA0 TW3",
 32: "K6 F10 V5 F27 QS6 +S2 S0 S1 S3 | K4 QA1 F14 QA4 QS7 | V4 F11 FW2 FW4 S4 | F15 V6 FW3 TW2 | F16 K7 FW0 TW1 | QA0 QA3 V7 FW5 S5 | F12 K5 FW1 TW0 | F13 QA2 F26 QA5 TW3",
 16: "F12 F13 F15 FW3 QS7 | K3 F16 QA2 F27 S1 TW1 | F11 QA0 QT3 F26 TW2 | K2 QA1 K7 QT4 FW5 | F10 V5 FW0 QS6 S0 S3 | V2 F14 V7 FW2 TW0 | V3 V6 FW1 QT5 TW3 | V4 K4 K5 K6 FW4 S2 S4 S5"}
HEAD = open("cdna_kernels/" + KNAME + ".s.ref").read().split("; Override launch")[0]
def mk(trace=False, force_safe=False, mfma_w=3, plan=None, rtrace=None, cs=None, first=0, bud=False, pf=1, nkv=16, nb=(6, 4, 6, 8), xs=None, xe=(), plain='', loc=False, exp=('acko', 'sb2', 'prs', 'p1')):
    name = KNAME + "_kernel"; n = "m"
    plan = plan or PLANS[nkv]
    a = Asm(mfma_w)
    start.TR = trace; g3.PLAIN = plain; g3.LOCAL = loc
    if trace: a("s_memrealtime s[86:87]")
    start.entry(a, n, lambda: rec_pre(a, 0), 0, force_safe, pf & 1)
    def put(off, regs):
        a(f"s_lshl_b32 s34, s2, 6\ns_add_u32 s34, s34, {GTRACE_OFF + 2 * MB + off}\nv_mov_b32 v252, 0")
        for i, r in enumerate(regs): a(f"v_mov_b32 v253, s{r}\nbuffer_store_dword v253, v252, s[4:7], s34 offen offset:{4*i}")
    def rstamp(i):
        if not trace: return
        if i < 0: return a("s_memrealtime s[34:35]\ns_waitcnt lgkmcnt(0)\nv_mov_b32_dpp v254, v254 row_shr:1 row_mask:0xf bank_mask:0xf\nv_writelane_b32 v254, s34, 0")
        if i == 2: a(f"s_lshl_b32 s34, s2, 8\ns_add_u32 s34, s34, {GTRACE_OFF + 3 * MB}\nv_lshlrev_b32 v253, 2, v0\nbuffer_store_dword v254, v253, s[4:7], s34 offen")
        a(f"s_memrealtime s[{76+2*i}:{77+2*i}]\ns_waitcnt lgkmcnt(0)")
        if i == 3: a("s_lshl_b32 s35, s12, 5\ns_add_u32 s35, s35, s13"); put(0, (86, 76, 78, 80, 82, sG, 88, 90, 92, 84, 57, 35))
    rec_all(a, n, rstamp, nkv, pf, nb=nb, xs=xs, trace=rtrace, exp=exp + tuple(xe))
    start.gemm_entry(a, n, nkv)
    if trace: a("s_memrealtime s[76:77]\ns_waitcnt lgkmcnt(0)"); put(0, (86, 76, 26, 27, 76, sG, 88, 90, 92, 84, 57))
    g3.gemm_side(a, n, lists_of(parse(plan), first), trace, cs=g3.Cfg(**cs) if cs else None)
    a(f"{n}_recdone:\ns_waitcnt vmcnt(0)")
    if bud:
        L = []
        for i, l in enumerate(a.lines):
            L.append(l)
            if l == "s_sub_u32 s17, s17, 1": L.append(f"s_mov_b32 s100, {i}")
            if l == "s_mov_b32 s17, 0x100000": L.append("s_mov_b32 s100, 0")
        global LINES
        LINES = a.lines; a.lines = L
        a(f"""s_lshl_b32 s34, s2, 2
        s_add_u32 s34, s34, s14
        s_lshl_b32 s34, s34, 4
        s_add_u32 s34, s34, {GTRACE_OFF + 4 * MB}
        v_mov_b32 v2, s17
        v_mov_b32 v3, s100
        v_mov_b32 v4, s16
        v_mov_b32 v5, s18
        v_mov_b32 v6, 0
        buffer_store_dwordx4 v[2:5], v6, s[4:7], s34 offen
        s_waitcnt vmcnt(0)""")
    a(f"{n}_end:\ns_endpgm")
    s = HEAD + f"; @launch grid=(256,1,1) block=(256,1,1) lds=163840\n"
    s += '.amdgcn_target "amdgcn-amd-amdhsa--gfx950"\n.text\n' + khead(name) + a.finish(True)
    s += '.section .rodata,"a"\n.p2align 6\n' + kdesc(name)
    return s
if __name__ == "__main__":
    out = sys.argv[1] if len(sys.argv) > 1 else "main.s"
    open(out, "w").write(mk(**(eval(sys.argv[2]) if len(sys.argv) > 2 else {})))
```

```python
from asmlib import *
from layout import *
from g2 import Cfg, pieces, reads, rebias, VM, lanes_frag, lanes_vt, getreg, pack, ACC0, PAD, CSC, NEG
import g2
from start import sSELV, XS

WS = 4
sW, sG, sBUD = 14, 16, 17
sTYP, sB, sN, sFLG, sNC, sOUT, sCUR, sNXT = 18, 19, 20, 21, 22, 23, 24, 25
sDEP, sDMK, sCOLD, sPFL = 26, 27, 28, 29
sWM, sWN, sSL, sQ = 32, 33, 34, 35
sSV, sPI = 59, 61
sLST = 36
SA, SB_ = 44, 48
sOA, sOB, sWB, sSTB, sCNT = 52, 53, 54, 55, 56
sRBA, sROW, sWA = 57, 58, 60
sE = 62
SO = 72
sTRC = 76
sWP = 86
assert (g2.SA, g2.SB_, g2.sOA, g2.sOB, g2.sWB, g2.sSTB, g2.sWA) == (SA, SB_, sOA, sOB, sWB, sSTB, 61)
g2.sWA = sWA
vAR, vBR, vDA, vDB, vE = 1, 2, 4, 6, 10
vFA, vFD, vDL, vDV, vORD = 10, 11, 13, 14, 15
aSTA, aSEL = 240, 248
ws = f"s[{WS}:{WS+3}]"
T_K, T_V, T_QA, T_F1, T_F2, T_WO, T_F2E, T_KH, T_VH, T_QS, T_TW, T_SUM, T_END = 0, 1, 2, 3, 4, 5, 6, 7, 8, 9, 10, 11, 15
TN = {0: "K", 1: "V", 2: "QA", 3: "F1", 4: "F2", 5: "WO", 6: "F2E", 7: "QT", 8: "VH", 9: "QS", 10: "TW", 11: "SUM", 15: "END"}
NLIST = 10
T_QT = T_KH
PLAIN = ""; LOCAL = False; MODS = {}
sLOC, sMODE = 13, 15
LDS_BYTES = 4 * 33792
def desc(t, b=0, n=0, k0=0, kl=0):
    return t | b << 4 | n << 7 | k0 << 11 | kl << 15
def with_sum(d, b, n): return d | 1 << 26 | b << 27 | n << 30
def bfe(a, d, s, off, w): a(f"s_bfe_u32 s{d}, s{s}, {hex(w << 16 | off)}")

def lane_setup(a, c):
    a(f"""
    v_lshrrev_b32 v{vE}, 4, v0                    ; g
    v_and_b32 v{vE+1}, 15, v0
    s_mul_i32 s{sE}, s{sWM}, {c.MT // 2 * 2048}
    v_lshl_add_u32 v{vAR}, v{vE}, 9, s{sE}
    v_lshl_add_u32 v{vAR}, v{vE+1}, 4, v{vAR}
    v_lshrrev_b32 v{vE+1}, 5, v0
    v_lshlrev_b32 v{vE+1}, 4, v{vE+1}
    v_and_b32 v{vE}, 1, v{vE}
    v_lshl_add_u32 v{vE+1}, v{vE}, 2, v{vE+1}
    v_bfe_u32 v{vE}, v0, 2, 2
    v_add_u32 v{vE+1}, v{vE+1}, v{vE}             ; k row
    v_bfe_u32 v{vE+2}, v0, 1, 1
    v_lshlrev_b32 v{vE+2}, 5, v{vE+2}
    v_and_b32 v{vE+3}, 1, v0
    v_lshl_add_u32 v{vE+2}, v{vE+3}, 3, v{vE+2}
    s_mov_b32 s{sE}, {PAD}
    v_lshrrev_b32 v{vE+3}, 1, v{vE+1}
    v_mad_u32_u24 v{vE+2}, v{vE+3}, s{sE}, v{vE+2}
    v_and_b32 v{vE+3}, 1, v{vE+1}
    v_lshl_add_u32 v{vE+2}, v{vE+3}, 9, v{vE+2}
    v_lshl_add_u32 v{vBR}, v{vE+3}, 4, v{vE+2}
    s_lshl_b32 s{sE}, s{sWN}, 8
    s_add_u32 s{sE}, s{sE}, {c.AB}
    v_add_u32 v{vBR}, s{sE}, v{vBR}
    v_xor_b32 v{vBR+1}, 16, v{vBR}
    s_mul_i32 s{sWA}, s{sW}, {c.PA * 1024}
    s_mul_i32 s{sWB}, s{sW}, {c.PB * PAD}
    s_add_u32 s{sWB}, s{sWB}, {c.AB}
    """)

def stream_lanes(a, c, t=12):
    a(f"""s_mul_i32 s{sE}, s{sW}, {c.PA // 2}
    s_mul_i32 s{sE}, s{sE}, s{sRBA}
    v_lshl_add_u32 v{vDA}, v0, 4, s{sE}""")
    if c.PA == 4: a(f"s_sub_u32 s{sE}, s{sRBA}, 2048\nv_add_u32 v{vDA+1}, s{sE}, v{vDA}")
    a(f"""v_lshrrev_b32 v{t}, 5, v0
    v_and_b32 v{vDB}, 31, v0
    v_xor_b32 v{vDB}, v{vDB}, v{t}
    v_lshlrev_b32 v{vDB}, 4, v{vDB}
    s_lshl_b32 s{sE}, s{sW}, 3
    v_add_u32 v{t}, s{sE}, v{t}
    v_mad_u32_u24 v{vDB}, v{t}, s{sROW}, v{vDB}
    s_lshl_b32 s{sE}, s{sROW}, 1
    s_sub_u32 s{sE}, s{sE}, {PAD}
    v_add_u32 v{vDB+1}, s{sE}, v{vDB}
    v_add_u32 v{vDB+2}, s{sE}, v{vDB+1}
    v_add_u32 v{vDB+3}, s{sE}, v{vDB+2}
    s_lshl_b32 s{sSTB}, s{sROW}, 5""")

def stream_switch(a, c, d, lab):
    t, b, n, k = sE + 1, sE + 2, sE + 3, sE + 4
    a(f"s_and_b32 s{t}, s{d}, 15")
    bfe(a, b, d, 4, 3); bfe(a, n, d, 7, 4); bfe(a, k, d, 11, 4)
    a(f"""s_mov_b32 s{SA+2}, {WS_BYTES}
    s_lshl_b32 s{sOB}, s{n}, 9
    s_sub_u32 s{sE}, s{t}, {T_F2}
    s_cmp_lt_u32 s{sE}, 3
    s_cbranch_scc1 {lab}_fw
    s_lshl_b32 s{sOA}, s{b}, 19
    s_mov_b32 s{sRBA}, 65536
    s_mov_b64 s[{SB_}:{SB_+1}], s[{sWP+4}:{sWP+5}]
    s_cmp_eq_u32 s{t}, {T_K}
    s_cselect_b64 s[{SB_}:{SB_+1}], s[{sWP}:{sWP+1}], s[{SB_}:{SB_+1}]
    s_cmp_eq_u32 s{t}, {T_V}
    s_cselect_b64 s[{SB_}:{SB_+1}], s[{sWP+2}:{sWP+3}], s[{SB_}:{SB_+1}]
    s_cmp_eq_u32 s{t}, {T_F1}
    s_cselect_b64 s[{SB_}:{SB_+1}], s[{sWP+6}:{sWP+7}], s[{SB_}:{SB_+1}]
    s_cselect_b32 s{sROW}, 7168, 0
    s_cselect_b32 s{sE}, 0, 8192
    s_or_b32 s{sROW}, s{sROW}, s{sE}
    s_lshl_b32 s{SB_+2}, s{sROW}, 10
    s_branch {lab}_l
    {lab}_fw:
    s_lshl_b32 s{sE}, s{k}, 19
    s_add_u32 s{sOB}, s{sOB}, s{sE}
    s_mov_b32 s{sROW}, 2048
    s_cmp_eq_u32 s{t}, {T_WO}
    s_cselect_b64 s[{SB_}:{SB_+1}], s[{sWP+10}:{sWP+11}], s[{sWP+8}:{sWP+9}]
    s_mov_b32 s{SB_+2}, {3584 * 2048}
    s_cselect_b32 s{SB_+2}, {4096 * 2048}, s{SB_+2}
    s_mov_b32 s{sRBA}, 229376
    s_cselect_b32 s{sRBA}, 262144, s{sRBA}
    s_mov_b32 s{sOA}, {H1_OFF}
    s_cselect_b32 s{sOA}, {O_OFF}, s{sOA}
    s_mul_i32 s{sE}, s{b}, s{sRBA}
    s_lshl_b32 s{sE}, s{sE}, 3
    s_add_u32 s{sOA}, s{sOA}, s{sE}
    s_lshl_b32 s{sE}, s{k}, 14
    s_add_u32 s{sOA}, s{sOA}, s{sE}
    {lab}_l:""")
    stream_lanes(a, c)

def lane0(a, v, tmp, sp=sE):
    a(f"v_mov_b32 v{v}, {OOB}\nv_mov_b32 v{tmp}, 0\nv_cmp_eq_u32 s[{sp}:{sp+1}], 0, v0\nv_cndmask_b32 v{v}, v{v}, v{tmp}, s[{sp}:{sp+1}]")
def fw_flag(a, d, b=sB, n=sN):
    a(f"""s_lshl_b32 s{d}, s{b}, 2
    s_add_u32 s{d}, s{d}, s{n}
    s_lshl_b32 s{d}, s{d}, 2
    s_add_u32 s{d}, s{d}, s{sW}
    s_lshl_b32 s{d}, s{d}, 6
    s_add_u32 s{d}, s{d}, {CTRL_OFF + C_FW}""")
DEPLD = f"buffer_load_dword v{vDV}, v{vDL}, {ws}, s{sDEP} offen sc1"
def notready(a):
    a(f"v_cmp_gt_u32 s[{sE}:{sE+1}], 4, v{vDV}\ns_and_b32 s{sE}, s{sE}, s{sDMK}")

def hook(a, c, lab, form):
    a(f"s_cmp_eq_u32 s{sCNT}, 1\ns_cbranch_scc0 {lab}_s")
    notready(a)
    a(f"""s_cselect_b32 s{sCOLD}, 1, s{sCOLD}
    s_cmp_eq_u32 s{sCOLD}, 0
    s_cbranch_scc1 {lab}_w
    s_mov_b32 s{SA+2}, 0
    s_mov_b32 s{SB_+2}, 0
    s_branch {lab}_s
    {lab}_w:""")
    stream_switch(a, c, sNXT, lab)
    a.lab(lab + "_s")
    a(DEPLD)

def stage(a, c, slot, form, first=False, top=None, pre=None):
    p = slot & 1
    fill = [[] for _ in range(c.M)]
    nslot = (slot + 1) % c.NS
    items = reads(c, nslot, p ^ 1) + rebias(c, nslot, (nslot + 1) % c.NS)
    pc = pieces(c, slot)
    span = c.M - c.r0 - 4
    st = min(c.rstep, span / len(items))
    dg = [min(c.M - 1, (i * c.M) // c.P + 1) for i in range(len(pc))]
    for i, x in enumerate(items):
        fill[min(c.M - 1, c.r0 + int(i * st))].append(x)
    for gp, x in zip(dg, pc):
        if "m0" in x[0] and gp > 0 and not any(y.startswith("buffer") for y in fill[gp - 1] + fill[gp]):
            fill[gp - 1].append(x[0]); x = x[1:]
        fill[gp] += x[:1] if x[0].startswith("buffer") else x[:2]
        rest = x[1:] if x[0].startswith("buffer") else x[2:]
        fill[min(c.M - 1, gp + 1)] += rest
    if top == "relax":
        L = a.newlab("rx")
        a(f"s_waitcnt vmcnt({(c.NS - 2) * c.P + 32}) lgkmcnt(0)\ns_cbranch_vccnz {L}\ns_waitcnt vmcnt({(c.NS - 2) * c.P})\n{L}:\ns_barrier")
    else:
        a(f"s_waitcnt vmcnt({(c.NS - 2) * c.P}) lgkmcnt(0)\ns_barrier")
    if pre: pre()
    n = 0
    for t in range(c.MT):
        for f0 in range(c.NT):
            f = f0 if t % 2 == 0 else c.NT - 1 - f0
            A, B = (c.wf(p, f), c.xf(p, t)) if form == "T" else (c.xf(p, t), c.wf(p, f))
            a(f"v_mfma_f32_16x16x32_bf16 {c.accs(t, f)}, {A}, {B}, {'0' if first else c.accs(t, f)}")
            for x in fill[n]: a(x)
            n += 1

def publish(a):
    L, L2 = a.newlab("pb"), a.newlab("pl")
    x = f"buffer_atomic_add v{vFD}, v{vFA}, {ws}, s{sPFL} offen"
    a(f"s_cbranch_vccz {L}\ns_mov_b64 vcc, 0")
    if LOCAL: a(f"s_cmp_eq_u32 s{sLOC}, 0\ns_cbranch_scc1 {L2}\n{x}\ns_branch {L}\n{L2}:")
    a(f"{x} sc1\n{L}:")
def dep_lanes(a):
    a(f"v_lshlrev_b32 v{vDL}, 2, v0\nv_mov_b32 v{vDV}, {OOB}\nv_cmp_gt_u32 s[{sE+6}:{sE+7}], 4, v0\nv_cndmask_b32 v{vDL}, v{vDV}, v{vDL}, s[{sE+6}:{sE+7}]")
def main_loop(a, c, form, tag):
    pub = lambda: publish(a)
    a.lab(tag + "_f")
    stage(a, c, 0, form, True, "relax", lambda: a(DEPLD))
    a(".p2align 3")
    a.lab(tag + "_l")
    stage(a, c, 1, form, top="relax"); stage(a, c, 2, form, top="relax"); stage(a, c, 3, form, pre=pub)
    a(f"s_sub_u32 s{sCNT}, s{sCNT}, 1\ns_cmp_eq_u32 s{sCNT}, 0\ns_cbranch_scc1 {tag}_x")
    a.lab(tag + "_c")
    stage(a, c, 0, form, pre=lambda: hook(a, c, tag + "_h", form))
    a(f"s_branch {tag}_l")
    a.lab(tag + "_x")
    a(f"v_readlane_b32 s{sSV}, v{vDV}, 32")

def cold_dma(a, c):
    for s in range(c.NS):
        for g in pieces(c, s):
            for x in g: a(x)

def spin(a, lab, out):
    a(f"""s_cmp_eq_u32 s{sBUD}, 0
    s_cbranch_scc1 {out}
    s_sub_u32 s{sBUD}, s{sBUD}, 1
    s_branch {lab}""")
def poll(a, lab, soff, val, n=1, va=vE, vd=12):
    x = {1: "dword", 2: "dwordx2"}[n]
    d = f"v{vd}" if n == 1 else f"v[{vd}:{vd+n-1}]"
    a(f"v_mov_b32 v{va}, 0")
    a.lab(lab)
    a(f"buffer_load_{x} {d}, v{va}, {ws}, s{soff} offen sc1\ns_waitcnt vmcnt(0)")
    if n == 2: a(f"v_and_b32 v{vd+1}, 32, v{vd+1}\nv_lshlrev_b32 v{vd+1}, 1, v{vd+1}\nv_max_u32 v{vd}, v{vd}, v{vd+1}")
    a(f"v_readfirstlane_b32 s{sE+9}, v{vd}\ns_cmp_ge_u32 s{sE+9}, {val}\ns_cbranch_scc1 {lab}_d")
    spin(a, lab, lab + "_d")
    a.lab(lab + "_d")
def tile_out(a, base, rmul, csh, half=False):
    a(f"""s_lshl_b32 s{sE}, s{sB}, 1
    s_add_u32 s{sE}, s{sE}, s{sWM}
    s_mul_i32 s{sE}, s{sE}, {rmul}
    s_lshl_b32 s{sE+1}, s{sN}, 1
    s_add_u32 s{sE+1}, s{sE+1}, s{sWN}
    s_lshl_b32 s{sE+1}, s{sE+1}, {csh}
    s_add_u32 s{sOUT}, s{sE}, s{sE+1}""")
    if base: a(f"s_add_u32 s{sOUT}, s{sOUT}, {base}")
def epi_store(a, c, kind, rstride, sbase=sOUT):
    if kind == "vt":
        lanes_vt(a, vE, vE + 1)
        prs = [((t, f), (t + 1, f)) for t in range(0, c.MT, 2) for f in range(c.NT)]
    else:
        lanes_frag(a, vE, vE + 1)
        prs = [((t, f), (t, f + 1)) for t in range(c.MT) for f in range(0, c.NT, 2)]
        prs.sort(key=lambda p: (p[0][0] >> 1, p[0][1] >> 2, p[0][0] & 1))
    if kind == 'silu' and 'x' in PLAIN or rstride == 65536 and 'y' in PLAIN: a(f"v_or_b32 v{vE}, {OOB}, v{vE}")
    if kind == "silu":
        a(f"s_mov_b32 s{sE+2}, 0xbfb8aa3b\ns_mov_b32 s{sE+3}, 0xbfb8aa3b\ns_mov_b32 s{sE+4}, 1.0\ns_mov_b32 s{sE+5}, 1.0")
    cur = None
    for (t, f), (t2, f2) in prs:
        base = (t >> 1) * rstride + (f >> 2) * 4096
        off = ((f >> 1) & 1) * 2048 + ((f & 1) * 128 if kind == "vt" else (t & 1) * 256)
        two = rstride == 524288 and 'two' in MODS
        if base != cur:
            a(f"s_add_u32 s{sE}, s{sbase}, {base}"); cur = base
            if two: a(f"s_xor_b32 s{sE+1}, s{sE}, 8192")
        b0 = getreg(a, c, t, f, ACC0); b1 = getreg(a, c, t2, f2, ACC0 + 4)
        if kind == "silu":
            for b in (b0, b1):
                for o, q in ((0, 12), (2, 14)): a(f"v_pk_mul_f32 v[{q}:{q+1}], v[{b+o}:{b+o+1}], s[{sE+2}:{sE+3}]")
                for q in (12, 13, 14, 15): a(f"v_exp_f32 v{q}, v{q}")
                for q in (12, 14): a(f"v_pk_add_f32 v[{q}:{q+1}], v[{q}:{q+1}], s[{sE+4}:{sE+5}]")
                for q in (12, 13, 14, 15): a(f"v_rcp_f32 v{q}, v{q}")
                for o, q in ((0, 12), (2, 14)): a(f"v_pk_mul_f32 v[{b+o}:{b+o+1}], v[{b+o}:{b+o+1}], v[{q}:{q+1}]")
        pack(a, b0, b0, b1)
        a(f"buffer_store_dwordx4 v[{b0}:{b0+3}], v{vE}, {ws}, s{sE} offen offset:{off}{'' if kind == 'silu' and 'h' in PLAIN else ' sc1'}{' nt' if 'n' in PLAIN else ''}{' sc0' if '0' in PLAIN else ''}")
        if two: a(f"buffer_store_dwordx4 v[{b0}:{b0+3}], v{vE}, {ws}, s{sE+1} offen offset:{off} sc1")
def row_flag(a, base):
    a(f"s_lshl_b32 s{sFLG}, s{sB}, 4\ns_add_u32 s{sFLG}, s{sFLG}, s{sN}\ns_lshl_b32 s{sFLG}, s{sFLG}, {6 if base == C_KV else 2}\ns_add_u32 s{sFLG}, s{sFLG}, {CTRL_OFF + base}")
    if base != C_KV: a(f"s_lshl_b32 s{sE}, s{sQ}, 9\ns_add_u32 s{sFLG}, s{sFLG}, s{sE}")
def epi_kv(a, c, v, lab):
    if c.MT == 8:
        tile_out(a, VT_OFF if v else K_OFF, 4 * 524288, 14)
        a(f"s_lshl_b32 s{sE}, s{sWM}, 13")
    else:
        tile_out(a, VT_OFF if v else K_OFF, 2 * 524288, 14)
        a(f"s_and_b32 s{sE}, s{sB}, 1\ns_lshl_b32 s{sE}, s{sE}, 13\ns_lshr_b32 s{sB}, s{sB}, 1")
    a(f"s_xor_b32 s{sE}, s{sE}, s{sSL}")
    if 'far' in MODS: a(f"s_xor_b32 s{sE}, s{sE}, 8192")
    a(f"s_add_u32 s{sOUT}, s{sOUT}, s{sE}")
    row_flag(a, C_KV)
    epi_store(a, c, "vt" if v else "frag", 524288)

def epi_park(a, c):
    tile_out(a, Y_OFF, 4 * 65536, 13)
    a(f"s_lshl_b32 s{sE}, s{sQ}, 22\ns_add_u32 s{sOUT}, s{sOUT}, s{sE}")
    fw_flag(a, sFLG)
    epi_store(a, c, "frag", 65536)

def sum_fields(a, b, n): bfe(a, b, sCUR, 27, 3); bfe(a, n, sCUR, 30, 2)
def sum_part(a, tag):
    sb, sn, sR, sC = sE + 4, sE + 5, sE + 6, sE + 7
    D, L = 176, 16
    sum_fields(a, sb, sn)
    a(f"s_cmp_ge_u32 s{sSV}, 4\ns_cbranch_scc1 {tag}_k")
    fw_flag(a, sE, sb, sn)
    poll(a, tag + "_p", sE, 4)
    a.lab(tag + "_k")
    lanes_frag(a, vE, vE + 1)
    a(f"""s_lshl_b32 s{sR}, s{sb}, 1
    s_add_u32 s{sR}, s{sR}, s{sWM}
    s_lshl_b32 s{sR}, s{sR}, 2
    s_add_u32 s{sR}, s{sR}, s{sQ}
    s_lshl_b32 s{sR}, s{sR}, 16
    s_lshl_b32 s{sC}, s{sn}, 1
    s_add_u32 s{sC}, s{sC}, s{sWN}
    s_lshl_b32 s{sE}, s{sC}, 13
    s_add_u32 s{sE}, s{sE}, s{sR}""")
    a(f"""v_and_b32 v12, 15, v0
    v_lshlrev_b32 v12, 11, v12
    v_lshrrev_b32 v{vE+1}, 4, v0
    v_lshl_add_u32 v12, v{vE+1}, 4, v12
    s_lshl_b32 s{sC}, s{sC}, 8
    s_add_u32 s{sR}, s{sR}, s{sC}
    s_add_u32 s{sC}, s{sR}, 32768""")
    n = 0; order = []
    for src in range(5):
        for Fh in range(2):
            if src: a(f"s_add_u32 s{sE+1}, s{sE}, {Y_OFF + (src - 1) * 4 * MB + 4096 * Fh}")
            for t in range(2):
                for F in (2 * Fh, 2 * Fh + 1):
                    if src: a(f"buffer_load_dwordx4 v[{L+4*n}:{L+4*n+3}], v{vE}, {ws}, s{sE+1} offen offset:{2048*(F&1)+256*t}")
                    else: a(f"buffer_load_dwordx4 v[{L+4*n}:{L+4*n+3}], v12, s[{XS}:{XS+3}], s{sC if t else sR} offen offset:{64*F}")
                    order.append((src, t, F)); n += 1
    acc = lambda t, F, e: D + 32 * t + 8 * F + 4 * e
    for n, (src, t, F) in enumerate(order):
        if n % 2 == 0:
            a(f"s_waitcnt vmcnt({38 - n})")
            if src == 0:
                for b0 in (L + 4 * n, L + 4 * n + 4): a(f"v_permlane16_swap_b32 v{b0}, v{b0+2}\nv_permlane16_swap_b32 v{b0+1}, v{b0+3}")
        for e in range(2):
            d = f"v[{acc(t,F,e)}:{acc(t,F,e)+3}]"
            a(f"v_mfma_f32_16x16x32_bf16 {d}, a[{aSEL+4*e}:{aSEL+4*e+3}], v[{L+4*n}:{L+4*n+3}], {d if src else 0}")
    for t in range(2):
        bs = [acc(t, F, 0) for F in range(4)]
        for b0 in bs: pack(a, b0, b0, b0 + 4)
        for b0 in bs: a(f"v_permlane16_swap_b32 v{b0}, v{b0+2}\nv_permlane16_swap_b32 v{b0+1}, v{b0+3}")
        for F, b0 in enumerate(bs): a(f"buffer_store_dwordx4 v[{b0}:{b0+3}], v12, s[{SO}:{SO+3}], s{sC if t else sR} offen offset:{64*F}")

sPA, sPT = 30, 31
QTR = False; QMOD = ''
def epi_qa(a, c, tag, stream=False):
    a("s_waitcnt lgkmcnt(0)")
    for i in range(8): a(f"v_accvgpr_write_b32 a{aSTA+i}, v{2+i}")
    tile_out(a, O_OFF, 4 * 262144, 13)
    if not stream: row_flag(a, C_QA)
    vKA, vVA, vKM, vVM = 2, 3, 4, 5
    vMD, vMM, vM0, vM1, vS0, vS1 = 6, 12, 10, 11, 10, 11
    sKA, sVA, sKM, sVM, sC = sE, sE + 2, sE + 4, sE + 5, sE + 6
    a(f"""s_lshl_b32 s{sE}, s{sN}, 1
    s_add_u32 s{sE}, s{sE}, s{sWN}              ; head
    s_lshl_b32 s{sE+1}, s{sB}, 1
    s_add_u32 s{sE+1}, s{sE+1}, s{sWM}
    s_lshl_b32 s{sE+2}, s{sG}, 7
    s_add_u32 s{sPA}, s{sE+2}, {CTRL_OFF + C_PM}
    s_lshl_b32 s{sPT}, s{sE+1}, 2""")
    if stream:
        a(f"""s_and_b32 s{sFLG}, s{sE+1}, 3
        s_lshl_b32 s{sFLG}, s{sFLG}, 3
        s_and_b32 s{sE+3}, s{sE}, 7
        s_add_u32 s{sFLG}, s{sFLG}, s{sE+3}
        s_lshr_b32 s{sE+3}, s{sE}, 3
        s_lshl_b32 s{sE+3}, s{sE+3}, 5
        s_add_u32 s{sFLG}, s{sFLG}, s{sE+3}
        s_lshl_b32 s{sFLG}, s{sFLG}, 2
        s_add_u32 s{sFLG}, s{sFLG}, {CTRL_OFF + C_OM}
        s_lshl_b32 s{sE+3}, s{sB}, 3""")
    else: a(f"s_add_u32 s{sE+3}, s{sPT}, 4")
    poll(a, tag + "_pp", sPA, f"s{sE+3}")
    assert (KM_OFF >> 21) % 2 == 0 and (VM_OFF >> 21) % 2 == 0 and (K_OFF >> 21) % 2 == 0 and (VT_OFF >> 21) % 2 == 0
    a(f"""s_lshl_b32 s{sE+2}, s{sE+1}, 19
    s_lshr_b32 s{sE+3}, s{sE}, 2
    s_lshl_b32 s{sE+3}, s{sE+3}, 14
    s_add_u32 s{sE+2}, s{sE+2}, s{sE+3}
    s_and_b32 s{sE+3}, s{sE}, 3
    s_lshl_b32 s{sE+3}, s{sE+3}, 11
    s_add_u32 s{sE+2}, s{sE+2}, s{sE+3}
    s_lshl_b32 s{sE+3}, s{sB}, 12
    s_{'xnor' if 'farm' in MODS else 'xor'}_b32 s{sE+3}, s{sE+3}, s{sSL}
    s_and_b32 s{sE+3}, s{sE+3}, 8192
    s_add_u32 s{sE+2}, s{sE+2}, s{sE+3}
    s_add_u32 s{sKM}, s{sE+2}, {KM_OFF}
    s_add_u32 s{sVM}, s{sE+2}, {VM_OFF}
    s_lshl_b32 s{sE+1}, s{sE+1}, 21
    s_lshl_b32 s{sE}, s{sE}, 14
    s_add_u32 s{sE}, s{sE}, s{sE+1}
    s_lshl_b32 s{sE+1}, s{sWM}, 13
    s_xor_b32 s{sE+1}, s{sE+1}, s{sSL}
    {f's_xor_b32 s{sE+1}, s{sE+1}, 8192' if 'far' in MODS or MODS.get('two') == 2 else ''}
    {f's_cmp_ge_u32 s{sB}, 2; s_cselect_b32 s{sE+3}, 8192, 0; s_xor_b32 s{sE+1}, s{sE+1}, s{sE+3}'.replace('; ', chr(10)) if MODS.get('two') == 1 else ''}
    s_add_u32 s{sE}, s{sE}, s{sE+1}
    s_add_u32 s{sVA}, s{sE}, {VT_OFF}
    s_add_u32 s{sVA+1}, s{sVA}, 4096
    s_add_u32 s{sKA}, s{sE}, {K_OFF}
    s_add_u32 s{sKA+1}, s{sKA}, 4096
    s_mov_b32 s{sC}, {CSC}
    s_mov_b32 s{sC+1}, {CSC}""")
    lanes_frag(a, vKA, 10); lanes_vt(a, vVA, 10)
    a(f"""v_lshrrev_b32 v10, 4, v0                ; g
    v_and_b32 v11, 15, v0                         ; m
    v_lshlrev_b32 v{vKM}, 7, v10
    v_lshl_add_u32 v{vKM}, v11, 4, v{vKM}
    v_mov_b32 v12, {OOB}
    v_cmp_gt_u32 vcc, 8, v11
    v_cndmask_b32 v{vKM}, v12, v{vKM}, vcc
    v_lshrrev_b32 v13, 3, v11
    v_lshlrev_b32 v13, 8, v13
    v_lshl_add_u32 v13, v10, 3, v13
    v_and_b32 v14, 7, v0
    v_lshl_add_u32 v{vVM}, v14, 4, v13
    v_cmp_gt_u32 vcc, 2, v10
    v_cndmask_b32 v{vVM}, v12, v{vVM}, vcc""")
    if 'm' in PLAIN: a(f"v_or_b32 v{vKM}, {OOB}, v{vKM}\nv_or_b32 v{vVM}, {OOB}, v{vVM}")
    if 'v' in PLAIN: a(f"v_or_b32 v{vVA}, {OOB}, v{vVA}")
    vm = VM(a)
    sets = (144, 0)
    Kr = lambda s, kt, F: sets[s & 1] + 16 * kt + 4 * F
    KMr = lambda s, F: sets[s & 1] + 32 + 4 * F
    Vr = lambda s, F, e: sets[s & 1] + 48 + 12 * F + 6 * e
    def loadKM(s):
        return [(f"buffer_load_dwordx4 a[{KMr(s,F)}:{KMr(s,F)+3}], v{vKM}, {ws}, s{sKM} offen offset:{512*F} sc1", ("KM", s)) for F in range(4)] + [(f"s_add_u32 s{sKM}, s{sKM}, 131072", None)]
    def loadVM(s):
        return [(f"buffer_load_dwordx2 a[{Vr(s,F,e)}:{Vr(s,F,e)+1}], v{vVM}, {ws}, s{sVM} offen offset:{512*F+128*e} sc1", ("VM", s)) for F in range(4) for e in range(2)] + [(f"s_add_u32 s{sVM}, s{sVM}, 131072", None)]
    def loadK(s):
        r = [] if stream else loadKM(s)
        for F in range(4):
            for kt in range(2):
                r.append((f"buffer_load_dwordx4 a[{Kr(s,kt,F)}:{Kr(s,kt,F)+3}], v{vVA if 'v' in PLAIN else vKA}, {ws}, s{sKA+(F>>1)} offen offset:{2048*(F&1)+256*kt}{QMOD}", ("K", s)))
        r.append((f"s_add_u32 s{sKA}, s{sKA}, 524288\ns_add_u32 s{sKA+1}, s{sKA+1}, 524288", None))
        return r
    def loadV(s):
        r = [] if stream else loadVM(s)
        for F in range(4):
            for e in range(2):
                b = Vr(s, F, e)
                r.append((f"buffer_load_dwordx4 a[{b+2}:{b+5}], v{vVA}, {ws}, s{sVA+(F>>1)} offen offset:{2048*(F&1)+128*e}{QMOD}", ("V", s)))
        r.append((f"s_add_u32 s{sVA}, s{sVA}, 524288\ns_add_u32 s{sVA+1}, s{sVA+1}, 524288", None))
        return r
    def emit(x):
        if x[1] is None: a(x[0])
        else: vm.op(*x)
    for x in loadK(0) + loadV(0): emit(x)
    a(f"v_mov_b32 v12, {NEG}\nv_lshlrev_b32 v13, 2, v10")
    for i in range(4):
        a(f"v_add_u32 v14, {i}, v13\nv_cmp_gt_u32 vcc, v14, v11\nv_cndmask_b32 v{vMD+i}, 0, v12, vcc")
    a(f"v_cmp_le_u32 vcc, 2, v10\nv_cndmask_b32 v12, 0, v12, vcc\nv_mov_b32 v13, v12\nv_mov_b32 v14, v12\nv_mov_b32 v15, v12")
    free = []; Q = {}
    pend = loadK(1) + loadV(1)
    for t in range(8):
        for F in range(4):
            k0, b0 = c.acc(t, 2 * F); k1, b1 = c.acc(t, 2 * F + 1)
            if k0 == "v":
                pack(a, b0, b0, b1); Q[t, F] = b0; free.append(b1)
            else:
                x, y = free.pop(0), free.pop(0)
                getreg(a, c, t, 2 * F, x); getreg(a, c, t, 2 * F + 1, y)
                pack(a, x, x, y); Q[t, F] = x; free.append(y)
            if t >= 1 and pend: emit(pend.pop(0))
            if t >= 4 and pend: emit(pend.pop(0))
    for x in pend: emit(x)
    R = lambda b, n=4: f"v[{b}:{b+n-1}]"
    A = lambda b, n=4: f"a[{b}:{b+n-1}]"
    if stream:
        X, Y = free.pop(), free.pop()
        a(f"s_cmp_eq_u32 s{sTYP}, {T_QT}\ns_cselect_b32 s{sE+8}, {OOB}, 0\nv_lshl_add_u32 v{X+1}, v0, 9, s{sE+8}")
        a(f"v_mov_b32 v{Y}, 1\ns_add_u32 s{sPT}, s{sPT}, 1")
        poll(a, tag + "_p0", sPA, f"s{sPT}", va=X, vd=X + 2)
        a(f"s_mov_b32 s{sNC}, s{sE+9}")
        vm.q = []
        QS0 = len(a.lines)
        for z in loadKM(0) + loadVM(0): emit(z)
    def QST(k):
        if not QTR: return ""
        return f"""s_memrealtime s[{sTRC+2}:{sTRC+3}]
        s_lshl_b32 s{sE+8}, s{sG}, 2
        s_add_u32 s{sE+8}, s{sE+8}, s{sW}
        s_lshl_b32 s{sE+8}, s{sE+8}, 6
        s_add_u32 s{sE+8}, s{sE+8}, {GTRACE_OFF + 5 * MB + 4 * k}
        s_cmp_eq_u32 s{sTYP}, {T_QT}
        s_cselect_b32 s{sE+8}, {GTRACE_OFF + 6 * MB}, s{sE+8}
        s_waitcnt lgkmcnt(0)
        v_mov_b32 v{X+3}, s{sTRC+2}
        v_mov_b32 v{X}, 0
        buffer_store_dword v{X+3}, v{X}, {ws}, s{sE+8} offen
        s_waitcnt vmcnt(0)
        """
    FLAG = lambda s: f"v_mov_b32 v{Y}, {s+1}\nbuffer_store_dword v{Y}, v{X+1}, {ws}, s{sFLG} offen sc1\n" + QST(2 * s + 1)
    for s in range(4):
        if stream and QTR: a(QST(2 * s))
        t0, t1 = 2 * s, 2 * s + 1
        D0, M0, E0, E1, M1 = [free.pop(0) for _ in range(5)]
        vm.wait(("KM" if stream else "K", s))
        for F in range(4):
            for d, kr, q, seed in ((D0, Kr(s, 0, F), Q[t0, F], R(vMD)), (M0, KMr(s, F), Q[t0, F], R(vMM)), (E0, Kr(s, 0, F), Q[t1, F], "0"),
                                   (E1, Kr(s, 1, F), Q[t1, F], R(vMD)), (M1, KMr(s, F), Q[t1, F], R(vMM))):
                a(f"v_mfma_f32_16x16x32_bf16 {R(d)}, {A(kr)}, {R(q)}, {seed if F == 0 else R(d)}")
        if s < 2:
            for x in loadK(s + 2): emit(x)
        for F in range(4): free += [Q[t0, F], Q[t1, F]]
        g0 = [D0 + i for i in range(4)] + [M0 + i for i in range(4)]
        g1 = [E0 + i for i in range(4)] + [E1 + i for i in range(4)] + [M1 + i for i in range(4)]
        def both(op3, op2, r0, r1):
            for r, g in ((r0, g0), (r1, g1)):
                a(f"{op3} v{r}, v{g[0]}, v{g[1]}, v{g[2]}")
                k = 3
                while k + 1 < len(g): a(f"{op3} v{r}, v{r}, v{g[k]}, v{g[k+1]}"); k += 2
                a(f"{op2} v{r}, v{r}, v{g[k]}")
        def across(op, r0, r1):
            a(f"""v_permlane32_swap_b32 v{r0}, v{r1}
            {op} v{r0}, v{r0}, v{r1}
            v_mov_b32 v{r1}, v{r0}
            v_permlane16_swap_b32 v{r0}, v{r1}
            {op} v{r0}, v{r0}, v{r1}""")
        both("v_max3_f32", "v_max_f32", vM0, vM1)
        across("v_max_f32", vM0, vM1)
        a(f"v_mul_f32 v{vM0}, s{sC}, v{vM0}\nv_mov_b32 v{vM1}, v{vM0}\nv_permlane32_swap_b32 v{vM0}, v{vM1}")
        for g, hi in ((g0, 0), (g1, 1)):
            for k in range(0, len(g), 2):
                a(f"v_pk_fma_f32 {R(g[k],2)}, {R(g[k],2)}, s[{sC}:{sC+1}], {R(vM0,2)} op_sel:[0,0,{hi}] op_sel_hi:[1,1,{hi}] neg_lo:[0,0,1] neg_hi:[0,0,1]")
        for r in g0 + g1: a(f"v_exp_f32 v{r}, v{r}")
        x, y = free.pop(0), free.pop(0)
        a(f"v_pk_add_f32 {R(x,2)}, {R(D0,2)}, {R(D0+2,2)}\nv_pk_add_f32 {R(x+2,2)}, {R(M0,2)}, {R(M0+2,2)}")
        a(f"v_pk_add_f32 {R(y,2)}, {R(E0,2)}, {R(E0+2,2)}\nv_pk_add_f32 {R(y+2,2)}, {R(E1,2)}, {R(E1+2,2)}")
        a(f"v_pk_add_f32 {R(x,2)}, {R(x,2)}, {R(x+2,2)}\nv_pk_add_f32 {R(y,2)}, {R(y,2)}, {R(y+2,2)}")
        a(f"v_pk_add_f32 {R(y+2,2)}, {R(M1,2)}, {R(M1+2,2)}\nv_add_f32 v{vS0}, v{x}, v{x+1}\nv_pk_add_f32 {R(y,2)}, {R(y,2)}, {R(y+2,2)}")
        a(f"v_add_f32 v{vS1}, v{y}, v{y+1}")
        across("v_add_f32", vS0, vS1)
        a(f"v_rcp_f32 v{vS0}, v{vS0}\nv_mov_b32 v{vS1}, v{vS0}\nv_permlane32_swap_b32 v{vS0}, v{vS1}")
        for g, hi in ((g0, 0), (g1, 1)):
            for k in range(0, len(g), 2):
                a(f"v_pk_mul_f32 {R(g[k],2)}, {R(g[k],2)}, {R(vS0,2)} op_sel:[0,{hi}] op_sel_hi:[1,{hi}]")
        pack(a, x, M0, D0)
        pack(a, y, E0, E1)
        a(f"v_cvt_pk_bf16_f32 v{M1}, v{M1}, v{M1+1}\nv_cvt_pk_bf16_f32 v{M1+1}, v{M1+2}, v{M1+3}")
        free += [D0, M0, E0, E1]
        vm.wait(("VM" if stream else "V", s))
        O = {(tt, F, e): free.pop(0) for F in range(4) for e in range(2) for tt in range(2)}
        for F in range(4):
            for e in range(2):
                a(f"v_mfma_f32_16x16x16_bf16 {R(O[1,F,e])}, {A(Vr(s,F,e),2)}, {R(M1,2)}, 0")
        for F in range(4):
            for e in range(2):
                a(f"v_mfma_f32_16x16x32_bf16 {R(O[0,F,e])}, {A(Vr(s,F,e))}, {R(x)}, 0")
        a(f"s_add_u32 s{sE+8}, s{sOUT}, {262144 * s}\ns_add_u32 s{sE+9}, s{sOUT}, {262144 * s + 4096}")
        def out(tt, F):
            b0 = O[tt, F, 0]
            pack(a, b0, b0, O[tt, F, 1])
            if 'z' in PLAIN: a("s_mov_b64 exec, 1")
            vm.op(f"buffer_store_dwordx4 {R(b0)}, v{vKA}, {ws}, s{sE+8+(F>>1)} offen offset:{2048*(F&1)+256*tt}{'' if 'o' in PLAIN and not stream else ' sc1'}{' nt' if 'n' in PLAIN else ''}{' sc0' if '0' in PLAIN else ''}", "st")
            if 'z' in PLAIN: a("s_mov_b64 exec, -1")
        for F in range(4):
            for e in range(2):
                a(f"v_mfma_f32_16x16x32_bf16 {R(O[1,F,e])}, {A(Vr(s,F,e)+2)}, {R(y)}, {R(O[1,F,e])}")
            if F >= 1: out(0, F - 1)
        if s < 2:
            for z in loadV(s + 2): emit(z)
        out(0, 3)
        for F in range(4): out(1, F)
        free += [x, y, M1] + list(O.values())
        if stream and s < 3:
            nx = [z[0] for z in loadKM(s + 1) + loadVM(s + 1)]
            a(f"s_add_u32 s{sPT}, s{sPT}, 1\ns_cmp_ge_u32 s{sNC}, s{sPT}\ns_cbranch_scc0 {tag}_w{s}")
            for z in nx: a(z)
            a(f"s_waitcnt vmcnt(12)\n{FLAG(s)}\ns_branch {tag}_j{s}\n{tag}_w{s}:\ns_waitcnt vmcnt(0)\n{FLAG(s)}")
            poll(a, f"{tag}_p{s+1}", sPA, f"s{sPT}", va=X, vd=X + 2)
            a(f"s_mov_b32 s{sNC}, s{sE+9}")
            for z in nx: a(z)
            a.lab(f"{tag}_j{s}")
            vm.q = [("KM", s + 1)] * 4 + [("VM", s + 1)] * 8
        elif stream: a(f"s_waitcnt vmcnt(0)\n{FLAG(s)}")
    for i in range(8): a(f"v_accvgpr_read_b32 v{2+i}, a{aSTA+i}")


def tail_wo(a, tag, trace=None):
    sU, sSG, sO, sY, sP, sXX, sYY, sOO = sTYP, sB, sN, sFLG, sNC, sOA, sOB, sSTB
    vA_, vL, vP_, vTH, vR, vO, vF, vY, vD, vB, vX, vFX, vL8 = 1, 2, 3, 4, 5, 6, 7, 8, 16, 32, 196, 200, 201
    bfe(a, sU, sCUR, 4, 5); bfe(a, sE + 8, sCUR, 9, 1); bfe(a, sSG, sCUR, 20, 6)
    a(f"""s_mov_b64 s[{SB_}:{SB_+1}], s[{sWP+10}:{sWP+11}]
    s_mov_b32 s{SB_+2}, {4096 * 2048}
    v_lshrrev_b32 v10, 2, v0
    v_and_b32 v11, 3, v0
    v_lshlrev_b32 v11, 4, v11
    v_lshl_add_u32 v{vA_}, v10, 11, v11
    s_lshl_b32 s{sOB}, s{sW}, 21
    s_lshl_b32 s{sE}, s{sU}, 6
    s_add_u32 s{sOB}, s{sOB}, s{sE}
    s_lshl_b32 s{sWA}, s{sW}, 15
    v_lshrrev_b32 v12, 4, v0                      ; g
    v_lshrrev_b32 v13, 5, v0
    v_lshlrev_b32 v13, 4, v13
    v_and_b32 v14, 1, v12
    v_lshl_add_u32 v13, v14, 2, v13
    v_and_b32 v10, 3, v10
    v_add_u32 v13, v13, v10                       ; k row
    v_lshl_add_u32 v{vR}, v13, 6, s{sWA}
    v_bfe_u32 v13, v0, 1, 1
    v_lshl_add_u32 v{vR}, v13, 5, v{vR}
    v_and_b32 v13, 1, v0
    v_lshl_add_u32 v{vR}, v13, 3, v{vR}
    s_waitcnt lgkmcnt(0)
    s_barrier""")
    def dma(bt):
        a(f"s_add_u32 m0, s{sWA}, {(bt & 1) * 16384}")
        for i in range(16):
            a(f"buffer_load_dwordx4 v{vA_}, s[{SB_}:{SB_+3}], s{sOB} offen lds\ns_add_u32 s{sOB}, s{sOB}, 32768")
            if i < 15: a("s_add_u32 m0, m0, 1024")
    def trr(bt):
        for ks in range(8):
            for e in range(2):
                for h in range(2):
                    r = 64 * bt + 8 * ks + 4 * e + 2 * h
                    a(f"ds_read_b64_tr_b16 a[{r}:{r+1}], v{vR} offset:{(bt & 1) * 16384 + 2048 * ks + 512 * h + 16 * e}")
            if ks & 1: a("s_waitcnt lgkmcnt(4)")
        a("s_waitcnt lgkmcnt(0)")
    dma(0); dma(1)
    for bt in range(4):
        a(f"s_waitcnt vmcnt({16 if bt < 3 else 0})"); trr(bt)
        if bt < 2: dma(bt + 2)
    lanes_frag(a, vF, 10)
    a(f"""s_lshl_b32 s{sE}, s{sE+8}, 8
    v_add_u32 v{vF}, s{sE}, v{vF}
    v_and_b32 v10, 15, v0
    v_lshlrev_b32 v10, 11, v10
    v_lshl_add_u32 v{vO}, v12, 4, v10
    s_lshl_b32 s{sE}, s{sE+8}, 15
    s_lshl_b32 s{sE+1}, s{sU}, 6
    s_add_u32 s{sE}, s{sE}, s{sE+1}
    v_add_u32 v{vO}, s{sE}, v{vO}
    v_lshlrev_b32 v{vL}, 4, v0
    v_add_u32 v{vR}, s{sWA}, v{vL}
    s_lshr_b32 s{sE}, s{sU}, 3
    s_lshl_b32 s{sE}, s{sE}, 8
    s_bfe_u32 s{sE+1}, s{sU}, 0x10002
    s_lshl_b32 s{sE+1}, s{sE+1}, 6
    s_add_u32 s{sP}, s{sE}, s{sE+1}
    s_add_u32 s{sP}, s{sP}, {C_FW}
    s_mov_b32 s{sDEP}, {CTRL_OFF}
    s_lshl_b32 s{sE}, s{sU}, 11
    s_cmp_eq_u32 s{sW}, 0
    s_cselect_b32 s{sE+1}, 0, {OOB}
    v_or_b32 v{vFX}, s{sE+1}, v{vO}
    s_lshl_b32 s{sYY}, s{sW}, 22
    s_add_u32 s{sYY}, s{sYY}, s{sE}
    s_add_u32 s{sYY}, s{sYY}, {Y_OFF}
    s_lshl_b32 s{sOO}, s{sW}, 16
    s_add_u32 s{sOO}, s{sOO}, {O_OFF}""")
    def flagaddr(sg):
        a(f"""s_bfe_u32 s{sE}, s{sg}, 0x20002
        v_cmp_eq_u32 s[{sE}:{sE+1}], s{sE}, v{vL8}
        s_and_b32 s{sE+3}, s{sg}, 3
        s_add_u32 s{sE+3}, s{sE+3}, 1
        v_mov_b32 v{vTH}, s{sE+3}
        v_cndmask_b32 v{vTH}, 0, v{vTH}, s[{sE}:{sE+1}]""")
    FL = lambda v: f"buffer_load_dword v{v}, v{vP_}, {ws}, s{sDEP} offen sc1"
    def early(sg):
        a(f"s_add_u32 s{sE+2}, s{sg}, 1")
        flagaddr(sE + 2)
        a(f"""{FL(12)}
        s_lshl_b32 s{sY}, s{sg}, 16
        buffer_load_dwordx4 v[{vX}:{vX+3}], v{vFX}, s[{XS}:{XS+3}], s{sY} offen
        s_add_u32 s{sE}, s{sY}, s{sYY}
        buffer_load_dwordx4 v[{vY}:{vY+3}], v{vF}, {ws}, s{sE} offen
        s_lshl_b32 s{sO}, s{sg}, 18
        s_add_u32 s{sO}, s{sO}, s{sOO}""")
    def frag(ks):
        a(f"buffer_load_dwordx4 v[{vB+4*ks}:{vB+4*ks+3}], v{vF}, {ws}, s{sO} offen offset:{2048*(ks&1)}")
        if ks & 1 and ks < 31: a(f"s_add_u32 s{sO}, s{sO}, 4096")
    def loads(sg):
        early(sg)
        for ks in range(32): frag(ks)
        a(FL(14))
    def wait(lab):
        a(f"{lab}:\n{FL(12)}\ns_waitcnt vmcnt(0)\nv_cmp_gt_u32 vcc, v{vTH}, v12\ns_cbranch_vccz {lab}_d")
        spin(a, lab, lab + "_d")
        a.lab(lab + "_d")
    def mm(ks):
        for e in range(2):
            d = vD + 8 * (ks & 1) + 4 * e
            a(f"v_mfma_f32_16x16x32_bf16 v[{d}:{d+3}], a[{8*ks+4*e}:{8*ks+4*e+3}], v[{vB+4*ks}:{vB+4*ks+3}], v[{d}:{d+3}]")
    def known(v): a(f"v_cmp_gt_u32 vcc, v{vTH}, v{v}\ns_cmp_eq_u32 s{sE+6}, 64\ns_cselect_b64 vcc, -1, vcc")
    if trace: a(f"s_mov_b32 s{sE+6}, 46"); trace(sE + 6)
    a(f"""v_lshrrev_b32 v{vL8}, 1, v0
    v_lshlrev_b32 v{vL8}, 10, v{vL8}
    v_and_b32 v{vP_}, 1, v0
    v_lshl_add_u32 v{vP_}, v{vP_}, 7, v{vL8}
    s_add_u32 s{sP}, s{sP}, {6 << 10}
    v_add_u32 v{vP_}, s{sP}, v{vP_}
    v_mov_b32 v13, {OOB}
    v_cmp_gt_u32 vcc, 4, v0
    v_cndmask_b32 v{vP_}, v13, v{vP_}, vcc
    v_cndmask_b32 v{vTH}, 0, 4, vcc
    s_cmp_lg_u32 s{sW}, 0
    s_cbranch_scc1 {tag}_wf_d""")
    wait(tag + "_wf")
    bfe(a, sE, sCUR, 4, 6)
    a(f"""s_barrier
    s_lshl_b32 s{sE}, s{sE}, 2
    s_add_u32 s{sE}, s{sE}, s{sW}
    s_lshl_b32 s{sE}, s{sE}, 7
    s_add_u32 s{sE}, s{sE}, {C_OM}
    v_lshl_add_u32 v{vP_}, v0, 2, s{sE}
    v_cmp_gt_u32 vcc, 32, v0
    v_cndmask_b32 v{vP_}, v13, v{vP_}, vcc
    v_lshrrev_b32 v{vL8}, 3, v0""")
    flagaddr(sSG)
    wait(tag + "_w0")
    if trace: a(f"s_mov_b32 s{sE+6}, 47"); trace(sE + 6)
    loads(sSG)
    a(f"{tag}_top:\ns_add_u32 s{sE+6}, s{sSG}, 1\ns_waitcnt vmcnt(33)")
    a(f"v_permlane16_swap_b32 v{vX}, v{vX+2}\nv_permlane16_swap_b32 v{vX+1}, v{vX+3}")
    for k, src in enumerate((vY, vX)):
        for i in range(4): a(f"v_lshlrev_b32 v{vD+8*k+2*i}, 16, v{src+i}\nv_and_b32 v{vD+8*k+2*i+1}, 0xffff0000, v{src+i}")
    known(12)
    a(f"s_cbranch_vccnz {tag}_n")
    early(sE + 6)
    for ks in range(32):
        a(f"s_waitcnt vmcnt({34 if ks else 35})"); mm(ks)
        if ks: frag(ks - 1)
    frag(31)
    a(f"{FL(14)}\ns_nop 7\ns_branch {tag}_r\n{tag}_n:")
    for ks in range(32):
        a(f"s_waitcnt vmcnt({32 - ks})"); mm(ks)
    a("s_waitcnt vmcnt(0)\ns_nop 4")
    known(14)
    a(f"s_cbranch_vccnz {tag}_r")
    loads(sE + 6)
    a.lab(tag + "_r")
    for i in range(0, 8, 2): a(f"v_pk_add_f32 v[{vD+i}:{vD+i+1}], v[{vD+i}:{vD+i+1}], v[{vD+8+i}:{vD+9+i}]")
    a(f"""ds_write_b128 v{vR}, v[{vD}:{vD+3}]
    ds_write_b128 v{vR}, v[{vD+4}:{vD+7}] offset:1024
    v_xor_b32 v{vR}, 2048, v{vR}
    s_waitcnt lgkmcnt(0)
    s_barrier
    s_and_b32 s{sE}, s{sSG}, 3
    s_cmp_lg_u32 s{sE}, s{sW}
    s_cbranch_scc1 {tag}_s""")
    T = 164
    for w in range(4):
        if w == 2: a(f"v_add_u32 v13, 65536, v{vL}")
        for e in range(2): a(f"ds_read_b128 v[{T+8*w+4*e}:{T+8*w+4*e+3}], v{vL if w < 2 else 13} offset:{32768*(w&1)+1024*e}")
    for w in range(1, 4):
        a(f"s_waitcnt lgkmcnt({6 - 2 * w})")
        for i in range(0, 8, 2): a(f"v_pk_add_f32 v[{T+i}:{T+i+1}], v[{T+i}:{T+i+1}], v[{T+8*w+i}:{T+8*w+i+1}]")
    pack(a, T, T, T + 4)
    a(f"""v_permlane16_swap_b32 v{T}, v{T+2}
    v_permlane16_swap_b32 v{T+1}, v{T+3}
    s_lshl_b32 s{sE}, s{sSG}, 16
    buffer_store_dwordx4 v[{T}:{T+3}], v{vO}, s[{SO}:{SO+3}], s{sE} offen""")
    if trace: trace(sSG)
    a(f"""{tag}_s:
    v_xor_b32 v{vL}, 2048, v{vL}
    s_mov_b32 s{sSG}, s{sE+6}
    s_cbranch_vccz {tag}_top
    s_cmp_eq_u32 s{sSG}, 64
    s_cbranch_scc1 {tag}_x""")
    wait(tag + "_w1")
    loads(sSG)
    a(f"s_branch {tag}_top\n{tag}_x:")

def load_lists(a, lists, lab):
    def rec(lo, hi):
        if hi - lo == 1:
            l = list(lists[lo]) + [T_END] * (NLIST - len(lists[lo]))
            assert len(l) == NLIST and l[-1] == T_END
            a(f"s_mov_b32 s{sCUR}, {hex(l[0])}\ns_mov_b32 s{sNXT}, {hex(l[1])}")
            for i in range(8):
                if l[2 + i] != T_END: a(f"s_mov_b32 s{sLST+i}, {hex(l[2+i])}")
            a(f"s_branch {lab}_d")
            return
        m = (lo + hi) // 2
        a(f"s_cmp_ge_u32 s{sG}, {m}\ns_cbranch_scc1 {lab}_{m}_{hi}")
        rec(lo, m); a.lab(f"{lab}_{m}_{hi}"); rec(m, hi)
    for i in range(8): a(f"s_mov_b32 s{sLST+i}, {T_END}")
    rec(0, len(lists))
    a.lab(lab + "_d")

def next_dep(a):
    t = sE + 1
    a(f"s_and_b32 s{t}, s{sNXT}, 15")
    bfe(a, sE + 2, sNXT, 4, 3); bfe(a, sE + 3, sNXT, 11, 4); bfe(a, sE + 4, sNXT, 15, 5)
    a(f"""s_lshl_b32 s{sE+2}, s{sE+2}, 4
    s_add_u32 s{sE+2}, s{sE+2}, s{sE+3}
    s_lshl_b32 s{sE+2}, s{sE+2}, 2
    s_mov_b32 s{sDEP}, {CTRL_OFF + C_F1}
    s_cmp_eq_u32 s{t}, {T_WO}
    s_cselect_b32 s{sDEP}, {CTRL_OFF + C_QA}, s{sDEP}
    s_add_u32 s{sDEP}, s{sDEP}, s{sE+2}
    s_lshl_b32 s{sE+2}, s{sQ}, 9
    s_add_u32 s{sDEP}, s{sDEP}, s{sE+2}
    s_bfm_b32 s{sDMK}, s{sE+4}, 0
    s_cmp_ge_u32 s{t}, {T_TW}
    s_cselect_b32 s{sCOLD}, 1, 0""")
    dep_lanes(a)
    sum_fields(a, sE + 1, sE + 2)
    fw_flag(a, sE, sE + 1, sE + 2)
    a(f"s_sub_u32 s{sE}, s{sE}, s{sDEP}\nv_writelane_b32 v{vDL}, s{sE}, 32")
def cur_fields(a):
    a(f"s_and_b32 s{sTYP}, s{sCUR}, 15")
    bfe(a, sB, sCUR, 4, 3); bfe(a, sN, sCUR, 7, 4); bfe(a, sCNT, sCUR, 15, 5)
    a(f"s_lshl_b32 s{sCNT}, s{sCNT}, 1\ns_cmp_eq_u32 s{sCNT}, 0\ns_cselect_b32 s{sCNT}, 8, s{sCNT}")

def gemm_side(a, name, lists, trace=False, cs=None):
    cs = cs or Cfg(8)
    assert cs.lds <= LDS_BYTES and XN_OFF == 0
    n = name + "_g"
    for i, k in enumerate((A_WK, A_WV, A_WQ, A_W1, A_W2, A_WO)): a(f"s_load_dwordx2 s[{sWP+2*i}:{sWP+2*i+1}], s[0:1], {k}")
    a(f"""s_load_dwordx2 s[{SO}:{SO+1}], s[0:1], {A_OUT}
    s_lshr_b32 s{sQ}, s{sG}, 5
    s_lshr_b32 s{sWM}, s{sW}, 1
    s_and_b32 s{sWN}, s{sW}, 1
    s_and_b32 s{sSL}, s{sSELV}, 2
    s_lshl_b32 s{sSL}, s{sSL}, 12
    s_mov_b32 s{SA}, s{WS}
    s_mov_b32 s{SA+1}, s{WS+1}
    s_mov_b32 s{SA+2}, {WS_BYTES}
    s_mov_b32 s{SA+3}, 0x20000
    s_mov_b32 s{SB_+2}, {8 * MB}
    s_mov_b32 s{SB_+3}, 0x20000
    s_mov_b32 s{SO+2}, {2048 * 1024 * 2}
    s_mov_b32 s{SO+3}, 0x20000""")
    load_lists(a, lists, n + "_ll")
    if trace: a(f"s_lshl_b32 s{sTRC}, s{sG}, 9\ns_add_u32 s{sTRC}, s{sTRC}, {GTRACE_OFF}")
    def stamp(i):
        if trace: a(f"s_memrealtime s[{sTRC+2}:{sTRC+3}]\ns_waitcnt lgkmcnt(0)\ns_mov_b32 s{sTRC+4+i}, s{sTRC+2}")
        if trace and i in (1, 2): a(f"s_memtime s[{sTRC+2}:{sTRC+3}]\ns_waitcnt lgkmcnt(0)\n" + (f"s_mov_b32 s{sTRC+8}, s{sTRC+2}" if i == 1 else f"s_sub_u32 s{sTRC+8}, s{sTRC+2}, s{sTRC+8}"))
    def trace_out(lab):
        if not trace: return
        stamp(3)
        a(f"s_cmp_lg_u32 s{sW}, 0\ns_cbranch_scc1 {lab}")
        lane0(a, 14, 15)
        for i in range(0, 4, 2): a(f"v_mov_b32 v12, s{sTRC+4+i}\nv_mov_b32 v13, s{sTRC+5+i}\nbuffer_store_dwordx2 v[12:13], v14, {ws}, s{sTRC} offen offset:{4*i}\ns_nop 1")
        a(f"v_mov_b32 v12, s{sCUR}\nv_mov_b32 v13, s{sTRC+8}\nbuffer_store_dwordx2 v[12:13], v14, {ws}, s{sTRC} offen offset:16\ns_nop 1\nv_mov_b32 v12, s{sTRC+1}\nv_mov_b32 v13, s{sTRC+9}\nbuffer_store_dwordx2 v[12:13], v14, {ws}, s{sTRC} offen offset:24\ns_add_u32 s{sTRC}, s{sTRC}, 32")
        a.lab(lab)
    stamp(0)
    cur_fields(a)
    lane_setup(a, cs)
    a("s_waitcnt lgkmcnt(0)")
    stream_switch(a, cs, sCUR, n + "_w0")
    cold_dma(a, cs)
    a(f"""v_and_b32 v10, 15, v0
    v_lshrrev_b32 v11, 4, v0
    v_lshrrev_b32 v12, 2, v10
    v_and_b32 v13, 1, v0
    v_lshlrev_b32 v13, 4, v13
    v_mov_b32 v14, 0x3f80
    v_lshlrev_b32 v14, v13, v14
    v_cmp_eq_u32 vcc, v11, v12
    v_cndmask_b32 v14, 0, v14, vcc
    v_bfe_u32 v13, v0, 1, 1
    v_cmp_eq_u32 vcc, 0, v13
    v_cndmask_b32 v12, 0, v14, vcc
    v_cndmask_b32 v13, v14, 0, vcc
    v_mov_b32 v14, 0""")
    for r, v in enumerate((12, 13, 14, 14, 14, 14, 12, 13)): a(f"v_accvgpr_write_b32 a{aSEL+r}, v{v}")
    a(f"""s_mov_b64 vcc, 0
    s_mov_b32 s{sE+8}, {T_QA}
    s_waitcnt vmcnt({(cs.NS - 1) * cs.P})
    s_branch {n}_warm""")
    main_loop(a, cs, "N", n + "_N")
    stamp(2)
    epi_kv(a, cs, 1, n + "_ev")
    a(f"s_branch {n}_nx0")
    main_loop(a, cs, "T", n + "_T")
    stamp(2)
    a(f"""s_cmp_eq_u32 s{sTYP}, {T_F2}
    s_cbranch_scc1 {n}_nx2
    s_cmp_eq_u32 s{sTYP}, {T_K}
    s_cbranch_scc1 {n}_ek
    s_cmp_eq_u32 s{sTYP}, {T_F1}
    s_cbranch_scc1 {n}_ef
    s_cmp_eq_u32 s{sTYP}, {T_QA}
    s_cbranch_scc1 {n}_eq
    s_cmp_ge_u32 s{sTYP}, {T_QT}
    s_cbranch_scc1 {n}_es""")
    epi_park(a, cs)
    a(f"s_branch {n}_nx1\n{n}_eq:")
    epi_qa(a, cs, n + "_qa")
    a(f"s_branch {n}_nx1\n{n}_es:")
    epi_qa(a, cs, n + "_qs", True)
    row_flag(a, C_QA)
    a(f"s_cmp_eq_u32 s{sTYP}, {T_QT}\ns_cselect_b32 s{sPI}, 1, 0\ns_branch {n}_nx3\n{n}_ef:")
    tile_out(a, H1_OFF, 4 * 229376, 13)
    row_flag(a, C_F1)
    epi_store(a, cs, "silu", 229376)
    a(f"s_branch {n}_nx1\n{n}_ek:")
    epi_kv(a, cs, 0, n + "_eks")
    a(f"""{n}_nx0:
    s_mov_b32 s{sPI}, 2
    s_branch {n}_nx3
    {n}_nx1:
    s_mov_b32 s{sPI}, 1
    {n}_nx3:
    s_bitcmp1_b32 s{sCUR}, 26
    s_cbranch_scc0 {n}_nx4
    {n}_sum:""")
    sum_part(a, n + "_sm")
    a.lab(n + "_nx4")
    lane0(a, vFA, vFD)
    a(f"s_and_b32 s{sLOC}, s{sTYP}, 14\ns_cmp_eq_u32 s{sLOC}, 2\ns_cselect_b32 s{sLOC}, s{sMODE}, 0")
    a(f"v_mov_b32 v{vFD}, s{sPI}\ns_mov_b32 s{sPFL}, s{sFLG}\ns_cmp_lg_u32 s{sPI}, 0\ns_cselect_b64 vcc, -1, 0")
    a.lab(n + "_nx2")
    trace_out(n + "_ntr")
    stamp(0)
    a(f"""s_mov_b32 s{sE+8}, s{sTYP}
    s_mov_b32 s{sCUR}, s{sNXT}
    s_mov_b32 s{sNXT}, s{sLST}""")
    for i in range(7): a(f"s_mov_b32 s{sLST+i}, s{sLST+i+1}")
    a(f"s_mov_b32 s{sLST+7}, {T_END}")
    cur_fields(a)
    a(f"""s_cmp_eq_u32 s{sCOLD}, 0
    s_cbranch_scc1 {n}_warm
    s_waitcnt vmcnt(0)""")
    def xst(r):
        if trace: a(f"s_memrealtime s[{sTRC+2}:{sTRC+3}]\ns_waitcnt lgkmcnt(0)\ns_mov_b32 s{r}, s{sTRC+2}")
    xst(sTRC + 1)
    publish(a)
    a(f"""s_cmp_eq_u32 s{sTYP}, {T_END}
    s_cbranch_scc1 {n}_done
    s_cmp_eq_u32 s{sTYP}, {T_TW}
    s_cbranch_scc1 {n}_tw
    s_mov_b32 s{sPI}, 0
    s_mov_b32 s{sSV}, 0
    s_cmp_eq_u32 s{sTYP}, {T_SUM}
    s_cbranch_scc1 {n}_sum""")
    dep_lanes(a)
    a(f"""{n}_dp:
    {DEPLD}
    s_waitcnt vmcnt(0)""")
    notready(a)
    a(f"s_cbranch_scc0 {n}_dpd")
    spin(a, n + "_dp", n + "_dpd")
    a.lab(n + "_dpd")
    xst(sTRC + 9)
    stream_switch(a, cs, sCUR, n + "_wc")
    cold_dma(a, cs)
    a(f"s_waitcnt vmcnt({(cs.NS - 1) * cs.P})")
    a.lab(n + "_warm")
    next_dep(a)
    a(f"""s_sub_u32 s{sE}, s{sTYP}, {T_F2}
    s_cmp_lt_u32 s{sE}, 3
    s_cbranch_scc1 {n}_redo
    s_cmp_eq_u32 s{sE+8}, {T_QA}
    s_cbranch_scc1 {n}_redo
    s_cmp_lt_u32 s{sE+8}, {T_KH}
    s_cbranch_scc1 {n}_go
    {n}_redo:
    s_waitcnt lgkmcnt(0)
    s_barrier""")
    for x in reads(cs, 0, 0) + rebias(cs, 0, 1): a(x)
    a.lab(n + "_go")
    stamp(1)
    a(f"""s_cmp_eq_u32 s{sTYP}, {T_V}
    s_cbranch_scc1 {n}_N_f
    s_cmp_eq_u32 s{sE+8}, {T_F2}
    s_cbranch_scc1 {n}_T_c
    s_branch {n}_T_f""")
    a.lab(n + "_tw")
    stamp(1)
    def twtr(sg):
        a(f"""s_memrealtime s[{sTRC+2}:{sTRC+3}]
        s_lshl_b32 s{sE}, s{sG}, 8
        s_lshl_b32 s{sE+1}, s{sg}, 2
        s_add_u32 s{sE}, s{sE}, s{sE+1}
        s_add_u32 s{sE}, s{sE}, {GTRACE_OFF + MB}
        s_waitcnt lgkmcnt(0)
        v_mov_b32 v13, s{sTRC+2}
        v_mov_b32 v15, 0
        buffer_store_dword v13, v15, {ws}, s{sE} offen""")
    tail_wo(a, n + "_tw", twtr if trace else None)
    stamp(2)
    trace_out(n + "_ntw")
    a.lab(n + "_done")
```

```python
from asmlib import *
from layout import *
from prep import srd
from rec import WS, T0, sX, sJ, sW, sMODE, sG, sBUD, sT
from start import DB, XS, M_ROWS, arrive, first_rows, line_addr, line_load, verdict, ln_out, sPASS, sSELV, WKS, WVS, WQS, WOS, M0S
sSTEP, sCUR, sRST, sPCUR, sPRST, sKM = 18, 19, 20, 21, 22, 23
sPEND, sCSC, sTK, sTV, sKVF, sSEL = 32, 33, 62, 63, 64, 65
sTB = 68
vTR, vFL, vOPW = 74, 75, 240
OPW = 1280
sMB = 66
sTR = 40
vCOL, vG, vIDX = 1, 2, 3
vSENT = 4
vA = 8
vQ0, vQ1, vK0, vK1, vV0, vV1, vO0, vO1 = 24, 28, 32, 36, 40, 44, 48, 52
vMEMR, vOR, vXW, vLIN, vOPR, vPW, vPR, vMW = 56, 57, 58, 59, 60, 61, 62, 65
vA1, vA2, vA3, vA4, vA5, vA6, vA7, vA8 = range(66, 74)
vT = 76
vKT, vVT = 80, 88
vF, vX, vD = 96, 100, 104
vR0, vR1, vBM, vONE, vPB, vS, vSO = 116, 120, 124, 128, 132, 136, 144
vP = 148
L_X, L_V, L_O, L_T, L_KP, L_XW, L_P0 = 0, 12288, 16384, 24576, 32768, 65536, 131072
XROW = 40
KVT = 16
CSC = 0x3e0293ee
ws = f"s[{WS}:{WS+3}]"
def vr(b, n=4): return f"v[{b}:{b+n-1}]"
def ar(b, n=8): return f"a[{b}:{b+n-1}]"
def pk(d, x, y): return f"v_pk_add_f32 {vr(d,2)}, {vr(x,2)}, {vr(y,2)}"

vM0, vXR, vX1, vACC, vRT, vKR, vXL, vRW, vRR, vST, vDUM = 128, 144, 208, 24, 88, 120, 241, 242, 243, 244, 245
vXR, vX1, vACC = 144, 24, 208
vQA, vOA, vQP, vOP = 10, 11, 12, 255
sPQ, sPO = 64, 68
sLB, sQO, sOO = 33, 32, 63
sXO, sKV, sXP, sXB, sXQ = 60, 61, 63, 69, 59
XOFF = lambda j: 2048 * (j >> 1 & 1) + 256 * (j & 1)
def kvmm(j, x):
    kb, t = j >> 1, j & 1; r = []
    for T in range(2):
        d = vr(vACC + 8 * t + 4 * T)
        r.append(f"v_mfma_f32_16x16x32_bf16 {d}, {ar(64 + 32 * T + 4 * kb, 4)}, {vr(x)}, {d if kb else 0}")
        d = vr(vACC + 16 + 8 * T + 4 * t)
        r.append(f"v_mfma_f32_16x16x32_bf16 {d}, {vr(x)}, {ar(128 + 32 * T + 4 * kb, 4)}, {d if kb else 0}")
    return r
def shares(): return [f"ds_write_b128 v{vRW}, {vr(vACC + 8 * q + 4 * h)} offset:{8192 * q + 1024 * h}" for q in (0, 2, 1, 3) for h in range(2)]
def merge(m, f, k=1, lead=0):
    m, f, r = list(m), list(f), []
    for i, x in enumerate(m):
        r.append(x)
        if i >= lead: r += f[:k]; f = f[k:]
    return r + f
def sr(b): return f"s[{b}:{b+3}]"
def rec_pre(a, pf):
    a(f"""
    s_lshl_b32 s{sT}, s{sX}, 5
    s_add_u32 s{sT}, s{sT}, s{sJ}            ; cu = 32x + j
    s_lshl_b32 s{sLB}, s{sW}, 15
    s_lshl_b32 s{sQO}, s{sW}, 21
    s_lshl_b32 s{sT}, s{sT}, 6
    s_add_u32 s{sQO}, s{sQO}, s{sT}
    s_lshr_b32 s{sT}, s{sJ}, 1
    s_lshl_b32 s{sT}, s{sT}, 2
    s_add_u32 s{sT}, s{sT}, s{sW}
    s_lshl_b32 s{sPQ}, s{sT}, 17
    s_lshl_b32 s{sPO}, s{sT}, 15
    s_lshl_b32 s{sT}, s{sX}, 11
    s_add_u32 s{sPQ}, s{sPQ}, s{sT}
    s_lshl_b32 s{sT}, s{sX}, 21
    s_add_u32 s{sPO}, s{sPO}, s{sT}
    ; every fourth line arrives late when only its two owners ask for it
    v_and_b32 v8, 3, v0
    v_lshlrev_b32 v8, 9, v8
    v_add_u32 v8, 384, v8
    s_lshl_b32 s{sT}, s{sJ}, 31
    v_or_b32 v8, s{sT}, v8
    v_lshrrev_b32 v9, 2, v0
    v_lshl_add_u32 v{vQP}, v9, 13, v8
    v_lshl_add_u32 v{vOP}, v9, 11, v8
    v_lshrrev_b32 v8, 2, v0
    v_and_b32 v9, 3, v0
    v_lshlrev_b32 v9, 4, v9
    v_lshl_add_u32 v{vQA}, v8, 13, v9
    v_lshl_add_u32 v{vOA}, v8, 11, v9
    s_lshl_b32 s{sT}, s{sX}, 21
    s_lshl_b32 s{sOO}, s{sW}, 19
    s_add_u32 s{sOO}, s{sOO}, s{sT}
    s_lshl_b32 s{sT}, s{sJ}, 6
    s_add_u32 s{sOO}, s{sOO}, s{sT}""")
def rec_ask(a, pf):
    if pf & 24:
        a(f"""s_lshl_b32 s{sT}, s{sJ}, 2
        s_add_u32 s{sT}, s{sT}, s{sW}
        s_lshl_b32 s{sT}, s{sT}, 16
        s_lshl_b32 s{sT+1}, s{sX}, 11
        s_add_u32 s{sT}, s{sT}, s{sT+1}
        s_add_u32 s{sT+1}, s{sT}, 32768
        v_lshrrev_b32 v8, 4, v0
        v_and_b32 v9, 15, v0
        v_lshlrev_b32 v9, 7, v9
        v_lshl_add_u32 v8, v8, 13, v9""")
        for R in (WKS, WVS)[:n_pre(pf) // 2]:
            for i in range(2): a(f"buffer_load_dword v{vDUM}, v8, {sr(R)}, s{sT+i} offen")
def n_pre(pf): return 4 if pf & 16 else 2 if pf & 8 else 0
def touch(R): return f"buffer_load_dword v{vDUM}, v{vOP if R == WOS else vQP}, {sr(R)}, s{sPO if R == WOS else sPQ} offen"

vGL = 16
def rec_prologue(a, name, stamp=lambda i: None, pf=0):
    def trr(abase, region, vaddr):
        for T in range(2):
            for s in range(4):
                for d in range(4):
                    r = abase + T * 32 + s * 8 + 2 * d
                    a(f"ds_read_b64_tr_b16 a[{r}:{r+1}], v{vaddr} offset:{region + (64*s + 32*(d>>1) + 2*(d&1)) * 64 + 32 * T}")
                a("s_waitcnt lgkmcnt(4)")
        a("s_waitcnt lgkmcnt(0)")
    ln_out(a, name, True)
    a.lab(name + "_noln")
    arrive(a, name + "_ra", 0, True)
    a.lab(name + "_dma")
    stamp(-1)
    def wdma(R, region, v, so, step, after=None):
        a(f"s_add_u32 m0, s{sLB}, {region}\ns_mov_b32 s{sT+2}, s{so}")
        for i in range(16):
            a(f"buffer_load_dwordx4 v{v}, {sr(R)}, s{sT+2} offen lds")
            if i < 15: a(f"s_add_u32 m0, m0, 1024\ns_add_u32 s{sT+2}, s{sT+2}, {step}")
            if after: after(i)
    def met():
        line_addr(a, vGL)
        first_rows(a, name, name + "_rm")
        stamp(1)
    if pf & 4: a("s_waitcnt vmcnt(0)"); met()
    for R in (WKS, WVS)[n_pre(pf) // 2:]: a(touch(R))
    wdma(WKS, 0, vQA, sQO, 16 * 8192)
    if pf & 2: a("s_waitcnt vmcnt(16)"); met()
    wdma(WVS, 16384, vQA, sQO, 16 * 8192)
    a(f"""
    v_and_b32 v{vCOL}, 15, v0
    v_lshrrev_b32 v{vG}, 4, v0
    s_lshl_b32 s{sT}, s{sX}, 5
    s_add_u32 s{sT}, s{sT}, s{sJ}
    v_and_b32 v13, 3, v0
    v_lshlrev_b32 v13, 3, v13
    v_add_u32 v13, s{sLB}, v13
    v_bfe_u32 v48, v0, 3, 1                  ; h
    v_bfe_u32 v49, v0, 2, 1                  ; u
    v_lshl_add_u32 v14, v48, 4, v49
    v_lshl_add_u32 v14, v{vG}, 2, v14        ; 16h + 4g + u
    v_lshl_add_u32 v14, v14, 6, v13
    v_lshl_add_u32 v15, v48, 2, v49
    v_and_b32 v50, 1, v{vG}
    v_lshl_add_u32 v15, v50, 4, v15
    v_lshrrev_b32 v50, 1, v{vG}
    v_lshl_add_u32 v15, v50, 3, v15          ; 16(g&1) + 8(g>>1) + 4h + u
    v_lshl_add_u32 v15, v15, 6, v13
    v_lshrrev_b32 v48, 2, v{vCOL}
    v_and_b32 v49, 1, v0
    v_lshl_add_u32 v48, v48, 1, v49
    v_lshlrev_b32 v48, 11, v48
    v_lshl_add_u32 v48, v50, 6, v48
    v_and_b32 v49, 1, v{vG}
    v_lshl_add_u32 v48, v49, 4, v48
    v_bfe_u32 v49, v0, 1, 1
    v_lshl_add_u32 v48, v49, 5, v48
    s_lshl_b32 s{sT+5}, s{sW}, 9
    """)
    for s in range(4): a(f"buffer_load_dwordx4 {vr(vM0+4*s)}, v48, {sr(M0S)}, s{sT+5} offen offset:{128*s}")
    a(f"""v_lshlrev_b32 v{vXL}, 9, v{vG}
    v_lshl_add_u32 v{vXL}, v{vCOL}, 4, v{vXL}
    s_lshl_b32 s{sT+5}, s{sW}, 11
    s_add_u32 s{sT+5}, s{sT+5}, {L_P0}
    v_lshl_add_u32 v{vRW}, v0, 4, s{sT+5}
    s_lshl_b32 s{sT+5}, s{sW}, 13
    s_add_u32 s{sT+5}, s{sT+5}, {L_P0}
    v_lshl_add_u32 v{vRR}, v0, 4, s{sT+5}
    s_lshr_b32 s{sT+5}, s{sT}, 2
    s_lshl_b32 s{sT+5}, s{sT+5}, 14
    s_and_b32 s{sT+6}, s{sT}, 3
    s_lshl_b32 s{sT+6}, s{sT+6}, 11
    s_add_u32 s{sT+5}, s{sT+5}, s{sT+6}
    v_add_u32 v{vST}, s{sT+5}, v{vXL}
    s_mov_b32 s{sKV}, {K_OFF}
    s_lshl_b32 s{sXO}, s{sPASS}, 2
    s_add_u32 s{sXO}, s{sXO}, s{sX}
    s_lshl_b32 s{sXO}, s{sXO}, 5
    s_add_u32 s{sXO}, s{sXO}, s{sW}
    s_lshl_b32 s{sXO}, s{sXO}, 14
    s_add_u32 s{sXO}, s{sXO}, {XR_OFF}""")
    stamp(-1)
    a("s_waitcnt vmcnt(20)")
    trr(64, 0, 14)
    a(touch(WQS))
    if not pf & 6: met()
    def xld(b, j):
        a(f"buffer_load_dwordx4 {vr(b + 4 * j)}, v{vXL}, {ws}, s{sXO} offen offset:{XOFF(j)}")
        if j & 3 == 3: a(f"s_add_u32 s{sXO}, s{sXO}, {4096 if j < 15 else 65536 - 3 * 4096}")
    def rows(i):
        for j in (2 * i, 2 * i + 1): xld(vX1 if j >> 4 else vXR, j & 15)
        if i == 7:
            stamp(-1)
            a("s_waitcnt vmcnt(29)")
            stamp(-1)
            trr(128, 16384, 14)
    wdma(WQS, 0, vQA, sQO, 16 * 8192, rows)
    a(touch(WOS))
    stamp(-1)
    wdma(WOS, 16384, vOA, sOO, 16 * 2048)
    a("s_waitcnt vmcnt(41)")
    stamp(0)
    for j in range(16):
        for x in kvmm(j, vXR + 4 * j): a(x)
        if j: xld(vXR, j - 1)
    xld(vXR, 15)
    a("s_barrier")
    for x in shares(): a(x)
    a("s_waitcnt lgkmcnt(0)\ns_barrier")
    stamp(-1)
    for q in range(4):
        for h in range(2): a(f"ds_read_b128 {vr(vRT + 8 * q + 4 * h)}, v{vRR} offset:{2048 * q + 1024 * h}")
    f = []
    for q in range(1, 4): f += [f"s_waitcnt lgkmcnt({6 - 2 * q})"] + [pk(vRT + i, vRT + i, vRT + 8 * q + i) for i in range(0, 8, 2)]
    f += [f"v_cvt_pk_bf16_f32 v{vKR+i}, v{vRT+2*i}, v{vRT+2*i+1}" for i in range(4)]
    a("s_waitcnt vmcnt(33)")
    for x in merge(sum((kvmm(j, vX1 + 4 * j) for j in range(16)), []), f, 1, 12): a(x)
    a(f"s_cmp_ge_u32 s{sW}, 2\ns_cbranch_scc1 {name}_kvs\nv_permlane32_swap_b32 v{vKR}, v{vKR+2}\nv_permlane32_swap_b32 v{vKR+1}, v{vKR+3}\n{name}_kvs:")
    stamp(-1)
    stamp(-1)
    trr(0, 0, 14)
    a(line_load(vGL))
    a("s_waitcnt vmcnt(17)")
    stamp(-1)
    trr(192, 16384, 15)
    a("s_waitcnt vmcnt(0)")
    stamp(-1)
    verdict(a, name, name + "_rv", vGL)
    a(f"s_and_b32 s{sSEL}, s{sSELV}, 2\ns_lshl_b32 s{sSEL}, s{sSEL}, 12")
    near(a, sT + 5, sKV)
    a(f"""s_lshr_b32 s{sT+6}, s{sW}, 1
    s_lshl_b32 s{sT+6}, s{sT+6}, 17
    s_and_b32 s{sT+7}, s{sW}, 1
    s_or_b32 s{sT+6}, s{sT+6}, s{sT+7}
    s_lshl_b32 s{sT+6}, s{sT+6}, 8
    s_add_u32 s{sT+5}, s{sT+5}, s{sT+6}
    buffer_store_dwordx4 {vr(vKR)}, v{vST}, {ws}, s{sT+5} offen sc1
    s_add_u32 s{sKV}, s{sKV}, 524288""")
    assert VT_OFF - K_OFF == 1 << 25
    for i in range(4): a(f"v_mov_b32 v{vKT+i}, v{vKR+i}")
    stamp(2)
    for i in range(0, 16, 2): a(f"v_mov_b64 {vr(vA+i,2)}, {vr(vM0+i,2)}")
    a(f"""s_lshl_b32 s{sT}, s{sX}, 5
    s_add_u32 s{sT}, s{sT}, s{sJ}
    v_lshrrev_b32 v{vT+3}, 1, v{vG}          ; g>>1
    v_and_b32 v{vT+2}, 1, v{vG}              ; g&1
    v_bfe_u32 v{vT+1}, v0, 1, 1""")
    a(f"""
    v_mov_b32 v{vIDX}, 0x4444
    v_mov_b32 v{vT}, 0xeeee
    v_cmp_eq_u32 s[{sMB}:{sMB+1}], 1, v{vT+1}
    v_cndmask_b32 v{vIDX}, v{vIDX}, v{vT}, s[{sMB}:{sMB+1}]
    """)
    for i in range(4):
        a(f"v_mov_b32 v{vSENT+i}, -1\nv_mov_b32 v{vONE+i}, 0x3f803f80\nv_mov_b32 v{vR0+i}, 0\nv_mov_b32 v{vR1+i}, 0\nv_mov_b32 v{vBM+i}, 0")
    for r in range(vQ0, vO1 + 4): a(f"v_mov_b32 v{r}, 0")
    a(f"""
    v_lshlrev_b32 v{vLIN}, 4, v0             ; lane*16
    s_movk_i32 s{sT+6}, 288
    s_movk_i32 s{sT+7}, 640
    s_lshl_b32 s{sT+1}, s{sX}, 14
    s_lshl_b32 s{sT+2}, s{sW}, 12
    s_add_u32 s{sT+2}, s{sT+2}, s{sT+1}
    v_add_u32 v{vMEMR}, s{sT+2}, v{vLIN}
    v_add_u32 v{vOR}, {R_O}, v{vMEMR}
    v_mul_u32_u24 v{vT}, {4*XROW*4}, v{vG}
    v_lshl_add_u32 v{vT}, v{vCOL}, 2, v{vT}
    s_mul_i32 s{sT+2}, s{sW}, {16*XROW*4}
    v_add_u32 v{vXW}, s{sT+2}, v{vT}
    s_lshl_b32 s{sT+4}, s{sJ}, 9
    s_add_u32 s{sT+4}, s{sT+4}, s{sT+1}      ; x*16K + j*512
    v_lshl_add_u32 v{vMW}, v0, 3, s{sT+4}
    s_mul_i32 s{sT+2}, s{sW}, {OPW}
    s_add_u32 s{sT+2}, s{sT+2}, {L_O}
    v_lshl_add_u32 v{vOPW}, v0, 2, s{sT+2}
    v_and_b32 v{vOPR}, 1, v0
    v_lshlrev_b32 v{vOPR}, 4, v{vOPR}
    v_bfe_u32 v{vT}, v0, 1, 1
    v_mad_u32_u24 v{vOPR}, v{vT}, s{sT+6}, v{vOPR}
    v_bfe_u32 v{vT}, v0, 2, 1
    v_mad_u32_u24 v{vOPR}, v{vT}, s{sT+7}, v{vOPR}
    v_bfe_u32 v{vT}, v0, 3, 2
    v_lshl_add_u32 v{vOPR}, v{vT}, 6, v{vOPR}
    v_lshl_add_u32 v{vOPR}, v{vT+3}, 5, v{vOPR}
    s_lshr_b32 s{sT+2}, s{sJ}, 1
    s_lshl_b32 s{sT+2}, s{sT+2}, 14
    s_and_b32 s{sT+3}, s{sJ}, 1
    s_lshl_b32 s{sT+3}, s{sT+3}, 12
    s_add_u32 s{sT+5}, s{sT+2}, s{sT+3}
    v_add_u32 v{vT}, s{sT+5}, v{vLIN}
    """)
    for i in range(4):
        a(f"s_add_u32 s{sT+2}, s{sX}, {i}\ns_and_b32 s{sT+2}, s{sT+2}, 3\ns_lshl_b32 s{sT+2}, s{sT+2}, 10\nv_add_u32 v{vPW+i}, s{sT+2}, v{vT}")
    a(f"""
    s_mov_b32 s{sSTEP}, 0
    s_mov_b32 s{sKM}, 0
    s_mov_b32 s{sPEND}, 0
    s_mov_b32 s{sCSC}, {CSC}
    s_mov_b32 s{sCUR}, {RING_OFF}
    s_mov_b32 s{sRST}, {RING_OFF + 2 * SLOT}
    s_mov_b32 s{sPCUR}, {PART_OFF}
    s_mov_b32 s{sPRST}, {PART_OFF + 2 * PSLOT}
    """)

def kv_wait(a, lab):
    a(f"v_mov_b32 v{vT+1}, 0")
    a.lab(lab)
    a(f"""buffer_load_dword v{vT}, v{vT+1}, {ws}, s{sKVF} offen sc1
    s_waitcnt vmcnt(0)
    v_readfirstlane_b32 s{sT+6}, v{vT}
    s_cmp_ge_u32 s{sT+6}, {KVT}
    s_cbranch_scc1 {lab}_d
    s_cmp_eq_u32 s{sBUD}, 0
    s_cbranch_scc1 {lab}_d
    s_sub_u32 s{sBUD}, s{sBUD}, 1
    s_branch {lab}""")
    a.lab(lab + "_d")

MODS = {}
def near(a, d, s):
    far = s in (sTK, sKV) and 'far' in MODS or s == sKV and MODS.get('two') == 2 or s == sKM and 'farm' in MODS
    a(f"s_lshr_b32 s{d}, s{s}, 8\ns_{'xnor' if far else 'xor'}_b32 s{d}, s{d}, s{sSEL}\ns_and_b32 s{d}, s{d}, 8192\ns_add_u32 s{d}, s{d}, s{s}")
def tok_dma(a):
    near(a, sT + 5, sTK)
    a(f"s_add_u32 s{sT+4}, s{sT+5}, {VT_OFF - K_OFF}")
    for i, (so, o) in enumerate(((sT + 5, 0), (sT + 5, 256), (sT + 4, 0), (sT + 4, 256))):
        a(f"s_add_u32 m0, s{sTB}, {1024 * i - o}\nbuffer_load_dwordx4 v{vA1}, {ws}, s{so} offen offset:{o}{MODS.get('t', ' sc1')} lds")
    a(f"s_add_u32 s{sTK}, s{sTK}, 524288\ns_xor_b32 s{sTB}, s{sTB}, 4096")
def tok_read(a):
    for i in range(4): a(f"ds_read_b128 {vr(vKT+4*i)}, v{vTR} offset:{L_T + 1024*i}")
    a(f"v_xor_b32 v{vTR}, 4096, v{vTR}")

def role_prologue(a, w, name, nkv):
    cu = sT
    def msk(dst, hi):
        a(f"v_mov_b32 v{vT}, {OOB}")
        a(f"v_cndmask_b32 v{dst}, v{vT}, v{dst}, s[{sMB}:{sMB+1}]" if hi else f"v_cndmask_b32 v{dst}, v{dst}, v{vT}, s[{sMB}:{sMB+1}]")
    def xread(dst):
        a(f"""v_mul_u32_u24 v{dst}, {XROW*4}, v{vCOL}
        v_lshl_add_u32 v{dst}, v{vT+3}, 6, v{dst}
        v_lshl_add_u32 v{dst}, v{vT+2}, 4, v{dst}""")
    a(f"""s_lshl_b32 s{sT+6}, s{cu}, 10
    s_add_u32 s{sT+6}, s{sT+6}, {R_ST}
    s_lshr_b32 s{sT+7}, s{cu}, 2
    s_lshl_b32 s{sT+7}, s{sT+7}, 10
    s_add_u32 s{sT+7}, s{sT+7}, {R_SM}
    s_and_b32 s{sT+3}, s{cu}, 3
    s_lshl_b32 s{sT+3}, s{sT+3}, 2""")
    if w == 0:
        xread(vA1)
        a(f"s_sub_u32 s{sT+2}, s{sT+6}, 32\nv_add_u32 v{vA2}, s{sT+2}, v{vLIN}"); msk(vA2, True)
        a(f"s_add_u32 s{sT+2}, s{sT+7}, s{sT+3}\ns_sub_u32 s{sT+2}, s{sT+2}, 32\nv_add_u32 v{vA3}, s{sT+2}, v{vLIN}"); msk(vA3, True)
        for k in range(1, 4):
            a(f"""s_add_u32 s{sT+2}, s{cu}, {k}
            s_and_b32 s{sT+2}, s{sT+2}, 3
            s_and_b32 s{sT+1}, s{cu}, 0x7c
            s_or_b32 s{sT+2}, s{sT+2}, s{sT+1}
            s_lshl_b32 s{sT+2}, s{sT+2}, 10
            s_add_u32 s{sT+2}, s{sT+2}, {R_ST}
            v_add_u32 v{vA4+k-1}, s{sT+2}, v{vLIN}""")
        a(f"""v_add_u32 v{vA7}, s{sT+7}, v{vLIN}
        v_lshl_add_u32 v{vA8}, v{vT+3}, 4, v{vCOL}
        v_lshl_add_u32 v{vA8}, v{vT+2}, 1, v{vA8}      ; 16(g>>1) + 4a + 2(g&1) + b
        s_add_u32 s{sT+2}, s{sT+4}, {R_O}
        v_lshl_add_u32 v{vA8}, v{vA8}, 4, s{sT+2}""")
        msk(vA8, False)
    elif w == 1:
        xread(vA1)
        a(f"""s_lshr_b32 s{sT+2}, s{cu}, 4
        s_lshl_b32 s{sT+2}, s{sT+2}, 14
        s_and_b32 s{sT+1}, s{cu}, 15
        s_lshl_b32 s{sT+1}, s{sT+1}, 9
        s_add_u32 s{sT+2}, s{sT+2}, s{sT+1}
        s_add_u32 s{sT+2}, s{sT+2}, {KM_OFF}
        v_lshrrev_b32 v{vA2}, 2, v{vCOL}
        v_and_b32 v{vT}, 1, v0
        v_lshl_add_u32 v{vA2}, v{vA2}, 1, v{vT}        ; key
        v_lshl_add_u32 v{vA2}, v{vG}, 3, v{vA2}
        v_lshl_add_u32 v{vA2}, v{vA2}, 4, s{sT+2}""")
        msk(vA2, False)
        a(f"""v_add_u32 v{vA3}, s{sT+6}, v{vLIN}
        s_add_u32 s{sT+2}, s{sT+7}, s{sT+3}
        v_add_u32 v{vA4}, s{sT+2}, v{vLIN}""")
    elif w == 2:
        a(f"""s_lshr_b32 s{sT+2}, s{cu}, 4
        s_lshl_b32 s{sT+2}, s{sT+2}, 14
        s_and_b32 s{sT+1}, s{cu}, 15
        s_lshl_b32 s{sT+1}, s{sT+1}, 9
        s_add_u32 s{sT+2}, s{sT+2}, s{sT+1}
        s_add_u32 s{sT+2}, s{sT+2}, {VM_OFF}
        v_add_u32 v{vA1}, s{sT+2}, v{vLIN}
        v_mov_b32 v{vT}, {OOB}
        v_cmp_gt_u32 vcc, 32, v0
        v_cndmask_b32 v{vA1}, v{vT}, v{vA1}, vcc
        v_lshl_add_u32 v{vA2}, v0, 3, s{sT+4}
        v_add_u32 v{vA3}, {R_O}, v{vA2}
        s_lshl_b32 s{sT+2}, s{sX}, 12
        s_add_u32 s{sT+2}, s{sT+2}, {CTRL_OFF + C_PM}
        s_cmp_eq_u32 s{sJ}, 0
        s_cselect_b32 s{sT+2}, s{sT+2}, {OOB}
        v_lshl_add_u32 v{vA4}, v0, 7, s{sT+2}
        v_mov_b32 v{vT}, {OOB}
        v_cmp_gt_u32 vcc, 32, v0
        v_cndmask_b32 v{vA4}, v{vT}, v{vA4}, vcc""")
    else:
        a(f"""s_lshr_b32 s{sT+2}, s{cu}, 2
        s_lshl_b32 s{sT+2}, s{sT+2}, 14
        s_and_b32 s{sT+3}, s{cu}, 3
        s_lshl_b32 s{sT+3}, s{sT+3}, 11
        s_add_u32 s{sT+2}, s{sT+2}, s{sT+3}
        v_lshlrev_b32 v{vA1}, 9, v{vG}
        v_lshl_add_u32 v{vA1}, v{vCOL}, 4, v{vA1}
        v_add_u32 v{vA1}, s{sT+2}, v{vA1}
        {f'v_or_b32 v{vA1}, {OOB}, v{vA1}' if 'notok' in MODS else ''}
        s_mov_b32 s{sTK}, {K_OFF + nkv * 524288}
        s_lshl_b32 s{sT+2}, s{sX}, 8
        s_add_u32 s{sT+2}, s{sT+2}, {CTRL_OFF + C_PROG + 4}
        v_mov_b32 v{vA3}, s{sT+2}
        v_mov_b32 v{vT}, {OOB}
        v_cmp_eq_u32 vcc, 0, v0
        v_cndmask_b32 v{vA3}, v{vT}, v{vA3}, vcc""")
    a("s_barrier")
    a(f"ds_write_b128 v{vLIN}, {vr(vKT)} offset:{L_T + 1024 * w}\nv_add_u32 v{vRW}, {L_KP - L_P0 & 0xffffffff}, v{vRW}")
    for x in shares(): a(x)
    if w == 0:
        a(f"v_add_u32 v{vXL}, {L_XW}, v{vLIN}")
        for j in range(16): a(f"ds_write_b128 v{vXL}, {vr(vXR + 4 * j)} offset:{1024 * j}")
    else: a(f"v_add_u32 v{vTR}, 4096, v{vLIN}\ns_mov_b32 s{sXB}, {L_XW + 16384}\ns_sub_u32 s{sXQ}, s{sXO}, 65536")
    if w == 3:
        a(f"""s_lshr_b32 s{sKVF}, s{cu}, 3
        s_lshl_b32 s{sKVF}, s{sKVF}, 6
        s_add_u32 s{sKVF}, s{sKVF}, {CTRL_OFF + C_KV + 1024 * (nkv // 8 - 1)}
        s_mov_b32 s{sTB}, {L_T}
        v_mov_b32 v{vFL}, 0
        s_add_u32 s{sXP}, s{sXO}, {65536 - 3 * 16384}
        s_lshl_b32 s{sT+6}, s{sJ}, 11
        v_lshl_add_u32 v{vA2}, v0, 7, s{sT+6}
        v_mov_b32 v{vT}, {OOB}
        v_cmp_gt_u32 vcc, 16, v0
        v_cndmask_b32 v{vA2}, v{vT}, v{vA2}, vcc
        s_mov_b64 s[{XS}:{XS+1}], s[{DB}:{DB+1}]
        s_mov_b64 s[{XS+2}:{XS+3}], s[{DB+2}:{DB+3}]""")
        line_addr(a, vA4); a(line_load(vA4, XS))
    a(f"s_xor_b32 s{sT+6}, s{sSEL}, {PART_OFF >> 8 & 8192}\ns_waitcnt lgkmcnt(0)\ns_barrier")
    for r in [vPW, vPR, vPR + 1, vPR + 2]: a(f"v_add_u32 v{r}, s{sT+6}, v{r}")
    if w == 0:
        a(f"v_mov_b32 v{vTR}, v{vLIN}")
        tok_read(a)

def rec_loop(a, name, w, fast, trace=None, nsteps=64, ns_s=2, nkv=64, nb=(6, 4, 6), xs=None, exp=()):
    p = f"{name}_{'f' if fast else 's'}{w}"
    loc = "" if fast else " sc1"
    cold = []
    trn = [0]
    def stamp(i):
        if trace is not None: a(f"s_memtime s[{70+2*i}:{71+2*i}]")
    def smf(acc, wb, T, s): return f"v_smfmac_f32_16x16x64_bf16 {vr(acc)}, {vr(vA+4*rot(s))}, {ar(wb+32*T+8*rot(s))}, v{vIDX}"
    def ld(vaddr, s): return f"buffer_load_dwordx4 {vr(vA+4*rot(s))}, v{vaddr}, {ws}, s{sCUR} offen offset:{1024*rot(s)} sc1"
    def budget(out): return f"s_cmp_eq_u32 s{sBUD}, 0\ns_cbranch_scc1 {out}\ns_sub_u32 s{sBUD}, s{sBUD}, 1"
    def cnt(i): return f"s_add_u32 s{sTR+i}, s{sTR+i}, 1" if trace is not None else ""
    rot = (lambda s: (s + w) & 3) if "rot" in exp else (lambda s: s ^ (w & 1)) if "rot2" in exp else (lambda s: s)
    def stages(tag, vaddr, mm, ci, tail=0):
        q = f"{p}_{tag}"
        chk = lambda s: f"v_cmp_eq_u32 vcc, -1, v{vA+4*rot(s)}"
        a("s_waitcnt vmcnt(3)")
        if tag == "a": stamp(0)
        a(f"{chk(0)}\ns_cbranch_vccnz {q}m0")
        rest = {0: []}
        for s in range(4):
            M = mm(s)
            if s == 3:
                for x in M: a(x)
                break
            k = len(M) // 2
            for x in M[:k]: a(x)
            a(f"s_waitcnt vmcnt({2-s})\n{chk(s+1)}")
            k2 = len(M) - 1
            for x in M[k:k2]: a(x)
            a(f"s_cbranch_vccnz {q}m{s+1}")
            rest[s + 1] = M[k2:]
            for x in M[k2:]: a(x)
        a.lab(f"{q}b")
        c = ""
        for s in range(4):
            c += f"{q}m{s}:\n" + "\n".join(rest[s]) + f"\ns_mov_b32 s{sPEND}, {15 & ~((1 << s) - 1)}\n{budget(f'{q}h{4-s}{s}')}\n{cnt(ci)}\n{ld(vaddr, s)}\ns_branch {q}l{4-s}{(s+1)&3}\n"
        for n in range(1, 5):
            for s in range(4):
                c += f"{q}l{n}{s}:\n"
                if n < 4: c += f"s_bitcmp1_b32 s{sPEND}, {s}\ns_cbranch_scc0 {q}l{n}{(s+1)&3}\n"
                c += f"s_waitcnt vmcnt({n-1})\n{chk(s)}\ns_cbranch_vccz {q}h{n}{s}\n{budget(f'{q}h{n}{s}')}\n{cnt(ci+1)}\n{ld(vaddr, s)}\n"
            c += f"s_branch {q}l{n}0\n"
            for s in range(4):
                c += f"{q}h{n}{s}:\n" + "\n".join(mm(s)) + "\n"
                c += f"s_bitset0_b32 s{sPEND}, {s}\ns_branch {q}l{n-1}{(s+1)&3}\n" if n > 1 else (f"s_nop {tail-1}\n" if tail else "") + f"s_branch {q}b\n"
        cold.append(c)
    def zero(r0, r1):
        for r in range(r0, r1, 2): a(f"v_mov_b64 {vr(r,2)}, 0")
    mf = lambda d, x, y, c: a(f"v_mfma_f32_16x16x32_bf16 {vr(d)}, {vr(x)}, {vr(y)}, {vr(d) if c else 0}")
    def xreduce(fill=(), vP=vP):
        for pw in range(4):
            for b in range(2):
                a(f"ds_read_b128 {vr(vP+8*pw+4*b)}, v{vA1} offset:{L_X + pw*16*XROW*4 + 32*b}")
        for x in fill: a(x)
        a("s_waitcnt lgkmcnt(4)")
        for i in range(0, 8, 2): a(pk(vP + i, vP + i, vP + 8 + i))
        a("s_waitcnt lgkmcnt(2)")
        for i in range(0, 8, 2): a(pk(vP + i, vP + i, vP + 16 + i))
        a("s_waitcnt lgkmcnt(1)")
        for i in range(0, 4, 2): a(pk(vP + i, vP + i, vP + 24 + i))
        a("s_waitcnt lgkmcnt(0)")
        for i in range(4, 8, 2): a(pk(vP + i, vP + i, vP + 24 + i))
        for i in range(0, 8, 2): a(f"v_cvt_pk_bf16_f32 v{vX+i//2}, v{vP+i}, v{vP+i+1}")
    def vreduce(tmp):
        o = [x for x in range(4) if x != w]
        for k in range(3): a(f"ds_read_b128 {vr(tmp+4*k)}, v{vLIN} offset:{L_V + 1024*o[k]}")
        src = {w: vF, o[0]: tmp, o[1]: tmp + 4, o[2]: tmp + 8}
        a("s_waitcnt lgkmcnt(0)")
        for i in (0, 2): a(pk(tmp + 12 + i, src[0] + i, src[1] + i))
        for i in (0, 2): a(pk(vF + i, src[2] + i, src[3] + i))
        for i in (0, 2): a(pk(vF + i, vF + i, tmp + 12 + i))
        a(f"v_cvt_pk_bf16_f32 v{vR0}, v{vF}, v{vF+1}\nv_cvt_pk_bf16_f32 v{vR1}, v{vF+2}, v{vF+3}")
    def kvm():
        if "nokm" in exp or w not in (1, 2): return
        near(a, sT + 5, sKM)
        a(f"buffer_store_dwordx4 {vr(vX)}, v{vA2 if w == 1 else vA1}, {ws}, s{sT+5} offen{MODS.get('m', ' sc1')}\ns_add_u32 s{sKM}, s{sKM}, 131072")
    def slow():
        if "wb1" in exp and w in (1, 2):
            a(f"s_cmp_eq_u32 s{sSTEP}, 0\ns_cbranch_scc1 {p}_nkm")
            kvm()
            if w == 2: a(f"v_mov_b32 v{vT}, s{sSTEP}\nv_add_u32 v{vT}, -1, v{vT}\nbuffer_store_dword v{vT}, v{vA4}, {ws}, 0 offen sc1")
            a.lab(f"{p}_nkm")
        else: kvm()
        if w == 1 and "w1r" not in exp: a(f"buffer_store_dwordx4 {vr(vSENT)}, v{vPW}, {ws}, s{sPRST} offen sc1")
        if w and "nokvs" not in exp:
            own(0)
            near(a, sT + 5, sKV)
            a(f"s_add_u32 s{sT+4}, s{sT+5}, {VT_OFF - K_OFF}\ns_add_u32 s{sKV}, s{sKV}, 524288")
            for k, q in enumerate(PC[w]): a(f"buffer_store_dwordx4 {vr(vKP + 4 * k)}, v{vST}, {ws}, s{sT + 5 - (q >> 1)} offen offset:{256 * (q & 1)}{MODS.get('s', ' sc1')}")
            if w == 3 and fast:
                a(f"s_cmp_eq_u32 s{sSTEP}, 3\ns_cbranch_scc1 {p}_rw\n{p}_rwd:")
                cold.append(f"""{p}_rw:
                v_cmp_ne_u32 vcc, 0, v{vA5}
                s_and_b32 s{sT+6}, vcc_lo, {M_ROWS}
                s_cmp_eq_u32 s{sT+6}, {M_ROWS}
                s_cbranch_scc1 {p}_rwd
                {budget(f'{p}_rwd')}
                {line_load(vA4, XS)}
                s_waitcnt vmcnt(0)
                s_branch {p}_rw""")
            if w == 3 and "notouch" not in exp:
                a(f"""buffer_load_dword v{vDUM}, v{vA2}, {ws}, s{sXP} offen
                s_add_u32 s{sXP}, s{sXP}, 65536
                s_cmp_eq_u32 s{sSTEP}, 3
                s_cselect_b32 s{sXP}, {XG_OFF + 8 * 65536}, s{sXP}""")
            emit(sum(xat(2), []))
            own()
        if w == 3 and nkv < 64:
            a(f"""s_sub_u32 s{sT+6}, s{sSTEP}, {nkv-3}
            s_cmp_ge_u32 s{sT+6}, {nsteps-2-(nkv-3)}
            s_cbranch_scc1 {p}_ntk
            s_cmp_eq_u32 s{sT+6}, 0
            s_cbranch_scc1 {p}_kvf""")
            a(f"v_readfirstlane_b32 s{sT+6}, v{vFL}\ns_cmp_lt_u32 s{sT+6}, {KVT}\ns_cbranch_scc1 {p}_kvw\n{p}_kv_d:")
            c = Asm(); kv_wait(c, f"{p}_kv"); cold.append(f"{p}_kvw:\n" + "\n".join(c.lines[:-1]) )
            tok_dma(a)
            a(f"""{p}_kvf:
            s_add_u32 s{sT+6}, s{sSTEP}, 3
            s_and_b32 s{sT+6}, s{sT+6}, 7
            s_cselect_b32 s{sT+6}, 0, 1024
            s_add_u32 s{sKVF}, s{sKVF}, s{sT+6}
            v_mov_b32 v{vT+1}, 0
            buffer_load_dword v{vFL}, v{vT+1}, {ws}, s{sKVF} offen sc1""")
            a.lab(f"{p}_ntk")
    PC = {1: (0,), 2: (2,), 3: (1, 3)}
    vKP, vRD = 136, 104
    nown = [0]
    def own(inc=None):
        if nkv == 64: return
        if inc is None: a.lab(f"{p}_ow{nown[0]}"); nown[0] += 1
        else: a(f"s_cmp_ge_u32 s{sSTEP}, {nkv - 1 + inc}\ns_cbranch_scc1 {p}_ow{nown[0]}")
    def emit(l):
        for x in l: a(x)
    MM = lambda js, reg: sum((kvmm(j, reg(j)) for j in js), [])
    def xld(j, dma=False):
        cur = not dma and j >= nb[0] and xs
        r = [f"s_add_u32 s{sT+4}, s{sXQ if cur else sXO}, {4096 * (j >> 2) - w * 16384 * dma & 0xffffffff}"]
        if dma: return r + [f"s_add_u32 m0, s{sXB}, {1024 * j - XOFF(j)}", f"buffer_load_dwordx4 v{vXL}, {ws}, s{sT+4} offen offset:{XOFF(j)} lds"]
        return r + [f"buffer_load_dwordx4 {vr(vXR + 4 * j)}, v{vXL}, {ws}, s{sT+4} offen offset:{XOFF(j)}"]
    def xat(pos):
        if not xs or not w or "nox" in exp: return []
        order = list(range(nb[0], 16)) + list(range(nb[0]))
        o0 = sum(x[0] for x in xs[:pos]); d0 = sum(x[1] for x in xs[:pos])
        assert sum(x[0] for x in xs) == 16 and sum(x[1] for x in xs) == 16 and xs[0][0] + xs[1][0] >= 16 - nb[0] >= xs[0][0]
        return [xld(j) for j in order[o0:o0 + xs[pos][0]]] + [xld(j, True) for j in range(d0, d0 + xs[pos][1]) if j % 3 == w % 3]
    def kv_b():
        if "nokvb" in exp: return
        own(0)
        js = list(range(nb[0])); h = len(js) // len(PC[w])
        for k, q in enumerate(PC[w]):
            for ww in range(4):
                for hh in range(2): a(f"ds_read_b128 {vr(vRD + 8 * ww + 4 * hh)}, v{vLIN} offset:{L_KP + 8192 * q + 2048 * ww + 1024 * hh}")
            f = []
            for ww in range(1, 4): f += [f"s_waitcnt lgkmcnt({6 - 2 * ww})"] + [pk(vRD + i, vRD + i, vRD + 8 * ww + i) for i in range(0, 8, 2)]
            r = vKP + 4 * k
            f += [f"v_cvt_pk_bf16_f32 v{r+i}, v{vRD+2*i}, v{vRD+2*i+1}" for i in range(4)]
            if q < 2: f += [f"v_permlane32_swap_b32 v{r}, v{r+2}", f"v_permlane32_swap_b32 v{r+1}, v{r+3}"]
            f += [f"ds_write_b128 v{vTR}, {vr(r)} offset:{L_T + 1024 * q}"]
            jj = js[k * h:(k + 1) * h] if k + 1 < len(PC[w]) else js[k * h:]
            emit(merge(MM(jj, lambda j: vXR + 4 * j), f, 3, min(6, 4 * len(jj) - 4)))
        if "xb" in exp:
            for j in js: emit(xld(j))
        emit(sum(xat(1), []))
        own()
        a(f"v_xor_b32 v{vTR}, 4096, v{vTR}")
    def kv_d():
        if "nokvd" in exp: return
        own(0)
        js = list(range(nb[0], 16))
        ld_ = [] if "xb" in exp else [xld(j) for j in range(nb[0])]
        dm = [xld(j, True) for j in range(16)] if w == 3 else []
        if "nox" in exp: ld_ = []; dm = []
        if xs:
            ld_ = []; dm = []
            emit(merge(MM(js, lambda j: vXR + 4 * j), ["\n".join(x) for x in xat(3)], 1, nb[3]))
            js = []
        for j in js:
            m = kvmm(j, vXR + 4 * j)
            f = []
            if j > js[0] and "nox" not in exp: f += xld(j - 1)
            if ld_: f += ld_.pop(0)
            a(m[0]); a(m[1]); emit(f); a(m[2])
            if dm: emit(dm.pop(0))
            a(m[3])
            if dm: emit(dm.pop(0))
        if "nox" not in exp and not xs: emit(xld(15))
        emit(sum(ld_ + dm, []))
        emit(shares())
        a(f"""s_mov_b32 s{sXQ}, s{sXO}
        s_add_u32 s{sXO}, s{sXO}, 65536
        s_cmp_eq_u32 s{sSTEP}, 4
        s_cselect_b32 s{sXO}, {XG_OFF + 8 * 65536 + 16384 * w}, s{sXO}""")
        a(f"s_xor_b32 s{sXB}, s{sXB}, 16384")
        own()
    n0, n1 = nb[1], nb[1] + nb[2]
    assert n0 <= 4 and 8 <= n1 <= n0 + 8
    W0 = lambda j: 180 + 4 * j if j < 4 else 164 + 4 * ((j - 4) & 7)
    xrd = lambda j: f"ds_read_b128 {vr(W0(j))}, v{vXL} offset:{1024 * j}"
    k0 = "nokv0" not in exp
    if trace is not None:
        for i in range(16): a(f"s_mov_b32 s{sTR+i}, 0")
        a(f"v_and_b32 v247, 31, v0\nv_lshlrev_b32 v247, 2, v247\nv_add_u32 v247, {98304 + 8192*w}, v247\nv_mov_b32 v246, 131072\nv_cmp_gt_u32 vcc, 32, v0\nv_cndmask_b32 v247, v246, v247, vcc\nv_mov_b32 v246, 0")
    a.lab(f"{p}_top")
    if w == 0 and k0 and "wsd" not in exp: own(0); emit(shares()); own()
    stages("a", vMEMR, lambda s: [smf(vQ0, 0, 0, s), smf(vQ1, 0, 1, s), smf(vK0, 64, 0, s), smf(vK1, 64, 1, s)], 1)
    stamp(1)
    if w == 1:
        a(f"buffer_store_dwordx4 {vr(vSENT)}, v{vA3}, {ws}, s{sRST} offen{loc}")
        a(f"buffer_store_dword v{vSENT}, v{vA4}, {ws}, s{sRST} offen{loc}")
    if w == 2:
        if "prs" not in exp: a(f"buffer_store_dwordx2 {vr(vSENT,2)}, v{vA2}, {ws}, s{sRST} offen{loc}")
        a(f"buffer_store_dwordx2 {vr(vSENT,2)}, v{vA3}, {ws}, s{sRST} offen{loc}")
    V = [smf(vV0 + 4 * T, 128, T, s) for s in range(4) for T in range(2)]
    a(V[0])
    a(pk(vQ0, vQ0, vQ0 + 2)); a(pk(vQ1, vQ1, vQ1 + 2))
    for T in range(2): a(f"ds_write2_b32 v{vXW}, v{vQ0+4*T}, v{vQ0+4*T+1} offset0:{2*XROW+16*T} offset1:{3*XROW+16*T}")
    a(V[1])
    a(pk(vK0, vK0, vK0 + 2)); a(pk(vK1, vK1, vK1 + 2))
    for T in range(2): a(f"ds_write2_b32 v{vXW}, v{vK0+4*T}, v{vK0+4*T+1} offset0:{16*T} offset1:{XROW+16*T}")
    a(f"""s_and_b32 s{sT+6}, s{sSTEP}, 3
    s_lshl_b32 s{sCUR}, s{sT+6}, 19
    s_add_u32 s{sCUR}, s{sCUR}, {RING_OFF}""")
    for x in V[2:4]: a(x)
    a("s_waitcnt lgkmcnt(0)\ns_barrier")
    stamp(2)
    if "wb1" in exp: slow()
    vfold = [pk(vF, vV0, vV0 + 2), pk(vF + 2, vV1, vV1 + 2)]
    if w == 0:
        xreduce(V[4:])
        mf(vD, vKT, vX, 0); mf(vD + 4, vKT + 4, vX, 0); mf(vD + 8, vX, vX, 0)
        for x in vfold: a(x)
        a(f"buffer_store_dwordx4 {vr(vD)}, v{vA2}, {ws}, s{sCUR} offen{loc}")
        a(f"buffer_store_dwordx4 {vr(vD+4)}, v{vA2}, {ws}, s{sCUR} offen offset:32{loc}")
        a(f"buffer_store_dword v{vD+8}, v{vA3}, {ws}, s{sCUR} offen{loc}")
        a(f"buffer_store_dword v{vD+9}, v{vA3}, {ws}, s{sCUR} offen offset:32{loc}")
        stamp(3)
        def sld(k):
            b = vP + 16 * k
            return "\n".join(f"buffer_load_dwordx4 {vr(b+4*i)}, v{vA4+i}, {ws}, s{sCUR} offen sc1" for i in range(4))
        def schk(k, o, done, neg=False):
            b = vP + 16 * k
            return f"""s_waitcnt vmcnt({o+3})
            {pk(vS, vSO, b)}
            {pk(vS+2, vSO+2, b+2)}
            s_waitcnt vmcnt({o+2})
            {pk(vS, vS, b+4)}
            {pk(vS+2, vS+2, b+6)}
            s_waitcnt vmcnt({o+1})
            {pk(vS, vS, b+8)}
            {pk(vS+2, vS+2, b+10)}
            s_waitcnt vmcnt({o})
            {pk(vS+4, b+12, b+14)}
            v_add_f32 v{vS+4}, v{vS+4}, v{vS+5}
            v_cmp_u_f32 vcc, v{vS}, v{vS+4}
            s_cbranch_{'vccnz' if neg else 'vccz'} {done}"""
        if "acks" not in exp and "sb2" not in exp: a(sld(0))
        a(f"ds_write_b128 v{vLIN}, {vr(vF)} offset:{L_V}")
        a(f"s_mov_b64 vcc, s[{sMB}:{sMB+1}]")
        for i in range(4): a(f"v_cndmask_b32_dpp v{vSO+i}, v{vD+i}, v{vD+4+i}, vcc quad_perm:[2,3,2,3] row_mask:0xf bank_mask:0xf")
        a("s_waitcnt lgkmcnt(0)\ns_barrier")
        stamp(4)
        a(f"s_cmp_eq_u32 s{sSTEP}, {nsteps-1}\ns_cbranch_scc1 {p}_fin")
        if "sb2" in exp: a(sld(0))
        vreduce(vP + 32)
        if ns_s == 2: a(sld(1))
        zero(vQ0, vV1 + 4)
        stamp(5)
        if "acks" in exp: a("s_waitcnt vmcnt(0)"); stamp(6); a(sld(0))
        else: stamp(6)
        o = 4 * (ns_s - 1)
        a(schk(0, o, f"{p}_ps", True))
        c = f"{p}_ps:\n"
        if ns_s == 2:
            for k in range(2): c += f"{budget(f'{p}_psd')}\n{cnt(5)}\n{sld(k)}\n{schk(k ^ 1, o, f'{p}_psd')}\n"
        else:
            c += f"{budget(f'{p}_psd')}\n{cnt(5)}\n{sld(0)}\n{schk(0, 0, f'{p}_psd')}\n"
        cold.append(c + f"s_branch {p}_ps")
        a.lab(f"{p}_psd")
        stamp(7)
        m, t = vT, vT + 1
        D = "quad_perm:[2,3,0,1] row_mask:0xf bank_mask:0xf"
        a(f"""v_max3_f32 v{m}, v{vS}, v{vS+1}, v{vS+4}
        v_max3_f32 v{m}, v{m}, v{vS+2}, v{vS+3}
        v_max_f32_dpp v{m}, v{m}, v{m} {D}
        v_mov_b32 v{t}, v{m}
        v_permlane16_swap_b32 v{m}, v{t}
        v_max_f32 v{m}, v{m}, v{t}
        v_mov_b32 v{t}, v{m}
        v_permlane32_swap_b32 v{m}, v{t}
        v_max_f32 v{m}, v{m}, v{t}
        v_mul_f32 v{m}, s{sCSC}, v{m}""")
        for i in range(5): a(f"v_fma_f32 v{vS+i}, v{vS+i}, s{sCSC}, -v{m}")
        for i in range(5): a(f"v_exp_f32 v{vS+i}, v{vS+i}")
        a(f"""v_cvt_pk_bf16_f32 v{vPB}, v{vS}, v{vS+1}
        v_cvt_pk_bf16_f32 v{vPB+1}, v{vS+2}, v{vS+3}
        v_mov_b32_dpp v{t}, v{vS+4} {D}
        v_mov_b32_dpp v{vPB+2}, v{vPB} {D}
        v_mov_b32_dpp v{vPB+3}, v{vPB+1} {D}
        v_cvt_pk_bf16_f32 v{vBM}, v{vS+4}, v{t}""")
        mf(vD + 8, vONE, vPB, 0); mf(vD + 8, vONE, vBM, 1)
        mf(vD, vVT, vPB, 0); mf(vD, vR0, vBM, 1); mf(vD + 4, vVT + 4, vPB, 0)
        a(f"v_rcp_f32 v{m}, v{vD+8}")
        mf(vD + 4, vR1, vBM, 1)
        for i in range(0, 8, 2):
            a(f"v_pk_mul_f32 {vr(vD+i,2)}, {vr(vD+i,2)}, {vr(m,2)} op_sel_hi:[1,0]")
            a(f"v_cvt_pk_bf16_f32 v{vX+i//2}, v{vD+i}, v{vD+i+1}")
        a(f"buffer_store_dwordx4 {vr(vX)}, v{vA8}, {ws}, s{sCUR} offen{loc}")
        stamp(8)
        if k0: emit(xrd(j) for j in range(4))
        if "acko" in exp: a("s_waitcnt vmcnt(0)")
    else:
        for x in V[4:]: a(x)
        for x in vfold: a(x)
        a(f"ds_write_b128 v{vLIN}, {vr(vF)} offset:{L_V + 1024*w}")
        if xat(0): own(0); emit(sum(xat(0), [])); own()
        stamp(3)
        a("s_waitcnt lgkmcnt(0)\ns_barrier")
        stamp(4)
        if w == 1: xreduce(vP=vRD)
        elif w == 2:
            vreduce(124)
            a(f"""v_permlane16_swap_b32 v{vR0}, v{vR1}
            v_mov_b32 v{vX}, v{vR0}
            v_mov_b32 v{vX+1}, v{vR1}
            v_mov_b32 v{vX+2}, v{vR0}
            v_mov_b32 v{vX+3}, v{vR1}
            v_permlane32_swap_b32 v{vX}, v{vX+2}
            v_permlane32_swap_b32 v{vX+1}, v{vX+3}""")
        a(f"s_cmp_eq_u32 s{sSTEP}, {nsteps-1}\ns_cbranch_scc1 {p}_fin")
        zero(vQ0, vV1 + 4)
        stamp(5)
        kv_b()
        for i in range(6, 9): stamp(i)
    a("s_barrier")
    stamp(9)
    for s in range(4): a(ld(vOR, s))
    if w == 0 and k0:
        own(0)
        a("s_waitcnt lgkmcnt(0)")
        emit(xrd(j) for j in range(4, 8))
        for j in range(n0): emit(kvmm(j, W0(j)) + [xrd(j + 8)])
        own()
    stages("o", vOR, lambda s: [smf(vO0, 192, 0, s), smf(vO1, 192, 1, s)], 3)
    stamp(10)
    a(pk(vF, vO0, vO0 + 2)); a(pk(vF + 2, vO1, vO1 + 2))
    a(f"ds_write2_b32 v{vOPW}, v{vF}, v{vF+1} offset0:0 offset1:72\nds_write2_b32 v{vOPW}, v{vF+2}, v{vF+3} offset0:160 offset1:232")
    if "w2c" not in exp and "wb1" not in exp: slow()
    a("s_waitcnt lgkmcnt(0)\ns_barrier")
    stamp(11)
    book = f"""s_add_u32 s{sSTEP}, s{sSTEP}, 1
    s_mov_b32 s{sT+7}, s{sPCUR}
    s_and_b32 s{sT+6}, s{sSTEP}, 3
    s_lshl_b32 s{sPCUR}, s{sT+6}, {PSLOT.bit_length() - 1}
    s_xor_b32 s{sPRST}, s{sPCUR}, {2*PSLOT}
    s_add_u32 s{sPCUR}, s{sPCUR}, {PART_OFF}
    s_add_u32 s{sPRST}, s{sPRST}, {PART_OFF}
    s_xor_b32 s{sT+6}, s{sT+6}, 2
    s_lshl_b32 s{sRST}, s{sT+6}, 19
    s_add_u32 s{sRST}, s{sRST}, {RING_OFF}"""
    if w == 0:
        for pw in range(4): a(f"ds_read_b128 {vr(vP+4*pw)}, v{vOPR} offset:{L_O + OPW*pw}")
        if "prs" in exp: a(f"buffer_store_dwordx2 {vr(vSENT,2)}, v{vMW}, {ws}, s{sRST} offen{loc}")
        a(f"""s_waitcnt lgkmcnt(2)
        {pk(vP, vP, vP+4)}
        {pk(vP+2, vP+2, vP+6)}
        s_waitcnt lgkmcnt(0)
        {pk(vP+8, vP+8, vP+12)}
        {pk(vP+10, vP+10, vP+14)}
        {pk(vF, vP, vP+8)}
        {pk(vF+2, vP+2, vP+10)}
        buffer_store_dwordx4 {vr(vF)}, v{vPW}, {ws}, s{sPCUR} offen sc1""")
        stamp(12)
        def pld(k, so): return "\n".join(f"buffer_load_dwordx4 {vr(vP+12*k+4*i)}, v{vPR+i}, {ws}, s{so} offen sc1" for i in range(3))
        def pchk(k, o, lab, neg):
            b = vP + 12 * k
            return f"""s_waitcnt vmcnt({o+1})
            {pk(b, b, b+4)}
            {pk(b+2, b+2, b+6)}
            s_waitcnt vmcnt({o})
            {pk(b+8, b+8, vF)}
            {pk(b+10, b+10, vF+2)}
            {pk(b, b, b+8)}
            {pk(b+2, b+2, b+10)}
            v_cmp_u_f32 vcc, v{b}, v{b+3}
            v_cvt_pk_bf16_f32 v{vX}, v{b}, v{b+1}
            v_cvt_pk_bf16_f32 v{vX+1}, v{b+2}, v{b+3}
            s_cbranch_{'vccnz' if neg else 'vccz'} {lab}"""
        when = [c for c in "012" if "p" + c in exp] or ["2"]
        np_ = len(when); k = 0
        if "0" in when: a(pld(k, sPCUR)); k += 1
        tok_read(a)
        zero(vO0, vO1 + 4)
        a(book)
        if k0:
            own(1)
            for j in range(n0, n1):
                emit(kvmm(j, W0(j)))
                if j < 8: a(xrd(j + 8))
            own()
        if "1" in when: a(f"s_waitcnt vmcnt({1 + 3 * k})"); a(pld(k, sT + 7)); k += 1
        if "2" in when: a(f"s_waitcnt vmcnt({3 * k})"); stamp(13); a(pld(k, sT + 7)); k += 1
        else: stamp(13)
        if k0:
            own(1)
            a("s_waitcnt lgkmcnt(0)")
            emit(MM(range(n1, 16), W0))
            if "wsd" in exp: emit(shares())
            own()
            a(f"v_xor_b32 v{vXL}, 16384, v{vXL}")
        o = 3 * (np_ - 1)
        a(pchk(0, o, f"{p}_ppr", True))
        c = f"{p}_ppr:\n"
        for k in range(np_): c += f"{budget(f'{p}_ppd')}\n{cnt(6)}\n{pld(k, sT + 7)}\n{pchk((k + 1) % np_, o, f'{p}_ppd', False)}\n"
        cold.append(c + f"s_branch {p}_ppr")
        a(f"""{p}_ppd:
        buffer_store_dwordx2 {vr(vX,2)}, v{vMW}, {ws}, s{sCUR} offen{loc}""")
        stamp(14)
        if "ackm" in exp: a("s_waitcnt vmcnt(0)")
        a("s_waitcnt lgkmcnt(0)")
    else:
        if "w2c" in exp: slow()
        if w == 2 and "wb1" not in exp: a(f"v_mov_b32 v{vT}, s{sSTEP}\nbuffer_store_dword v{vT}, v{vA4}, {ws}, 0 offen sc1")
        zero(vO0, vO1 + 4)
        stamp(12)
        kv_d()
        a(book)
        a("s_waitcnt lgkmcnt(0)")
        for i in (13, 14): stamp(i)
    a("s_barrier")
    stamp(15)
    for s in range(4): a(ld(vMEMR, s))
    if trace is not None:
        a("s_memrealtime s[36:37]\ns_waitcnt lgkmcnt(0)")
        for i in range(16): a(f"v_writelane_b32 v246, s{70+2*i}, {i}")
        a("v_writelane_b32 v246, s36, 16")
        for i in range(1, 7): a(f"v_writelane_b32 v246, s{sTR+i}, {16+i}")
        a(f"ds_write_b32 v247, v246\nv_add_u32 v247, 128, v247")
    a(f"s_branch {p}_top")
    for c in cold: a(c)
    a.lab(f"{p}_fin")
    kvm()
    a("s_waitcnt vmcnt(0)\ns_barrier")
    if w == 3:
        a(f"""v_mov_b32 v{vT}, 1
        buffer_atomic_add v{vT}, v{vA3}, {ws}, 0 offen sc0{'' if fast else ' sc1'}
        s_lshl_b32 s{sT+2}, s{sX}, 12
        s_add_u32 s{sT+2}, s{sT+2}, {CTRL_OFF + C_PM}
        v_mov_b32 v{vT+1}, {OOB}
        v_cmp_gt_u32 vcc, 32, v0
        s_waitcnt vmcnt(0)
        v_readfirstlane_b32 s{sT+3}, v{vT}
        v_mov_b32 v{vT}, 64
        s_cmp_eq_u32 s{sT+3}, 31
        s_cselect_b32 s{sT+2}, s{sT+2}, {OOB}
        v_lshl_add_u32 v{vA3}, v0, 7, s{sT+2}
        v_cndmask_b32 v{vA3}, v{vT+1}, v{vA3}, vcc
        buffer_store_dword v{vT}, v{vA3}, {ws}, 0 offen sc1""")
    if trace is not None:
        a(f"s_lshl_b32 s{sT+6}, s{sX}, 5\ns_add_u32 s{sT+6}, s{sT+6}, s{sJ}\ns_lshl_b32 s{sT+6}, s{sT+6}, 15\ns_add_u32 s{sT+6}, s{sT+6}, {TRACE_OFF + 8192*w}")
        for i in range(8):
            a(f"v_add_u32 v247, {98304 + 8192*w + 1024*i}, v{vLIN}\nds_read_b128 v[248:251], v247\ns_waitcnt lgkmcnt(0)\nbuffer_store_dwordx4 v[248:251], v{vLIN}, {ws}, s{sT+6} offen\ns_add_u32 s{sT+6}, s{sT+6}, 1024\ns_waitcnt vmcnt(0)")
    a(f"s_branch {name}_recdone")

def rec_all(a, name, stamp=lambda i: None, nkv=64, pf=0, **kw):
    rec_prologue(a, name, stamp, pf)
    for w in range(3):
        a(f"s_cmp_eq_u32 s{sW}, {w}\ns_cbranch_scc1 {name}_rp{w}")
    for w in (3, 0, 1, 2):
        if w != 3: a.lab(f"{name}_rp{w}")
        role_prologue(a, w, name, nkv)
        stamp(3)
        a(f"s_cmp_eq_u32 s{sMODE}, 0\ns_cbranch_scc1 {name}_safe{w}")
        rec_loop(a, name, w, True, nkv=nkv, **kw)
        a.lab(f"{name}_safe{w}")
        rec_loop(a, name, w, False, nkv=nkv, **kw)
```

```python
from asmlib import *
from layout import *
from prep import srd
from rec import WS, sX, sJ, sW, sMODE, sG, sBUD, sT
sXCC, sVOTE, sPASS, sSELV, sCLR = 56, 57, 58, 59, 38
DB, XS = 72, 8
WKS, WVS, WQS, WOS, M0S = 40, 44, 48, 52, 96
LN_L = 131072
D_DONE, D_BAD, D_GT, D_GA, D_ROWS = 32, 40, 41, 42, 43
M_ROWS = 15 << D_ROWS - D_DONE
ws = f"s[{WS}:{WS+3}]"; db = f"s[{DB}:{DB+3}]"
vRAW, vUN, vOUT = 16, 64, 7

def lane0(a, v, s):
    a(f"v_mov_b32 v{v}, {OOB}\nv_writelane_b32 v{v}, s{s}, 0")
def one(a, v, w, off):
    a(f"s_cmp_eq_u32 s{sW}, {w}\ns_cselect_b32 s{off}, s{off}, {OOB}")
    lane0(a, v, off)

MBOX = CTRL_OFF + CTRL_SIZE
def mbox(a, d, own=True):
    a(f"s_lshl_b32 s{d}, s{sXCC}, 5")
    if own: a(f"s_add_u32 s{d}, s{d}, s{sJ}")
    a(f"s_lshl_b32 s{d}, s{d}, 7\ns_add_u32 s{d}, s{d}, {MBOX}")
def post(a, va, vd, d):
    mbox(a, d, False)
    a(f"""v_lshl_add_u32 v{va}, v0, 7, s{d}
    v_mov_b32 v{va+2}, {OOB}
    v_cmp_gt_u32 vcc, 32, v0
    v_cndmask_b32 v{va}, v{va+2}, v{va}, vcc
    buffer_store_dword v{vd}, v{va}, {ws}, 0 offen""")
def rows_done(a, lab):
    a(f"""s_lshl_b32 s{sT+6}, s{sXCC}, 4
    s_add_u32 s{sT+6}, s{sT+6}, 8
    v_mov_b32 v97, 1""")
    lane0(a, 96, sT + 6)
    a(f"""buffer_atomic_add v97, v96, {db}, 0 offen sc0
    s_waitcnt vmcnt(0)
    v_readfirstlane_b32 s{sT+4}, v97
    v_mov_b32 v97, 1
    s_cmp_lg_u32 s{sT+4}, 31
    s_cbranch_scc1 {lab}""")
    post(a, 96, 97, sT + 6)

TR = False
def st(a, r):
    if TR: a(f"s_memrealtime s[{r}:{r+1}]\ns_waitcnt lgkmcnt(0)")

GP = 0
def ahead(a, mats, w0, lab):
    a(f"""s_sub_u32 s{sT}, s{sW}, {w0}
    s_cmp_ge_u32 s{sT}, 2
    s_cbranch_scc1 {lab}
    s_lshl_b32 s{sT+1}, s{sG}, 1
    s_add_u32 s{sT}, s{sT}, s{sT+1}
    s_lshl_b32 s{sT}, s{sT}, 15
    v_lshlrev_b32 v200, {6 if GP & 16 else 7}, v0""")
    n = 8 if GP & 16 else 4
    for i in range(n):
        for R in mats: a(f"buffer_load_dword v201, v200, s[{R}:{R+3}], s{sT} offen")
        if i < n - 1: a(f"s_add_u32 s{sT}, s{sT}, {32768 // n}")
def entry(a, name, rec_pre, rec_ask, n_pre, force_safe=False, rec_early=None):
    a(f"s_cmp_ge_u32 s2, 256\ns_cbranch_scc1 {name}_end")
    srd(a, DB, A_DBG, 256); srd(a, WS, A_WS, WS_BYTES); srd(a, XS, A_X, 2048 * 1024 * 2)
    a(f"""
    v_lshrrev_b32 v2, 6, v0            ; wave
    v_and_b32 v0, 63, v0
    s_getreg_b32 s{sXCC}, hwreg(HW_REG_XCC_ID, 0, 4)
    v_readfirstlane_b32 s{sW}, v2
    v_mov_b32 v97, 1
    s_lshl_b32 s{sT}, s{sXCC}, 4
    s_cmp_lt_u32 s{sXCC}, 8
    s_cselect_b32 s{sT}, s{sT}, {OOB}
    s_waitcnt lgkmcnt(0)
    s_and_b32 s{sT+7}, s{DB}, 127
    s_cselect_b32 s{sT}, {OOB}, s{sT}""")
    one(a, 96, 0, sT)
    a(f"buffer_atomic_add v97, v96, {db}, 0 offen sc0")
    for s, k in ((WKS, A_WK), (WVS, A_WV), (WQS, A_WQ), (WOS, A_WO)): srd(a, s, k, 8 * MB)
    srd(a, M0S, A_MEM0, 16384)
    a(f"""v_mov_b32 v8, -1
    v_mov_b32 v9, -1
    v_mov_b32 v10, -1
    v_mov_b32 v11, -1
    v_mov_b32 v12, -1
    v_mov_b32 v255, -1
    s_mov_b32 s{sBUD}, 0x100000
    s_lshr_b32 s{sT}, s2, 3
    s_lshl_b32 s{sT}, s{sT}, 1
    s_xor_b32 s{sT+1}, s2, s{sW}
    s_and_b32 s{sT+1}, s{sT+1}, 1
    s_add_u32 s{sT}, s{sT}, s{sT+1}
    s_lshl_b32 s{sT}, s{sT}, 3
    s_and_b32 s{sT+1}, s2, 7
    s_add_u32 s{sT}, s{sT}, s{sT+1}
    s_add_u32 s{sT}, s{sT}, {PART_OFF >> 10}
    s_add_u32 s{sT+1}, s2, {RING_OFF >> 10}
    s_cmp_eq_u32 s{sW}, 0
    s_cselect_b32 s{sT}, s{sT+1}, s{sT}
    s_add_u32 s{sT+1}, s2, {RING_OFF + SLOT >> 10}
    s_cmp_eq_u32 s{sW}, 3
    s_cselect_b32 s{sT}, s{sT+1}, s{sT}
    s_lshl_b32 s{sCLR}, s{sT}, 10
    v_lshlrev_b32 v13, 4, v0
    buffer_store_dwordx4 v[8:11], v13, {ws}, s{sCLR} offen sc1
    s_cmp_eq_u32 s{sW}, 3
    s_cbranch_scc0 {name}_c1
    v_bfe_u32 v14, v0, 3, 1
    v_lshlrev_b32 v14, 19, v14
    v_and_b32 v15, 7, v0
    v_lshl_add_u32 v14, v15, 4, v14
    s_lshl_b32 s{sT}, s2, 7
    s_add_u32 s{sT}, s{sT}, {RING_OFF + R_SM}
    v_add_u32 v14, s{sT}, v14
    s_lshl_b32 s{sT}, s2, 9
    s_add_u32 s{sT}, s{sT}, {CTRL_OFF - 256}
    v_add_u32 v15, s{sT}, v13
    v_cmp_gt_u32 vcc, 16, v0
    v_cndmask_b32 v14, v15, v14, vcc
    v_cndmask_b32 v16, 0, v8, vcc
    v_mov_b32 v15, {OOB}
    v_mov_b32 v17, v16
    v_mov_b32 v18, v16
    v_mov_b32 v19, v16
    v_cmp_gt_u32 vcc, 48, v0
    v_cndmask_b32 v14, v15, v14, vcc
    buffer_store_dwordx4 v[16:19], v14, {ws}, 0 offen sc1
    {name}_c1:
    v_mov_b32 v98, {LN_L + 512}
    v_lshl_add_u32 v99, v2, 2, v98
    s_waitcnt vmcnt(0)
    v_readfirstlane_b32 s{sT}, v97
    v_mov_b32 v97, s{sT}
    ds_write_b32 v99, v97
    s_waitcnt lgkmcnt(0)
    s_barrier
    ds_read_b32 v100, v98
    s_and_b32 s{sX}, s{sXCC}, 3
    s_lshl_b32 s{sG}, s{sX}, 5
    s_mov_b32 s{sPASS}, 0
    s_mov_b32 s{sVOTE}, 1
    s_waitcnt lgkmcnt(0)
    v_readfirstlane_b32 s{sJ}, v100
    s_add_u32 s{sG}, s{sG}, s{sJ}
    s_cmp_lt_u32 s{sXCC}, 4
    s_cselect_b32 s{sG}, -1, s{sG}
    s_lshr_b32 s{sT}, s{sXCC}, 3
    s_or_b32 s{sT}, s{sT}, s{sT+7}
    s_cselect_b32 s{sJ}, 32, s{sJ}
    s_cmp_ge_u32 s{sXCC}, {(8, 0, 4)[force_safe]}
    s_cselect_b32 s{sT}, 31, 32
    s_cmp_lt_u32 s{sJ}, s{sT}
    s_cbranch_scc1 {name}_role
    s_mov_b32 s{sT}, {4 * D_BAD}
    v_mov_b32 v97, 1""")
    assert PART_OFF >> 21 & 1
    one(a, 96, 0, sT)
    a(f"""buffer_store_dword v97, v96, {db}, 0 offen sc1
    {name}_fb:
    s_load_dwordx2 s[{WQS}:{WQS+1}], s[0:1], {A_WQ}
    s_waitcnt vmcnt(0) lgkmcnt(0)
    s_barrier
    s_mov_b32 s{sT}, {4 * D_GT}
    v_mov_b32 v97, 1""")
    one(a, 96, 0, sT)
    a(f"""buffer_atomic_add v97, v96, {db}, 0 offen sc0 sc1
    v_mov_b32 v98, {LN_L + 512}
    s_waitcnt vmcnt(0)
    s_cmp_lg_u32 s{sW}, 0
    s_cbranch_scc1 {name}_fb1
    v_readfirstlane_b32 s{sT}, v97
    v_mov_b32 v97, s{sT}
    ds_write_b32 v98, v97
    s_waitcnt lgkmcnt(0)
    {name}_fb1:
    s_barrier
    ds_read_b32 v97, v98
    s_mov_b32 s{sPASS}, 1
    s_waitcnt lgkmcnt(0)
    v_readfirstlane_b32 s{sT}, v97
    s_bfe_u32 s{sX}, s{sT}, 0x20005
    s_and_b32 s{sJ}, s{sT}, 31
    s_and_b32 s{sT}, s{sT}, 255
    s_sub_u32 s{sG}, s{sT}, 128
    s_cselect_b32 s{sG}, -1, s{sG}
    {name}_role:""")
    st(a, 84)
    mbox(a, sT)
    a(f"s_cmp_eq_u32 s{sPASS}, 0\ns_cselect_b32 s{sT}, s{sT}, {OOB}\nv_mov_b32 v99, 0")
    one(a, 98, 3, sT)
    a(f"buffer_store_dword v99, v98, {ws}, 0 offen")
    a(f"""v_and_b32 v3, 15, v0               ; r
    v_lshrrev_b32 v4, 4, v0            ; p
    s_not_b32 s{sT+1}, s{sJ}
    s_lshl_b32 s{sT+1}, s{sT+1}, 31
    s_lshr_b32 s{sT}, s{sJ}, 1
    s_cmp_eq_u32 s{sG}, -1
    s_cselect_b32 s{sT}, s{sT}, s{sG}
    s_cselect_b32 s{sT+1}, s{sT+1}, 0
    s_lshl_b32 s{sT}, s{sT}, 4
    v_add_u32 v5, s{sT}, v3            ; row
    s_lshl_b32 s{sT}, s{sW}, 9
    s_or_b32 s{sT}, s{sT}, s{sT+1}
    v_lshl_add_u32 v6, v5, 11, s{sT}
    v_lshl_add_u32 v6, v4, 4, v6
    s_cmp_eq_u32 s{sG}, -1
    s_cbranch_scc1 {name}_x0
    s_cmp_lg_u32 s{sPASS}, 0
    s_cbranch_scc1 {name}_x
    s_memtime s[34:35]
    s_waitcnt lgkmcnt(0)
    buffer_store_dwordx4 v[8:11], v13, {ws}, s{sCLR} offen sc1
    s_branch {name}_x
    {name}_x0:
    s_lshl_b32 s{sT}, s{sXCC}, 4
    s_add_u32 s{sT}, s{sT}, 4
    s_cmp_eq_u32 s{sPASS}, 0
    s_cselect_b32 s{sT}, s{sT}, {OOB}
    v_mov_b32 v97, s{sVOTE}""")
    one(a, 96, 3, sT)
    a(f"buffer_atomic_add v97, v96, {db}, 0 offen sc0\n{name}_x:")
    for i in range(8): a(f"buffer_load_dwordx4 v[{vRAW+4*i}:{vRAW+3+4*i}], v6, s[{XS}:{XS+3}], 0 offen offset:{64*i}")
    a(f"""v_lshrrev_b32 v{vOUT}, 5, v5
    v_lshlrev_b32 v{vOUT}, 16, v{vOUT}
    v_and_b32 v15, 31, v5
    v_lshl_add_u32 v{vOUT}, v15, 4, v{vOUT}
    s_lshl_b32 s{sT}, s{sW}, 14
    s_or_b32 s{sT}, s{sT}, s{sT+1}
    v_add_u32 v{vOUT}, s{sT}, v{vOUT}
    s_cmp_lg_u32 s{sG}, -1
    s_cbranch_scc1 {name}_xw""")
    rec_pre()
    a(f"""s_and_b32 s{sT}, s{sJ}, 1
    s_or_b32 s{sT}, s{sT}, s{sPASS}
    s_cbranch_scc1 {name}_rows""")
    if not rec_early: a(f"s_branch {name}_rows")
    st(a, 92)
    a(f"s_cmp_lg_u32 s{sW}, 3\ns_cbranch_scc1 {name}_dt\ns_waitcnt vmcnt(8)")
    last(a, True)
    rows_done(a, name + "_dt")
    a.lab(name + "_dt")
    rec_ask()
    a(f"s_branch {name}_dma\n{name}_rows:\ns_waitcnt vmcnt(8)")
    last(a, True)
    a(f"s_bitcmp0_b32 s{sJ}, 0\ns_cbranch_scc1 {name}_noln")
    rec_ask()
    a(f"s_waitcnt vmcnt({n_pre + 1})")
    a(f"""s_branch {name}_xi
    {name}_xw:
    v_mov_b32 v98, {LN_L + 528}
    s_lshl_b32 s{sT}, s{sW}, 2
    v_add_u32 v99, s{sT}, v98
    s_waitcnt vmcnt(8)
    s_memtime s[36:37]
    s_waitcnt lgkmcnt(0)
    s_sub_u32 s36, s36, s34
    v_mov_b32 v97, s36
    ds_write_b32 v99, v97""")
    m = [R for R, b in ((WQS, 1), (WOS, 2), (WVS, 8)) if GP & b]
    if m:
        ahead(a, m, 0, name + "_xa")
        a(f"s_waitcnt vmcnt({(8 if GP & 16 else 4) * len(m)})\ns_branch {name}_xi\n{name}_xa:")
    a(f"""s_waitcnt vmcnt(0)
    {name}_xi:""")
    st(a, 88)
    U = vUN
    for d in range(32): a(f"v_lshlrev_b32 v{U+2*d}, 16, v{vRAW+d}\nv_and_b32 v{U+1+2*d}, 0xffff0000, v{vRAW+d}")
    a(f"v_pk_add_f32 v[48:49], v[{U}:{U+1}], v[{U+2}:{U+3}]\nv_pk_add_f32 v[50:51], v[{U+4}:{U+5}], v[{U+6}:{U+7}]")
    for d in range(8, 64, 4): a(f"v_pk_add_f32 v[48:49], v[48:49], v[{U+d}:{U+d+1}]\nv_pk_add_f32 v[50:51], v[50:51], v[{U+d+2}:{U+d+3}]")
    a("v_pk_add_f32 v[48:49], v[48:49], v[50:51]\nv_add_f32 v48, v48, v49")
    def xlane_sum(r, t):
        a(f"v_mov_b32 v{t}, v{r}\nv_permlane16_swap_b32 v{r}, v{t}\nv_add_f32 v{r}, v{r}, v{t}")
        a(f"v_mov_b32 v{t}, v{r}\nv_permlane32_swap_b32 v{r}, v{t}\nv_add_f32 v{r}, v{r}, v{t}")
    a(f"v_lshlrev_b32 v62, 4, v3\nv_add_u32 v62, {LN_L}, v62\ns_lshl_b32 s{sT}, s{sW}, 2\nv_add_u32 v63, s{sT}, v62")
    def xwave_sum(r, base):
        a(f"ds_write_b32 v63, v{r} offset:{base}\ns_waitcnt lgkmcnt(0)\ns_barrier")
        a(f"ds_read_b128 v[52:55], v62 offset:{base}\ns_waitcnt lgkmcnt(0)")
        a(f"v_add_f32 v52, v52, v53\nv_add_f32 v54, v54, v55\nv_add_f32 v{r}, v52, v54")
    xlane_sum(48, 49); xwave_sum(48, 0)
    a(f"""s_cmp_eq_u32 s{sG}, -1
    s_cbranch_scc1 {name}_nv
    v_mov_b32 v128, {LN_L + 532}
    ds_read2_b32 v[128:129], v128 offset0:0 offset1:1
    s_waitcnt lgkmcnt(0)
    v_readfirstlane_b32 s{sT+2}, v128
    v_readfirstlane_b32 s{sT+3}, v129
    s_sub_u32 s{sT+1}, s{sT+2}, s{sT+3}
    s_sub_u32 s{sT+4}, 0, s{sT+1}
    s_bitcmp1_b32 s2, 0
    s_cselect_b32 s{sT+1}, s{sT+1}, s{sT+4}
    s_mov_b32 s{sVOTE}, 0x101
    s_cmp_gt_i32 s{sT+1}, 128
    s_cselect_b32 s{sVOTE}, 0x201, s{sVOTE}
    s_cmp_lt_i32 s{sT+1}, -128
    s_cselect_b32 s{sVOTE}, 1, s{sVOTE}
    s_lshl_b32 s{sT+6}, s{sXCC}, 4
    s_add_u32 s{sT+6}, s{sT+6}, 4
    s_cmp_eq_u32 s{sPASS}, 0
    s_cselect_b32 s{sT+6}, s{sT+6}, {OOB}
    v_mov_b32 v131, s{sVOTE}""")
    a(f"s_cmp_lg_u32 s{sW}, 3\ns_cbranch_scc1 {name}_nv")
    lane0(a, 130, sT + 6)
    a(f"buffer_atomic_add v131, v130, {db}, 0 offen sc0\n{name}_nv:")
    a("v_mul_f32 v48, 0x3a800000, v48")
    sub = lambda d, x: f"v_pk_add_f32 v[{d}:{d+1}], v[{x}:{x+1}], v[48:49] op_sel_hi:[1,0] neg_lo:[0,1] neg_hi:[0,1]"
    a(f"{sub(56, U)}\n{sub(50, U+2)}\nv_pk_mul_f32 v[58:59], v[56:57], v[56:57]\nv_pk_mul_f32 v[60:61], v[50:51], v[50:51]")
    for d in range(4, 64, 4):
        a(f"{sub(56, U+d)}\n{sub(50, U+2+d)}\nv_pk_fma_f32 v[58:59], v[56:57], v[56:57], v[58:59]\nv_pk_fma_f32 v[60:61], v[50:51], v[50:51], v[60:61]")
    a("v_pk_add_f32 v[58:59], v[58:59], v[60:61]\nv_add_f32 v58, v58, v59")
    xlane_sum(58, 49); xwave_sum(58, 256)
    a("""
    v_mul_f32 v58, 0x3a800000, v58     ; var
    v_cvt_pk_bf16_f32 v58, v58, v48
    v_and_b32 v48, 0xffff0000, v58
    v_lshlrev_b32 v58, 16, v58
    v_add_f32 v58, 0x3727c5ac, v58     ; + 1e-5
    v_cvt_pk_bf16_f32 v58, v58, v58
    v_lshlrev_b32 v58, 16, v58
    v_sqrt_f32 v58, v58
    v_cvt_pk_bf16_f32 v58, v58, v58
    v_lshlrev_b32 v58, 16, v58
    v_rcp_f32 v58, v58
    """)
    for d in range(32):
        x, y = U + 2 * d, U + 1 + 2 * d
        a(f"""{sub(x, x)}
        v_cvt_pk_bf16_f32 v{y}, v{x}, v{y}
        v_lshlrev_b32 v{x}, 16, v{y}
        v_and_b32 v{y}, 0xffff0000, v{y}
        v_pk_mul_f32 v[{x}:{y}], v[{x}:{y}], v[58:59] op_sel_hi:[1,0]""")
    a(f"s_cmp_lg_u32 s{sG}, -1\ns_cbranch_scc1 {name}_gemm")

def last(a, rec, va=96, vd=97):
    a(f"""v_readfirstlane_b32 s{sT+4}, v{vd}
    s_lshl_b32 s{sT+5}, s{sXCC}, 2
    s_add_u32 s{sT+5}, s{sT+5}, {4 * D_DONE}
    s_add_u32 s{sT+4}, s{sT+4}, s{sVOTE}
    s_and_b32 s{sT+6}, s{sT+4}, 255
    s_lshr_b32 s{sT+4}, s{sT+4}, 8
    s_add_u32 s{sT+4}, s{sT+4}, 256
    s_lshl_b32 s{sT+7}, s{sPASS}, 8
    s_or_b32 s{sT+6}, s{sT+6}, s{sT+7}
    s_cmp_eq_u32 s{sT+6}, 32
    s_cselect_b32 s{sT+5}, s{sT+5}, {OOB}
    v_mov_b32 v{vd}, s{sT+4}""")
    one(a, va, 3, sT + 5)
    a(f"buffer_store_dword v{vd}, v{va}, {db}, 0 offen sc1")

def ln_out(a, name, rec, nkv=8):
    order = (0, 2, 1, 3) if rec else (0, 1, 2, 3)
    if rec:
        a(f"""v_lshrrev_b32 v15, 1, v4
        v_and_b32 v4, 1, v4
        v_lshl_add_u32 v4, v4, 1, v15
        s_lshl_b32 s{sT}, s{sPASS}, 2
        s_add_u32 s{sT}, s{sT}, s{sX}
        s_lshl_b32 s{sT}, s{sT}, 19
        s_add_u32 s{sT}, s{sT}, {XR_OFF}""")
    else:
        a(f"""s_mov_b32 s{sT}, {XN_OFF}
        v_lshrrev_b32 v15, 1, v4
        v_and_b32 v14, 1, v4
        v_lshl_add_u32 v14, v14, 1, v15
        v_lshl_add_u32 v14, v14, 9, v{vOUT}""")
    a(f"v_lshl_add_u32 v{vOUT}, v4, 9, v{vOUT}")
    def put(i, m): return f"buffer_store_dwordx4 v[{vRAW+4*i}:{vRAW+4*i+3}], v{vOUT}, {ws}, s{sT} offen offset:{2048*(i&1)}{m}" + (f"\ns_add_u32 s{sT}, s{sT}, 4096" if i & 1 else "")
    for i in range(8):
        b = vRAW + 4 * i
        for q in range(4): a(f"v_cvt_pk_bf16_f32 v{b+order[q]}, v{vUN+8*i+2*q}, v{vUN+8*i+2*q+1}")
        if rec: a(f"v_permlane32_swap_b32 v{b}, v{b+1}\nv_permlane32_swap_b32 v{b+2}, v{b+3}")
        else: a(f"v_permlane16_swap_b32 v{b}, v{b+2}\nv_permlane16_swap_b32 v{b+1}, v{b+3}\n{put(i, ' sc1')}")
    if rec:
        a(f"s_cmp_lg_u32 s{sPASS}, 0\ns_cbranch_scc1 {name}_xs")
        for i in range(8): a(put(i, ""))
        a(f"s_branch {name}_xd\n{name}_xs:")
        for i in range(8): a(put(i, " sc1"))
        a.lab(name + "_xd")
    elif nkv > 8:
        a(f"s_sub_u32 s{sT}, s{sG}, 16\ns_cmp_ge_u32 s{sT}, {2 * nkv - 16}\ns_cbranch_scc1 {name}_x2\ns_mov_b32 s{sT}, {XG_OFF}")
        for i in range(8):
            b = 128 + 4 * i
            for q in range(4): a(f"v_cvt_pk_bf16_f32 v{b+(0, 2, 1, 3)[q]}, v{vUN+8*i+2*q}, v{vUN+8*i+2*q+1}")
            a(f"v_permlane32_swap_b32 v{b}, v{b+1}\nv_permlane32_swap_b32 v{b+2}, v{b+3}")
            a(f"buffer_store_dwordx4 v[{b}:{b+3}], v14, {ws}, s{sT} offen offset:{2048*(i&1)} sc1" + (f"\ns_add_u32 s{sT}, s{sT}, 4096" if i & 1 else ""))
        a.lab(name + "_x2")
    st(a, 90)

def arrive(a, lab, left, rec):
    a(f"s_waitcnt vmcnt({left})\ns_barrier")
    st(a, 92)
    a(f"""s_cmp_lg_u32 s{sW}, 3
    s_cbranch_scc1 {lab}
    s_cmp_eq_u32 s{sPASS}, 0
    s_cbranch_scc1 {lab}_f
    s_mov_b32 s{sT+6}, {4 * D_GA}
    v_mov_b32 v97, 1""")
    lane0(a, 96, sT + 6)
    a(f"""buffer_atomic_add v97, v96, {db}, 0 offen sc1
    s_branch {lab}
    {lab}_f:""")
    if rec: rows_done(a, lab)
    else:
        a(f"""s_lshl_b32 s{sT+6}, s{sXCC}, 4
        s_add_u32 s{sT+6}, s{sT+6}, 8
        v_mov_b32 v97, 1""")
        lane0(a, 96, sT + 6)
        a(f"""buffer_atomic_add v97, v96, {db}, 0 offen sc0
        s_lshl_b32 s{sT+5}, s{sX}, 2
        s_add_u32 s{sT+5}, s{sT+5}, {4 * D_ROWS}
        s_waitcnt vmcnt(0)
        v_readfirstlane_b32 s{sT+4}, v97
        v_mov_b32 v97, 1
        s_cmp_eq_u32 s{sT+4}, 31
        s_cselect_b32 s{sT+5}, s{sT+5}, {OOB}""")
        lane0(a, 96, sT + 5)
        a(f"buffer_store_dword v97, v96, {db}, 0 offen sc1")
    a.lab(lab)

def meet(a, name, lab):
    a(f"""v_mov_b32 v98, {LN_L + 576}
    s_cmp_lg_u32 s{sW}, 0
    s_cbranch_scc1 {lab}_w
    s_cmp_eq_u32 s{sJ}, 0
    s_cbranch_scc1 {lab}_s
    s_cmp_lg_u32 s{sPASS}, 0
    s_cbranch_scc1 {lab}_s""")
    mbox(a, sT + 7)
    a(f"""{lab}_m:
    s_mov_b32 s{sT+6}, 12
    {lab}_q:
    s_load_dword s{sSELV}, s[{WS}:{WS+1}], s{sT+7} glc
    s_waitcnt lgkmcnt(0)
    s_cmp_lg_u32 s{sSELV}, 0
    s_cbranch_scc1 {lab}_d
    s_sub_u32 s{sT+6}, s{sT+6}, 1
    s_cbranch_scc0 {lab}_q
    v_mov_b32 v96, {4 * D_BAD}
    buffer_load_dword v97, v96, {db}, 0 offen sc1
    s_mov_b32 s{sSELV}, 3
    s_waitcnt vmcnt(0)
    v_readfirstlane_b32 s{sT+6}, v97
    s_cmp_lg_u32 s{sT+6}, 0
    s_cbranch_scc1 {lab}_d
    s_mov_b32 s{sSELV}, 1
    s_cmp_eq_u32 s{sBUD}, 0
    s_cbranch_scc1 {lab}_d
    s_sub_u32 s{sBUD}, s{sBUD}, 1
    s_branch {lab}_m
    {lab}_s:""")
    line_addr(a, 96)
    a(f"""{lab}_l:
    {line_load(96)}
    s_waitcnt vmcnt(0)
    v_cmp_ne_u32 vcc, 0, v97
    v_readlane_b32 s{sT+6}, v97, {D_GA - D_DONE}
    s_mov_b32 s{sSELV}, 1
    s_cmp_eq_u32 s{sPASS}, 0
    s_cbranch_scc1 {lab}_f
    s_cmp_ge_u32 s{sT+6}, 256
    s_cbranch_scc1 {lab}_d
    s_branch {lab}_a
    {lab}_f:
    s_mov_b32 s{sSELV}, 3
    s_bitcmp1_b32 vcc_lo, {D_BAD - D_DONE}
    s_cbranch_scc1 {lab}_p
    s_and_b32 s{sT+5}, vcc_lo, {255 | M_ROWS}
    s_cmp_eq_u32 s{sT+5}, {255 | M_ROWS}
    s_cbranch_scc1 {lab}_v
    {lab}_a:
    s_mov_b32 s{sSELV}, 1
    s_cmp_eq_u32 s{sBUD}, 0
    s_cbranch_scc1 {lab}_d
    s_sub_u32 s{sBUD}, s{sBUD}, 1
    s_branch {lab}_l
    {lab}_v:
    v_add_u32_dpp v97, v97, v97 row_shr:1 row_mask:0xf bank_mask:0xf bound_ctrl:0
    v_add_u32_dpp v97, v97, v97 row_shr:2 row_mask:0xf bank_mask:0xf bound_ctrl:0
    v_add_u32_dpp v97, v97, v97 row_shr:4 row_mask:0xf bank_mask:0xf bound_ctrl:0
    v_readlane_b32 s{sT+5}, v97, 7
    s_cmp_gt_u32 s{sT+5}, {2048 + 128}
    s_cselect_b32 s{sSELV}, 2, 1
    {lab}_p:
    v_mov_b32 v97, s{sSELV}""")
    post(a, 100, 97, sT + 7)
    a(f"""{lab}_d:
    v_mov_b32 v97, s{sSELV}
    ds_write_b32 v98, v97
    s_waitcnt lgkmcnt(0)
    {lab}_w:
    s_barrier
    ds_read_b32 v97, v98
    s_xor_b32 s{sMODE}, s{sPASS}, 1
    s_waitcnt lgkmcnt(0)
    v_readfirstlane_b32 s{sSELV}, v97
    s_cmp_eq_u32 s{sSELV}, 3
    s_cbranch_scc1 {name}_fb
    s_barrier""")

def first_rows(a, name, lab):
    a(f"""v_mov_b32 v98, {LN_L + 576}
    s_cmp_lg_u32 s{sW}, 3
    s_cbranch_scc1 {lab}_w""")
    mbox(a, sT + 7)
    a(f"""s_cmp_eq_u32 s{sPASS}, 0
    s_cbranch_scc0 {lab}_l
    {lab}_k:
    s_mov_b32 s{sT+6}, 8
    {lab}_q:
    s_load_dword s{sT+5}, s[{WS}:{WS+1}], s{sT+7} glc
    s_mov_b32 s{sSELV}, 0
    s_waitcnt lgkmcnt(0)
    s_cmp_lg_u32 s{sT+5}, 0
    s_cbranch_scc1 {lab}_d
    s_sub_u32 s{sT+6}, s{sT+6}, 1
    s_cbranch_scc0 {lab}_q
    {lab}_l:
    v_mov_b32 v96, {4 * D_BAD}
    buffer_load_dwordx3 v[100:102], v96, {db}, 0 offen sc1
    s_waitcnt vmcnt(0)
    v_readfirstlane_b32 s{sT+5}, v100
    v_readfirstlane_b32 s{sT+6}, v102
    s_cmp_eq_u32 s{sPASS}, 0
    s_cselect_b32 s{sSELV}, 3, 0
    s_cselect_b32 s{sT+5}, s{sT+5}, 0
    s_cselect_b32 s{sT+6}, 0, s{sT+6}
    s_lshr_b32 s{sT+6}, s{sT+6}, 8
    s_or_b32 s{sT+5}, s{sT+5}, s{sT+6}
    s_cbranch_scc1 {lab}_d
    s_mov_b32 s{sSELV}, 0
    s_cmp_eq_u32 s{sBUD}, 0
    s_cbranch_scc1 {lab}_d
    s_sub_u32 s{sBUD}, s{sBUD}, 1
    s_cmp_eq_u32 s{sPASS}, 0
    s_cbranch_scc1 {lab}_k
    s_branch {lab}_l
    {lab}_d:
    v_mov_b32 v97, s{sSELV}
    ds_write_b32 v98, v97
    s_waitcnt lgkmcnt(0)
    {lab}_w:
    s_barrier
    ds_read_b32 v97, v98
    s_xor_b32 s{sMODE}, s{sPASS}, 1
    s_waitcnt lgkmcnt(0)
    v_readfirstlane_b32 s{sSELV}, v97
    s_cmp_eq_u32 s{sSELV}, 3
    s_cbranch_scc1 {name}_fb""")
    assert D_GA == D_BAD + 2
def line_addr(a, v):
    a(f"""v_lshlrev_b32 v{v}, 2, v0
    v_add_u32 v{v}, {4 * D_DONE}, v{v}
    v_mov_b32 v{v+1}, {OOB}
    v_cmp_gt_u32 vcc, 16, v0
    v_cndmask_b32 v{v}, v{v+1}, v{v}, vcc""")
def line_load(v, r=DB): return f"buffer_load_dword v{v+1}, v{v}, s[{r}:{r+3}], 0 offen sc1"
def verdict(a, name, lab, v):
    d = v + 1
    a(f"""s_mov_b32 s{sSELV}, 1
    s_cmp_lg_u32 s{sPASS}, 0
    s_cbranch_scc1 {lab}_d
    {lab}_l:
    v_cmp_ne_u32 vcc, 0, v{d}
    s_bitcmp1_b32 vcc_lo, {D_BAD - D_DONE}
    s_cbranch_scc1 {name}_fb
    s_and_b32 s{sT+5}, vcc_lo, 255
    s_cmp_eq_u32 s{sT+5}, 255
    s_cbranch_scc1 {lab}_v
    s_cmp_eq_u32 s{sBUD}, 0
    s_cbranch_scc1 {lab}_d
    s_sub_u32 s{sBUD}, s{sBUD}, 1
    {line_load(v)}
    s_waitcnt vmcnt(0)
    s_branch {lab}_l
    {lab}_v:
    v_add_u32_dpp v{d}, v{d}, v{d} row_shr:1 row_mask:0xf bank_mask:0xf bound_ctrl:0
    v_add_u32_dpp v{d}, v{d}, v{d} row_shr:2 row_mask:0xf bank_mask:0xf bound_ctrl:0
    v_add_u32_dpp v{d}, v{d}, v{d} row_shr:4 row_mask:0xf bank_mask:0xf bound_ctrl:0
    v_readlane_b32 s{sT+5}, v{d}, 7
    s_mov_b32 s{sVOTE}, s{sT+5}
    s_cmp_gt_u32 s{sT+5}, {2048 + 128}
    s_cselect_b32 s{sSELV}, 2, 1
    {lab}_d:""")

def gemm_entry(a, name, nkv=8):
    a(f"{name}_gemm:\ns_cmp_lg_u32 s{sW}, 3\ns_cbranch_scc1 {name}_g0\ns_waitcnt vmcnt(0)")
    last(a, False, 130, 131)
    a.lab(name + "_g0")
    ln_out(a, name, False, nkv)
    arrive(a, name + "_ga", 0, False)
    if GP & 4:
        ahead(a, [WOS], 1, name + "_gb")
        a(f"s_waitcnt vmcnt(0)\n{name}_gb:")
    meet(a, name, name + "_gm")
```

```python
import sys
from asmlib import *; from layout import *; from prep import gen_prep
from rec import sG
from rec5 import rec_all, rec_pre, rec_ask, n_pre
import start, rec5
import g4 as g3
from g4 import desc, T_K, T_V, T_QA, T_F1, T_F2, T_WO, T_F2E, T_KH, T_VH, T_QS, T_TW, T_SUM, with_sum
TW0 = 48
def f1_range(b, q):
    n = [e >> 3 for e in range(28 * q, 28 * q + 28) if e & 7 == b]
    return n[0], len(n)
def column(task, q, r):
    ty, i = task[:2]
    if ty == 'K': return [desc(T_K, i, 4 * q + r)]
    if ty == 'V': return [desc(T_V, i, 4 * q + r)]
    if ty == 'QA': return [desc(T_QA, i, 4 * q + r)]
    if ty == 'QT': return [desc(T_KH, i, 4 * q + r)]
    if ty == 'QS': return [desc(T_QS, i, 4 * q + r)]
    if ty == 'F1':
        tiles = [(b, f1_range(b, q)[0] + k) for b in range(8) for k in range(f1_range(b, q)[1])]
        b, n = tiles[4 * i + r]
        return [desc(T_F1, b, n)]
    if ty == 'FW':
        k0, kl = f1_range(i, q)
        return [desc(T_F2, i, r, k0, kl), desc(T_WO, i, r, 4 * q, 4)]
    if ty == 'F2':
        k0, kl = f1_range(i, q)
        return [desc(T_F2E, i, r, k0, kl)]
    if ty == 'TW': return [T_TW | (16 * q + 4 * i + r) << 4 | TW0 << 20]
    if ty == 'S': return [with_sum(T_SUM, i, r)]
    raise ValueError(ty)
def lists_of(cols, first=0):
    L = []
    for q in range(4):
        for c in range(8):
            for r in range(4):
                l = []
                for t in cols[c]:
                    if t[0] == '+S': l[-1] = with_sum(l[-1], t[1], r)
                    else: l += column(t, q, r)
                if l[-1] & 15 == T_TW and l[-2] & 15 == T_KH: l[-1] |= 1 << 10
                if first == 1: l[0] = desc(T_V if c >= 4 else T_K, q + 1, 4 * (c & 3) + r)
                if first == 2: l[0] = desc(T_V if c >= 4 else T_K, 1 + (q & 2) + (c >> 1 & 1), 8 * (q & 1) + 4 * (c & 1) + r)
                assert (l[0] & 15) in (T_K, T_V, T_QA, T_F1, T_KH)
                L.append(l)
    return L
def parse(s): return [[(x.rstrip("0123456789") if not x.startswith(("F1", "F2")) else x[:2], int(x[-1])) for x in c.split()] for c in s.split("|")]
PLAN_D = "K1 K6 F10 V5 F27 QS6 +S2 S0 S1 S3 | K4 QA1 F14 QA4 QS7 | V4 F11 FW2 FW4 S4 | K3 F15 V6 FW3 TW2 | V2 F16 K7 FW0 TW1 | V3 QA0 QA3 V7 FW5 S5 | K2 F12 K5 FW1 TW0 | V1 F13 QA2 F26 QA5 TW3"
PLANS = {64: "F10 QA1 FW1 QS6 S0 S1 | F11 QA2 FW2 QS7 | F12 FW0 FW4 S2 S3 S4 | F13 QA3 FW3 TW2 | F14 F26 QA4 TW1 | F15 F27 QA5 TW0 | F16 FW5 S5 | QA0 TW3",
 32: "K6 F10 V5 F27 QS6 +S2 S0 S1 S3 | K4 QA1 F14 QA4 QS7 | V4 F11 FW2 FW4 S4 | F15 V6 FW3 TW2 | F16 K7 FW0 TW1 | QA0 QA3 V7 FW5 S5 | F12 K5 FW1 TW0 | F13 QA2 F26 QA5 TW3",
 16: "F12 F13 F15 FW3 QS7 | K3 F16 QA2 F27 S1 S0 TW1 | F11 QA0 QT3 F26 TW2 | K2 QA1 K7 QT4 FW5 | F10 V5 FW0 QS6 | V2 F14 V7 FW2 S2 TW0 | V3 V6 FW1 QT5 TW3 | V4 K4 K5 K6 FW4 S3 S4 S5"}
HEAD = open("cdna_kernels/" + KNAME + ".s.ref").read().split("; Override launch")[0]
def mk(trace=False, force_safe=False, mfma_w=3, plan=None, rtrace=None, cs=None, first=0, bud=False, pf=1, nkv=16, nb=(6, 4, 6, 8), xs=None, xe=(), plain='', loc=False, gp=5, qtr=False, mods=dict(two=2, f1=1, pm=1, sn=1, pp=1), exp=('acko', 'sb2', 'prs', 'p1')):
    name = KNAME + "_kernel"; n = "m"
    plan = plan or PLANS[nkv]
    a = Asm(mfma_w)
    start.TR = trace; start.GP = gp; g3.QTR = qtr; g3.QMOD = mods.get('q', ''); rec5.MODS = g3.MODS = mods; g3.PLAIN = plain; g3.LOCAL = loc
    if trace: a("s_memrealtime s[86:87]")
    start.entry(a, n, lambda: rec_pre(a, pf), lambda: rec_ask(a, pf), n_pre(pf), force_safe, pf & 1)
    def put(off, regs):
        a(f"s_lshl_b32 s34, s2, 6\ns_add_u32 s34, s34, {GTRACE_OFF + 2 * MB + off}\nv_mov_b32 v252, 0")
        for i, r in enumerate(regs): a(f"v_mov_b32 v253, s{r}\nbuffer_store_dword v253, v252, s[4:7], s34 offen offset:{4*i}")
    def rstamp(i):
        if not trace: return
        if i < 0: return a("s_memrealtime s[34:35]\ns_waitcnt lgkmcnt(0)\nv_mov_b32_dpp v254, v254 row_shr:1 row_mask:0xf bank_mask:0xf\nv_writelane_b32 v254, s34, 0")
        if i == 2: a(f"s_lshl_b32 s34, s2, 8\ns_add_u32 s34, s34, {GTRACE_OFF + 3 * MB}\nv_lshlrev_b32 v253, 2, v0\nbuffer_store_dword v254, v253, s[4:7], s34 offen")
        a(f"s_memrealtime s[{76+2*i}:{77+2*i}]\ns_waitcnt lgkmcnt(0)")
        if i == 3: a("s_lshl_b32 s35, s12, 5\ns_add_u32 s35, s35, s13"); put(0, (86, 76, 78, 80, 82, sG, 88, 90, 92, 84, 57, 35))
    rec_all(a, n, rstamp, nkv, pf, nb=nb, xs=xs, trace=rtrace, exp=exp + tuple(xe))
    start.gemm_entry(a, n, nkv)
    if trace: a("s_memrealtime s[76:77]\ns_waitcnt lgkmcnt(0)"); put(0, (86, 76, 26, 27, 76, sG, 88, 90, 92, 84, 57))
    g3.gemm_side(a, n, lists_of(parse(plan), first), trace, cs=g3.Cfg(**cs) if cs else None)
    a(f"{n}_recdone:\ns_waitcnt vmcnt(0)")
    if bud:
        L = []
        for i, l in enumerate(a.lines):
            L.append(l)
            if l == "s_sub_u32 s17, s17, 1": L.append(f"s_mov_b32 s100, {i}")
            if l == "s_mov_b32 s17, 0x100000": L.append("s_mov_b32 s100, 0")
        global LINES
        LINES = a.lines; a.lines = L
        a(f"""s_lshl_b32 s34, s2, 2
        s_add_u32 s34, s34, s14
        s_lshl_b32 s34, s34, 4
        s_add_u32 s34, s34, {GTRACE_OFF + 4 * MB}
        v_mov_b32 v2, s17
        v_mov_b32 v3, s100
        v_mov_b32 v4, s16
        v_mov_b32 v5, s18
        v_mov_b32 v6, 0
        buffer_store_dwordx4 v[2:5], v6, s[4:7], s34 offen
        s_waitcnt vmcnt(0)""")
    a(f"{n}_end:\ns_endpgm")
    s = HEAD + f"; @launch grid=(256,1,1) block=(256,1,1) lds=163840\n"
    s += '.amdgcn_target "amdgcn-amd-amdhsa--gfx950"\n.text\n' + khead(name) + a.finish(True)
    s += '.section .rodata,"a"\n.p2align 6\n' + kdesc(name)
    return s
if __name__ == "__main__":
    out = sys.argv[1] if len(sys.argv) > 1 else "main.s"
    open(out, "w").write(mk(**(eval(sys.argv[2]) if len(sys.argv) > 2 else {})))
```

```python
from asmlib import *
from layout import *
from g2 import Cfg, pieces, reads, rebias, VM, lanes_frag, lanes_vt, getreg, pack, ACC0, PAD, CSC, NEG
import g2
from start import sSELV, XS

WS = 4
sW, sG, sBUD = 14, 16, 17
sTYP, sB, sN, sFLG, sNC, sOUT, sCUR, sNXT = 18, 19, 20, 21, 22, 23, 24, 25
sDEP, sDMK, sCOLD, sPFL = 26, 27, 28, 29
sWM, sWN, sSL, sQ = 32, 33, 34, 35
sSV, sPI = 59, 61
sLST = 36
SA, SB_ = 44, 48
sOA, sOB, sWB, sSTB, sCNT = 52, 53, 54, 55, 56
sRBA, sROW, sWA = 57, 58, 60
sE = 62
SO = 72
sTRC = 76
sWP = 86
assert (g2.SA, g2.SB_, g2.sOA, g2.sOB, g2.sWB, g2.sSTB, g2.sWA) == (SA, SB_, sOA, sOB, sWB, sSTB, 61)
g2.sWA = sWA
vAR, vBR, vDA, vDB, vE = 1, 2, 4, 6, 10
vFA, vFD, vDL, vDV, vORD = 10, 11, 13, 14, 15
aSTA, aSEL = 240, 248
ws = f"s[{WS}:{WS+3}]"
T_K, T_V, T_QA, T_F1, T_F2, T_WO, T_F2E, T_KH, T_VH, T_QS, T_TW, T_SUM, T_END = 0, 1, 2, 3, 4, 5, 6, 7, 8, 9, 10, 11, 15
TN = {0: "K", 1: "V", 2: "QA", 3: "F1", 4: "F2", 5: "WO", 6: "F2E", 7: "QT", 8: "VH", 9: "QS", 10: "TW", 11: "SUM", 15: "END"}
NLIST = 10
T_QT = T_KH
import rec5
PLAIN = ""; LOCAL = False; MODS = {}
sLOC, sMODE = 13, 15
LDS_BYTES = 4 * 33792
def desc(t, b=0, n=0, k0=0, kl=0):
    return t | b << 4 | n << 7 | k0 << 11 | kl << 15
def with_sum(d, b, n): return d | 1 << 26 | b << 27 | n << 30
def bfe(a, d, s, off, w): a(f"s_bfe_u32 s{d}, s{s}, {hex(w << 16 | off)}")

def lane_setup(a, c):
    a(f"""
    v_lshrrev_b32 v{vE}, 4, v0                    ; g
    v_and_b32 v{vE+1}, 15, v0
    s_mul_i32 s{sE}, s{sWM}, {c.MT // 2 * 2048}
    v_lshl_add_u32 v{vAR}, v{vE}, 9, s{sE}
    v_lshl_add_u32 v{vAR}, v{vE+1}, 4, v{vAR}
    v_lshrrev_b32 v{vE+1}, 5, v0
    v_lshlrev_b32 v{vE+1}, 4, v{vE+1}
    v_and_b32 v{vE}, 1, v{vE}
    v_lshl_add_u32 v{vE+1}, v{vE}, 2, v{vE+1}
    v_bfe_u32 v{vE}, v0, 2, 2
    v_add_u32 v{vE+1}, v{vE+1}, v{vE}             ; k row
    v_bfe_u32 v{vE+2}, v0, 1, 1
    v_lshlrev_b32 v{vE+2}, 5, v{vE+2}
    v_and_b32 v{vE+3}, 1, v0
    v_lshl_add_u32 v{vE+2}, v{vE+3}, 3, v{vE+2}   ; run offset
    s_mov_b32 s{sE}, {PAD}
    v_lshrrev_b32 v{vE+3}, 1, v{vE+1}
    v_mad_u32_u24 v{vE+2}, v{vE+3}, s{sE}, v{vE+2}
    v_and_b32 v{vE+3}, 1, v{vE+1}
    v_lshl_add_u32 v{vE+2}, v{vE+3}, 9, v{vE+2}
    v_lshl_add_u32 v{vBR}, v{vE+3}, 4, v{vE+2}
    s_lshl_b32 s{sE}, s{sWN}, 8
    s_add_u32 s{sE}, s{sE}, {c.AB}
    v_add_u32 v{vBR}, s{sE}, v{vBR}
    v_xor_b32 v{vBR+1}, 16, v{vBR}
    s_mul_i32 s{sWA}, s{sW}, {c.PA * 1024}
    s_mul_i32 s{sWB}, s{sW}, {c.PB * PAD}
    s_add_u32 s{sWB}, s{sWB}, {c.AB}
    """)

def stream_lanes(a, c, t=12):
    a(f"""s_mul_i32 s{sE}, s{sW}, {c.PA // 2}
    s_mul_i32 s{sE}, s{sE}, s{sRBA}
    v_lshl_add_u32 v{vDA}, v0, 4, s{sE}""")
    if c.PA == 4: a(f"s_sub_u32 s{sE}, s{sRBA}, 2048\nv_add_u32 v{vDA+1}, s{sE}, v{vDA}")
    a(f"""v_lshrrev_b32 v{t}, 5, v0
    v_and_b32 v{vDB}, 31, v0
    v_xor_b32 v{vDB}, v{vDB}, v{t}
    v_lshlrev_b32 v{vDB}, 4, v{vDB}
    s_lshl_b32 s{sE}, s{sW}, 3
    v_add_u32 v{t}, s{sE}, v{t}
    v_mad_u32_u24 v{vDB}, v{t}, s{sROW}, v{vDB}
    s_lshl_b32 s{sE}, s{sROW}, 1
    s_sub_u32 s{sE}, s{sE}, {PAD}
    v_add_u32 v{vDB+1}, s{sE}, v{vDB}
    v_add_u32 v{vDB+2}, s{sE}, v{vDB+1}
    v_add_u32 v{vDB+3}, s{sE}, v{vDB+2}
    s_lshl_b32 s{sSTB}, s{sROW}, 5""")

def stream_switch(a, c, d, lab):
    t, b, n, k = sE + 1, sE + 2, sE + 3, sE + 4
    a(f"s_and_b32 s{t}, s{d}, 15")
    bfe(a, b, d, 4, 3); bfe(a, n, d, 7, 4); bfe(a, k, d, 11, 4)
    a(f"""s_mov_b32 s{SA+2}, {WS_BYTES}
    s_lshl_b32 s{sOB}, s{n}, 9
    s_sub_u32 s{sE}, s{t}, {T_F2}
    s_cmp_lt_u32 s{sE}, 3
    s_cbranch_scc1 {lab}_fw
    s_lshl_b32 s{sOA}, s{b}, 19
    s_mov_b32 s{sRBA}, 65536
    s_mov_b64 s[{SB_}:{SB_+1}], s[{sWP+4}:{sWP+5}]
    s_cmp_eq_u32 s{t}, {T_K}
    s_cselect_b64 s[{SB_}:{SB_+1}], s[{sWP}:{sWP+1}], s[{SB_}:{SB_+1}]
    s_cmp_eq_u32 s{t}, {T_V}
    s_cselect_b64 s[{SB_}:{SB_+1}], s[{sWP+2}:{sWP+3}], s[{SB_}:{SB_+1}]
    s_cmp_eq_u32 s{t}, {T_F1}
    s_cselect_b64 s[{SB_}:{SB_+1}], s[{sWP+6}:{sWP+7}], s[{SB_}:{SB_+1}]
    s_cselect_b32 s{sROW}, 7168, 0
    s_cselect_b32 s{sE}, 0, 8192
    s_or_b32 s{sROW}, s{sROW}, s{sE}
    s_lshl_b32 s{SB_+2}, s{sROW}, 10
    s_branch {lab}_l
    {lab}_fw:
    s_lshl_b32 s{sE}, s{k}, 19
    s_add_u32 s{sOB}, s{sOB}, s{sE}
    s_mov_b32 s{sROW}, 2048
    s_cmp_eq_u32 s{t}, {T_WO}
    s_cselect_b64 s[{SB_}:{SB_+1}], s[{sWP+10}:{sWP+11}], s[{sWP+8}:{sWP+9}]
    s_mov_b32 s{SB_+2}, {3584 * 2048}
    s_cselect_b32 s{SB_+2}, {4096 * 2048}, s{SB_+2}
    s_mov_b32 s{sRBA}, 229376
    s_cselect_b32 s{sRBA}, 262144, s{sRBA}
    s_mov_b32 s{sOA}, {H1_OFF}
    s_cselect_b32 s{sOA}, {O_OFF}, s{sOA}
    s_mul_i32 s{sE}, s{b}, s{sRBA}
    s_lshl_b32 s{sE}, s{sE}, 3
    s_add_u32 s{sOA}, s{sOA}, s{sE}
    s_lshl_b32 s{sE}, s{k}, 14
    s_add_u32 s{sOA}, s{sOA}, s{sE}
    {lab}_l:""")
    stream_lanes(a, c)

def lane0(a, v, tmp, sp=sE):
    a(f"v_mov_b32 v{v}, {OOB}\nv_mov_b32 v{tmp}, 0\nv_cmp_eq_u32 s[{sp}:{sp+1}], 0, v0\nv_cndmask_b32 v{v}, v{v}, v{tmp}, s[{sp}:{sp+1}]")
def fw_flag(a, d, b=sB, n=sN):
    a(f"""s_lshl_b32 s{d}, s{b}, 2
    s_add_u32 s{d}, s{d}, s{n}
    s_lshl_b32 s{d}, s{d}, 2
    s_add_u32 s{d}, s{d}, s{sW}
    s_lshl_b32 s{d}, s{d}, 6
    s_add_u32 s{d}, s{d}, {CTRL_OFF + C_FW}""")
DEPLD = f"buffer_load_dword v{vDV}, v{vDL}, {ws}, s{sDEP} offen sc1"
def notready(a):
    a(f"v_cmp_gt_u32 s[{sE}:{sE+1}], 4, v{vDV}\ns_and_b32 s{sE}, s{sE}, s{sDMK}")

def hook(a, c, lab, form):
    a(f"s_cmp_eq_u32 s{sCNT}, 1\ns_cbranch_scc0 {lab}_s")
    notready(a)
    a(f"""s_cselect_b32 s{sCOLD}, 1, s{sCOLD}
    s_cmp_eq_u32 s{sCOLD}, 0
    s_cbranch_scc1 {lab}_w
    s_mov_b32 s{SA+2}, 0
    s_mov_b32 s{SB_+2}, 0
    s_branch {lab}_s
    {lab}_w:""")
    stream_switch(a, c, sNXT, lab)
    a.lab(lab + "_s")
    a(DEPLD)

def stage(a, c, slot, form, first=False, top=None, pre=None):
    p = slot & 1
    fill = [[] for _ in range(c.M)]
    nslot = (slot + 1) % c.NS
    items = reads(c, nslot, p ^ 1) + rebias(c, nslot, (nslot + 1) % c.NS)
    pc = pieces(c, slot)
    span = c.M - c.r0 - 4
    st = min(c.rstep, span / len(items))
    dg = [min(c.M - 1, (i * c.M) // c.P + 1) for i in range(len(pc))]
    for i, x in enumerate(items):
        fill[min(c.M - 1, c.r0 + int(i * st))].append(x)
    for gp, x in zip(dg, pc):
        if "m0" in x[0] and gp > 0 and not any(y.startswith("buffer") for y in fill[gp - 1] + fill[gp]):
            fill[gp - 1].append(x[0]); x = x[1:]
        fill[gp] += x[:1] if x[0].startswith("buffer") else x[:2]
        rest = x[1:] if x[0].startswith("buffer") else x[2:]
        fill[min(c.M - 1, gp + 1)] += rest
    if top == "relax":
        L = a.newlab("rx")
        a(f"s_waitcnt vmcnt({(c.NS - 2) * c.P + 32}) lgkmcnt(0)\ns_cbranch_vccnz {L}\ns_waitcnt vmcnt({(c.NS - 2) * c.P})\n{L}:\ns_barrier")
    else:
        a(f"s_waitcnt vmcnt({(c.NS - 2) * c.P}) lgkmcnt(0)\ns_barrier")
    if pre: pre()
    n = 0
    for t in range(c.MT):
        for f0 in range(c.NT):
            f = f0 if t % 2 == 0 else c.NT - 1 - f0
            A, B = (c.wf(p, f), c.xf(p, t)) if form == "T" else (c.xf(p, t), c.wf(p, f))
            a(f"v_mfma_f32_16x16x32_bf16 {c.accs(t, f)}, {A}, {B}, {'0' if first else c.accs(t, f)}")
            for x in fill[n]: a(x)
            n += 1

def publish(a):
    L, L2 = a.newlab("pb"), a.newlab("pl")
    x = f"buffer_atomic_add v{vFD}, v{vFA}, {ws}, s{sPFL} offen"
    a(f"s_cbranch_vccz {L}\ns_mov_b64 vcc, 0")
    if LOCAL: a(f"s_cmp_eq_u32 s{sLOC}, 0\ns_cbranch_scc1 {L2}\n{x}\ns_branch {L}\n{L2}:")
    a(f"{x} sc1\n{L}:")
def dep_lanes(a):
    a(f"v_lshlrev_b32 v{vDL}, 2, v0\nv_mov_b32 v{vDV}, {OOB}\nv_cmp_gt_u32 s[{sE+6}:{sE+7}], 4, v0\nv_cndmask_b32 v{vDL}, v{vDV}, v{vDL}, s[{sE+6}:{sE+7}]")
def main_loop(a, c, form, tag):
    pub = lambda: publish(a)
    a.lab(tag + "_f")
    stage(a, c, 0, form, True, "relax", lambda: a(DEPLD))
    a(".p2align 3")
    a.lab(tag + "_l")
    stage(a, c, 1, form, top="relax"); stage(a, c, 2, form, top="relax"); stage(a, c, 3, form, pre=pub)
    a(f"s_sub_u32 s{sCNT}, s{sCNT}, 1\ns_cmp_eq_u32 s{sCNT}, 0\ns_cbranch_scc1 {tag}_x")
    a.lab(tag + "_c")
    stage(a, c, 0, form, pre=lambda: hook(a, c, tag + "_h", form))
    a(f"s_branch {tag}_l")
    a.lab(tag + "_x")
    a(f"v_readlane_b32 s{sSV}, v{vDV}, 32")

def cold_dma(a, c):
    for s in range(c.NS):
        for g in pieces(c, s):
            for x in g: a(x)

def spin(a, lab, out):
    a(f"""s_cmp_eq_u32 s{sBUD}, 0
    s_cbranch_scc1 {out}
    s_sub_u32 s{sBUD}, s{sBUD}, 1
    s_branch {lab}""")
def poll(a, lab, soff, val, n=1, va=vE, vd=12):
    x = {1: "dword", 2: "dwordx2"}[n]
    d = f"v{vd}" if n == 1 else f"v[{vd}:{vd+n-1}]"
    a(f"v_mov_b32 v{va}, 0")
    a.lab(lab)
    a(f"buffer_load_{x} {d}, v{va}, {ws}, s{soff} offen sc1\ns_waitcnt vmcnt(0)")
    if n == 2: a(f"v_and_b32 v{vd+1}, 32, v{vd+1}\nv_lshlrev_b32 v{vd+1}, 1, v{vd+1}\nv_max_u32 v{vd}, v{vd}, v{vd+1}")
    a(f"v_readfirstlane_b32 s{sE+9}, v{vd}\ns_cmp_ge_u32 s{sE+9}, {val}\ns_cbranch_scc1 {lab}_d")
    spin(a, lab, lab + "_d")
    a.lab(lab + "_d")
def tile_out(a, base, rmul, csh, half=False):
    a(f"""s_lshl_b32 s{sE}, s{sB}, 1
    s_add_u32 s{sE}, s{sE}, s{sWM}
    s_mul_i32 s{sE}, s{sE}, {rmul}
    s_lshl_b32 s{sE+1}, s{sN}, 1
    s_add_u32 s{sE+1}, s{sE+1}, s{sWN}
    s_lshl_b32 s{sE+1}, s{sE+1}, {csh}
    s_add_u32 s{sOUT}, s{sE}, s{sE+1}""")
    if base: a(f"s_add_u32 s{sOUT}, s{sOUT}, {base}")
def epi_store(a, c, kind, rstride, sbase=sOUT):
    if kind == "vt":
        lanes_vt(a, vE, vE + 1)
        prs = [((t, f), (t + 1, f)) for t in range(0, c.MT, 2) for f in range(c.NT)]
    else:
        lanes_frag(a, vE, vE + 1)
        prs = [((t, f), (t, f + 1)) for t in range(c.MT) for f in range(0, c.NT, 2)]
        prs.sort(key=lambda p: (p[0][0] >> 1, p[0][1] >> 2, p[0][0] & 1))
    if kind == 'silu' and 'x' in PLAIN or rstride == 65536 and 'y' in PLAIN: a(f"v_or_b32 v{vE}, {OOB}, v{vE}")
    if kind == "silu":
        a(f"s_mov_b32 s{sE+2}, 0xbfb8aa3b\ns_mov_b32 s{sE+3}, 0xbfb8aa3b\ns_mov_b32 s{sE+4}, 1.0\ns_mov_b32 s{sE+5}, 1.0")
    cur = None
    for (t, f), (t2, f2) in prs:
        base = (t >> 1) * rstride + (f >> 2) * 4096
        off = ((f >> 1) & 1) * 2048 + ((f & 1) * 128 if kind == "vt" else (t & 1) * 256)
        two = rstride == 524288 and 'two' in MODS
        if base != cur:
            a(f"s_add_u32 s{sE}, s{sbase}, {base}"); cur = base
            if two: a(f"s_xor_b32 s{sE+1}, s{sE}, 8192")
        b0 = getreg(a, c, t, f, ACC0); b1 = getreg(a, c, t2, f2, ACC0 + 4)
        if kind == "silu":
            for b in (b0, b1):
                for o, q in ((0, 12), (2, 14)): a(f"v_pk_mul_f32 v[{q}:{q+1}], v[{b+o}:{b+o+1}], s[{sE+2}:{sE+3}]")
                for q in (12, 13, 14, 15): a(f"v_exp_f32 v{q}, v{q}")
                for q in (12, 14): a(f"v_pk_add_f32 v[{q}:{q+1}], v[{q}:{q+1}], s[{sE+4}:{sE+5}]")
                for q in (12, 13, 14, 15): a(f"v_rcp_f32 v{q}, v{q}")
                for o, q in ((0, 12), (2, 14)): a(f"v_pk_mul_f32 v[{b+o}:{b+o+1}], v[{b+o}:{b+o+1}], v[{q}:{q+1}]")
        pack(a, b0, b0, b1)
        a(f"buffer_store_dwordx4 v[{b0}:{b0+3}], v{vE}, {ws}, s{sE} offen offset:{off}{'' if kind == 'silu' and 'h' in PLAIN else ' sc1'}{' nt' if 'n' in PLAIN else ''}{' sc0' if '0' in PLAIN else ''}")
        if two: a(f"buffer_store_dwordx4 v[{b0}:{b0+3}], v{vE}, {ws}, s{sE+1} offen offset:{off} sc1")
def row_flag(a, base):
    a(f"s_lshl_b32 s{sFLG}, s{sB}, 4\ns_add_u32 s{sFLG}, s{sFLG}, s{sN}\ns_lshl_b32 s{sFLG}, s{sFLG}, {6 if base == C_KV else 2}\ns_add_u32 s{sFLG}, s{sFLG}, {CTRL_OFF + base}")
    if base != C_KV: a(f"s_lshl_b32 s{sE}, s{sQ}, 9\ns_add_u32 s{sFLG}, s{sFLG}, s{sE}")
def epi_kv(a, c, v, lab):
    if c.MT == 8:
        tile_out(a, VT_OFF if v else K_OFF, 4 * 524288, 14)
        a(f"s_lshl_b32 s{sE}, s{sWM}, 13")
    else:
        tile_out(a, VT_OFF if v else K_OFF, 2 * 524288, 14)
        a(f"s_and_b32 s{sE}, s{sB}, 1\ns_lshl_b32 s{sE}, s{sE}, 13\ns_lshr_b32 s{sB}, s{sB}, 1")
    a(f"s_xor_b32 s{sE}, s{sE}, s{sSL}")
    if 'far' in MODS: a(f"s_xor_b32 s{sE}, s{sE}, 8192")
    a(f"s_add_u32 s{sOUT}, s{sOUT}, s{sE}")
    row_flag(a, C_KV)
    epi_store(a, c, "vt" if v else "frag", 524288)

def epi_park(a, c):
    tile_out(a, Y_OFF, 4 * 65536, 13)
    a(f"s_lshl_b32 s{sE}, s{sQ}, 22\ns_add_u32 s{sOUT}, s{sOUT}, s{sE}")
    fw_flag(a, sFLG)
    epi_store(a, c, "frag", 65536)

def sum_fields(a, b, n): bfe(a, b, sCUR, 27, 3); bfe(a, n, sCUR, 30, 2)
def sum_part(a, tag):
    sb, sn, sR, sC = sE + 4, sE + 5, sE + 6, sE + 7
    D, L = 176, 16
    sum_fields(a, sb, sn)
    a(f"s_cmp_ge_u32 s{sSV}, 4\ns_cbranch_scc1 {tag}_k")
    fw_flag(a, sE, sb, sn)
    poll(a, tag + "_p", sE, 4)
    a.lab(tag + "_k")
    lanes_frag(a, vE, vE + 1)
    a(f"""s_lshl_b32 s{sR}, s{sb}, 1
    s_add_u32 s{sR}, s{sR}, s{sWM}
    s_lshl_b32 s{sR}, s{sR}, 2
    s_add_u32 s{sR}, s{sR}, s{sQ}
    s_lshl_b32 s{sR}, s{sR}, 16
    s_lshl_b32 s{sC}, s{sn}, 1
    s_add_u32 s{sC}, s{sC}, s{sWN}
    s_lshl_b32 s{sE}, s{sC}, 13
    s_add_u32 s{sE}, s{sE}, s{sR}""")
    a(f"""v_and_b32 v12, 15, v0
    v_lshlrev_b32 v12, 11, v12
    v_lshrrev_b32 v{vE+1}, 4, v0
    v_lshl_add_u32 v12, v{vE+1}, 4, v12
    s_lshl_b32 s{sC}, s{sC}, 8
    s_add_u32 s{sR}, s{sR}, s{sC}
    s_add_u32 s{sC}, s{sR}, 32768""")
    n = 0; order = []
    for src in range(5):
        for Fh in range(2):
            if src: a(f"s_add_u32 s{sE+1}, s{sE}, {Y_OFF + (src - 1) * 4 * MB + 4096 * Fh}")
            for t in range(2):
                for F in (2 * Fh, 2 * Fh + 1):
                    if src: a(f"buffer_load_dwordx4 v[{L+4*n}:{L+4*n+3}], v{vE}, {ws}, s{sE+1} offen offset:{2048*(F&1)+256*t}")
                    else: a(f"buffer_load_dwordx4 v[{L+4*n}:{L+4*n+3}], v12, s[{XS}:{XS+3}], s{sC if t else sR} offen offset:{64*F}")
                    order.append((src, t, F)); n += 1
    acc = lambda t, F, e: D + 32 * t + 8 * F + 4 * e
    for n, (src, t, F) in enumerate(order):
        if n % 2 == 0:
            a(f"s_waitcnt vmcnt({38 - n})")
            if src == 0:
                for b0 in (L + 4 * n, L + 4 * n + 4): a(f"v_permlane16_swap_b32 v{b0}, v{b0+2}\nv_permlane16_swap_b32 v{b0+1}, v{b0+3}")
        for e in range(2):
            d = f"v[{acc(t,F,e)}:{acc(t,F,e)+3}]"
            a(f"v_mfma_f32_16x16x32_bf16 {d}, a[{aSEL+4*e}:{aSEL+4*e+3}], v[{L+4*n}:{L+4*n+3}], {d if src else 0}")
    for t in range(2):
        bs = [acc(t, F, 0) for F in range(4)]
        for b0 in bs: pack(a, b0, b0, b0 + 4)
        for b0 in bs: a(f"v_permlane16_swap_b32 v{b0}, v{b0+2}\nv_permlane16_swap_b32 v{b0+1}, v{b0+3}")
        for F, b0 in enumerate(bs): a(f"buffer_store_dwordx4 v[{b0}:{b0+3}], v12, s[{SO}:{SO+3}], s{sC if t else sR} offen offset:{64*F}{MODS.get('os', '')}")

sPA, sPT = 30, 31
QTR = False; QMOD = ''
def epi_qa(a, c, tag, stream=False):
    a("s_waitcnt lgkmcnt(0)")
    for i in range(8): a(f"v_accvgpr_write_b32 a{aSTA+i}, v{2+i}")
    tile_out(a, O_OFF, 4 * 262144, 13)
    if not stream: row_flag(a, C_QA)
    vKA, vVA, vKM, vVM = 2, 3, 4, 5
    vMD, vMM, vM0, vM1, vS0, vS1 = 6, 12, 10, 11, 10, 11
    sKA, sVA, sKM, sVM, sC = sE, sE + 2, sE + 4, sE + 5, sE + 6
    a(f"""s_lshl_b32 s{sE}, s{sN}, 1
    s_add_u32 s{sE}, s{sE}, s{sWN}              ; head
    s_lshl_b32 s{sE+1}, s{sB}, 1
    s_add_u32 s{sE+1}, s{sE+1}, s{sWM}
    {rec5.pm_addr(sPA, sE + 2, sQ, sSL)}
    s_and_b32 s{sE+2}, s{sG}, 31
    s_lshl_b32 s{sE+2}, s{sE+2}, 7
    s_add_u32 s{sPA}, s{sPA}, s{sE+2}
    s_lshl_b32 s{sPT}, s{sE+1}, 2""")
    if stream:
        a(f"""s_and_b32 s{sFLG}, s{sE+1}, 3
        s_lshl_b32 s{sFLG}, s{sFLG}, 3
        s_and_b32 s{sE+3}, s{sE}, 7
        s_add_u32 s{sFLG}, s{sFLG}, s{sE+3}
        s_lshr_b32 s{sE+3}, s{sE}, 3
        s_lshl_b32 s{sE+3}, s{sE+3}, 5
        s_add_u32 s{sFLG}, s{sFLG}, s{sE+3}
        s_lshl_b32 s{sFLG}, s{sFLG}, 2
        s_add_u32 s{sFLG}, s{sFLG}, {CTRL_OFF + C_OM}
        s_lshl_b32 s{sE+3}, s{sB}, 3""")
        if MODS.get('pp'): a(f"s_sub_u32 s{sE+3}, s{sE+3}, 1")
    else: a(f"s_add_u32 s{sE+3}, s{sPT}, 4")
    poll(a, tag + "_pp", sPA, f"s{sE+3}")
    assert (KM_OFF >> 21) % 2 == 0 and (VM_OFF >> 21) % 2 == 0 and (K_OFF >> 21) % 2 == 0 and (VT_OFF >> 21) % 2 == 0
    a(f"""s_lshl_b32 s{sE+2}, s{sE+1}, 19
    s_lshr_b32 s{sE+3}, s{sE}, 2
    s_lshl_b32 s{sE+3}, s{sE+3}, 14
    s_add_u32 s{sE+2}, s{sE+2}, s{sE+3}
    s_and_b32 s{sE+3}, s{sE}, 3
    s_lshl_b32 s{sE+3}, s{sE+3}, 11
    s_add_u32 s{sE+2}, s{sE+2}, s{sE+3}
    s_lshl_b32 s{sE+3}, s{sB}, 12
    s_{'xnor' if 'farm' in MODS else 'xor'}_b32 s{sE+3}, s{sE+3}, s{sSL}
    s_and_b32 s{sE+3}, s{sE+3}, 8192
    s_add_u32 s{sE+2}, s{sE+2}, s{sE+3}
    s_add_u32 s{sKM}, s{sE+2}, {KM_OFF}
    s_add_u32 s{sVM}, s{sE+2}, {VM_OFF}
    s_lshl_b32 s{sE+1}, s{sE+1}, 21
    s_lshl_b32 s{sE}, s{sE}, 14
    s_add_u32 s{sE}, s{sE}, s{sE+1}
    s_lshl_b32 s{sE+1}, s{sWM}, 13
    s_xor_b32 s{sE+1}, s{sE+1}, s{sSL}
    {f's_xor_b32 s{sE+1}, s{sE+1}, 8192' if 'far' in MODS or MODS.get('two') == 2 else ''}
    {f's_cmp_ge_u32 s{sB}, 2; s_cselect_b32 s{sE+3}, 8192, 0; s_xor_b32 s{sE+1}, s{sE+1}, s{sE+3}'.replace('; ', chr(10)) if MODS.get('two') == 1 else ''}
    s_add_u32 s{sE}, s{sE}, s{sE+1}
    s_add_u32 s{sVA}, s{sE}, {VT_OFF}
    s_add_u32 s{sVA+1}, s{sVA}, 4096
    s_add_u32 s{sKA}, s{sE}, {K_OFF}
    s_add_u32 s{sKA+1}, s{sKA}, 4096
    s_mov_b32 s{sC}, {CSC}
    s_mov_b32 s{sC+1}, {CSC}""")
    lanes_frag(a, vKA, 10); lanes_vt(a, vVA, 10)
    a(f"""v_lshrrev_b32 v10, 4, v0                ; g
    v_and_b32 v11, 15, v0                         ; m
    v_lshlrev_b32 v{vKM}, 7, v10
    v_lshl_add_u32 v{vKM}, v11, 4, v{vKM}
    v_mov_b32 v12, {OOB}
    v_cmp_gt_u32 vcc, 8, v11
    v_cndmask_b32 v{vKM}, v12, v{vKM}, vcc
    v_lshrrev_b32 v13, 3, v11
    v_lshlrev_b32 v13, 8, v13
    v_lshl_add_u32 v13, v10, 3, v13
    v_and_b32 v14, 7, v0
    v_lshl_add_u32 v{vVM}, v14, 4, v13
    v_cmp_gt_u32 vcc, 2, v10
    v_cndmask_b32 v{vVM}, v12, v{vVM}, vcc""")
    if 'm' in PLAIN: a(f"v_or_b32 v{vKM}, {OOB}, v{vKM}\nv_or_b32 v{vVM}, {OOB}, v{vVM}")
    if 'v' in PLAIN: a(f"v_or_b32 v{vVA}, {OOB}, v{vVA}")
    vm = VM(a)
    sets = (144, 0)
    Kr = lambda s, kt, F: sets[s & 1] + 16 * kt + 4 * F
    KMr = lambda s, F: sets[s & 1] + 32 + 4 * F
    Vr = lambda s, F, e: sets[s & 1] + 48 + 12 * F + 6 * e
    def loadKM(s):
        return [(f"buffer_load_dwordx4 a[{KMr(s,F)}:{KMr(s,F)+3}], v{vKM}, {ws}, s{sKM} offen offset:{512*F} sc1", ("KM", s)) for F in range(4)] + [(f"s_add_u32 s{sKM}, s{sKM}, 131072", None)]
    def loadVM(s):
        return [(f"buffer_load_dwordx2 a[{Vr(s,F,e)}:{Vr(s,F,e)+1}], v{vVM}, {ws}, s{sVM} offen offset:{512*F+128*e} sc1", ("VM", s)) for F in range(4) for e in range(2)] + [(f"s_add_u32 s{sVM}, s{sVM}, 131072", None)]
    def loadK(s):
        r = [] if stream else loadKM(s)
        for F in range(4):
            for kt in range(2):
                r.append((f"buffer_load_dwordx4 a[{Kr(s,kt,F)}:{Kr(s,kt,F)+3}], v{vVA if 'v' in PLAIN else vKA}, {ws}, s{sKA+(F>>1)} offen offset:{2048*(F&1)+256*kt}{QMOD}", ("K", s)))
        r.append((f"s_add_u32 s{sKA}, s{sKA}, 524288\ns_add_u32 s{sKA+1}, s{sKA+1}, 524288", None))
        return r
    def loadV(s):
        r = [] if stream else loadVM(s)
        for F in range(4):
            for e in range(2):
                b = Vr(s, F, e)
                r.append((f"buffer_load_dwordx4 a[{b+2}:{b+5}], v{vVA}, {ws}, s{sVA+(F>>1)} offen offset:{2048*(F&1)+128*e}{QMOD}", ("V", s)))
        r.append((f"s_add_u32 s{sVA}, s{sVA}, 524288\ns_add_u32 s{sVA+1}, s{sVA+1}, 524288", None))
        return r
    def emit(x):
        if x[1] is None: a(x[0])
        else: vm.op(*x)
    for x in loadK(0) + loadV(0): emit(x)
    a(f"v_mov_b32 v12, {NEG}\nv_lshlrev_b32 v13, 2, v10")
    for i in range(4):
        a(f"v_add_u32 v14, {i}, v13\nv_cmp_gt_u32 vcc, v14, v11\nv_cndmask_b32 v{vMD+i}, 0, v12, vcc")
    a(f"v_cmp_le_u32 vcc, 2, v10\nv_cndmask_b32 v12, 0, v12, vcc\nv_mov_b32 v13, v12\nv_mov_b32 v14, v12\nv_mov_b32 v15, v12")
    free = []; Q = {}
    pend = loadK(1) + loadV(1)
    for t in range(8):
        for F in range(4):
            k0, b0 = c.acc(t, 2 * F); k1, b1 = c.acc(t, 2 * F + 1)
            if k0 == "v":
                pack(a, b0, b0, b1); Q[t, F] = b0; free.append(b1)
            else:
                x, y = free.pop(0), free.pop(0)
                getreg(a, c, t, 2 * F, x); getreg(a, c, t, 2 * F + 1, y)
                pack(a, x, x, y); Q[t, F] = x; free.append(y)
            if t >= 1 and pend: emit(pend.pop(0))
            if t >= 4 and pend: emit(pend.pop(0))
    for x in pend: emit(x)
    R = lambda b, n=4: f"v[{b}:{b+n-1}]"
    A = lambda b, n=4: f"a[{b}:{b+n-1}]"
    if stream:
        X, Y = free.pop(), free.pop()
        a(f"s_cmp_eq_u32 s{sTYP}, {T_QT}\ns_cselect_b32 s{sE+8}, {OOB}, 0\nv_lshl_add_u32 v{X+1}, v0, 9, s{sE+8}")
        a(f"v_mov_b32 v{Y}, 1\ns_add_u32 s{sPT}, s{sPT}, 1")
        if MODS.get('sn', 0) & 2:
            a(f"s_cmp_lg_u32 s{sPT}, 61\ns_cbranch_scc1 {tag}_sn\ns_add_u32 s{sE+8}, s{sOUT}, {262144 * 3}\ns_add_u32 s{sE+9}, s{sOUT}, {262144 * 3 + 4096}")
            for i in range(4): a(f"v_mov_b32 v{free[0]+i}, -1")
            for F in range(4):
                for tt in range(2): a(f"buffer_store_dwordx4 {R(free[0])}, v{vKA}, {ws}, s{sE+8+(F>>1)} offen offset:{2048*(F&1)+256*tt} sc1")
            a.lab(tag + "_sn")
        def rows(s, done):
            a(f"s_branch {tag}_c{s}\n{tag}_r{s}:\ns_sub_u32 s{sKM}, s{sKM}, 131072\ns_sub_u32 s{sVM}, s{sVM}, 131072")
            if 'pr' in MODS:
                a(f"{tag}_q{s}:\n{loadVM(s)[7][0]}\ns_waitcnt vmcnt(0)\nv_accvgpr_read_b32 v{X}, a{Vr(s, 3, 1)}\nv_cmp_eq_u32 vcc, -1, v{X}\ns_cbranch_vccz {tag}_q{s}_d")
                spin(a, f"{tag}_q{s}", f"{tag}_q{s}_d"); a.lab(f"{tag}_q{s}_d")
            for z in loadKM(s) + loadVM(s): a(z[0])
            a(f"s_waitcnt vmcnt(0)\n{tag}_c{s}:")
            rs = [KMr(s, F) for F in range(4)] + [Vr(s, F, e) for F in range(4) for e in range(2)]
            a(f"v_accvgpr_read_b32 v{X+2}, a{rs[0]}\nv_accvgpr_read_b32 v{X}, a{rs[1]}\nv_max_u32 v{X+2}, v{X+2}, v{X}")
            for k in range(2, 12, 2): a(f"v_accvgpr_read_b32 v{X}, a{rs[k]}\nv_accvgpr_read_b32 v{X+3}, a{rs[k+1]}\nv_max3_u32 v{X+2}, v{X+2}, v{X}, v{X+3}")
            a(f"v_cmp_eq_u32 vcc, -1, v{X+2}\ns_cbranch_vccz {done}")
            spin(a, f"{tag}_r{s}", done)
        sn = (MODS.get('sn', 0) & 1 and 'np' not in MODS)
        if sn: a(f"s_cmp_ge_u32 s{sPT}, {MODS.get('s0', 56) + 1}\ns_cselect_b32 s{sE+8}, 2, 0\ns_sub_u32 s{sE+8}, s{sPT}, s{sE+8}")
        poll(a, tag + "_p0", sPA, f"s{sE+8 if sn else sPT}", va=X, vd=X + 2)
        a(f"s_mov_b32 s{sNC}, s{sE+9}")
        vm.q = []
        QS0 = len(a.lines)
        for z in loadKM(0) + loadVM(0): emit(z)
        if sn:
            a(f"s_cmp_lt_u32 s{sPT}, {MODS.get('s0', 56) + 1}\ns_cbranch_scc1 {tag}_f0\ns_waitcnt vmcnt(0)")
            rows(0, tag + "_f0")
            a.lab(tag + "_f0")
    def QST(k):
        if not QTR: return ""
        return f"""s_memrealtime s[{sTRC+2}:{sTRC+3}]
        s_lshl_b32 s{sE+8}, s{sG}, 2
        s_add_u32 s{sE+8}, s{sE+8}, s{sW}
        s_lshl_b32 s{sE+8}, s{sE+8}, 6
        s_add_u32 s{sE+8}, s{sE+8}, {GTRACE_OFF + 5 * MB + 4 * k}
        s_cmp_eq_u32 s{sTYP}, {T_QT}
        s_cselect_b32 s{sE+8}, {GTRACE_OFF + 6 * MB}, s{sE+8}
        s_waitcnt lgkmcnt(0)
        v_mov_b32 v{X+3}, s{sTRC+2}
        v_mov_b32 v{X}, 0
        buffer_store_dword v{X+3}, v{X}, {ws}, s{sE+8} offen
        s_waitcnt vmcnt(0)
        """
    FLAG = lambda s: f"v_mov_b32 v{Y}, {s+1}\nbuffer_store_dword v{Y}, v{X+1}, {ws}, s{sFLG} offen sc1\n" + QST(2 * s + 1)
    for s in range(4):
        if stream and QTR: a(QST(2 * s))
        t0, t1 = 2 * s, 2 * s + 1
        D0, M0, E0, E1, M1 = [free.pop(0) for _ in range(5)]
        vm.wait(("KM" if stream else "K", s))
        for F in range(4):
            for d, kr, q, seed in ((D0, Kr(s, 0, F), Q[t0, F], R(vMD)), (M0, KMr(s, F), Q[t0, F], R(vMM)), (E0, Kr(s, 0, F), Q[t1, F], "0"),
                                   (E1, Kr(s, 1, F), Q[t1, F], R(vMD)), (M1, KMr(s, F), Q[t1, F], R(vMM))):
                a(f"v_mfma_f32_16x16x32_bf16 {R(d)}, {A(kr)}, {R(q)}, {seed if F == 0 else R(d)}")
        if s < 2:
            for x in loadK(s + 2): emit(x)
        for F in range(4): free += [Q[t0, F], Q[t1, F]]
        g0 = [D0 + i for i in range(4)] + [M0 + i for i in range(4)]
        g1 = [E0 + i for i in range(4)] + [E1 + i for i in range(4)] + [M1 + i for i in range(4)]
        def both(op3, op2, r0, r1):
            for r, g in ((r0, g0), (r1, g1)):
                a(f"{op3} v{r}, v{g[0]}, v{g[1]}, v{g[2]}")
                k = 3
                while k + 1 < len(g): a(f"{op3} v{r}, v{r}, v{g[k]}, v{g[k+1]}"); k += 2
                a(f"{op2} v{r}, v{r}, v{g[k]}")
        def across(op, r0, r1):
            a(f"""v_permlane32_swap_b32 v{r0}, v{r1}
            {op} v{r0}, v{r0}, v{r1}
            v_mov_b32 v{r1}, v{r0}
            v_permlane16_swap_b32 v{r0}, v{r1}
            {op} v{r0}, v{r0}, v{r1}""")
        both("v_max3_f32", "v_max_f32", vM0, vM1)
        across("v_max_f32", vM0, vM1)
        a(f"v_mul_f32 v{vM0}, s{sC}, v{vM0}\nv_mov_b32 v{vM1}, v{vM0}\nv_permlane32_swap_b32 v{vM0}, v{vM1}")
        for g, hi in ((g0, 0), (g1, 1)):
            for k in range(0, len(g), 2):
                a(f"v_pk_fma_f32 {R(g[k],2)}, {R(g[k],2)}, s[{sC}:{sC+1}], {R(vM0,2)} op_sel:[0,0,{hi}] op_sel_hi:[1,1,{hi}] neg_lo:[0,0,1] neg_hi:[0,0,1]")
        for r in g0 + g1: a(f"v_exp_f32 v{r}, v{r}")
        x, y = free.pop(0), free.pop(0)
        a(f"v_pk_add_f32 {R(x,2)}, {R(D0,2)}, {R(D0+2,2)}\nv_pk_add_f32 {R(x+2,2)}, {R(M0,2)}, {R(M0+2,2)}")
        a(f"v_pk_add_f32 {R(y,2)}, {R(E0,2)}, {R(E0+2,2)}\nv_pk_add_f32 {R(y+2,2)}, {R(E1,2)}, {R(E1+2,2)}")
        a(f"v_pk_add_f32 {R(x,2)}, {R(x,2)}, {R(x+2,2)}\nv_pk_add_f32 {R(y,2)}, {R(y,2)}, {R(y+2,2)}")
        a(f"v_pk_add_f32 {R(y+2,2)}, {R(M1,2)}, {R(M1+2,2)}\nv_add_f32 v{vS0}, v{x}, v{x+1}\nv_pk_add_f32 {R(y,2)}, {R(y,2)}, {R(y+2,2)}")
        a(f"v_add_f32 v{vS1}, v{y}, v{y+1}")
        across("v_add_f32", vS0, vS1)
        a(f"v_rcp_f32 v{vS0}, v{vS0}\nv_mov_b32 v{vS1}, v{vS0}\nv_permlane32_swap_b32 v{vS0}, v{vS1}")
        for g, hi in ((g0, 0), (g1, 1)):
            for k in range(0, len(g), 2):
                a(f"v_pk_mul_f32 {R(g[k],2)}, {R(g[k],2)}, {R(vS0,2)} op_sel:[0,{hi}] op_sel_hi:[1,{hi}]")
        pack(a, x, M0, D0)
        pack(a, y, E0, E1)
        a(f"v_cvt_pk_bf16_f32 v{M1}, v{M1}, v{M1+1}\nv_cvt_pk_bf16_f32 v{M1+1}, v{M1+2}, v{M1+3}")
        free += [D0, M0, E0, E1]
        vm.wait(("VM" if stream else "V", s))
        O = {(tt, F, e): free.pop(0) for F in range(4) for e in range(2) for tt in range(2)}
        for F in range(4):
            for e in range(2):
                a(f"v_mfma_f32_16x16x16_bf16 {R(O[1,F,e])}, {A(Vr(s,F,e),2)}, {R(M1,2)}, 0")
        for F in range(4):
            for e in range(2):
                a(f"v_mfma_f32_16x16x32_bf16 {R(O[0,F,e])}, {A(Vr(s,F,e))}, {R(x)}, 0")
        a(f"s_add_u32 s{sE+8}, s{sOUT}, {262144 * s}\ns_add_u32 s{sE+9}, s{sOUT}, {262144 * s + 4096}")
        def out(tt, F):
            b0 = O[tt, F, 0]
            pack(a, b0, b0, O[tt, F, 1])
            if 'z' in PLAIN: a("s_mov_b64 exec, 1")
            vm.op(f"buffer_store_dwordx4 {R(b0)}, v{vKA}, {ws}, s{sE+8+(F>>1)} offen offset:{2048*(F&1)+256*tt}{'' if 'o' in PLAIN and not stream else ' sc1'}{' nt' if 'n' in PLAIN else ''}{' sc0' if '0' in PLAIN else ''}", "st")
            if 'z' in PLAIN: a("s_mov_b64 exec, -1")
        for F in range(4):
            for e in range(2):
                a(f"v_mfma_f32_16x16x32_bf16 {R(O[1,F,e])}, {A(Vr(s,F,e)+2)}, {R(y)}, {R(O[1,F,e])}")
            if F >= 1: out(0, F - 1)
        if s < 2:
            for z in loadV(s + 2): emit(z)
        out(0, 3)
        for F in range(4): out(1, F)
        free += [x, y, M1] + list(O.values())
        if stream and s < 3:
            nx = [z[0] for z in loadKM(s + 1) + loadVM(s + 1)]
            a(f"s_add_u32 s{sPT}, s{sPT}, 1")
            if (MODS.get('sn', 0) & 1 and 'np' not in MODS): a(f"s_cmp_ge_u32 s{sPT}, {MODS.get('s0', 56) + 2}\ns_cbranch_scc1 {tag}_d{s}")
            a(f"s_cmp_ge_u32 s{sNC}, s{sPT}\ns_cbranch_scc0 {tag}_w{s}")
            for z in nx: a(z)
            a(f"s_waitcnt vmcnt(12)\n{FLAG(s)}\ns_branch {tag}_j{s}")
            if (MODS.get('sn', 0) & 1 and 'np' not in MODS):
                a.lab(f"{tag}_d{s}")
                for z in nx: a(z)
                a(f"s_waitcnt vmcnt(12)\n{FLAG(s)}\ns_waitcnt vmcnt(1)")
                rows(s + 1, f"{tag}_j{s}")
            a(f"{tag}_w{s}:\ns_waitcnt vmcnt(0)\n{FLAG(s)}")
            poll(a, f"{tag}_p{s+1}", sPA, f"s{sPT}", va=X, vd=X + 2)
            a(f"s_mov_b32 s{sNC}, s{sE+9}")
            for z in nx: a(z)
            a.lab(f"{tag}_j{s}")
            vm.q = [("KM", s + 1)] * 4 + [("VM", s + 1)] * 8
        elif stream and MODS.get('sn', 0) & 2: a(f"s_cmp_eq_u32 s{sPT}, 64\ns_cbranch_scc1 {tag}_na\ns_waitcnt vmcnt(0)\n{tag}_na:\n{FLAG(s)}")
        elif stream: a(f"s_waitcnt vmcnt(0)\n{FLAG(s)}")
    for i in range(8): a(f"v_accvgpr_read_b32 v{2+i}, a{aSTA+i}")


def tail_wo(a, tag, trace=None):
    sU, sSG, sO, sY, sP, sXX, sYY, sOO = sTYP, sB, sN, sFLG, sNC, sOA, sOB, sSTB
    vA_, vL, vP_, vTH, vR, vO, vF, vY, vD, vB, vX, vFX, vL8 = 1, 2, 3, 4, 5, 6, 7, 8, 16, 32, 196, 200, 201
    bfe(a, sU, sCUR, 4, 5); bfe(a, sE + 8, sCUR, 9, 1); bfe(a, sSG, sCUR, 20, 6)
    a(f"""s_mov_b64 s[{SB_}:{SB_+1}], s[{sWP+10}:{sWP+11}]
    s_mov_b32 s{SB_+2}, {4096 * 2048}
    v_lshrrev_b32 v10, 2, v0
    v_and_b32 v11, 3, v0
    v_lshlrev_b32 v11, 4, v11
    v_lshl_add_u32 v{vA_}, v10, 11, v11
    s_lshl_b32 s{sOB}, s{sW}, 21
    s_lshl_b32 s{sE}, s{sU}, 6
    s_add_u32 s{sOB}, s{sOB}, s{sE}
    s_lshl_b32 s{sWA}, s{sW}, 15
    v_lshrrev_b32 v12, 4, v0                      ; g
    v_lshrrev_b32 v13, 5, v0
    v_lshlrev_b32 v13, 4, v13
    v_and_b32 v14, 1, v12
    v_lshl_add_u32 v13, v14, 2, v13
    v_and_b32 v10, 3, v10
    v_add_u32 v13, v13, v10                       ; k row
    v_lshl_add_u32 v{vR}, v13, 6, s{sWA}
    v_bfe_u32 v13, v0, 1, 1
    v_lshl_add_u32 v{vR}, v13, 5, v{vR}
    v_and_b32 v13, 1, v0
    v_lshl_add_u32 v{vR}, v13, 3, v{vR}
    s_waitcnt lgkmcnt(0)
    s_barrier""")
    def dma(bt):
        a(f"s_add_u32 m0, s{sWA}, {(bt & 1) * 16384}")
        for i in range(16):
            a(f"buffer_load_dwordx4 v{vA_}, s[{SB_}:{SB_+3}], s{sOB} offen lds\ns_add_u32 s{sOB}, s{sOB}, 32768")
            if i < 15: a("s_add_u32 m0, m0, 1024")
    def trr(bt):
        for ks in range(8):
            for e in range(2):
                for h in range(2):
                    r = 64 * bt + 8 * ks + 4 * e + 2 * h
                    a(f"ds_read_b64_tr_b16 a[{r}:{r+1}], v{vR} offset:{(bt & 1) * 16384 + 2048 * ks + 512 * h + 16 * e}")
            if ks & 1: a("s_waitcnt lgkmcnt(4)")
        a("s_waitcnt lgkmcnt(0)")
    dma(0); dma(1)
    for bt in range(4):
        a(f"s_waitcnt vmcnt({16 if bt < 3 else 0})"); trr(bt)
        if bt < 2: dma(bt + 2)
    lanes_frag(a, vF, 10)
    a(f"""s_lshl_b32 s{sE}, s{sE+8}, 8
    v_add_u32 v{vF}, s{sE}, v{vF}
    v_and_b32 v10, 15, v0
    v_lshlrev_b32 v10, 11, v10
    v_lshl_add_u32 v{vO}, v12, 4, v10
    s_lshl_b32 s{sE}, s{sE+8}, 15
    s_lshl_b32 s{sE+1}, s{sU}, 6
    s_add_u32 s{sE}, s{sE}, s{sE+1}
    v_add_u32 v{vO}, s{sE}, v{vO}
    v_lshlrev_b32 v{vL}, 4, v0
    v_add_u32 v{vR}, s{sWA}, v{vL}
    s_lshr_b32 s{sE}, s{sU}, 3
    s_lshl_b32 s{sE}, s{sE}, 8
    s_bfe_u32 s{sE+1}, s{sU}, 0x10002
    s_lshl_b32 s{sE+1}, s{sE+1}, 6
    s_add_u32 s{sP}, s{sE}, s{sE+1}
    s_add_u32 s{sP}, s{sP}, {C_FW}
    s_mov_b32 s{sDEP}, {CTRL_OFF}
    s_lshl_b32 s{sE}, s{sU}, 11
    s_cmp_eq_u32 s{sW}, 0
    s_cselect_b32 s{sE+1}, 0, {OOB}
    v_or_b32 v{vFX}, s{sE+1}, v{vO}
    s_lshl_b32 s{sYY}, s{sW}, 22
    s_add_u32 s{sYY}, s{sYY}, s{sE}
    s_add_u32 s{sYY}, s{sYY}, {Y_OFF}
    s_lshl_b32 s{sOO}, s{sW}, 16
    s_add_u32 s{sOO}, s{sOO}, {O_OFF}""")
    def flagaddr(sg):
        a(f"""s_bfe_u32 s{sE}, s{sg}, 0x20002
        v_cmp_eq_u32 s[{sE}:{sE+1}], s{sE}, v{vL8}
        s_and_b32 s{sE+3}, s{sg}, 3
        s_add_u32 s{sE+3}, s{sE+3}, 1
        v_mov_b32 v{vTH}, s{sE+3}
        v_cndmask_b32 v{vTH}, 0, v{vTH}, s[{sE}:{sE+1}]""")
    FL = lambda v: f"buffer_load_dword v{v}, v{vP_}, {ws}, s{sDEP} offen sc1"
    def early(sg):
        a(f"s_add_u32 s{sE+2}, s{sg}, 1")
        flagaddr(sE + 2)
        a(f"""{FL(12)}
        s_lshl_b32 s{sY}, s{sg}, 16
        buffer_load_dwordx4 v[{vX}:{vX+3}], v{vFX}, s[{XS}:{XS+3}], s{sY} offen
        s_add_u32 s{sE}, s{sY}, s{sYY}
        buffer_load_dwordx4 v[{vY}:{vY+3}], v{vF}, {ws}, s{sE} offen
        s_lshl_b32 s{sO}, s{sg}, 18
        s_add_u32 s{sO}, s{sO}, s{sOO}""")
    def frag(ks, m=""):
        a(f"buffer_load_dwordx4 v[{vB+4*ks}:{vB+4*ks+3}], v{vF}, {ws}, s{sO} offen offset:{2048*(ks&1)}{m}")
        if ks & 1 and ks < 31: a(f"s_add_u32 s{sO}, s{sO}, 4096")
    def loads(sg, m=""):
        early(sg)
        for ks in range(32): frag(ks, m)
        a(FL(14))
    def wait(lab):
        a(f"{lab}:\n{FL(12)}\ns_waitcnt vmcnt(0)\nv_cmp_gt_u32 vcc, v{vTH}, v12\ns_cbranch_vccz {lab}_d")
        spin(a, lab, lab + "_d")
        a.lab(lab + "_d")
    def mm(ks):
        for e in range(2):
            d = vD + 8 * (ks & 1) + 4 * e
            a(f"v_mfma_f32_16x16x32_bf16 v[{d}:{d+3}], a[{8*ks+4*e}:{8*ks+4*e+3}], v[{vB+4*ks}:{vB+4*ks+3}], v[{d}:{d+3}]")
    def known(v): a(f"v_cmp_gt_u32 vcc, v{vTH}, v{v}\ns_cmp_eq_u32 s{sE+6}, 64\ns_cselect_b64 vcc, -1, vcc")
    if trace: a(f"s_mov_b32 s{sE+6}, 46"); trace(sE + 6)
    a(f"""v_lshrrev_b32 v{vL8}, 1, v0
    v_lshlrev_b32 v{vL8}, 10, v{vL8}
    v_and_b32 v{vP_}, 1, v0
    v_lshl_add_u32 v{vP_}, v{vP_}, 7, v{vL8}
    s_add_u32 s{sP}, s{sP}, {6 << 10}
    v_add_u32 v{vP_}, s{sP}, v{vP_}
    v_mov_b32 v13, {OOB}
    v_cmp_gt_u32 vcc, 4, v0
    v_cndmask_b32 v{vP_}, v13, v{vP_}, vcc
    v_cndmask_b32 v{vTH}, 0, 4, vcc
    s_cmp_lg_u32 s{sW}, 0
    s_cbranch_scc1 {tag}_wf_d""")
    wait(tag + "_wf")
    bfe(a, sE, sCUR, 4, 6)
    a(f"""s_barrier
    s_lshl_b32 s{sE}, s{sE}, 2
    s_add_u32 s{sE}, s{sE}, s{sW}
    s_lshl_b32 s{sE}, s{sE}, 7
    s_add_u32 s{sE}, s{sE}, {C_OM}
    v_lshl_add_u32 v{vP_}, v0, 2, s{sE}
    v_cmp_gt_u32 vcc, 32, v0
    v_cndmask_b32 v{vP_}, v13, v{vP_}, vcc
    v_lshrrev_b32 v{vL8}, 3, v0""")
    flagaddr(sSG)
    wait(tag + "_w0")
    if trace: a(f"s_mov_b32 s{sE+6}, 47"); trace(sE + 6)
    loads(sSG)
    a(f"{tag}_top:\ns_add_u32 s{sE+6}, s{sSG}, 1\ns_waitcnt vmcnt(33)")
    a(f"v_permlane16_swap_b32 v{vX}, v{vX+2}\nv_permlane16_swap_b32 v{vX+1}, v{vX+3}")
    for k, src in enumerate((vY, vX)):
        for i in range(4): a(f"v_lshlrev_b32 v{vD+8*k+2*i}, 16, v{src+i}\nv_and_b32 v{vD+8*k+2*i+1}, 0xffff0000, v{src+i}")
    known(12)
    a(f"s_cbranch_vccnz {tag}_n")
    early(sE + 6)
    for ks in range(32):
        a(f"s_waitcnt vmcnt({34 if ks else 35})"); mm(ks)
        if ks: frag(ks - 1)
    frag(31)
    a(f"{FL(14)}\ns_nop 7\ns_branch {tag}_r\n{tag}_n:")
    for ks in range(32):
        k0 = MODS.get('fs', 99)
        a(f"s_waitcnt vmcnt({32 - ks + (ks > k0)})"); mm(ks)
        if ks == k0: a(FL(15))
        if MODS.get('sn', 0) & 2 and ks & 1: a(f"v_max3_u32 v202, v202, v{vB+4*ks-4}, v{vB+4*ks}" if ks > 1 else f"v_max_u32 v202, v{vB}, v{vB+4}")
    if MODS.get('sn', 0) & 2: a(f"v_cmp_eq_u32 vcc, -1, v202\ns_cbranch_vccnz {tag}_sn\n{tag}_snd:")
    a(f"s_waitcnt vmcnt({int('fs' in MODS)})\ns_nop 4")
    known(14)
    a(f"s_cbranch_vccnz {tag}_r")
    loads(sE + 6)
    a.lab(tag + "_r")
    for i in range(0, 8, 2): a(f"v_pk_add_f32 v[{vD+i}:{vD+i+1}], v[{vD+i}:{vD+i+1}], v[{vD+8+i}:{vD+9+i}]")
    a(f"""ds_write_b128 v{vR}, v[{vD}:{vD+3}]
    ds_write_b128 v{vR}, v[{vD+4}:{vD+7}] offset:1024
    v_xor_b32 v{vR}, 2048, v{vR}
    s_waitcnt lgkmcnt(0)
    s_barrier
    s_and_b32 s{sE}, s{sSG}, 3
    s_cmp_lg_u32 s{sE}, s{sW}
    s_cbranch_scc1 {tag}_s""")
    T = 164
    for w in range(4):
        if w == 2: a(f"v_add_u32 v13, 65536, v{vL}")
        for e in range(2): a(f"ds_read_b128 v[{T+8*w+4*e}:{T+8*w+4*e+3}], v{vL if w < 2 else 13} offset:{32768*(w&1)+1024*e}")
    for w in range(1, 4):
        a(f"s_waitcnt lgkmcnt({6 - 2 * w})")
        for i in range(0, 8, 2): a(f"v_pk_add_f32 v[{T+i}:{T+i+1}], v[{T+i}:{T+i+1}], v[{T+8*w+i}:{T+8*w+i+1}]")
    pack(a, T, T, T + 4)
    a(f"""v_permlane16_swap_b32 v{T}, v{T+2}
    v_permlane16_swap_b32 v{T+1}, v{T+3}
    s_lshl_b32 s{sE}, s{sSG}, 16
    buffer_store_dwordx4 v[{T}:{T+3}], v{vO}, s[{SO}:{SO+3}], s{sE} offen{MODS.get('ot', '')}""")
    if trace: trace(sSG)
    a(f"""{tag}_s:
    v_xor_b32 v{vL}, 2048, v{vL}
    s_mov_b32 s{sSG}, s{sE+6}
    s_cbranch_vccz {tag}_top
    s_cmp_eq_u32 s{sSG}, 64
    s_cbranch_scc1 {tag}_x""")
    if 'fs' in MODS: a(f"s_waitcnt vmcnt(0)\nv_cmp_gt_u32 vcc, v{vTH}, v15\ns_cbranch_vccz {tag}_w1_d")
    wait(tag + "_w1")
    loads(sSG)
    a(f"s_branch {tag}_top")
    if MODS.get('sn', 0) & 2:
        a(f"{tag}_sn:\ns_cmp_lg_u32 s{sSG}, 63\ns_cbranch_scc1 {tag}_snd\ns_cmp_eq_u32 s{sBUD}, 0\ns_cbranch_scc1 {tag}_snd\ns_sub_u32 s{sBUD}, s{sBUD}, 1\ns_waitcnt vmcnt(0)")
        loads(sSG, " sc1")
        a(f"s_branch {tag}_top")
    a.lab(tag + "_x")

def load_lists(a, lists, lab):
    def rec(lo, hi):
        if hi - lo == 1:
            l = list(lists[lo]) + [T_END] * (NLIST - len(lists[lo]))
            assert len(l) == NLIST and l[-1] == T_END
            a(f"s_mov_b32 s{sCUR}, {hex(l[0])}\ns_mov_b32 s{sNXT}, {hex(l[1])}")
            for i in range(8):
                if l[2 + i] != T_END: a(f"s_mov_b32 s{sLST+i}, {hex(l[2+i])}")
            a(f"s_branch {lab}_d")
            return
        m = (lo + hi) // 2
        a(f"s_cmp_ge_u32 s{sG}, {m}\ns_cbranch_scc1 {lab}_{m}_{hi}")
        rec(lo, m); a.lab(f"{lab}_{m}_{hi}"); rec(m, hi)
    for i in range(8): a(f"s_mov_b32 s{sLST+i}, {T_END}")
    rec(0, len(lists))
    a.lab(lab + "_d")

def next_dep(a):
    t = sE + 1
    a(f"s_and_b32 s{t}, s{sNXT}, 15")
    bfe(a, sE + 2, sNXT, 4, 3); bfe(a, sE + 3, sNXT, 11, 4); bfe(a, sE + 4, sNXT, 15, 5)
    a(f"""s_lshl_b32 s{sE+2}, s{sE+2}, 4
    s_add_u32 s{sE+2}, s{sE+2}, s{sE+3}
    s_lshl_b32 s{sE+2}, s{sE+2}, 2
    s_mov_b32 s{sDEP}, {CTRL_OFF + C_F1}
    s_cmp_eq_u32 s{t}, {T_WO}
    s_cselect_b32 s{sDEP}, {CTRL_OFF + C_QA}, s{sDEP}
    s_add_u32 s{sDEP}, s{sDEP}, s{sE+2}
    s_lshl_b32 s{sE+2}, s{sQ}, 9
    s_add_u32 s{sDEP}, s{sDEP}, s{sE+2}
    s_bfm_b32 s{sDMK}, s{sE+4}, 0
    s_cmp_ge_u32 s{t}, {T_TW}
    s_cselect_b32 s{sCOLD}, 1, 0""")
    dep_lanes(a)
    sum_fields(a, sE + 1, sE + 2)
    fw_flag(a, sE, sE + 1, sE + 2)
    a(f"s_sub_u32 s{sE}, s{sE}, s{sDEP}\nv_writelane_b32 v{vDL}, s{sE}, 32")
def cur_fields(a):
    a(f"s_and_b32 s{sTYP}, s{sCUR}, 15")
    bfe(a, sB, sCUR, 4, 3); bfe(a, sN, sCUR, 7, 4); bfe(a, sCNT, sCUR, 15, 5)
    a(f"s_lshl_b32 s{sCNT}, s{sCNT}, 1\ns_cmp_eq_u32 s{sCNT}, 0\ns_cselect_b32 s{sCNT}, 8, s{sCNT}")

def gemm_side(a, name, lists, trace=False, cs=None):
    cs = cs or Cfg(8)
    assert cs.lds <= LDS_BYTES and XN_OFF == 0
    n = name + "_g"
    for i, k in enumerate((A_WK, A_WV, A_WQ, A_W1, A_W2, A_WO)): a(f"s_load_dwordx2 s[{sWP+2*i}:{sWP+2*i+1}], s[0:1], {k}")
    a(f"""s_load_dwordx2 s[{SO}:{SO+1}], s[0:1], {A_OUT}
    s_lshr_b32 s{sQ}, s{sG}, 5
    s_lshr_b32 s{sWM}, s{sW}, 1
    s_and_b32 s{sWN}, s{sW}, 1
    s_and_b32 s{sSL}, s{sSELV}, 2
    s_lshl_b32 s{sSL}, s{sSL}, 12
    s_mov_b32 s{SA}, s{WS}
    s_mov_b32 s{SA+1}, s{WS+1}
    s_mov_b32 s{SA+2}, {WS_BYTES}
    s_mov_b32 s{SA+3}, 0x20000
    s_mov_b32 s{SB_+2}, {8 * MB}
    s_mov_b32 s{SB_+3}, 0x20000
    s_mov_b32 s{SO+2}, {2048 * 1024 * 2}
    s_mov_b32 s{SO+3}, 0x20000""")
    load_lists(a, lists, n + "_ll")
    if trace: a(f"s_lshl_b32 s{sTRC}, s{sG}, 9\ns_add_u32 s{sTRC}, s{sTRC}, {GTRACE_OFF}")
    def stamp(i):
        if trace: a(f"s_memrealtime s[{sTRC+2}:{sTRC+3}]\ns_waitcnt lgkmcnt(0)\ns_mov_b32 s{sTRC+4+i}, s{sTRC+2}")
        if trace and i in (1, 2): a(f"s_memtime s[{sTRC+2}:{sTRC+3}]\ns_waitcnt lgkmcnt(0)\n" + (f"s_mov_b32 s{sTRC+8}, s{sTRC+2}" if i == 1 else f"s_sub_u32 s{sTRC+8}, s{sTRC+2}, s{sTRC+8}"))
    def trace_out(lab):
        if not trace: return
        stamp(3)
        a(f"s_cmp_lg_u32 s{sW}, 0\ns_cbranch_scc1 {lab}")
        lane0(a, 14, 15)
        for i in range(0, 4, 2): a(f"v_mov_b32 v12, s{sTRC+4+i}\nv_mov_b32 v13, s{sTRC+5+i}\nbuffer_store_dwordx2 v[12:13], v14, {ws}, s{sTRC} offen offset:{4*i}\ns_nop 1")
        a(f"v_mov_b32 v12, s{sCUR}\nv_mov_b32 v13, s{sTRC+8}\nbuffer_store_dwordx2 v[12:13], v14, {ws}, s{sTRC} offen offset:16\ns_nop 1\nv_mov_b32 v12, s{sTRC+1}\nv_mov_b32 v13, s{sTRC+9}\nbuffer_store_dwordx2 v[12:13], v14, {ws}, s{sTRC} offen offset:24\ns_add_u32 s{sTRC}, s{sTRC}, 32")
        a.lab(lab)
    stamp(0)
    cur_fields(a)
    lane_setup(a, cs)
    a("s_waitcnt lgkmcnt(0)")
    stream_switch(a, cs, sCUR, n + "_w0")
    cold_dma(a, cs)
    a(f"""v_and_b32 v10, 15, v0
    v_lshrrev_b32 v11, 4, v0
    v_lshrrev_b32 v12, 2, v10
    v_and_b32 v13, 1, v0
    v_lshlrev_b32 v13, 4, v13
    v_mov_b32 v14, 0x3f80
    v_lshlrev_b32 v14, v13, v14
    v_cmp_eq_u32 vcc, v11, v12
    v_cndmask_b32 v14, 0, v14, vcc
    v_bfe_u32 v13, v0, 1, 1
    v_cmp_eq_u32 vcc, 0, v13
    v_cndmask_b32 v12, 0, v14, vcc
    v_cndmask_b32 v13, v14, 0, vcc
    v_mov_b32 v14, 0""")
    for r, v in enumerate((12, 13, 14, 14, 14, 14, 12, 13)): a(f"v_accvgpr_write_b32 a{aSEL+r}, v{v}")
    a(f"""s_mov_b64 vcc, 0
    s_mov_b32 s{sE+8}, {T_QA}
    s_waitcnt vmcnt({(cs.NS - 1) * cs.P})
    s_branch {n}_warm""")
    main_loop(a, cs, "N", n + "_N")
    stamp(2)
    epi_kv(a, cs, 1, n + "_ev")
    a(f"s_branch {n}_nx0")
    main_loop(a, cs, "T", n + "_T")
    stamp(2)
    a(f"""s_cmp_eq_u32 s{sTYP}, {T_F2}
    s_cbranch_scc1 {n}_nx2
    s_cmp_eq_u32 s{sTYP}, {T_K}
    s_cbranch_scc1 {n}_ek
    s_cmp_eq_u32 s{sTYP}, {T_F1}
    s_cbranch_scc1 {n}_ef
    s_cmp_eq_u32 s{sTYP}, {T_QA}
    s_cbranch_scc1 {n}_eq
    s_cmp_ge_u32 s{sTYP}, {T_QT}
    s_cbranch_scc1 {n}_es""")
    epi_park(a, cs)
    a(f"s_branch {n}_nx1\n{n}_eq:")
    epi_qa(a, cs, n + "_qa")
    a(f"s_branch {n}_nx1\n{n}_es:")
    epi_qa(a, cs, n + "_qs", True)
    row_flag(a, C_QA)
    a(f"s_cmp_eq_u32 s{sTYP}, {T_QT}\ns_cselect_b32 s{sPI}, 1, 0\ns_branch {n}_nx3\n{n}_ef:")
    tile_out(a, H1_OFF, 4 * 229376, 13)
    row_flag(a, C_F1)
    epi_store(a, cs, "silu", 229376)
    a(f"s_branch {n}_nx1\n{n}_ek:")
    epi_kv(a, cs, 0, n + "_eks")
    a(f"""{n}_nx0:
    s_mov_b32 s{sPI}, 2
    s_branch {n}_nx3
    {n}_nx1:
    s_mov_b32 s{sPI}, 1
    {n}_nx3:
    s_bitcmp1_b32 s{sCUR}, 26
    s_cbranch_scc0 {n}_nx4
    {n}_sum:""")
    sum_part(a, n + "_sm")
    a.lab(n + "_nx4")
    lane0(a, vFA, vFD)
    a(f"s_and_b32 s{sLOC}, s{sTYP}, 14\ns_cmp_eq_u32 s{sLOC}, 2\ns_cselect_b32 s{sLOC}, s{sMODE}, 0")
    a(f"v_mov_b32 v{vFD}, s{sPI}\ns_mov_b32 s{sPFL}, s{sFLG}\ns_cmp_lg_u32 s{sPI}, 0\ns_cselect_b64 vcc, -1, 0")
    a.lab(n + "_nx2")
    trace_out(n + "_ntr")
    stamp(0)
    a(f"""s_mov_b32 s{sE+8}, s{sTYP}
    s_mov_b32 s{sCUR}, s{sNXT}
    s_mov_b32 s{sNXT}, s{sLST}""")
    for i in range(7): a(f"s_mov_b32 s{sLST+i}, s{sLST+i+1}")
    a(f"s_mov_b32 s{sLST+7}, {T_END}")
    cur_fields(a)
    a(f"""s_cmp_eq_u32 s{sCOLD}, 0
    s_cbranch_scc1 {n}_warm
    s_waitcnt vmcnt(0)""")
    def xst(r):
        if trace: a(f"s_memrealtime s[{sTRC+2}:{sTRC+3}]\ns_waitcnt lgkmcnt(0)\ns_mov_b32 s{r}, s{sTRC+2}")
    xst(sTRC + 1)
    publish(a)
    a(f"""s_cmp_eq_u32 s{sTYP}, {T_END}
    s_cbranch_scc1 {n}_done
    s_cmp_eq_u32 s{sTYP}, {T_TW}
    s_cbranch_scc1 {n}_tw
    s_mov_b32 s{sPI}, 0
    s_mov_b32 s{sSV}, 0
    s_cmp_eq_u32 s{sTYP}, {T_SUM}
    s_cbranch_scc1 {n}_sum""")
    dep_lanes(a)
    a(f"""{n}_dp:
    {DEPLD}
    s_waitcnt vmcnt(0)""")
    notready(a)
    a(f"s_cbranch_scc0 {n}_dpd")
    spin(a, n + "_dp", n + "_dpd")
    a.lab(n + "_dpd")
    xst(sTRC + 9)
    stream_switch(a, cs, sCUR, n + "_wc")
    cold_dma(a, cs)
    a(f"s_waitcnt vmcnt({(cs.NS - 1) * cs.P})")
    a.lab(n + "_warm")
    next_dep(a)
    a(f"""s_sub_u32 s{sE}, s{sTYP}, {T_F2}
    s_cmp_lt_u32 s{sE}, 3
    s_cbranch_scc1 {n}_redo
    s_cmp_eq_u32 s{sE+8}, {T_QA}
    s_cbranch_scc1 {n}_redo
    s_cmp_lt_u32 s{sE+8}, {T_KH}
    s_cbranch_scc1 {n}_go
    {n}_redo:
    s_waitcnt lgkmcnt(0)
    s_barrier""")
    for x in reads(cs, 0, 0) + rebias(cs, 0, 1): a(x)
    a.lab(n + "_go")
    stamp(1)
    a(f"""s_cmp_eq_u32 s{sTYP}, {T_V}
    s_cbranch_scc1 {n}_N_f
    s_cmp_eq_u32 s{sE+8}, {T_F2}
    s_cbranch_scc1 {n}_T_c
    s_branch {n}_T_f""")
    a.lab(n + "_tw")
    stamp(1)
    def twtr(sg):
        a(f"""s_memrealtime s[{sTRC+2}:{sTRC+3}]
        s_lshl_b32 s{sE}, s{sG}, 8
        s_lshl_b32 s{sE+1}, s{sg}, 2
        s_add_u32 s{sE}, s{sE}, s{sE+1}
        s_add_u32 s{sE}, s{sE}, {GTRACE_OFF + MB}
        s_waitcnt lgkmcnt(0)
        v_mov_b32 v13, s{sTRC+2}
        v_mov_b32 v15, 0
        buffer_store_dword v13, v15, {ws}, s{sE} offen""")
    tail_wo(a, n + "_tw", twtr if trace else None)
    stamp(2)
    trace_out(n + "_ntw")
    a.lab(n + "_done")
```

```python
from asmlib import *
from layout import *
from prep import srd
from rec import WS, T0, sX, sJ, sW, sMODE, sG, sBUD, sT
from start import DB, XS, M_ROWS, arrive, first_rows, line_addr, line_load, verdict, ln_out, sPASS, sSELV, WKS, WVS, WQS, WOS, M0S
sSTEP, sCUR, sRST, sPCUR, sPRST, sKM = 18, 19, 20, 21, 22, 23
sPEND, sCSC, sTK, sTV, sKVF, sSEL = 32, 33, 62, 63, 64, 65
sTB = 68
vTR, vFL, vOPW = 74, 75, 240
OPW = 1280
sMB = 66
sTR = 40
vCOL, vG, vIDX = 1, 2, 3
vSENT = 4
vA = 8
vQ0, vQ1, vK0, vK1, vV0, vV1, vO0, vO1 = 24, 28, 32, 36, 40, 44, 48, 52
vMEMR, vOR, vXW, vLIN, vOPR, vPW, vPR, vMW = 56, 57, 58, 59, 60, 61, 62, 65
vA1, vA2, vA3, vA4, vA5, vA6, vA7, vA8 = range(66, 74)
vT = 76
vKT, vVT = 80, 88
vF, vX, vD = 96, 100, 104
vR0, vR1, vBM, vONE, vPB, vS, vSO = 116, 120, 124, 128, 132, 136, 144
vP = 148
L_X, L_V, L_O, L_T, L_KP, L_XW, L_P0 = 0, 12288, 16384, 24576, 32768, 65536, 131072
XROW = 40
KVT = 16
CSC = 0x3e0293ee
ws = f"s[{WS}:{WS+3}]"
def vr(b, n=4): return f"v[{b}:{b+n-1}]"
def ar(b, n=8): return f"a[{b}:{b+n-1}]"
def pk(d, x, y): return f"v_pk_add_f32 {vr(d,2)}, {vr(x,2)}, {vr(y,2)}"

vM0, vXR, vX1, vACC, vRT, vKR, vXL, vRW, vRR, vST, vDUM = 128, 144, 208, 24, 88, 120, 241, 242, 243, 244, 245
vXR, vX1, vACC = 144, 24, 208
vQA, vOA, vQP, vOP = 10, 11, 12, 255
sPQ, sPO = 64, 68
sLB, sQO, sOO = 33, 32, 63
sXO, sKV, sXP, sXB, sXQ = 60, 61, 63, 69, 59
XOFF = lambda j: 2048 * (j >> 1 & 1) + 256 * (j & 1)
def kvmm(j, x):
    kb, t = j >> 1, j & 1; r = []
    for T in range(2):
        d = vr(vACC + 8 * t + 4 * T)
        r.append(f"v_mfma_f32_16x16x32_bf16 {d}, {ar(64 + 32 * T + 4 * kb, 4)}, {vr(x)}, {d if kb else 0}")
        d = vr(vACC + 16 + 8 * T + 4 * t)
        r.append(f"v_mfma_f32_16x16x32_bf16 {d}, {vr(x)}, {ar(128 + 32 * T + 4 * kb, 4)}, {d if kb else 0}")
    return r
def shares(): return [f"ds_write_b128 v{vRW}, {vr(vACC + 8 * q + 4 * h)} offset:{8192 * q + 1024 * h}" for q in (0, 2, 1, 3) for h in range(2)]
def merge(m, f, k=1, lead=0):
    m, f, r = list(m), list(f), []
    for i, x in enumerate(m):
        r.append(x)
        if i >= lead: r += f[:k]; f = f[k:]
    return r + f
def sr(b): return f"s[{b}:{b+3}]"
def rec_pre(a, pf):
    a(f"""
    s_lshl_b32 s{sT}, s{sX}, 5
    s_add_u32 s{sT}, s{sT}, s{sJ}            ; cu = 32x + j
    s_lshl_b32 s{sLB}, s{sW}, 15
    s_lshl_b32 s{sQO}, s{sW}, 21
    s_lshl_b32 s{sT}, s{sT}, 6
    s_add_u32 s{sQO}, s{sQO}, s{sT}
    s_lshr_b32 s{sT}, s{sJ}, 1
    s_lshl_b32 s{sT}, s{sT}, 2
    s_add_u32 s{sT}, s{sT}, s{sW}            ; sixteen rows
    s_lshl_b32 s{sPQ}, s{sT}, 17
    s_lshl_b32 s{sPO}, s{sT}, 15
    s_lshl_b32 s{sT}, s{sX}, 11
    s_add_u32 s{sPQ}, s{sPQ}, s{sT}
    s_lshl_b32 s{sT}, s{sX}, 21
    s_add_u32 s{sPO}, s{sPO}, s{sT}
    ; every fourth line arrives late when only its two owners ask for it
    v_and_b32 v8, 3, v0
    v_lshlrev_b32 v8, 9, v8
    v_add_u32 v8, 384, v8
    s_lshl_b32 s{sT}, s{sJ}, 31
    v_or_b32 v8, s{sT}, v8
    v_lshrrev_b32 v9, 2, v0
    v_lshl_add_u32 v{vQP}, v9, 13, v8
    v_lshl_add_u32 v{vOP}, v9, 11, v8
    v_lshrrev_b32 v8, 2, v0
    v_and_b32 v9, 3, v0
    v_lshlrev_b32 v9, 4, v9
    v_lshl_add_u32 v{vQA}, v8, 13, v9
    v_lshl_add_u32 v{vOA}, v8, 11, v9
    s_lshl_b32 s{sT}, s{sX}, 21
    s_lshl_b32 s{sOO}, s{sW}, 19
    s_add_u32 s{sOO}, s{sOO}, s{sT}
    s_lshl_b32 s{sT}, s{sJ}, 6
    s_add_u32 s{sOO}, s{sOO}, s{sT}""")
def rec_ask(a, pf):
    if pf & 24:
        a(f"""s_lshl_b32 s{sT}, s{sJ}, 2
        s_add_u32 s{sT}, s{sT}, s{sW}
        s_lshl_b32 s{sT}, s{sT}, 16
        s_lshl_b32 s{sT+1}, s{sX}, 11
        s_add_u32 s{sT}, s{sT}, s{sT+1}
        s_add_u32 s{sT+1}, s{sT}, 32768
        v_lshrrev_b32 v8, 4, v0
        v_and_b32 v9, 15, v0
        v_lshlrev_b32 v9, 7, v9
        v_lshl_add_u32 v8, v8, 13, v9""")
        for R in (WKS, WVS)[:n_pre(pf) // 2]:
            for i in range(2): a(f"buffer_load_dword v{vDUM}, v8, {sr(R)}, s{sT+i} offen")
def n_pre(pf): return 4 if pf & 16 else 2 if pf & 8 else 0
def touch(R): return f"buffer_load_dword v{vDUM}, v{vOP if R == WOS else vQP}, {sr(R)}, s{sPO if R == WOS else sPQ} offen"

vGL = 16
def rec_prologue(a, name, stamp=lambda i: None, pf=0):
    def trr(abase, region, vaddr):
        for T in range(2):
            for s in range(4):
                for d in range(4):
                    r = abase + T * 32 + s * 8 + 2 * d
                    a(f"ds_read_b64_tr_b16 a[{r}:{r+1}], v{vaddr} offset:{region + (64*s + 32*(d>>1) + 2*(d&1)) * 64 + 32 * T}")
                a("s_waitcnt lgkmcnt(4)")
        a("s_waitcnt lgkmcnt(0)")
    ln_out(a, name, True)
    a.lab(name + "_noln")
    arrive(a, name + "_ra", 0, True)
    a.lab(name + "_dma")
    stamp(-1)
    def wdma(R, region, v, so, step, after=None):
        a(f"s_add_u32 m0, s{sLB}, {region}\ns_mov_b32 s{sT+2}, s{so}")
        for i in range(16):
            a(f"buffer_load_dwordx4 v{v}, {sr(R)}, s{sT+2} offen lds")
            if i < 15: a(f"s_add_u32 m0, m0, 1024\ns_add_u32 s{sT+2}, s{sT+2}, {step}")
            if after: after(i)
    def met():
        line_addr(a, vGL)
        first_rows(a, name, name + "_rm")
        stamp(1)
    if pf & 4: a("s_waitcnt vmcnt(0)"); met()
    for R in (WKS, WVS)[n_pre(pf) // 2:]: a(touch(R))
    wdma(WKS, 0, vQA, sQO, 16 * 8192)
    if pf & 2: a("s_waitcnt vmcnt(16)"); met()
    wdma(WVS, 16384, vQA, sQO, 16 * 8192)
    a(f"""
    v_and_b32 v{vCOL}, 15, v0
    v_lshrrev_b32 v{vG}, 4, v0
    s_lshl_b32 s{sT}, s{sX}, 5
    s_add_u32 s{sT}, s{sT}, s{sJ}
    v_and_b32 v13, 3, v0
    v_lshlrev_b32 v13, 3, v13
    v_add_u32 v13, s{sLB}, v13
    v_bfe_u32 v48, v0, 3, 1                  ; h
    v_bfe_u32 v49, v0, 2, 1                  ; u
    v_lshl_add_u32 v14, v48, 4, v49
    v_lshl_add_u32 v14, v{vG}, 2, v14        ; 16h + 4g + u
    v_lshl_add_u32 v14, v14, 6, v13
    v_lshl_add_u32 v15, v48, 2, v49
    v_and_b32 v50, 1, v{vG}
    v_lshl_add_u32 v15, v50, 4, v15
    v_lshrrev_b32 v50, 1, v{vG}
    v_lshl_add_u32 v15, v50, 3, v15          ; 16(g&1) + 8(g>>1) + 4h + u
    v_lshl_add_u32 v15, v15, 6, v13
    v_lshrrev_b32 v48, 2, v{vCOL}
    v_and_b32 v49, 1, v0
    v_lshl_add_u32 v48, v48, 1, v49
    v_lshlrev_b32 v48, 11, v48
    v_lshl_add_u32 v48, v50, 6, v48
    v_and_b32 v49, 1, v{vG}
    v_lshl_add_u32 v48, v49, 4, v48
    v_bfe_u32 v49, v0, 1, 1
    v_lshl_add_u32 v48, v49, 5, v48
    s_lshl_b32 s{sT+5}, s{sW}, 9
    """)
    for s in range(4): a(f"buffer_load_dwordx4 {vr(vM0+4*s)}, v48, {sr(M0S)}, s{sT+5} offen offset:{128*s}")
    a(f"""v_lshlrev_b32 v{vXL}, 9, v{vG}
    v_lshl_add_u32 v{vXL}, v{vCOL}, 4, v{vXL}
    s_lshl_b32 s{sT+5}, s{sW}, 11
    s_add_u32 s{sT+5}, s{sT+5}, {L_P0}
    v_lshl_add_u32 v{vRW}, v0, 4, s{sT+5}
    s_lshl_b32 s{sT+5}, s{sW}, 13
    s_add_u32 s{sT+5}, s{sT+5}, {L_P0}
    v_lshl_add_u32 v{vRR}, v0, 4, s{sT+5}              ; the piece that this wave completes
    s_lshr_b32 s{sT+5}, s{sT}, 2
    s_lshl_b32 s{sT+5}, s{sT+5}, 14
    s_and_b32 s{sT+6}, s{sT}, 3
    s_lshl_b32 s{sT+6}, s{sT+6}, 11
    s_add_u32 s{sT+5}, s{sT+5}, s{sT+6}
    v_add_u32 v{vST}, s{sT+5}, v{vXL}
    s_mov_b32 s{sKV}, {K_OFF}
    s_lshl_b32 s{sXO}, s{sPASS}, 2
    s_add_u32 s{sXO}, s{sXO}, s{sX}
    s_lshl_b32 s{sXO}, s{sXO}, 5
    s_add_u32 s{sXO}, s{sXO}, s{sW}
    s_lshl_b32 s{sXO}, s{sXO}, 14
    s_add_u32 s{sXO}, s{sXO}, {XR_OFF}""")
    stamp(-1)
    a("s_waitcnt vmcnt(20)")
    trr(64, 0, 14)
    a(touch(WQS))
    if not pf & 6: met()
    def xld(b, j):
        a(f"buffer_load_dwordx4 {vr(b + 4 * j)}, v{vXL}, {ws}, s{sXO} offen offset:{XOFF(j)}")
        if j & 3 == 3: a(f"s_add_u32 s{sXO}, s{sXO}, {4096 if j < 15 else 65536 - 3 * 4096}")
    def rows(i):
        for j in (2 * i, 2 * i + 1): xld(vX1 if j >> 4 else vXR, j & 15)
        if i == 7:
            stamp(-1)
            a("s_waitcnt vmcnt(29)")
            stamp(-1)
            trr(128, 16384, 14)
    wdma(WQS, 0, vQA, sQO, 16 * 8192, rows)
    a(touch(WOS))
    stamp(-1)
    wdma(WOS, 16384, vOA, sOO, 16 * 2048)
    a("s_waitcnt vmcnt(41)")
    stamp(0)
    for j in range(16):
        for x in kvmm(j, vXR + 4 * j): a(x)
        if j: xld(vXR, j - 1)
    xld(vXR, 15)
    a("s_barrier")
    for x in shares(): a(x)
    a("s_waitcnt lgkmcnt(0)\ns_barrier")
    stamp(-1)
    for q in range(4):
        for h in range(2): a(f"ds_read_b128 {vr(vRT + 8 * q + 4 * h)}, v{vRR} offset:{2048 * q + 1024 * h}")
    f = []
    for q in range(1, 4): f += [f"s_waitcnt lgkmcnt({6 - 2 * q})"] + [pk(vRT + i, vRT + i, vRT + 8 * q + i) for i in range(0, 8, 2)]
    f += [f"v_cvt_pk_bf16_f32 v{vKR+i}, v{vRT+2*i}, v{vRT+2*i+1}" for i in range(4)]
    a("s_waitcnt vmcnt(33)")
    for x in merge(sum((kvmm(j, vX1 + 4 * j) for j in range(16)), []), f, 1, 12): a(x)
    a(f"s_cmp_ge_u32 s{sW}, 2\ns_cbranch_scc1 {name}_kvs\nv_permlane32_swap_b32 v{vKR}, v{vKR+2}\nv_permlane32_swap_b32 v{vKR+1}, v{vKR+3}\n{name}_kvs:")
    stamp(-1)
    stamp(-1)
    trr(0, 0, 14)
    a(line_load(vGL))
    a("s_waitcnt vmcnt(17)")
    stamp(-1)
    trr(192, 16384, 15)
    a("s_waitcnt vmcnt(0)")
    stamp(-1)
    verdict(a, name, name + "_rv", vGL)
    a(f"s_and_b32 s{sSEL}, s{sSELV}, 2\ns_lshl_b32 s{sSEL}, s{sSEL}, 12")
    near(a, sT + 5, sKV)
    a(f"""s_lshr_b32 s{sT+6}, s{sW}, 1
    s_lshl_b32 s{sT+6}, s{sT+6}, 17
    s_and_b32 s{sT+7}, s{sW}, 1
    s_or_b32 s{sT+6}, s{sT+6}, s{sT+7}
    s_lshl_b32 s{sT+6}, s{sT+6}, 8
    s_add_u32 s{sT+5}, s{sT+5}, s{sT+6}
    buffer_store_dwordx4 {vr(vKR)}, v{vST}, {ws}, s{sT+5} offen sc1
    s_add_u32 s{sKV}, s{sKV}, 524288""")
    assert VT_OFF - K_OFF == 1 << 25
    for i in range(4): a(f"v_mov_b32 v{vKT+i}, v{vKR+i}")
    stamp(2)
    for i in range(0, 16, 2): a(f"v_mov_b64 {vr(vA+i,2)}, {vr(vM0+i,2)}")
    a(f"""s_lshl_b32 s{sT}, s{sX}, 5
    s_add_u32 s{sT}, s{sT}, s{sJ}
    v_lshrrev_b32 v{vT+3}, 1, v{vG}          ; g>>1
    v_and_b32 v{vT+2}, 1, v{vG}              ; g&1
    v_bfe_u32 v{vT+1}, v0, 1, 1""")
    a(f"""
    v_mov_b32 v{vIDX}, 0x4444
    v_mov_b32 v{vT}, 0xeeee
    v_cmp_eq_u32 s[{sMB}:{sMB+1}], 1, v{vT+1}
    v_cndmask_b32 v{vIDX}, v{vIDX}, v{vT}, s[{sMB}:{sMB+1}]
    """)
    for i in range(4):
        a(f"v_mov_b32 v{vSENT+i}, -1\nv_mov_b32 v{vONE+i}, 0x3f803f80\nv_mov_b32 v{vR0+i}, 0\nv_mov_b32 v{vR1+i}, 0\nv_mov_b32 v{vBM+i}, 0")
    for r in range(vQ0, vO1 + 4): a(f"v_mov_b32 v{r}, 0")
    a(f"""
    v_lshlrev_b32 v{vLIN}, 4, v0             ; lane*16
    s_movk_i32 s{sT+6}, 288
    s_movk_i32 s{sT+7}, 640
    s_lshl_b32 s{sT+1}, s{sX}, 14
    s_lshl_b32 s{sT+2}, s{sW}, 12
    s_add_u32 s{sT+2}, s{sT+2}, s{sT+1}
    v_add_u32 v{vMEMR}, s{sT+2}, v{vLIN}
    v_add_u32 v{vOR}, {R_O}, v{vMEMR}
    v_mul_u32_u24 v{vT}, {4*XROW*4}, v{vG}
    v_lshl_add_u32 v{vT}, v{vCOL}, 2, v{vT}
    s_mul_i32 s{sT+2}, s{sW}, {16*XROW*4}
    v_add_u32 v{vXW}, s{sT+2}, v{vT}
    s_lshl_b32 s{sT+4}, s{sJ}, 9
    s_add_u32 s{sT+4}, s{sT+4}, s{sT+1}      ; x*16K + j*512
    v_lshl_add_u32 v{vMW}, v0, 3, s{sT+4}
    s_mul_i32 s{sT+2}, s{sW}, {OPW}
    s_add_u32 s{sT+2}, s{sT+2}, {L_O}
    v_lshl_add_u32 v{vOPW}, v0, 2, s{sT+2}
    v_and_b32 v{vOPR}, 1, v0
    v_lshlrev_b32 v{vOPR}, 4, v{vOPR}
    v_bfe_u32 v{vT}, v0, 1, 1
    v_mad_u32_u24 v{vOPR}, v{vT}, s{sT+6}, v{vOPR}
    v_bfe_u32 v{vT}, v0, 2, 1
    v_mad_u32_u24 v{vOPR}, v{vT}, s{sT+7}, v{vOPR}
    v_bfe_u32 v{vT}, v0, 3, 2
    v_lshl_add_u32 v{vOPR}, v{vT}, 6, v{vOPR}
    v_lshl_add_u32 v{vOPR}, v{vT+3}, 5, v{vOPR}
    s_lshr_b32 s{sT+2}, s{sJ}, 1
    s_lshl_b32 s{sT+2}, s{sT+2}, 14
    s_and_b32 s{sT+3}, s{sJ}, 1
    s_lshl_b32 s{sT+3}, s{sT+3}, 12
    s_add_u32 s{sT+5}, s{sT+2}, s{sT+3}
    v_add_u32 v{vT}, s{sT+5}, v{vLIN}
    """)
    for i in range(4):
        a(f"s_add_u32 s{sT+2}, s{sX}, {i}\ns_and_b32 s{sT+2}, s{sT+2}, 3\ns_lshl_b32 s{sT+2}, s{sT+2}, 10\nv_add_u32 v{vPW+i}, s{sT+2}, v{vT}")
    a(f"""
    s_mov_b32 s{sSTEP}, 0
    s_mov_b32 s{sKM}, 0
    s_mov_b32 s{sPEND}, 0
    s_mov_b32 s{sCSC}, {CSC}
    s_mov_b32 s{sCUR}, {RING_OFF}
    s_mov_b32 s{sRST}, {RING_OFF + 2 * SLOT}
    s_mov_b32 s{sPCUR}, {PART_OFF}
    s_mov_b32 s{sPRST}, {PART_OFF + 2 * PSLOT}
    """)

def kv_wait(a, lab):
    a(f"v_mov_b32 v{vT+1}, 0")
    a.lab(lab)
    a(f"""buffer_load_dword v{vFL}, v{vT+1}, {ws}, s{sKVF} offen sc1
    s_waitcnt vmcnt(0)
    v_readfirstlane_b32 s{sT+6}, v{vFL}
    s_cmp_ge_u32 s{sT+6}, {KVT}
    s_cbranch_scc1 {lab}_d
    s_cmp_eq_u32 s{sBUD}, 0
    s_cbranch_scc1 {lab}_d
    s_sub_u32 s{sBUD}, s{sBUD}, 1
    s_branch {lab}""")
    a.lab(lab + "_d")

MODS = {}
def near(a, d, s):
    far = s in (sTK, sKV) and 'far' in MODS or s == sKV and MODS.get('two') == 2 or s == sKM and 'farm' in MODS
    a(f"s_lshr_b32 s{d}, s{s}, 8\ns_{'xnor' if far else 'xor'}_b32 s{d}, s{d}, s{sSEL}\ns_and_b32 s{d}, s{d}, 8192\ns_add_u32 s{d}, s{d}, s{s}")
def pm_addr(d, t, x, sel):
    h = (CTRL_OFF + C_PM >> 8 & 8192) ^ (0 if MODS.get('pm') == 1 else 8192)
    r = f"s_and_b32 s{d}, s{x}, 1\ns_lshr_b32 s{t}, s{x}, 1\ns_lshl_b32 s{t}, s{t}, 2\ns_add_u32 s{d}, s{d}, s{t}\ns_lshl_b32 s{d}, s{d}, 12\n"
    if MODS.get('pm'): r += f"s_xor_b32 s{t}, s{sel}, {h}\ns_add_u32 s{d}, s{d}, s{t}\n"
    return r + f"s_add_u32 s{d}, s{d}, {CTRL_OFF + C_PM}"
def tok_dma(a):
    near(a, sT + 5, sTK)
    a(f"s_add_u32 s{sT+4}, s{sT+5}, {VT_OFF - K_OFF}")
    for i, (so, o) in list(enumerate(((sT + 5, 0), (sT + 5, 256), (sT + 4, 0), (sT + 4, 256))))[:4 - MODS.get('ta', 0)]:
        a(f"s_add_u32 m0, s{sTB}, {1024 * i - o}\nbuffer_load_dwordx4 v{vA1}, {ws}, s{so} offen offset:{o}{MODS.get('t', ' sc1')} lds")
    if MODS.get('ta'): a(f"s_mov_b32 s{sTV}, s{sT+5}")
    a(f"s_add_u32 s{sTK}, s{sTK}, 524288\ns_xor_b32 s{sTB}, s{sTB}, 4096")
def tok_late(a, lab):
    a(f"s_cmp_eq_u32 s{sTV}, 0\ns_cbranch_scc1 {lab}\ns_add_u32 s{sT+4}, s{sTV}, {VT_OFF - K_OFF}\ns_xor_b32 s{sT+5}, s{sTB}, 4096")
    for i, (so, o) in list(enumerate(((sTV, 0), (sTV, 256), (sT + 4, 0), (sT + 4, 256))))[4 - MODS['ta']:]:
        a(f"s_add_u32 m0, s{sT+5}, {1024 * i - o}\nbuffer_load_dwordx4 v{vA1}, {ws}, s{so} offen offset:{o}{MODS.get('t', ' sc1')} lds")
    a(f"s_mov_b32 s{sTV}, 0\n{lab}:")
def tok_read(a):
    for i in range(4): a(f"ds_read_b128 {vr(vKT+4*i)}, v{vTR} offset:{L_T + 1024*i}")
    a(f"v_xor_b32 v{vTR}, 4096, v{vTR}")

def role_prologue(a, w, name, nkv):
    cu = sT
    def msk(dst, hi):
        a(f"v_mov_b32 v{vT}, {OOB}")
        a(f"v_cndmask_b32 v{dst}, v{vT}, v{dst}, s[{sMB}:{sMB+1}]" if hi else f"v_cndmask_b32 v{dst}, v{dst}, v{vT}, s[{sMB}:{sMB+1}]")
    def xread(dst):
        a(f"""v_mul_u32_u24 v{dst}, {XROW*4}, v{vCOL}
        v_lshl_add_u32 v{dst}, v{vT+3}, 6, v{dst}
        v_lshl_add_u32 v{dst}, v{vT+2}, 4, v{dst}""")
    a(f"""s_lshl_b32 s{sT+6}, s{cu}, 10
    s_add_u32 s{sT+6}, s{sT+6}, {R_ST}            ; own token scores
    s_lshr_b32 s{sT+7}, s{cu}, 2
    s_lshl_b32 s{sT+7}, s{sT+7}, 10
    s_add_u32 s{sT+7}, s{sT+7}, {R_SM}
    s_and_b32 s{sT+3}, s{cu}, 3
    s_lshl_b32 s{sT+3}, s{sT+3}, 2""")
    if w == 0:
        xread(vA1)
        a(f"s_sub_u32 s{sT+2}, s{sT+6}, 32\nv_add_u32 v{vA2}, s{sT+2}, v{vLIN}"); msk(vA2, True)
        a(f"s_add_u32 s{sT+2}, s{sT+7}, s{sT+3}\ns_sub_u32 s{sT+2}, s{sT+2}, 32\nv_add_u32 v{vA3}, s{sT+2}, v{vLIN}"); msk(vA3, True)
        for k in range(1, 4):
            a(f"""s_add_u32 s{sT+2}, s{cu}, {k}
            s_and_b32 s{sT+2}, s{sT+2}, 3
            s_and_b32 s{sT+1}, s{cu}, 0x7c
            s_or_b32 s{sT+2}, s{sT+2}, s{sT+1}
            s_lshl_b32 s{sT+2}, s{sT+2}, 10
            s_add_u32 s{sT+2}, s{sT+2}, {R_ST}
            v_add_u32 v{vA4+k-1}, s{sT+2}, v{vLIN}""")
        a(f"""v_add_u32 v{vA7}, s{sT+7}, v{vLIN}
        v_lshl_add_u32 v{vA8}, v{vT+3}, 4, v{vCOL}
        v_lshl_add_u32 v{vA8}, v{vT+2}, 1, v{vA8}      ; 16(g>>1) + 4a + 2(g&1) + b
        s_add_u32 s{sT+2}, s{sT+4}, {R_O}
        v_lshl_add_u32 v{vA8}, v{vA8}, 4, s{sT+2}""")
        msk(vA8, False)
    elif w == 1:
        xread(vA1)
        a(f"""s_lshr_b32 s{sT+2}, s{cu}, 4
        s_lshl_b32 s{sT+2}, s{sT+2}, 14
        s_and_b32 s{sT+1}, s{cu}, 15
        s_lshl_b32 s{sT+1}, s{sT+1}, 9
        s_add_u32 s{sT+2}, s{sT+2}, s{sT+1}
        s_add_u32 s{sT+2}, s{sT+2}, {KM_OFF}
        v_lshrrev_b32 v{vA2}, 2, v{vCOL}
        v_and_b32 v{vT}, 1, v0
        v_lshl_add_u32 v{vA2}, v{vA2}, 1, v{vT}        ; key
        v_lshl_add_u32 v{vA2}, v{vG}, 3, v{vA2}
        v_lshl_add_u32 v{vA2}, v{vA2}, 4, s{sT+2}""")
        msk(vA2, False)
        a(f"""v_add_u32 v{vA3}, s{sT+6}, v{vLIN}
        s_add_u32 s{sT+2}, s{sT+7}, s{sT+3}
        v_add_u32 v{vA4}, s{sT+2}, v{vLIN}""")
    elif w == 2:
        a(f"""s_lshr_b32 s{sT+2}, s{cu}, 4
        s_lshl_b32 s{sT+2}, s{sT+2}, 14
        s_and_b32 s{sT+1}, s{cu}, 15
        s_lshl_b32 s{sT+1}, s{sT+1}, 9
        s_add_u32 s{sT+2}, s{sT+2}, s{sT+1}
        s_add_u32 s{sT+2}, s{sT+2}, {VM_OFF}
        v_add_u32 v{vA1}, s{sT+2}, v{vLIN}
        v_mov_b32 v{vT}, {OOB}
        v_cmp_gt_u32 vcc, 32, v0
        v_cndmask_b32 v{vA1}, v{vT}, v{vA1}, vcc
        v_lshl_add_u32 v{vA2}, v0, 3, s{sT+4}
        v_add_u32 v{vA3}, {R_O}, v{vA2}
        {pm_addr(sT + 2, sT + 3, sX, sSEL)}
        s_cmp_eq_u32 s{sJ}, 0
        s_cselect_b32 s{sT+2}, s{sT+2}, {OOB}
        v_lshl_add_u32 v{vA4}, v0, 7, s{sT+2}
        v_mov_b32 v{vT}, {OOB}
        v_cmp_gt_u32 vcc, 32, v0
        v_cndmask_b32 v{vA4}, v{vT}, v{vA4}, vcc""")
    else:
        a(f"""s_lshr_b32 s{sT+2}, s{cu}, 2
        s_lshl_b32 s{sT+2}, s{sT+2}, 14
        s_and_b32 s{sT+3}, s{cu}, 3
        s_lshl_b32 s{sT+3}, s{sT+3}, 11
        s_add_u32 s{sT+2}, s{sT+2}, s{sT+3}
        v_lshlrev_b32 v{vA1}, 9, v{vG}
        v_lshl_add_u32 v{vA1}, v{vCOL}, 4, v{vA1}
        v_add_u32 v{vA1}, s{sT+2}, v{vA1}              ; token tiles
        {f'v_or_b32 v{vA1}, {OOB}, v{vA1}' if 'notok' in MODS else ''}
        s_mov_b32 s{sTK}, {K_OFF + nkv * 524288}
        s_lshl_b32 s{sT+2}, s{sX}, 8
        s_add_u32 s{sT+2}, s{sT+2}, {CTRL_OFF + C_PROG + 4}
        v_mov_b32 v{vA3}, s{sT+2}
        v_mov_b32 v{vT}, {OOB}
        v_cmp_eq_u32 vcc, 0, v0
        v_cndmask_b32 v{vA3}, v{vT}, v{vA3}, vcc""")
    a("s_barrier")
    a(f"ds_write_b128 v{vLIN}, {vr(vKT)} offset:{L_T + 1024 * w}\nv_add_u32 v{vRW}, {L_KP - L_P0 & 0xffffffff}, v{vRW}")
    for x in shares(): a(x)
    if w == 0:
        a(f"v_add_u32 v{vXL}, {L_XW}, v{vLIN}")
        for j in range(16): a(f"ds_write_b128 v{vXL}, {vr(vXR + 4 * j)} offset:{1024 * j}")
    else: a(f"v_add_u32 v{vTR}, 4096, v{vLIN}\ns_mov_b32 s{sXB}, {L_XW + 16384}\ns_sub_u32 s{sXQ}, s{sXO}, 65536")
    if w == 3:
        a(f"""s_lshr_b32 s{sKVF}, s{cu}, 3
        s_lshl_b32 s{sKVF}, s{sKVF}, 6
        s_add_u32 s{sKVF}, s{sKVF}, {CTRL_OFF + C_KV + 1024 * (nkv // 8 - 1)}
        s_mov_b32 s{sTV}, 0
        s_mov_b32 s{sTB}, {L_T}
        v_mov_b32 v{vFL}, 0
        s_add_u32 s{sXP}, s{sXO}, {65536 - 3 * 16384}
        s_lshl_b32 s{sT+6}, s{sJ}, 11
        v_lshl_add_u32 v{vA2}, v0, 7, s{sT+6}
        v_mov_b32 v{vT}, {OOB}
        v_cmp_gt_u32 vcc, 16, v0
        v_cndmask_b32 v{vA2}, v{vT}, v{vA2}, vcc
        s_mov_b64 s[{XS}:{XS+1}], s[{DB}:{DB+1}]
        s_mov_b64 s[{XS+2}:{XS+3}], s[{DB+2}:{DB+3}]""")
        line_addr(a, vA4); a(line_load(vA4, XS))
    a(f"s_xor_b32 s{sT+6}, s{sSEL}, {PART_OFF >> 8 & 8192}\ns_waitcnt lgkmcnt(0)\ns_barrier")
    for r in [vPW, vPR, vPR + 1, vPR + 2]: a(f"v_add_u32 v{r}, s{sT+6}, v{r}")
    if w == 0:
        a(f"v_mov_b32 v{vTR}, v{vLIN}")
        tok_read(a)

def rec_loop(a, name, w, fast, trace=None, nsteps=64, ns_s=2, nkv=64, nb=(6, 4, 6), xs=None, exp=()):
    p = f"{name}_{'f' if fast else 's'}{w}"
    loc = "" if fast else " sc1"
    cold = []
    trn = [0]
    def stamp(i):
        if trace is not None: a(f"s_memtime s[{70+2*i}:{71+2*i}]")
    def smf(acc, wb, T, s): return f"v_smfmac_f32_16x16x64_bf16 {vr(acc)}, {vr(vA+4*rot(s))}, {ar(wb+32*T+8*rot(s))}, v{vIDX}"
    def ld(vaddr, s): return f"buffer_load_dwordx4 {vr(vA+4*rot(s))}, v{vaddr}, {ws}, s{sCUR} offen offset:{1024*rot(s)} sc1"
    def budget(out): return f"s_cmp_eq_u32 s{sBUD}, 0\ns_cbranch_scc1 {out}\ns_sub_u32 s{sBUD}, s{sBUD}, 1"
    def cnt(i): return f"s_add_u32 s{sTR+i}, s{sTR+i}, 1" if trace is not None else ""
    rot = (lambda s: (s + w) & 3) if "rot" in exp else (lambda s: s ^ (w & 1)) if "rot2" in exp else (lambda s: s)
    def stages(tag, vaddr, mm, ci, tail=0, hook=None):
        q = f"{p}_{tag}"
        chk = lambda s: f"v_cmp_eq_u32 vcc, -1, v{vA+4*rot(s)}"
        a("s_waitcnt vmcnt(3)")
        if tag == "a": stamp(0)
        a(f"{chk(0)}\ns_cbranch_vccnz {q}m0")
        rest = {0: []}
        for s in range(4):
            M = mm(s)
            if s == 3:
                for x in M: a(x)
                break
            k = len(M) // 2
            for x in M[:k]: a(x)
            a(f"s_waitcnt vmcnt({2-s})\n{chk(s+1)}")
            k2 = len(M) - 1
            for x in M[k:k2]: a(x)
            a(f"s_cbranch_vccnz {q}m{s+1}")
            if hook and s == 2: hook(a, "")
            rest[s + 1] = M[k2:]
            for x in M[k2:]: a(x)
        a.lab(f"{q}b")
        c = ""
        for s in range(4):
            c += f"{q}m{s}:\n" + "\n".join(rest[s]) + f"\ns_mov_b32 s{sPEND}, {15 & ~((1 << s) - 1)}\n{budget(f'{q}h{4-s}{s}')}\n{cnt(ci)}\n{ld(vaddr, s)}\ns_branch {q}l{4-s}{(s+1)&3}\n"
        for n in range(1, 5):
            for s in range(4):
                c += f"{q}l{n}{s}:\n"
                if n < 4: c += f"s_bitcmp1_b32 s{sPEND}, {s}\ns_cbranch_scc0 {q}l{n}{(s+1)&3}\n"
                c += f"s_waitcnt vmcnt({n-1})\n{chk(s)}\ns_cbranch_vccz {q}h{n}{s}\n{budget(f'{q}h{n}{s}')}\n{cnt(ci+1)}\n{ld(vaddr, s)}\n"
            c += f"s_branch {q}l{n}0\n"
            for s in range(4):
                c += f"{q}h{n}{s}:\n" + "\n".join(mm(s)) + "\n"
                c += f"s_bitset0_b32 s{sPEND}, {s}\ns_branch {q}l{n-1}{(s+1)&3}\n" if n > 1 else (f"s_nop {tail-1}\n" if tail else "") + f"s_branch {q}{'c' if hook else 'b'}\n"
        if hook:
            b = Asm(); hook(b, "c"); c += f"{q}c:\n" + "\n".join(b.lines) + f"\ns_branch {q}b\n"
        cold.append(c)
    def zero(r0, r1):
        for r in range(r0, r1, 2): a(f"v_mov_b64 {vr(r,2)}, 0")
    mf = lambda d, x, y, c: a(f"v_mfma_f32_16x16x32_bf16 {vr(d)}, {vr(x)}, {vr(y)}, {vr(d) if c else 0}")
    def xreduce(fill=(), vP=vP):
        for pw in range(4):
            for b in range(2):
                a(f"ds_read_b128 {vr(vP+8*pw+4*b)}, v{vA1} offset:{L_X + pw*16*XROW*4 + 32*b}")
        for x in fill: a(x)
        a("s_waitcnt lgkmcnt(4)")
        for i in range(0, 8, 2): a(pk(vP + i, vP + i, vP + 8 + i))
        a("s_waitcnt lgkmcnt(2)")
        for i in range(0, 8, 2): a(pk(vP + i, vP + i, vP + 16 + i))
        a("s_waitcnt lgkmcnt(1)")
        for i in range(0, 4, 2): a(pk(vP + i, vP + i, vP + 24 + i))
        a("s_waitcnt lgkmcnt(0)")
        for i in range(4, 8, 2): a(pk(vP + i, vP + i, vP + 24 + i))
        for i in range(0, 8, 2): a(f"v_cvt_pk_bf16_f32 v{vX+i//2}, v{vP+i}, v{vP+i+1}")
    def vreduce(tmp):
        o = [x for x in range(4) if x != w]
        for k in range(3): a(f"ds_read_b128 {vr(tmp+4*k)}, v{vLIN} offset:{L_V + 1024*o[k]}")
        src = {w: vF, o[0]: tmp, o[1]: tmp + 4, o[2]: tmp + 8}
        a("s_waitcnt lgkmcnt(0)")
        for i in (0, 2): a(pk(tmp + 12 + i, src[0] + i, src[1] + i))
        for i in (0, 2): a(pk(vF + i, src[2] + i, src[3] + i))
        for i in (0, 2): a(pk(vF + i, vF + i, tmp + 12 + i))
        a(f"v_cvt_pk_bf16_f32 v{vR0}, v{vF}, v{vF+1}\nv_cvt_pk_bf16_f32 v{vR1}, v{vF+2}, v{vF+3}")
    def kvm():
        if "nokm" in exp or w not in (1, 2): return
        near(a, sT + 5, sKM)
        a(f"buffer_store_dwordx4 {vr(vX)}, v{vA2 if w == 1 else vA1}, {ws}, s{sT+5} offen{MODS.get('m', ' sc1')}\ns_add_u32 s{sKM}, s{sKM}, 131072")
    def marks():
        if w not in (1, 2) or not MODS.get('sn', 0) & 1: return
        s0, n, t0 = MODS.get('s0', 56), MODS.get('sp', (2, 48))[0], MODS.get('sp', (2, 48))[1]
        assert 'farm' not in MODS and s0 >= 48 and t0 + (64 - s0) // n <= s0 - 3
        a(f"""s_sub_u32 s{sT+4}, s{sSTEP}, {t0}
        s_cmp_ge_u32 s{sT+4}, {(64 - s0) // n}
        s_cbranch_scc1 {p}_sn
        s_xor_b32 s{sT+5}, s{sSEL}, 8192
        s_and_b32 s{sT+5}, s{sT+5}, 8192
        s_mul_i32 s{sT+4}, s{sT+4}, {131072 * n}
        s_add_u32 s{sT+5}, s{sT+5}, s{sT+4}
        s_add_u32 s{sT+5}, s{sT+5}, {s0 * 131072}""")
        a(f"s_add_u32 s{sT+5}, s{sT+5}, 131072\n".join(f"buffer_store_dwordx4 {vr(vSENT)}, v{vA2 if w == 1 else vA1}, {ws}, s{sT+5} offen sc1\n" for _ in range(n)) + f"{p}_sn:")
    def toks(b, x):
        b(f"""s_sub_u32 s{sT+6}, s{sSTEP}, {nkv-3}
        s_cmp_ge_u32 s{sT+6}, {nsteps-2-(nkv-3)}
        s_cbranch_scc1 {p}{x}_ntk
        s_cmp_eq_u32 s{sT+6}, 0
        s_cbranch_scc1 {p}{x}_kvf""")
        b(f"v_readfirstlane_b32 s{sT+6}, v{vFL}\ns_cmp_lt_u32 s{sT+6}, {KVT}\ns_cbranch_scc1 {p}{x}_kvw\n{p}{x}_kv_d:")
        c = Asm(); kv_wait(c, f"{p}{x}_kv"); cold.append(f"{p}{x}_kvw:\n" + "\n".join(c.lines[:-1]) )
        tok_dma(b)
        b(f"""{p}{x}_kvf:
        s_add_u32 s{sT+6}, s{sSTEP}, 3
        s_and_b32 s{sT+6}, s{sT+6}, 7
        {f's_cbranch_scc1 {p}{x}_ntk' if 'f1' in MODS else ''}
        s_cselect_b32 s{sT+6}, 0, 1024
        s_add_u32 s{sKVF}, s{sKVF}, s{sT+6}
        v_mov_b32 v{vT+1}, 0
        buffer_load_dword v{vFL}, v{vT+1}, {ws}, s{sKVF} offen sc1""")
        b.lab(f"{p}{x}_ntk")
    def slow():
        if "wb1" in exp and w in (1, 2):
            a(f"s_cmp_eq_u32 s{sSTEP}, 0\ns_cbranch_scc1 {p}_nkm")
            kvm()
            if w == 2: a(f"v_mov_b32 v{vT}, s{sSTEP}\nv_add_u32 v{vT}, -1, v{vT}\nbuffer_store_dword v{vT}, v{vA4}, {ws}, 0 offen sc1")
            a.lab(f"{p}_nkm")
        elif 'ke' in MODS and w in (1, 2):
            a(f"s_cmp_ge_u32 s{sSTEP}, {MODS['ke']}\ns_cbranch_scc1 {p}_ke")
            kvm(); a.lab(f"{p}_ke")
        else: kvm()
        if w == 1 and "w1r" not in exp: a(f"buffer_store_dwordx4 {vr(vSENT)}, v{vPW}, {ws}, s{sPRST} offen sc1")
        if w and "nokvs" not in exp:
            own(0)
            near(a, sT + 5, sKV)
            a(f"s_add_u32 s{sT+4}, s{sT+5}, {VT_OFF - K_OFF}\ns_add_u32 s{sKV}, s{sKV}, 524288")
            for k, q in enumerate(PC[w]): a(f"buffer_store_dwordx4 {vr(vKP + 4 * k)}, v{vST}, {ws}, s{sT + 5 - (q >> 1)} offen offset:{256 * (q & 1)}{MODS.get('s', ' sc1')}")
            if w == 3 and fast:
                a(f"s_cmp_eq_u32 s{sSTEP}, 3\ns_cbranch_scc1 {p}_rw\n{p}_rwd:")
                cold.append(f"""{p}_rw:
                v_cmp_ne_u32 vcc, 0, v{vA5}
                s_and_b32 s{sT+6}, vcc_lo, {M_ROWS}
                s_cmp_eq_u32 s{sT+6}, {M_ROWS}
                s_cbranch_scc1 {p}_rwd
                {budget(f'{p}_rwd')}
                {line_load(vA4, XS)}
                s_waitcnt vmcnt(0)
                s_branch {p}_rw""")
            if w == 3 and "notouch" not in exp:
                a(f"""buffer_load_dword v{vDUM}, v{vA2}, {ws}, s{sXP} offen
                s_add_u32 s{sXP}, s{sXP}, 65536
                s_cmp_eq_u32 s{sSTEP}, 3
                s_cselect_b32 s{sXP}, {XG_OFF + 8 * 65536}, s{sXP}""")
            emit(sum(xat(2), []))
            own()
        if w == 3 and nkv < 64 and 'te' not in MODS: toks(a, '')
    PC = {1: (0,), 2: (2,), 3: (1, 3)}
    vKP, vRD = 136, 104
    nown = [0]
    def own(inc=None):
        if nkv == 64: return
        if inc is None: a.lab(f"{p}_ow{nown[0]}"); nown[0] += 1
        else: a(f"s_cmp_ge_u32 s{sSTEP}, {nkv - 1 + inc}\ns_cbranch_scc1 {p}_ow{nown[0]}")
    def emit(l):
        for x in l: a(x)
    MM = lambda js, reg: sum((kvmm(j, reg(j)) for j in js), [])
    def xld(j, dma=False):
        cur = not dma and j >= nb[0] and xs
        r = [f"s_add_u32 s{sT+4}, s{sXQ if cur else sXO}, {4096 * (j >> 2) - w * 16384 * dma & 0xffffffff}"]
        if dma: return r + [f"s_add_u32 m0, s{sXB}, {1024 * j - XOFF(j)}", f"buffer_load_dwordx4 v{vXL}, {ws}, s{sT+4} offen offset:{XOFF(j)} lds"]
        return r + [f"buffer_load_dwordx4 {vr(vXR + 4 * j)}, v{vXL}, {ws}, s{sT+4} offen offset:{XOFF(j)}"]
    def xat(pos):
        if not xs or not w or "nox" in exp: return []
        order = list(range(nb[0], 16)) + list(range(nb[0]))
        o0 = sum(x[0] for x in xs[:pos]); d0 = sum(x[1] for x in xs[:pos])
        assert sum(x[0] for x in xs) == 16 and sum(x[1] for x in xs) == 16 and xs[0][0] + xs[1][0] >= 16 - nb[0] >= xs[0][0]
        return [xld(j) for j in order[o0:o0 + xs[pos][0]]] + [xld(j, True) for j in range(d0, d0 + xs[pos][1]) if j % 3 == w % 3]
    def kv_b():
        if "nokvb" in exp: return
        own(0)
        js = list(range(nb[0])); h = len(js) // len(PC[w])
        for k, q in enumerate(PC[w]):
            for ww in range(4):
                for hh in range(2): a(f"ds_read_b128 {vr(vRD + 8 * ww + 4 * hh)}, v{vLIN} offset:{L_KP + 8192 * q + 2048 * ww + 1024 * hh}")
            f = []
            for ww in range(1, 4): f += [f"s_waitcnt lgkmcnt({6 - 2 * ww})"] + [pk(vRD + i, vRD + i, vRD + 8 * ww + i) for i in range(0, 8, 2)]
            r = vKP + 4 * k
            f += [f"v_cvt_pk_bf16_f32 v{r+i}, v{vRD+2*i}, v{vRD+2*i+1}" for i in range(4)]
            if q < 2: f += [f"v_permlane32_swap_b32 v{r}, v{r+2}", f"v_permlane32_swap_b32 v{r+1}, v{r+3}"]
            f += [f"ds_write_b128 v{vTR}, {vr(r)} offset:{L_T + 1024 * q}"]
            jj = js[k * h:(k + 1) * h] if k + 1 < len(PC[w]) else js[k * h:]
            emit(merge(MM(jj, lambda j: vXR + 4 * j), f, 3, min(6, 4 * len(jj) - 4)))
        if "xb" in exp:
            for j in js: emit(xld(j))
        emit(sum(xat(1), []))
        own()
        a(f"v_xor_b32 v{vTR}, 4096, v{vTR}")
    def kv_d():
        if "nokvd" in exp: return
        own(0)
        js = list(range(nb[0], 16))
        ld_ = [] if "xb" in exp else [xld(j) for j in range(nb[0])]
        dm = [xld(j, True) for j in range(16)] if w == 3 else []
        if "nox" in exp: ld_ = []; dm = []
        if xs:
            ld_ = []; dm = []
            emit(merge(MM(js, lambda j: vXR + 4 * j), ["\n".join(x) for x in xat(3)], 1, nb[3]))
            js = []
        for j in js:
            m = kvmm(j, vXR + 4 * j)
            f = []
            if j > js[0] and "nox" not in exp: f += xld(j - 1)
            if ld_: f += ld_.pop(0)
            a(m[0]); a(m[1]); emit(f); a(m[2])
            if dm: emit(dm.pop(0))
            a(m[3])
            if dm: emit(dm.pop(0))
        if "nox" not in exp and not xs: emit(xld(15))
        emit(sum(ld_ + dm, []))
        emit(shares())
        a(f"""s_mov_b32 s{sXQ}, s{sXO}
        s_add_u32 s{sXO}, s{sXO}, 65536
        s_cmp_eq_u32 s{sSTEP}, 4
        s_cselect_b32 s{sXO}, {XG_OFF + 8 * 65536 + 16384 * w}, s{sXO}""")
        a(f"s_xor_b32 s{sXB}, s{sXB}, 16384")
        own()
    n0, n1 = nb[1], nb[1] + nb[2]
    assert n0 <= 4 and 8 <= n1 <= n0 + 8
    W0 = lambda j: 180 + 4 * j if j < 4 else 164 + 4 * ((j - 4) & 7)
    xrd = lambda j: f"ds_read_b128 {vr(W0(j))}, v{vXL} offset:{1024 * j}"
    k0 = "nokv0" not in exp
    if trace is not None:
        for i in range(16): a(f"s_mov_b32 s{sTR+i}, 0")
        a(f"v_and_b32 v247, 31, v0\nv_lshlrev_b32 v247, 2, v247\nv_add_u32 v247, {98304 + 8192*w}, v247\nv_mov_b32 v246, 131072\nv_cmp_gt_u32 vcc, 32, v0\nv_cndmask_b32 v247, v246, v247, vcc\nv_mov_b32 v246, 0")
    a.lab(f"{p}_top")
    if w == 0 and k0 and "wsd" not in exp: own(0); emit(shares()); own()
    stages("a", vMEMR, lambda s: [smf(vQ0, 0, 0, s), smf(vQ1, 0, 1, s), smf(vK0, 64, 0, s), smf(vK1, 64, 1, s)], 1)
    stamp(1)
    if w == 3 and nkv < 64 and MODS.get('ta'): tok_late(a, f"{p}_tl")
    if w == 1:
        a(f"buffer_store_dwordx4 {vr(vSENT)}, v{vA3}, {ws}, s{sRST} offen{loc}")
        a(f"buffer_store_dword v{vSENT}, v{vA4}, {ws}, s{sRST} offen{loc}")
    if w == 2:
        if "prs" not in exp: a(f"buffer_store_dwordx2 {vr(vSENT,2)}, v{vA2}, {ws}, s{sRST} offen{loc}")
        a(f"buffer_store_dwordx2 {vr(vSENT,2)}, v{vA3}, {ws}, s{sRST} offen{loc}")
    V = [smf(vV0 + 4 * T, 128, T, s) for s in range(4) for T in range(2)]
    a(V[0])
    a(pk(vQ0, vQ0, vQ0 + 2)); a(pk(vQ1, vQ1, vQ1 + 2))
    for T in range(2): a(f"ds_write2_b32 v{vXW}, v{vQ0+4*T}, v{vQ0+4*T+1} offset0:{2*XROW+16*T} offset1:{3*XROW+16*T}")
    a(V[1])
    a(pk(vK0, vK0, vK0 + 2)); a(pk(vK1, vK1, vK1 + 2))
    for T in range(2): a(f"ds_write2_b32 v{vXW}, v{vK0+4*T}, v{vK0+4*T+1} offset0:{16*T} offset1:{XROW+16*T}")
    a(f"""s_and_b32 s{sT+6}, s{sSTEP}, 3
    s_lshl_b32 s{sCUR}, s{sT+6}, 19
    s_add_u32 s{sCUR}, s{sCUR}, {RING_OFF}""")
    for x in V[2:4]: a(x)
    a("s_waitcnt lgkmcnt(0)\ns_barrier")
    stamp(2)
    if "wb1" in exp: slow()
    vfold = [pk(vF, vV0, vV0 + 2), pk(vF + 2, vV1, vV1 + 2)]
    if w == 0:
        xreduce(V[4:])
        mf(vD, vKT, vX, 0); mf(vD + 4, vKT + 4, vX, 0); mf(vD + 8, vX, vX, 0)
        for x in vfold: a(x)
        a(f"buffer_store_dwordx4 {vr(vD)}, v{vA2}, {ws}, s{sCUR} offen{loc}")
        a(f"buffer_store_dwordx4 {vr(vD+4)}, v{vA2}, {ws}, s{sCUR} offen offset:32{loc}")
        a(f"buffer_store_dword v{vD+8}, v{vA3}, {ws}, s{sCUR} offen{loc}")
        a(f"buffer_store_dword v{vD+9}, v{vA3}, {ws}, s{sCUR} offen offset:32{loc}")
        stamp(3)
        def sld(k):
            b = vP + 16 * k
            return "\n".join(f"buffer_load_dwordx4 {vr(b+4*i)}, v{vA4+i}, {ws}, s{sCUR} offen sc1" for i in range(4))
        def schk(k, o, done, neg=False):
            b = vP + 16 * k
            return f"""s_waitcnt vmcnt({o+3})
            {pk(vS, vSO, b)}
            {pk(vS+2, vSO+2, b+2)}
            s_waitcnt vmcnt({o+2})
            {pk(vS, vS, b+4)}
            {pk(vS+2, vS+2, b+6)}
            s_waitcnt vmcnt({o+1})
            {pk(vS, vS, b+8)}
            {pk(vS+2, vS+2, b+10)}
            s_waitcnt vmcnt({o})
            {pk(vS+4, b+12, b+14)}
            v_add_f32 v{vS+4}, v{vS+4}, v{vS+5}
            v_cmp_u_f32 vcc, v{vS}, v{vS+4}
            s_cbranch_{'vccnz' if neg else 'vccz'} {done}"""
        if "acks" not in exp and "sb2" not in exp: a(sld(0))
        a(f"ds_write_b128 v{vLIN}, {vr(vF)} offset:{L_V}")
        a(f"s_mov_b64 vcc, s[{sMB}:{sMB+1}]")
        for i in range(4): a(f"v_cndmask_b32_dpp v{vSO+i}, v{vD+i}, v{vD+4+i}, vcc quad_perm:[2,3,2,3] row_mask:0xf bank_mask:0xf")
        a("s_waitcnt lgkmcnt(0)\ns_barrier")
        stamp(4)
        a(f"s_cmp_eq_u32 s{sSTEP}, {nsteps-1}\ns_cbranch_scc1 {p}_fin")
        if "sb2" in exp: a(sld(0))
        vreduce(vP + 32)
        if ns_s == 2: a(sld(1))
        zero(vQ0, vV1 + 4)
        stamp(5)
        if "acks" in exp: a("s_waitcnt vmcnt(0)"); stamp(6); a(sld(0))
        else: stamp(6)
        o = 4 * (ns_s - 1)
        a(schk(0, o, f"{p}_ps", True))
        c = f"{p}_ps:\n"
        if ns_s == 2:
            for k in range(2): c += f"{budget(f'{p}_psd')}\n{cnt(5)}\n{sld(k)}\n{schk(k ^ 1, o, f'{p}_psd')}\n"
        else:
            c += f"{budget(f'{p}_psd')}\n{cnt(5)}\n{sld(0)}\n{schk(0, 0, f'{p}_psd')}\n"
        cold.append(c + f"s_branch {p}_ps")
        a.lab(f"{p}_psd")
        stamp(7)
        m, t = vT, vT + 1
        D = "quad_perm:[2,3,0,1] row_mask:0xf bank_mask:0xf"
        a(f"""v_max3_f32 v{m}, v{vS}, v{vS+1}, v{vS+4}
        v_max3_f32 v{m}, v{m}, v{vS+2}, v{vS+3}
        v_max_f32_dpp v{m}, v{m}, v{m} {D}
        v_mov_b32 v{t}, v{m}
        v_permlane16_swap_b32 v{m}, v{t}
        v_max_f32 v{m}, v{m}, v{t}
        v_mov_b32 v{t}, v{m}
        v_permlane32_swap_b32 v{m}, v{t}
        v_max_f32 v{m}, v{m}, v{t}
        v_mul_f32 v{m}, s{sCSC}, v{m}""")
        for i in range(5): a(f"v_fma_f32 v{vS+i}, v{vS+i}, s{sCSC}, -v{m}")
        for i in range(5): a(f"v_exp_f32 v{vS+i}, v{vS+i}")
        a(f"""v_cvt_pk_bf16_f32 v{vPB}, v{vS}, v{vS+1}
        v_cvt_pk_bf16_f32 v{vPB+1}, v{vS+2}, v{vS+3}
        v_mov_b32_dpp v{t}, v{vS+4} {D}
        v_mov_b32_dpp v{vPB+2}, v{vPB} {D}
        v_mov_b32_dpp v{vPB+3}, v{vPB+1} {D}
        v_cvt_pk_bf16_f32 v{vBM}, v{vS+4}, v{t}""")
        mf(vD + 8, vONE, vPB, 0); mf(vD + 8, vONE, vBM, 1)
        mf(vD, vVT, vPB, 0); mf(vD, vR0, vBM, 1); mf(vD + 4, vVT + 4, vPB, 0)
        a(f"v_rcp_f32 v{m}, v{vD+8}")
        mf(vD + 4, vR1, vBM, 1)
        for i in range(0, 8, 2):
            a(f"v_pk_mul_f32 {vr(vD+i,2)}, {vr(vD+i,2)}, {vr(m,2)} op_sel_hi:[1,0]")
            a(f"v_cvt_pk_bf16_f32 v{vX+i//2}, v{vD+i}, v{vD+i+1}")
        a(f"buffer_store_dwordx4 {vr(vX)}, v{vA8}, {ws}, s{sCUR} offen{loc}")
        stamp(8)
        if k0: emit(xrd(j) for j in range(4))
        if "acko" in exp: a("s_waitcnt vmcnt(0)")
    else:
        for x in V[4:]: a(x)
        for x in vfold: a(x)
        a(f"ds_write_b128 v{vLIN}, {vr(vF)} offset:{L_V + 1024*w}")
        if xat(0): own(0); emit(sum(xat(0), [])); own()
        stamp(3)
        a("s_waitcnt lgkmcnt(0)\ns_barrier")
        stamp(4)
        if w == 1: xreduce(vP=vRD)
        elif w == 2:
            vreduce(124)
            a(f"""v_permlane16_swap_b32 v{vR0}, v{vR1}
            v_mov_b32 v{vX}, v{vR0}
            v_mov_b32 v{vX+1}, v{vR1}
            v_mov_b32 v{vX+2}, v{vR0}
            v_mov_b32 v{vX+3}, v{vR1}
            v_permlane32_swap_b32 v{vX}, v{vX+2}
            v_permlane32_swap_b32 v{vX+1}, v{vX+3}""")
        if 'ke' in MODS and w in (1, 2):
            a(f"s_cmp_lt_u32 s{sSTEP}, {MODS['ke']}\ns_cbranch_scc1 {p}_kf")
            kvm()
            a(f"s_cmp_eq_u32 s{sSTEP}, {nsteps-1}\ns_cbranch_scc1 {p}_fin\n{p}_kf:")
        else: a(f"s_cmp_eq_u32 s{sSTEP}, {nsteps-1}\ns_cbranch_scc1 {p}_fin")
        zero(vQ0, vV1 + 4)
        stamp(5)
        kv_b()
        for i in range(6, 9): stamp(i)
    a("s_barrier")
    stamp(9)
    for s in range(4): a(ld(vOR, s))
    if w == 0 and k0:
        own(0)
        a("s_waitcnt lgkmcnt(0)")
        emit(xrd(j) for j in range(4, 8))
        for j in range(n0): emit(kvmm(j, W0(j)) + [xrd(j + 8)])
        own()
    stages("o", vOR, lambda s: [smf(vO0, 192, 0, s), smf(vO1, 192, 1, s)], 3, hook=toks if w == 3 and nkv < 64 and 'te' in MODS else None)
    stamp(10)
    a(pk(vF, vO0, vO0 + 2)); a(pk(vF + 2, vO1, vO1 + 2))
    a(f"ds_write2_b32 v{vOPW}, v{vF}, v{vF+1} offset0:0 offset1:72\nds_write2_b32 v{vOPW}, v{vF+2}, v{vF+3} offset0:160 offset1:232")
    if "w2c" not in exp and "wb1" not in exp: slow()
    a("s_waitcnt lgkmcnt(0)\ns_barrier")
    stamp(11)
    book = f"""s_add_u32 s{sSTEP}, s{sSTEP}, 1
    s_mov_b32 s{sT+7}, s{sPCUR}
    s_and_b32 s{sT+6}, s{sSTEP}, 3
    s_lshl_b32 s{sPCUR}, s{sT+6}, {PSLOT.bit_length() - 1}
    s_xor_b32 s{sPRST}, s{sPCUR}, {2*PSLOT}
    s_add_u32 s{sPCUR}, s{sPCUR}, {PART_OFF}
    s_add_u32 s{sPRST}, s{sPRST}, {PART_OFF}
    s_xor_b32 s{sT+6}, s{sT+6}, 2
    s_lshl_b32 s{sRST}, s{sT+6}, 19
    s_add_u32 s{sRST}, s{sRST}, {RING_OFF}"""
    if w == 0:
        for pw in range(4): a(f"ds_read_b128 {vr(vP+4*pw)}, v{vOPR} offset:{L_O + OPW*pw}")
        if "prs" in exp: a(f"buffer_store_dwordx2 {vr(vSENT,2)}, v{vMW}, {ws}, s{sRST} offen{loc}")
        a(f"""s_waitcnt lgkmcnt(2)
        {pk(vP, vP, vP+4)}
        {pk(vP+2, vP+2, vP+6)}
        s_waitcnt lgkmcnt(0)
        {pk(vP+8, vP+8, vP+12)}
        {pk(vP+10, vP+10, vP+14)}
        {pk(vF, vP, vP+8)}
        {pk(vF+2, vP+2, vP+10)}
        buffer_store_dwordx4 {vr(vF)}, v{vPW}, {ws}, s{sPCUR} offen sc1""")
        stamp(12)
        def pld(k, so): return "\n".join(f"buffer_load_dwordx4 {vr(vP+12*k+4*i)}, v{vPR+i}, {ws}, s{so} offen sc1" for i in range(3))
        def pchk(k, o, lab, neg):
            b = vP + 12 * k
            return f"""s_waitcnt vmcnt({o+1})
            {pk(b, b, b+4)}
            {pk(b+2, b+2, b+6)}
            s_waitcnt vmcnt({o})
            {pk(b+8, b+8, vF)}
            {pk(b+10, b+10, vF+2)}
            {pk(b, b, b+8)}
            {pk(b+2, b+2, b+10)}
            v_cmp_u_f32 vcc, v{b}, v{b+3}
            v_cvt_pk_bf16_f32 v{vX}, v{b}, v{b+1}
            v_cvt_pk_bf16_f32 v{vX+1}, v{b+2}, v{b+3}
            s_cbranch_{'vccnz' if neg else 'vccz'} {lab}"""
        when = [c for c in "012" if "p" + c in exp] or ["2"]
        np_ = len(when); k = 0
        if "0" in when: a(pld(k, sPCUR)); k += 1
        tok_read(a)
        zero(vO0, vO1 + 4)
        a(book)
        if k0:
            own(1)
            for j in range(n0, n1):
                emit(kvmm(j, W0(j)))
                if j < 8: a(xrd(j + 8))
            own()
        if "1" in when: a(f"s_waitcnt vmcnt({1 + 3 * k})"); a(pld(k, sT + 7)); k += 1
        if "2" in when: a(f"s_waitcnt vmcnt({3 * k})"); stamp(13); a(pld(k, sT + 7)); k += 1
        else: stamp(13)
        if k0:
            own(1)
            a("s_waitcnt lgkmcnt(0)")
            emit(MM(range(n1, 16), W0))
            if "wsd" in exp: emit(shares())
            own()
            a(f"v_xor_b32 v{vXL}, 16384, v{vXL}")
        o = 3 * (np_ - 1)
        a(pchk(0, o, f"{p}_ppr", True))
        c = f"{p}_ppr:\n"
        for k in range(np_): c += f"{budget(f'{p}_ppd')}\n{cnt(6)}\n{pld(k, sT + 7)}\n{pchk((k + 1) % np_, o, f'{p}_ppd', False)}\n"
        cold.append(c + f"s_branch {p}_ppr")
        a(f"""{p}_ppd:
        buffer_store_dwordx2 {vr(vX,2)}, v{vMW}, {ws}, s{sCUR} offen{loc}""")
        stamp(14)
        if "ackm" in exp: a("s_waitcnt vmcnt(0)")
        a("s_waitcnt lgkmcnt(0)")
    else:
        if "w2c" in exp: slow()
        if w == 2 and "wb1" not in exp: a(f"v_mov_b32 v{vT}, s{sSTEP}\nbuffer_store_dword v{vT}, v{vA4}, {ws}, 0 offen sc1")
        marks()
        zero(vO0, vO1 + 4)
        stamp(12)
        kv_d()
        a(book)
        a("s_waitcnt lgkmcnt(0)")
        for i in (13, 14): stamp(i)
    a("s_barrier")
    stamp(15)
    for s in range(4): a(ld(vMEMR, s))
    if trace is not None:
        a("s_memrealtime s[36:37]\ns_waitcnt lgkmcnt(0)")
        for i in range(16): a(f"v_writelane_b32 v246, s{70+2*i}, {i}")
        a("v_writelane_b32 v246, s36, 16")
        for i in range(1, 7): a(f"v_writelane_b32 v246, s{sTR+i}, {16+i}")
        a(f"ds_write_b32 v247, v246\nv_add_u32 v247, 128, v247")
    a(f"s_branch {p}_top")
    for c in cold: a(c)
    a.lab(f"{p}_fin")
    if 'ke' not in MODS: kvm()
    a("s_waitcnt vmcnt(0)\ns_barrier")
    if w == 3:
        a(f"""v_mov_b32 v{vT}, 1
        buffer_atomic_add v{vT}, v{vA3}, {ws}, 0 offen sc0{'' if fast else ' sc1'}
        {pm_addr(sT + 2, sT + 3, sX, sSEL)}
        v_mov_b32 v{vT+1}, {OOB}
        v_cmp_gt_u32 vcc, 32, v0
        s_waitcnt vmcnt(0)
        v_readfirstlane_b32 s{sT+3}, v{vT}
        v_mov_b32 v{vT}, 64
        s_cmp_eq_u32 s{sT+3}, 31
        s_cselect_b32 s{sT+2}, s{sT+2}, {OOB}
        v_lshl_add_u32 v{vA3}, v0, 7, s{sT+2}
        v_cndmask_b32 v{vA3}, v{vT+1}, v{vA3}, vcc
        buffer_store_dword v{vT}, v{vA3}, {ws}, 0 offen sc1""")
    if trace is not None:
        a(f"s_lshl_b32 s{sT+6}, s{sX}, 5\ns_add_u32 s{sT+6}, s{sT+6}, s{sJ}\ns_lshl_b32 s{sT+6}, s{sT+6}, 15\ns_add_u32 s{sT+6}, s{sT+6}, {TRACE_OFF + 8192*w}")
        for i in range(8):
            a(f"v_add_u32 v247, {98304 + 8192*w + 1024*i}, v{vLIN}\nds_read_b128 v[248:251], v247\ns_waitcnt lgkmcnt(0)\nbuffer_store_dwordx4 v[248:251], v{vLIN}, {ws}, s{sT+6} offen\ns_add_u32 s{sT+6}, s{sT+6}, 1024\ns_waitcnt vmcnt(0)")
    a(f"s_branch {name}_recdone")

def rec_all(a, name, stamp=lambda i: None, nkv=64, pf=0, **kw):
    rec_prologue(a, name, stamp, pf)
    for w in range(3):
        a(f"s_cmp_eq_u32 s{sW}, {w}\ns_cbranch_scc1 {name}_rp{w}")
    for w in (3, 0, 1, 2):
        if w != 3: a.lab(f"{name}_rp{w}")
        role_prologue(a, w, name, nkv)
        stamp(3)
        a(f"s_cmp_eq_u32 s{sMODE}, 0\ns_cbranch_scc1 {name}_safe{w}")
        rec_loop(a, name, w, True, nkv=nkv, **kw)
        a.lab(f"{name}_safe{w}")
        rec_loop(a, name, w, False, nkv=nkv, **kw)
```

```python
from asmlib import *
from layout import *
from g2 import Cfg, pieces, reads, rebias, VM, lanes_frag, lanes_vt, getreg, pack, ACC0, PAD, CSC, NEG
import g2
from start import sSELV, XS

WS = 4
sW, sG, sBUD = 14, 16, 17
sTYP, sB, sN, sFLG, sNC, sOUT, sCUR, sNXT = 18, 19, 20, 21, 22, 23, 24, 25
sDEP, sDMK, sCOLD, sPFL = 26, 27, 28, 29
sWM, sWN, sSL, sQ = 32, 33, 34, 35
sSV, sPI = 59, 61
sLST = 36
SA, SB_ = 44, 48
sOA, sOB, sWB, sSTB, sCNT = 52, 53, 54, 55, 56
sRBA, sROW, sWA = 57, 58, 60
sE = 62
SO = 72
sTRC = 76
sWP = 86
assert (g2.SA, g2.SB_, g2.sOA, g2.sOB, g2.sWB, g2.sSTB, g2.sWA) == (SA, SB_, sOA, sOB, sWB, sSTB, 61)
g2.sWA = sWA
vAR, vBR, vDA, vDB, vE = 1, 2, 4, 6, 10
vFA, vFD, vDL, vDV, vORD = 10, 11, 13, 14, 15
aSTA, aSEL = 240, 248
ws = f"s[{WS}:{WS+3}]"
T_K, T_V, T_QA, T_F1, T_F2, T_WO, T_F2E, T_KH, T_VH, T_QS, T_TW, T_SUM, T_END = 0, 1, 2, 3, 4, 5, 6, 7, 8, 9, 10, 11, 15
TN = {0: "K", 1: "V", 2: "QA", 3: "F1", 4: "F2", 5: "WO", 6: "F2E", 7: "QT", 8: "VH", 9: "QS", 10: "TW", 11: "SUM", 15: "END"}
NLIST = 10
T_QT = T_KH
import rec5
PLAIN = ""; LOCAL = False; MODS = {}
sLOC, sMODE = 13, 15
LDS_BYTES = 4 * 33792
def desc(t, b=0, n=0, k0=0, kl=0):
    return t | b << 4 | n << 7 | k0 << 11 | kl << 15
def with_sum(d, b, n): return d | 1 << 26 | b << 27 | n << 30
def bfe(a, d, s, off, w): a(f"s_bfe_u32 s{d}, s{s}, {hex(w << 16 | off)}")

def lane_setup(a, c):
    a(f"""
    v_lshrrev_b32 v{vE}, 4, v0                    ; g
    v_and_b32 v{vE+1}, 15, v0
    s_mul_i32 s{sE}, s{sWM}, {c.MT // 2 * 2048}
    v_lshl_add_u32 v{vAR}, v{vE}, 9, s{sE}
    v_lshl_add_u32 v{vAR}, v{vE+1}, 4, v{vAR}
    v_lshrrev_b32 v{vE+1}, 5, v0
    v_lshlrev_b32 v{vE+1}, 4, v{vE+1}
    v_and_b32 v{vE}, 1, v{vE}
    v_lshl_add_u32 v{vE+1}, v{vE}, 2, v{vE+1}
    v_bfe_u32 v{vE}, v0, 2, 2
    v_add_u32 v{vE+1}, v{vE+1}, v{vE}             ; k row
    v_bfe_u32 v{vE+2}, v0, 1, 1
    v_lshlrev_b32 v{vE+2}, 5, v{vE+2}
    v_and_b32 v{vE+3}, 1, v0
    v_lshl_add_u32 v{vE+2}, v{vE+3}, 3, v{vE+2}   ; run offset
    s_mov_b32 s{sE}, {PAD}
    v_lshrrev_b32 v{vE+3}, 1, v{vE+1}
    v_mad_u32_u24 v{vE+2}, v{vE+3}, s{sE}, v{vE+2}
    v_and_b32 v{vE+3}, 1, v{vE+1}
    v_lshl_add_u32 v{vE+2}, v{vE+3}, 9, v{vE+2}
    v_lshl_add_u32 v{vBR}, v{vE+3}, 4, v{vE+2}
    s_lshl_b32 s{sE}, s{sWN}, 8
    s_add_u32 s{sE}, s{sE}, {c.AB}
    v_add_u32 v{vBR}, s{sE}, v{vBR}
    v_xor_b32 v{vBR+1}, 16, v{vBR}
    s_mul_i32 s{sWA}, s{sW}, {c.PA * 1024}
    s_mul_i32 s{sWB}, s{sW}, {c.PB * PAD}
    s_add_u32 s{sWB}, s{sWB}, {c.AB}
    """)

def stream_lanes(a, c, t=12):
    a(f"""s_mul_i32 s{sE}, s{sW}, {c.PA // 2}
    s_mul_i32 s{sE}, s{sE}, s{sRBA}
    v_lshl_add_u32 v{vDA}, v0, 4, s{sE}""")
    if c.PA == 4: a(f"s_sub_u32 s{sE}, s{sRBA}, 2048\nv_add_u32 v{vDA+1}, s{sE}, v{vDA}")
    a(f"""v_lshrrev_b32 v{t}, 5, v0
    v_and_b32 v{vDB}, 31, v0
    v_xor_b32 v{vDB}, v{vDB}, v{t}
    v_lshlrev_b32 v{vDB}, 4, v{vDB}
    s_lshl_b32 s{sE}, s{sW}, 3
    v_add_u32 v{t}, s{sE}, v{t}
    v_mad_u32_u24 v{vDB}, v{t}, s{sROW}, v{vDB}
    s_lshl_b32 s{sE}, s{sROW}, 1
    s_sub_u32 s{sE}, s{sE}, {PAD}
    v_add_u32 v{vDB+1}, s{sE}, v{vDB}
    v_add_u32 v{vDB+2}, s{sE}, v{vDB+1}
    v_add_u32 v{vDB+3}, s{sE}, v{vDB+2}
    s_lshl_b32 s{sSTB}, s{sROW}, 5""")

def stream_switch(a, c, d, lab):
    t, b, n, k = sE + 1, sE + 2, sE + 3, sE + 4
    a(f"s_and_b32 s{t}, s{d}, 15")
    bfe(a, b, d, 4, 3); bfe(a, n, d, 7, 4); bfe(a, k, d, 11, 4)
    a(f"""s_mov_b32 s{SA+2}, {WS_BYTES}
    s_lshl_b32 s{sOB}, s{n}, 9
    s_sub_u32 s{sE}, s{t}, {T_F2}
    s_cmp_lt_u32 s{sE}, 3
    s_cbranch_scc1 {lab}_fw
    s_lshl_b32 s{sOA}, s{b}, 19
    s_mov_b32 s{sRBA}, 65536
    s_mov_b64 s[{SB_}:{SB_+1}], s[{sWP+4}:{sWP+5}]
    s_cmp_eq_u32 s{t}, {T_K}
    s_cselect_b64 s[{SB_}:{SB_+1}], s[{sWP}:{sWP+1}], s[{SB_}:{SB_+1}]
    s_cmp_eq_u32 s{t}, {T_V}
    s_cselect_b64 s[{SB_}:{SB_+1}], s[{sWP+2}:{sWP+3}], s[{SB_}:{SB_+1}]
    s_cmp_eq_u32 s{t}, {T_F1}
    s_cselect_b64 s[{SB_}:{SB_+1}], s[{sWP+6}:{sWP+7}], s[{SB_}:{SB_+1}]
    s_cselect_b32 s{sROW}, 7168, 0
    s_cselect_b32 s{sE}, 0, 8192
    s_or_b32 s{sROW}, s{sROW}, s{sE}
    s_lshl_b32 s{SB_+2}, s{sROW}, 10
    s_branch {lab}_l
    {lab}_fw:
    s_lshl_b32 s{sE}, s{k}, 19
    s_add_u32 s{sOB}, s{sOB}, s{sE}
    s_mov_b32 s{sROW}, 2048
    s_cmp_eq_u32 s{t}, {T_WO}
    s_cselect_b64 s[{SB_}:{SB_+1}], s[{sWP+10}:{sWP+11}], s[{sWP+8}:{sWP+9}]
    s_mov_b32 s{SB_+2}, {3584 * 2048}
    s_cselect_b32 s{SB_+2}, {4096 * 2048}, s{SB_+2}
    s_mov_b32 s{sRBA}, 229376
    s_cselect_b32 s{sRBA}, 262144, s{sRBA}
    s_mov_b32 s{sOA}, {H1_OFF}
    s_cselect_b32 s{sOA}, {O_OFF}, s{sOA}
    s_mul_i32 s{sE}, s{b}, s{sRBA}
    s_lshl_b32 s{sE}, s{sE}, 3
    s_add_u32 s{sOA}, s{sOA}, s{sE}
    s_lshl_b32 s{sE}, s{k}, 14
    s_add_u32 s{sOA}, s{sOA}, s{sE}
    {lab}_l:""")
    stream_lanes(a, c)

def lane0(a, v, tmp, sp=sE):
    a(f"v_mov_b32 v{v}, {OOB}\nv_mov_b32 v{tmp}, 0\nv_cmp_eq_u32 s[{sp}:{sp+1}], 0, v0\nv_cndmask_b32 v{v}, v{v}, v{tmp}, s[{sp}:{sp+1}]")
def fw_flag(a, d, b=sB, n=sN):
    a(f"""s_lshl_b32 s{d}, s{b}, 2
    s_add_u32 s{d}, s{d}, s{n}
    s_lshl_b32 s{d}, s{d}, 2
    s_add_u32 s{d}, s{d}, s{sW}
    s_lshl_b32 s{d}, s{d}, 6
    s_add_u32 s{d}, s{d}, {CTRL_OFF + C_FW}""")
DEPLD = f"buffer_load_dword v{vDV}, v{vDL}, {ws}, s{sDEP} offen sc1"
def notready(a):
    a(f"v_cmp_gt_u32 s[{sE}:{sE+1}], 4, v{vDV}\ns_and_b32 s{sE}, s{sE}, s{sDMK}")

def hook(a, c, lab, form):
    a(f"s_cmp_eq_u32 s{sCNT}, 1\ns_cbranch_scc0 {lab}_s")
    notready(a)
    a(f"""s_cselect_b32 s{sCOLD}, 1, s{sCOLD}
    s_cmp_eq_u32 s{sCOLD}, 0
    s_cbranch_scc1 {lab}_w
    s_mov_b32 s{SA+2}, 0
    s_mov_b32 s{SB_+2}, 0
    s_branch {lab}_s
    {lab}_w:""")
    stream_switch(a, c, sNXT, lab)
    a.lab(lab + "_s")
    a(DEPLD)

def stage(a, c, slot, form, first=False, top=None, pre=None):
    p = slot & 1
    fill = [[] for _ in range(c.M)]
    nslot = (slot + 1) % c.NS
    items = reads(c, nslot, p ^ 1) + rebias(c, nslot, (nslot + 1) % c.NS)
    pc = pieces(c, slot)
    span = c.M - c.r0 - 4
    st = min(c.rstep, span / len(items))
    dg = [min(c.M - 1, (i * c.M) // c.P + 1) for i in range(len(pc))]
    for i, x in enumerate(items):
        fill[min(c.M - 1, c.r0 + int(i * st))].append(x)
    for gp, x in zip(dg, pc):
        if "m0" in x[0] and gp > 0 and not any(y.startswith("buffer") for y in fill[gp - 1] + fill[gp]):
            fill[gp - 1].append(x[0]); x = x[1:]
        fill[gp] += x[:1] if x[0].startswith("buffer") else x[:2]
        rest = x[1:] if x[0].startswith("buffer") else x[2:]
        fill[min(c.M - 1, gp + 1)] += rest
    if top == "relax":
        L = a.newlab("rx")
        a(f"s_waitcnt vmcnt({(c.NS - 2) * c.P + 32}) lgkmcnt(0)\ns_cbranch_vccnz {L}\ns_waitcnt vmcnt({(c.NS - 2) * c.P})\n{L}:\ns_barrier")
    else:
        a(f"s_waitcnt vmcnt({(c.NS - 2) * c.P}) lgkmcnt(0)\ns_barrier")
    if pre: pre()
    n = 0
    for t in range(c.MT):
        for f0 in range(c.NT):
            f = f0 if t % 2 == 0 else c.NT - 1 - f0
            A, B = (c.wf(p, f), c.xf(p, t)) if form == "T" else (c.xf(p, t), c.wf(p, f))
            a(f"v_mfma_f32_16x16x32_bf16 {c.accs(t, f)}, {A}, {B}, {'0' if first else c.accs(t, f)}")
            for x in fill[n]: a(x)
            n += 1

def publish(a):
    L, L2 = a.newlab("pb"), a.newlab("pl")
    x = f"buffer_atomic_add v{vFD}, v{vFA}, {ws}, s{sPFL} offen"
    a(f"s_cbranch_vccz {L}\ns_mov_b64 vcc, 0")
    if LOCAL: a(f"s_cmp_eq_u32 s{sLOC}, 0\ns_cbranch_scc1 {L2}\n{x}\ns_branch {L}\n{L2}:")
    a(f"{x} sc1\n{L}:")
def dep_lanes(a):
    a(f"v_lshlrev_b32 v{vDL}, 2, v0\nv_mov_b32 v{vDV}, {OOB}\nv_cmp_gt_u32 s[{sE+6}:{sE+7}], 4, v0\nv_cndmask_b32 v{vDL}, v{vDV}, v{vDL}, s[{sE+6}:{sE+7}]")
def main_loop(a, c, form, tag):
    pub = lambda: publish(a)
    a.lab(tag + "_f")
    stage(a, c, 0, form, True, "relax", lambda: a(DEPLD))
    a(".p2align 3")
    a.lab(tag + "_l")
    stage(a, c, 1, form, top="relax"); stage(a, c, 2, form, top="relax"); stage(a, c, 3, form, pre=pub)
    a(f"s_sub_u32 s{sCNT}, s{sCNT}, 1\ns_cmp_eq_u32 s{sCNT}, 0\ns_cbranch_scc1 {tag}_x")
    a.lab(tag + "_c")
    stage(a, c, 0, form, pre=lambda: hook(a, c, tag + "_h", form))
    a(f"s_branch {tag}_l")
    a.lab(tag + "_x")
    a(f"v_readlane_b32 s{sSV}, v{vDV}, 32")

def cold_dma(a, c):
    for s in range(c.NS):
        for g in pieces(c, s):
            for x in g: a(x)

def spin(a, lab, out):
    a(f"""s_cmp_eq_u32 s{sBUD}, 0
    s_cbranch_scc1 {out}
    s_sub_u32 s{sBUD}, s{sBUD}, 1
    s_branch {lab}""")
def poll(a, lab, soff, val, n=1, va=vE, vd=12):
    x = {1: "dword", 2: "dwordx2"}[n]
    d = f"v{vd}" if n == 1 else f"v[{vd}:{vd+n-1}]"
    a(f"v_mov_b32 v{va}, 0")
    a.lab(lab)
    a(f"buffer_load_{x} {d}, v{va}, {ws}, s{soff} offen sc1\ns_waitcnt vmcnt(0)")
    if n == 2: a(f"v_and_b32 v{vd+1}, 32, v{vd+1}\nv_lshlrev_b32 v{vd+1}, 1, v{vd+1}\nv_max_u32 v{vd}, v{vd}, v{vd+1}")
    a(f"v_readfirstlane_b32 s{sE+9}, v{vd}\ns_cmp_ge_u32 s{sE+9}, {val}\ns_cbranch_scc1 {lab}_d")
    spin(a, lab, lab + "_d")
    a.lab(lab + "_d")
def tile_out(a, base, rmul, csh, half=False):
    a(f"""s_lshl_b32 s{sE}, s{sB}, 1
    s_add_u32 s{sE}, s{sE}, s{sWM}
    s_mul_i32 s{sE}, s{sE}, {rmul}
    s_lshl_b32 s{sE+1}, s{sN}, 1
    s_add_u32 s{sE+1}, s{sE+1}, s{sWN}
    s_lshl_b32 s{sE+1}, s{sE+1}, {csh}
    s_add_u32 s{sOUT}, s{sE}, s{sE+1}""")
    if base: a(f"s_add_u32 s{sOUT}, s{sOUT}, {base}")
def epi_store(a, c, kind, rstride, sbase=sOUT):
    if kind == "vt":
        lanes_vt(a, vE, vE + 1)
        prs = [((t, f), (t + 1, f)) for t in range(0, c.MT, 2) for f in range(c.NT)]
    else:
        lanes_frag(a, vE, vE + 1)
        prs = [((t, f), (t, f + 1)) for t in range(c.MT) for f in range(0, c.NT, 2)]
        prs.sort(key=lambda p: (p[0][0] >> 1, p[0][1] >> 2, p[0][0] & 1))
    if kind == 'silu' and 'x' in PLAIN or rstride == 65536 and 'y' in PLAIN: a(f"v_or_b32 v{vE}, {OOB}, v{vE}")
    if kind == "silu":
        a(f"s_mov_b32 s{sE+2}, 0xbfb8aa3b\ns_mov_b32 s{sE+3}, 0xbfb8aa3b\ns_mov_b32 s{sE+4}, 1.0\ns_mov_b32 s{sE+5}, 1.0")
    cur = None
    for (t, f), (t2, f2) in prs:
        base = (t >> 1) * rstride + (f >> 2) * 4096
        off = ((f >> 1) & 1) * 2048 + ((f & 1) * 128 if kind == "vt" else (t & 1) * 256)
        two = rstride == 524288 and 'two' in MODS
        if base != cur:
            a(f"s_add_u32 s{sE}, s{sbase}, {base}"); cur = base
            if two: a(f"s_xor_b32 s{sE+1}, s{sE}, 8192")
        b0 = getreg(a, c, t, f, ACC0); b1 = getreg(a, c, t2, f2, ACC0 + 4)
        if kind == "silu":
            for b in (b0, b1):
                for o, q in ((0, 12), (2, 14)): a(f"v_pk_mul_f32 v[{q}:{q+1}], v[{b+o}:{b+o+1}], s[{sE+2}:{sE+3}]")
                for q in (12, 13, 14, 15): a(f"v_exp_f32 v{q}, v{q}")
                for q in (12, 14): a(f"v_pk_add_f32 v[{q}:{q+1}], v[{q}:{q+1}], s[{sE+4}:{sE+5}]")
                for q in (12, 13, 14, 15): a(f"v_rcp_f32 v{q}, v{q}")
                for o, q in ((0, 12), (2, 14)): a(f"v_pk_mul_f32 v[{b+o}:{b+o+1}], v[{b+o}:{b+o+1}], v[{q}:{q+1}]")
        pack(a, b0, b0, b1)
        a(f"buffer_store_dwordx4 v[{b0}:{b0+3}], v{vE}, {ws}, s{sE} offen offset:{off}{'' if kind == 'silu' and 'h' in PLAIN else ' sc1'}{' nt' if 'n' in PLAIN else ''}{' sc0' if '0' in PLAIN else ''}")
        if two: a(f"buffer_store_dwordx4 v[{b0}:{b0+3}], v{vE}, {ws}, s{sE+1} offen offset:{off} sc1")
def row_flag(a, base):
    a(f"s_lshl_b32 s{sFLG}, s{sB}, 4\ns_add_u32 s{sFLG}, s{sFLG}, s{sN}\ns_lshl_b32 s{sFLG}, s{sFLG}, {6 if base == C_KV else 2}\ns_add_u32 s{sFLG}, s{sFLG}, {CTRL_OFF + base}")
    if base != C_KV: a(f"s_lshl_b32 s{sE}, s{sQ}, 9\ns_add_u32 s{sFLG}, s{sFLG}, s{sE}")
def epi_kv(a, c, v, lab):
    if c.MT == 8:
        tile_out(a, VT_OFF if v else K_OFF, 4 * 524288, 14)
        a(f"s_lshl_b32 s{sE}, s{sWM}, 13")
    else:
        tile_out(a, VT_OFF if v else K_OFF, 2 * 524288, 14)
        a(f"s_and_b32 s{sE}, s{sB}, 1\ns_lshl_b32 s{sE}, s{sE}, 13\ns_lshr_b32 s{sB}, s{sB}, 1")
    a(f"s_xor_b32 s{sE}, s{sE}, s{sSL}")
    if 'far' in MODS: a(f"s_xor_b32 s{sE}, s{sE}, 8192")
    a(f"s_add_u32 s{sOUT}, s{sOUT}, s{sE}")
    row_flag(a, C_KV)
    epi_store(a, c, "vt" if v else "frag", 524288)

def epi_park(a, c):
    tile_out(a, Y_OFF, 4 * 65536, 13)
    a(f"s_lshl_b32 s{sE}, s{sQ}, 22\ns_add_u32 s{sOUT}, s{sOUT}, s{sE}")
    fw_flag(a, sFLG)
    epi_store(a, c, "frag", 65536)

def sum_fields(a, b, n): bfe(a, b, sCUR, 27, 3); bfe(a, n, sCUR, 30, 2)
def sum_part(a, tag):
    sb, sn, sR, sC = sE + 4, sE + 5, sE + 6, sE + 7
    D, L = 176, 16
    sum_fields(a, sb, sn)
    a(f"s_cmp_ge_u32 s{sSV}, 4\ns_cbranch_scc1 {tag}_k")
    fw_flag(a, sE, sb, sn)
    poll(a, tag + "_p", sE, 4)
    a.lab(tag + "_k")
    lanes_frag(a, vE, vE + 1)
    a(f"""s_lshl_b32 s{sR}, s{sb}, 1
    s_add_u32 s{sR}, s{sR}, s{sWM}
    s_lshl_b32 s{sR}, s{sR}, 2
    s_add_u32 s{sR}, s{sR}, s{sQ}
    s_lshl_b32 s{sR}, s{sR}, 16
    s_lshl_b32 s{sC}, s{sn}, 1
    s_add_u32 s{sC}, s{sC}, s{sWN}
    s_lshl_b32 s{sE}, s{sC}, 13
    s_add_u32 s{sE}, s{sE}, s{sR}""")
    a(f"""v_and_b32 v12, 15, v0
    v_lshlrev_b32 v12, 11, v12
    v_lshrrev_b32 v{vE+1}, 4, v0
    v_lshl_add_u32 v12, v{vE+1}, 4, v12
    s_lshl_b32 s{sC}, s{sC}, 8
    s_add_u32 s{sR}, s{sR}, s{sC}
    s_add_u32 s{sC}, s{sR}, 32768""")
    n = 0; order = []
    for src in range(5):
        for Fh in range(2):
            if src: a(f"s_add_u32 s{sE+1}, s{sE}, {Y_OFF + (src - 1) * 4 * MB + 4096 * Fh}")
            for t in range(2):
                for F in (2 * Fh, 2 * Fh + 1):
                    if src: a(f"buffer_load_dwordx4 v[{L+4*n}:{L+4*n+3}], v{vE}, {ws}, s{sE+1} offen offset:{2048*(F&1)+256*t}")
                    else: a(f"buffer_load_dwordx4 v[{L+4*n}:{L+4*n+3}], v12, s[{XS}:{XS+3}], s{sC if t else sR} offen offset:{64*F}")
                    order.append((src, t, F)); n += 1
    acc = lambda t, F, e: D + 32 * t + 8 * F + 4 * e
    for n, (src, t, F) in enumerate(order):
        if n % 2 == 0:
            a(f"s_waitcnt vmcnt({38 - n})")
            if src == 0:
                for b0 in (L + 4 * n, L + 4 * n + 4): a(f"v_permlane16_swap_b32 v{b0}, v{b0+2}\nv_permlane16_swap_b32 v{b0+1}, v{b0+3}")
        for e in range(2):
            d = f"v[{acc(t,F,e)}:{acc(t,F,e)+3}]"
            a(f"v_mfma_f32_16x16x32_bf16 {d}, a[{aSEL+4*e}:{aSEL+4*e+3}], v[{L+4*n}:{L+4*n+3}], {d if src else 0}")
    for t in range(2):
        bs = [acc(t, F, 0) for F in range(4)]
        for b0 in bs: pack(a, b0, b0, b0 + 4)
        for b0 in bs: a(f"v_permlane16_swap_b32 v{b0}, v{b0+2}\nv_permlane16_swap_b32 v{b0+1}, v{b0+3}")
        for F, b0 in enumerate(bs): a(f"buffer_store_dwordx4 v[{b0}:{b0+3}], v12, s[{SO}:{SO+3}], s{sC if t else sR} offen offset:{64*F}{MODS.get('os', '')}")

sPA, sPT = 30, 31
QTR = False; QMOD = ''
def epi_qa(a, c, tag, stream=False):
    a("s_waitcnt lgkmcnt(0)")
    for i in range(8): a(f"v_accvgpr_write_b32 a{aSTA+i}, v{2+i}")
    tile_out(a, O_OFF, 4 * 262144, 13)
    if not stream: row_flag(a, C_QA)
    vKA, vVA, vKM, vVM = 2, 3, 4, 5
    vMD, vMM, vM0, vM1, vS0, vS1 = 6, 12, 10, 11, 10, 11
    sKA, sVA, sKM, sVM, sC = sE, sE + 2, sE + 4, sE + 5, sE + 6
    a(f"""s_lshl_b32 s{sE}, s{sN}, 1
    s_add_u32 s{sE}, s{sE}, s{sWN}              ; head
    s_lshl_b32 s{sE+1}, s{sB}, 1
    s_add_u32 s{sE+1}, s{sE+1}, s{sWM}
    {rec5.pm_addr(sPA, sE + 2, sQ, sSL)}
    s_and_b32 s{sE+2}, s{sG}, 31
    s_lshl_b32 s{sE+2}, s{sE+2}, 7
    s_add_u32 s{sPA}, s{sPA}, s{sE+2}
    s_lshl_b32 s{sPT}, s{sE+1}, 2""")
    if stream:
        a(f"""s_and_b32 s{sFLG}, s{sE+1}, 3
        s_lshl_b32 s{sFLG}, s{sFLG}, 3
        s_and_b32 s{sE+3}, s{sE}, 7
        s_add_u32 s{sFLG}, s{sFLG}, s{sE+3}
        s_lshr_b32 s{sE+3}, s{sE}, 3
        s_lshl_b32 s{sE+3}, s{sE+3}, 5
        s_add_u32 s{sFLG}, s{sFLG}, s{sE+3}
        s_lshl_b32 s{sFLG}, s{sFLG}, 2
        s_add_u32 s{sFLG}, s{sFLG}, {CTRL_OFF + C_OM}
        s_lshl_b32 s{sE+3}, s{sB}, 3""")
        if MODS.get('pp'): a(f"s_sub_u32 s{sE+3}, s{sE+3}, 1")
    else: a(f"s_add_u32 s{sE+3}, s{sPT}, 4")
    poll(a, tag + "_pp", sPA, f"s{sE+3}")
    assert (KM_OFF >> 21) % 2 == 0 and (VM_OFF >> 21) % 2 == 0 and (K_OFF >> 21) % 2 == 0 and (VT_OFF >> 21) % 2 == 0
    a(f"""s_lshl_b32 s{sE+2}, s{sE+1}, 19
    s_lshr_b32 s{sE+3}, s{sE}, 2
    s_lshl_b32 s{sE+3}, s{sE+3}, 14
    s_add_u32 s{sE+2}, s{sE+2}, s{sE+3}
    s_and_b32 s{sE+3}, s{sE}, 3
    s_lshl_b32 s{sE+3}, s{sE+3}, 11
    s_add_u32 s{sE+2}, s{sE+2}, s{sE+3}
    s_lshl_b32 s{sE+3}, s{sB}, 12
    s_{'xnor' if 'farm' in MODS else 'xor'}_b32 s{sE+3}, s{sE+3}, s{sSL}
    s_and_b32 s{sE+3}, s{sE+3}, 8192
    s_add_u32 s{sE+2}, s{sE+2}, s{sE+3}
    s_add_u32 s{sKM}, s{sE+2}, {KM_OFF}
    s_add_u32 s{sVM}, s{sE+2}, {VM_OFF}
    s_lshl_b32 s{sE+1}, s{sE+1}, 21
    s_lshl_b32 s{sE}, s{sE}, 14
    s_add_u32 s{sE}, s{sE}, s{sE+1}
    s_lshl_b32 s{sE+1}, s{sWM}, 13
    s_xor_b32 s{sE+1}, s{sE+1}, s{sSL}
    {f's_xor_b32 s{sE+1}, s{sE+1}, 8192' if 'far' in MODS or MODS.get('two') == 2 else ''}
    {f's_cmp_ge_u32 s{sB}, 2; s_cselect_b32 s{sE+3}, 8192, 0; s_xor_b32 s{sE+1}, s{sE+1}, s{sE+3}'.replace('; ', chr(10)) if MODS.get('two') == 1 else ''}
    s_add_u32 s{sE}, s{sE}, s{sE+1}
    s_add_u32 s{sVA}, s{sE}, {VT_OFF}
    s_add_u32 s{sVA+1}, s{sVA}, 4096
    s_add_u32 s{sKA}, s{sE}, {K_OFF}
    s_add_u32 s{sKA+1}, s{sKA}, 4096
    s_mov_b32 s{sC}, {CSC}
    s_mov_b32 s{sC+1}, {CSC}""")
    lanes_frag(a, vKA, 10); lanes_vt(a, vVA, 10)
    a(f"""v_lshrrev_b32 v10, 4, v0                ; g
    v_and_b32 v11, 15, v0                         ; m
    v_lshlrev_b32 v{vKM}, 7, v10
    v_lshl_add_u32 v{vKM}, v11, 4, v{vKM}
    v_mov_b32 v12, {OOB}
    v_cmp_gt_u32 vcc, 8, v11
    v_cndmask_b32 v{vKM}, v12, v{vKM}, vcc
    v_lshrrev_b32 v13, 3, v11
    v_lshlrev_b32 v13, 8, v13
    v_lshl_add_u32 v13, v10, 3, v13
    v_and_b32 v14, 7, v0
    v_lshl_add_u32 v{vVM}, v14, 4, v13
    v_cmp_gt_u32 vcc, 2, v10
    v_cndmask_b32 v{vVM}, v12, v{vVM}, vcc""")
    if 'm' in PLAIN: a(f"v_or_b32 v{vKM}, {OOB}, v{vKM}\nv_or_b32 v{vVM}, {OOB}, v{vVM}")
    if 'v' in PLAIN: a(f"v_or_b32 v{vVA}, {OOB}, v{vVA}")
    vm = VM(a)
    sets = (144, 0)
    Kr = lambda s, kt, F: sets[s & 1] + 16 * kt + 4 * F
    KMr = lambda s, F: sets[s & 1] + 32 + 4 * F
    Vr = lambda s, F, e: sets[s & 1] + 48 + 12 * F + 6 * e
    def loadKM(s):
        return [(f"buffer_load_dwordx4 a[{KMr(s,F)}:{KMr(s,F)+3}], v{vKM}, {ws}, s{sKM} offen offset:{512*F} sc1", ("KM", s)) for F in range(4)] + [(f"s_add_u32 s{sKM}, s{sKM}, 131072", None)]
    def loadVM(s):
        return [(f"buffer_load_dwordx2 a[{Vr(s,F,e)}:{Vr(s,F,e)+1}], v{vVM}, {ws}, s{sVM} offen offset:{512*F+128*e} sc1", ("VM", s)) for F in range(4) for e in range(2)] + [(f"s_add_u32 s{sVM}, s{sVM}, 131072", None)]
    def loadK(s):
        r = [] if stream else loadKM(s)
        for F in range(4):
            for kt in range(2):
                r.append((f"buffer_load_dwordx4 a[{Kr(s,kt,F)}:{Kr(s,kt,F)+3}], v{vVA if 'v' in PLAIN else vKA}, {ws}, s{sKA+(F>>1)} offen offset:{2048*(F&1)+256*kt}{QMOD}", ("K", s)))
        r.append((f"s_add_u32 s{sKA}, s{sKA}, 524288\ns_add_u32 s{sKA+1}, s{sKA+1}, 524288", None))
        return r
    def loadV(s):
        r = [] if stream else loadVM(s)
        for F in range(4):
            for e in range(2):
                b = Vr(s, F, e)
                r.append((f"buffer_load_dwordx4 a[{b+2}:{b+5}], v{vVA}, {ws}, s{sVA+(F>>1)} offen offset:{2048*(F&1)+128*e}{QMOD}", ("V", s)))
        r.append((f"s_add_u32 s{sVA}, s{sVA}, 524288\ns_add_u32 s{sVA+1}, s{sVA+1}, 524288", None))
        return r
    def emit(x):
        if x[1] is None: a(x[0])
        else: vm.op(*x)
    for x in loadK(0) + loadV(0): emit(x)
    a(f"v_mov_b32 v12, {NEG}\nv_lshlrev_b32 v13, 2, v10")
    for i in range(4):
        a(f"v_add_u32 v14, {i}, v13\nv_cmp_gt_u32 vcc, v14, v11\nv_cndmask_b32 v{vMD+i}, 0, v12, vcc")
    a(f"v_cmp_le_u32 vcc, 2, v10\nv_cndmask_b32 v12, 0, v12, vcc\nv_mov_b32 v13, v12\nv_mov_b32 v14, v12\nv_mov_b32 v15, v12")
    free = []; Q = {}
    pend = loadK(1) + loadV(1)
    for t in range(8):
        for F in range(4):
            k0, b0 = c.acc(t, 2 * F); k1, b1 = c.acc(t, 2 * F + 1)
            if k0 == "v":
                pack(a, b0, b0, b1); Q[t, F] = b0; free.append(b1)
            else:
                x, y = free.pop(0), free.pop(0)
                getreg(a, c, t, 2 * F, x); getreg(a, c, t, 2 * F + 1, y)
                pack(a, x, x, y); Q[t, F] = x; free.append(y)
            if t >= 1 and pend: emit(pend.pop(0))
            if t >= 4 and pend: emit(pend.pop(0))
    for x in pend: emit(x)
    R = lambda b, n=4: f"v[{b}:{b+n-1}]"
    A = lambda b, n=4: f"a[{b}:{b+n-1}]"
    if stream:
        X, Y = free.pop(), free.pop()
        a(f"s_cmp_eq_u32 s{sTYP}, {T_QT}\ns_cselect_b32 s{sE+8}, {OOB}, 0\nv_lshl_add_u32 v{X+1}, v0, 9, s{sE+8}")
        a(f"v_mov_b32 v{Y}, 1\ns_add_u32 s{sPT}, s{sPT}, 1")
        if MODS.get('sn', 0) & 2:
            a(f"s_cmp_lg_u32 s{sPT}, 61\ns_cbranch_scc1 {tag}_sn")
            for i in range(4): a(f"v_mov_b32 v{free[0]+i}, -1")
            for k in range(MODS.get('a0', 63) - 60, 4):
                a(f"s_add_u32 s{sE+8}, s{sOUT}, {262144 * k}\ns_add_u32 s{sE+9}, s{sOUT}, {262144 * k + 4096}")
                for F in range(4):
                    for tt in range(2): a(f"buffer_store_dwordx4 {R(free[0])}, v{vKA}, {ws}, s{sE+8+(F>>1)} offen offset:{2048*(F&1)+256*tt} sc1")
            a.lab(tag + "_sn")
        def rows(s, done):
            a(f"s_branch {tag}_c{s}\n{tag}_r{s}:\ns_sub_u32 s{sKM}, s{sKM}, 131072\ns_sub_u32 s{sVM}, s{sVM}, 131072")
            if 'pr' in MODS:
                a(f"{tag}_q{s}:\n{loadVM(s)[7][0]}\ns_waitcnt vmcnt(0)\nv_accvgpr_read_b32 v{X}, a{Vr(s, 3, 1)}\nv_cmp_eq_u32 vcc, -1, v{X}\ns_cbranch_vccz {tag}_q{s}_d")
                spin(a, f"{tag}_q{s}", f"{tag}_q{s}_d"); a.lab(f"{tag}_q{s}_d")
            for z in loadKM(s) + loadVM(s): a(z[0])
            a(f"s_waitcnt vmcnt(0)\n{tag}_c{s}:")
            rs = [KMr(s, F) for F in range(4)] + [Vr(s, F, e) for F in range(4) for e in range(2)]
            a(f"v_accvgpr_read_b32 v{X+2}, a{rs[0]}\nv_accvgpr_read_b32 v{X}, a{rs[1]}\nv_max_u32 v{X+2}, v{X+2}, v{X}")
            for k in range(2, 12, 2): a(f"v_accvgpr_read_b32 v{X}, a{rs[k]}\nv_accvgpr_read_b32 v{X+3}, a{rs[k+1]}\nv_max3_u32 v{X+2}, v{X+2}, v{X}, v{X+3}")
            a(f"v_cmp_eq_u32 vcc, -1, v{X+2}\ns_cbranch_vccz {done}")
            spin(a, f"{tag}_r{s}", done)
        sn = (MODS.get('sn', 0) & 1 and 'np' not in MODS)
        if sn: a(f"s_cmp_ge_u32 s{sPT}, {MODS.get('s0', 56) + 1}\ns_cselect_b32 s{sE+8}, 2, 0\ns_sub_u32 s{sE+8}, s{sPT}, s{sE+8}")
        poll(a, tag + "_p0", sPA, f"s{sE+8 if sn else sPT}", va=X, vd=X + 2)
        a(f"s_mov_b32 s{sNC}, s{sE+9}")
        vm.q = []
        QS0 = len(a.lines)
        for z in loadKM(0) + loadVM(0): emit(z)
        if sn:
            a(f"s_cmp_lt_u32 s{sPT}, {MODS.get('s0', 56) + 1}\ns_cbranch_scc1 {tag}_f0\ns_waitcnt vmcnt(0)")
            rows(0, tag + "_f0")
            a.lab(tag + "_f0")
    def QST(k):
        if not QTR: return ""
        return f"""s_memrealtime s[{sTRC+2}:{sTRC+3}]
        s_lshl_b32 s{sE+8}, s{sG}, 2
        s_add_u32 s{sE+8}, s{sE+8}, s{sW}
        s_lshl_b32 s{sE+8}, s{sE+8}, 6
        s_add_u32 s{sE+8}, s{sE+8}, {GTRACE_OFF + 5 * MB + 4 * k}
        s_cmp_eq_u32 s{sTYP}, {T_QT}
        s_cselect_b32 s{sE+8}, {GTRACE_OFF + 6 * MB}, s{sE+8}
        s_waitcnt lgkmcnt(0)
        v_mov_b32 v{X+3}, s{sTRC+2}
        v_mov_b32 v{X}, 0
        buffer_store_dword v{X+3}, v{X}, {ws}, s{sE+8} offen
        s_waitcnt vmcnt(0)
        """
    FLAG = lambda s: f"v_mov_b32 v{Y}, {s+1}\nbuffer_store_dword v{Y}, v{X+1}, {ws}, s{sFLG} offen sc1\n" + QST(2 * s + 1)
    for s in range(4):
        if stream and QTR: a(QST(2 * s))
        t0, t1 = 2 * s, 2 * s + 1
        D0, M0, E0, E1, M1 = [free.pop(0) for _ in range(5)]
        vm.wait(("KM" if stream else "K", s))
        for F in range(4):
            for d, kr, q, seed in ((D0, Kr(s, 0, F), Q[t0, F], R(vMD)), (M0, KMr(s, F), Q[t0, F], R(vMM)), (E0, Kr(s, 0, F), Q[t1, F], "0"),
                                   (E1, Kr(s, 1, F), Q[t1, F], R(vMD)), (M1, KMr(s, F), Q[t1, F], R(vMM))):
                a(f"v_mfma_f32_16x16x32_bf16 {R(d)}, {A(kr)}, {R(q)}, {seed if F == 0 else R(d)}")
        if s < 2:
            for x in loadK(s + 2): emit(x)
        for F in range(4): free += [Q[t0, F], Q[t1, F]]
        g0 = [D0 + i for i in range(4)] + [M0 + i for i in range(4)]
        g1 = [E0 + i for i in range(4)] + [E1 + i for i in range(4)] + [M1 + i for i in range(4)]
        def both(op3, op2, r0, r1):
            for r, g in ((r0, g0), (r1, g1)):
                a(f"{op3} v{r}, v{g[0]}, v{g[1]}, v{g[2]}")
                k = 3
                while k + 1 < len(g): a(f"{op3} v{r}, v{r}, v{g[k]}, v{g[k+1]}"); k += 2
                a(f"{op2} v{r}, v{r}, v{g[k]}")
        def across(op, r0, r1):
            a(f"""v_permlane32_swap_b32 v{r0}, v{r1}
            {op} v{r0}, v{r0}, v{r1}
            v_mov_b32 v{r1}, v{r0}
            v_permlane16_swap_b32 v{r0}, v{r1}
            {op} v{r0}, v{r0}, v{r1}""")
        both("v_max3_f32", "v_max_f32", vM0, vM1)
        across("v_max_f32", vM0, vM1)
        a(f"v_mul_f32 v{vM0}, s{sC}, v{vM0}\nv_mov_b32 v{vM1}, v{vM0}\nv_permlane32_swap_b32 v{vM0}, v{vM1}")
        for g, hi in ((g0, 0), (g1, 1)):
            for k in range(0, len(g), 2):
                a(f"v_pk_fma_f32 {R(g[k],2)}, {R(g[k],2)}, s[{sC}:{sC+1}], {R(vM0,2)} op_sel:[0,0,{hi}] op_sel_hi:[1,1,{hi}] neg_lo:[0,0,1] neg_hi:[0,0,1]")
        for r in g0 + g1: a(f"v_exp_f32 v{r}, v{r}")
        x, y = free.pop(0), free.pop(0)
        a(f"v_pk_add_f32 {R(x,2)}, {R(D0,2)}, {R(D0+2,2)}\nv_pk_add_f32 {R(x+2,2)}, {R(M0,2)}, {R(M0+2,2)}")
        a(f"v_pk_add_f32 {R(y,2)}, {R(E0,2)}, {R(E0+2,2)}\nv_pk_add_f32 {R(y+2,2)}, {R(E1,2)}, {R(E1+2,2)}")
        a(f"v_pk_add_f32 {R(x,2)}, {R(x,2)}, {R(x+2,2)}\nv_pk_add_f32 {R(y,2)}, {R(y,2)}, {R(y+2,2)}")
        a(f"v_pk_add_f32 {R(y+2,2)}, {R(M1,2)}, {R(M1+2,2)}\nv_add_f32 v{vS0}, v{x}, v{x+1}\nv_pk_add_f32 {R(y,2)}, {R(y,2)}, {R(y+2,2)}")
        a(f"v_add_f32 v{vS1}, v{y}, v{y+1}")
        across("v_add_f32", vS0, vS1)
        a(f"v_rcp_f32 v{vS0}, v{vS0}\nv_mov_b32 v{vS1}, v{vS0}\nv_permlane32_swap_b32 v{vS0}, v{vS1}")
        for g, hi in ((g0, 0), (g1, 1)):
            for k in range(0, len(g), 2):
                a(f"v_pk_mul_f32 {R(g[k],2)}, {R(g[k],2)}, {R(vS0,2)} op_sel:[0,{hi}] op_sel_hi:[1,{hi}]")
        pack(a, x, M0, D0)
        pack(a, y, E0, E1)
        a(f"v_cvt_pk_bf16_f32 v{M1}, v{M1}, v{M1+1}\nv_cvt_pk_bf16_f32 v{M1+1}, v{M1+2}, v{M1+3}")
        free += [D0, M0, E0, E1]
        vm.wait(("VM" if stream else "V", s))
        O = {(tt, F, e): free.pop(0) for F in range(4) for e in range(2) for tt in range(2)}
        for F in range(4):
            for e in range(2):
                a(f"v_mfma_f32_16x16x16_bf16 {R(O[1,F,e])}, {A(Vr(s,F,e),2)}, {R(M1,2)}, 0")
        for F in range(4):
            for e in range(2):
                a(f"v_mfma_f32_16x16x32_bf16 {R(O[0,F,e])}, {A(Vr(s,F,e))}, {R(x)}, 0")
        a(f"s_add_u32 s{sE+8}, s{sOUT}, {262144 * s}\ns_add_u32 s{sE+9}, s{sOUT}, {262144 * s + 4096}")
        def out(tt, F):
            b0 = O[tt, F, 0]
            pack(a, b0, b0, O[tt, F, 1])
            if 'z' in PLAIN: a("s_mov_b64 exec, 1")
            vm.op(f"buffer_store_dwordx4 {R(b0)}, v{vKA}, {ws}, s{sE+8+(F>>1)} offen offset:{2048*(F&1)+256*tt}{'' if 'o' in PLAIN and not stream else ' sc1'}{' nt' if 'n' in PLAIN else ''}{' sc0' if '0' in PLAIN else ''}", "st")
            if 'z' in PLAIN: a("s_mov_b64 exec, -1")
        for F in range(4):
            for e in range(2):
                a(f"v_mfma_f32_16x16x32_bf16 {R(O[1,F,e])}, {A(Vr(s,F,e)+2)}, {R(y)}, {R(O[1,F,e])}")
            if F >= 1: out(0, F - 1)
        if s < 2:
            for z in loadV(s + 2): emit(z)
        out(0, 3)
        for F in range(4): out(1, F)
        free += [x, y, M1] + list(O.values())
        if stream and s < 3:
            nx = [z[0] for z in loadKM(s + 1) + loadVM(s + 1)]
            a(f"s_add_u32 s{sPT}, s{sPT}, 1")
            if (MODS.get('sn', 0) & 1 and 'np' not in MODS): a(f"s_cmp_ge_u32 s{sPT}, {MODS.get('s0', 56) + 2}\ns_cbranch_scc1 {tag}_d{s}")
            a(f"s_cmp_ge_u32 s{sNC}, s{sPT}\ns_cbranch_scc0 {tag}_w{s}")
            for z in nx: a(z)
            a(f"s_waitcnt vmcnt(12)\n{FLAG(s)}\ns_branch {tag}_j{s}")
            if (MODS.get('sn', 0) & 1 and 'np' not in MODS):
                a.lab(f"{tag}_d{s}")
                if MODS['sn'] & 2 and 60 + s >= MODS.get('a0', 63):
                    a(f"s_cmp_lt_u32 s{sPT}, 62\ns_cbranch_scc1 {tag}_e{s}\n{FLAG(s)}")
                    for z in nx: a(z)
                    a(f"s_waitcnt vmcnt(0)\ns_branch {tag}_c{s+1}\n{tag}_e{s}:")
                for z in nx: a(z)
                a(f"s_waitcnt vmcnt(12)\n{FLAG(s)}\ns_waitcnt vmcnt(1)")
                rows(s + 1, f"{tag}_j{s}")
            a(f"{tag}_w{s}:\ns_waitcnt vmcnt(0)\n{FLAG(s)}")
            poll(a, f"{tag}_p{s+1}", sPA, f"s{sPT}", va=X, vd=X + 2)
            a(f"s_mov_b32 s{sNC}, s{sE+9}")
            for z in nx: a(z)
            a.lab(f"{tag}_j{s}")
            vm.q = [("KM", s + 1)] * 4 + [("VM", s + 1)] * 8
        elif stream and MODS.get('sn', 0) & 2: a(f"s_cmp_eq_u32 s{sPT}, 64\ns_cbranch_scc1 {tag}_na\ns_waitcnt vmcnt(0)\n{tag}_na:\n{FLAG(s)}")
        elif stream: a(f"s_waitcnt vmcnt(0)\n{FLAG(s)}")
    for i in range(8): a(f"v_accvgpr_read_b32 v{2+i}, a{aSTA+i}")


def tail_wo(a, tag, trace=None):
    sU, sSG, sO, sY, sP, sXX, sYY, sOO = sTYP, sB, sN, sFLG, sNC, sOA, sOB, sSTB
    vA_, vL, vP_, vTH, vR, vO, vF, vY, vD, vB, vX, vFX, vL8 = 1, 2, 3, 4, 5, 6, 7, 8, 16, 32, 196, 200, 201
    bfe(a, sU, sCUR, 4, 5); bfe(a, sE + 8, sCUR, 9, 1); bfe(a, sSG, sCUR, 20, 6)
    a(f"""s_mov_b64 s[{SB_}:{SB_+1}], s[{sWP+10}:{sWP+11}]
    s_mov_b32 s{SB_+2}, {4096 * 2048}
    v_lshrrev_b32 v10, 2, v0
    v_and_b32 v11, 3, v0
    v_lshlrev_b32 v11, 4, v11
    v_lshl_add_u32 v{vA_}, v10, 11, v11
    s_lshl_b32 s{sOB}, s{sW}, 21
    s_lshl_b32 s{sE}, s{sU}, 6
    s_add_u32 s{sOB}, s{sOB}, s{sE}
    s_lshl_b32 s{sWA}, s{sW}, 15
    v_lshrrev_b32 v12, 4, v0                      ; g
    v_lshrrev_b32 v13, 5, v0
    v_lshlrev_b32 v13, 4, v13
    v_and_b32 v14, 1, v12
    v_lshl_add_u32 v13, v14, 2, v13
    v_and_b32 v10, 3, v10
    v_add_u32 v13, v13, v10                       ; k row
    v_lshl_add_u32 v{vR}, v13, 6, s{sWA}
    v_bfe_u32 v13, v0, 1, 1
    v_lshl_add_u32 v{vR}, v13, 5, v{vR}
    v_and_b32 v13, 1, v0
    v_lshl_add_u32 v{vR}, v13, 3, v{vR}""")
    if 'tt' in MODS:
        a(f"s_cmp_ge_u32 s{sW}, 2\ns_cbranch_scc1 {tag}_tt\nv_lshlrev_b32 v204, 11, v0\ns_mov_b32 s{sE+1}, s{sOB}")
        for k in range(32): a(f"buffer_load_dword v203, v204, s[{SB_}:{SB_+3}], s{sE+1} offen\ns_add_u32 s{sE+1}, s{sE+1}, {131072 + (k == 15) * (1 << 21)}")
        a.lab(tag + "_tt")
    if 'eb' in MODS: a(f"s_waitcnt lgkmcnt(0)\ns_bitcmp1_b32 s{sCUR}, 10\ns_cbranch_scc1 {tag}_eb\ns_barrier\n{tag}_eb:")
    else: a("s_waitcnt lgkmcnt(0)\ns_barrier")
    def dma(bt):
        a(f"s_add_u32 m0, s{sWA}, {(bt & 1) * 16384}")
        for i in range(16):
            a(f"buffer_load_dwordx4 v{vA_}, s[{SB_}:{SB_+3}], s{sOB} offen lds\ns_add_u32 s{sOB}, s{sOB}, 32768")
            if i < 15: a("s_add_u32 m0, m0, 1024")
    def trr(bt):
        for ks in range(8):
            for e in range(2):
                for h in range(2):
                    r = 64 * bt + 8 * ks + 4 * e + 2 * h
                    a(f"ds_read_b64_tr_b16 a[{r}:{r+1}], v{vR} offset:{(bt & 1) * 16384 + 2048 * ks + 512 * h + 16 * e}")
            if ks & 1: a("s_waitcnt lgkmcnt(4)")
        a("s_waitcnt lgkmcnt(0)")
    dma(0); dma(1)
    for bt in range(4):
        a(f"s_waitcnt vmcnt({16 if bt < 3 else 0})"); trr(bt)
        if bt < 2: dma(bt + 2)
    lanes_frag(a, vF, 10)
    a(f"""s_lshl_b32 s{sE}, s{sE+8}, 8
    v_add_u32 v{vF}, s{sE}, v{vF}
    v_and_b32 v10, 15, v0
    v_lshlrev_b32 v10, 11, v10
    v_lshl_add_u32 v{vO}, v12, 4, v10
    s_lshl_b32 s{sE}, s{sE+8}, 15
    s_lshl_b32 s{sE+1}, s{sU}, 6
    s_add_u32 s{sE}, s{sE}, s{sE+1}
    v_add_u32 v{vO}, s{sE}, v{vO}
    v_lshlrev_b32 v{vL}, 4, v0
    v_add_u32 v{vR}, s{sWA}, v{vL}
    s_lshr_b32 s{sE}, s{sU}, 3
    s_lshl_b32 s{sE}, s{sE}, 8
    s_bfe_u32 s{sE+1}, s{sU}, 0x10002
    s_lshl_b32 s{sE+1}, s{sE+1}, 6
    s_add_u32 s{sP}, s{sE}, s{sE+1}
    s_add_u32 s{sP}, s{sP}, {C_FW}
    s_mov_b32 s{sDEP}, {CTRL_OFF}
    s_lshl_b32 s{sE}, s{sU}, 11
    s_cmp_eq_u32 s{sW}, 0
    s_cselect_b32 s{sE+1}, 0, {OOB}
    v_or_b32 v{vFX}, s{sE+1}, v{vO}
    s_lshl_b32 s{sYY}, s{sW}, 22
    s_add_u32 s{sYY}, s{sYY}, s{sE}
    s_add_u32 s{sYY}, s{sYY}, {Y_OFF}
    s_lshl_b32 s{sOO}, s{sW}, 16
    s_add_u32 s{sOO}, s{sOO}, {O_OFF}""")
    def flagaddr(sg):
        a(f"""s_bfe_u32 s{sE}, s{sg}, 0x20002
        v_cmp_eq_u32 s[{sE}:{sE+1}], s{sE}, v{vL8}
        s_and_b32 s{sE+3}, s{sg}, 3
        s_add_u32 s{sE+3}, s{sE+3}, 1
        v_mov_b32 v{vTH}, s{sE+3}
        v_cndmask_b32 v{vTH}, 0, v{vTH}, s[{sE}:{sE+1}]""")
    FL = lambda v: f"buffer_load_dword v{v}, v{vP_}, {ws}, s{sDEP} offen sc1"
    def early(sg):
        a(f"s_add_u32 s{sE+2}, s{sg}, 1")
        flagaddr(sE + 2)
        a(f"""{FL(12)}
        s_lshl_b32 s{sY}, s{sg}, 16
        buffer_load_dwordx4 v[{vX}:{vX+3}], v{vFX}, s[{XS}:{XS+3}], s{sY} offen
        s_add_u32 s{sE}, s{sY}, s{sYY}
        buffer_load_dwordx4 v[{vY}:{vY+3}], v{vF}, {ws}, s{sE} offen
        s_lshl_b32 s{sO}, s{sg}, 18
        s_add_u32 s{sO}, s{sO}, s{sOO}""")
    def frag(ks, m=""):
        a(f"buffer_load_dwordx4 v[{vB+4*ks}:{vB+4*ks+3}], v{vF}, {ws}, s{sO} offen offset:{2048*(ks&1)}{m}")
        if ks & 1 and ks < 31: a(f"s_add_u32 s{sO}, s{sO}, 4096")
    def loads(sg, m=""):
        early(sg)
        for ks in range(32): frag(ks, m)
        a(FL(14))
    def wait(lab):
        a(f"{lab}:\n{FL(12)}\ns_waitcnt vmcnt(0)\nv_cmp_gt_u32 vcc, v{vTH}, v12\ns_cbranch_vccz {lab}_d")
        spin(a, lab, lab + "_d")
        a.lab(lab + "_d")
    def mm(ks):
        for e in range(2):
            d = vD + 8 * (ks & 1) + 4 * e
            a(f"v_mfma_f32_16x16x32_bf16 v[{d}:{d+3}], a[{8*ks+4*e}:{8*ks+4*e+3}], v[{vB+4*ks}:{vB+4*ks+3}], v[{d}:{d+3}]")
    def known(v): a(f"v_cmp_gt_u32 vcc, v{vTH}, v{v}\ns_cmp_eq_u32 s{sE+6}, 64\ns_cselect_b64 vcc, -1, vcc")
    if trace: a(f"s_mov_b32 s{sE+6}, 46"); trace(sE + 6)
    a(f"""v_lshrrev_b32 v{vL8}, 1, v0
    v_lshlrev_b32 v{vL8}, 10, v{vL8}
    v_and_b32 v{vP_}, 1, v0
    v_lshl_add_u32 v{vP_}, v{vP_}, 7, v{vL8}
    s_add_u32 s{sP}, s{sP}, {6 << 10}
    v_add_u32 v{vP_}, s{sP}, v{vP_}
    v_mov_b32 v13, {OOB}
    v_cmp_gt_u32 vcc, 4, v0
    v_cndmask_b32 v{vP_}, v13, v{vP_}, vcc
    v_cndmask_b32 v{vTH}, 0, 4, vcc
    s_cmp_lg_u32 s{sW}, 0
    s_cbranch_scc1 {tag}_wf_d""")
    wait(tag + "_wf")
    bfe(a, sE, sCUR, 4, 6)
    a(f"""s_barrier
    s_lshl_b32 s{sE}, s{sE}, 2
    s_add_u32 s{sE}, s{sE}, s{sW}
    s_lshl_b32 s{sE}, s{sE}, 7
    s_add_u32 s{sE}, s{sE}, {C_OM}
    v_lshl_add_u32 v{vP_}, v0, 2, s{sE}
    v_cmp_gt_u32 vcc, 32, v0
    v_cndmask_b32 v{vP_}, v13, v{vP_}, vcc
    v_lshrrev_b32 v{vL8}, 3, v0""")
    flagaddr(sSG)
    wait(tag + "_w0")
    if trace: a(f"s_mov_b32 s{sE+6}, 47"); trace(sE + 6)
    loads(sSG)
    a(f"{tag}_top:\ns_add_u32 s{sE+6}, s{sSG}, 1\ns_waitcnt vmcnt(33)")
    a(f"v_permlane16_swap_b32 v{vX}, v{vX+2}\nv_permlane16_swap_b32 v{vX+1}, v{vX+3}")
    for k, src in enumerate((vY, vX)):
        for i in range(4): a(f"v_lshlrev_b32 v{vD+8*k+2*i}, 16, v{src+i}\nv_and_b32 v{vD+8*k+2*i+1}, 0xffff0000, v{src+i}")
    known(12)
    a(f"s_cbranch_vccnz {tag}_n")
    early(sE + 6)
    for ks in range(32):
        a(f"s_waitcnt vmcnt({34 if ks else 35})"); mm(ks)
        if 'a0' in MODS: a(f"v_max_u32 v202, v202, v{vB+4*ks}" if ks else f"v_mov_b32 v202, v{vB}")
        if ks: frag(ks - 1)
    frag(31)
    a(FL(14))
    if 'a0' in MODS: a(f"v_cmp_eq_u32 vcc, -1, v202\ns_cbranch_vccnz {tag}_sp\n{tag}_spd:\ns_mov_b64 vcc, 0")
    a(f"s_nop 7\ns_branch {tag}_r\n{tag}_n:")
    for ks in range(32):
        k0 = MODS.get('fs', 99)
        a(f"s_waitcnt vmcnt({32 - ks + (ks > k0)})"); mm(ks)
        if ks == k0: a(FL(15))
        if MODS.get('sn', 0) & 2 and ks & 1: a(f"v_max3_u32 v202, v202, v{vB+4*ks-4}, v{vB+4*ks}" if ks > 1 else f"v_max_u32 v202, v{vB}, v{vB+4}")
    if MODS.get('sn', 0) & 2: a(f"v_cmp_eq_u32 vcc, -1, v202\ns_cbranch_vccnz {tag}_sn\n{tag}_snd:")
    a(f"s_waitcnt vmcnt({int('fs' in MODS)})\ns_nop 4")
    known(14)
    a(f"s_cbranch_vccnz {tag}_r")
    loads(sE + 6)
    a.lab(tag + "_r")
    for i in range(0, 8, 2): a(f"v_pk_add_f32 v[{vD+i}:{vD+i+1}], v[{vD+i}:{vD+i+1}], v[{vD+8+i}:{vD+9+i}]")
    a(f"""ds_write_b128 v{vR}, v[{vD}:{vD+3}]
    ds_write_b128 v{vR}, v[{vD+4}:{vD+7}] offset:1024
    v_xor_b32 v{vR}, 2048, v{vR}
    s_waitcnt lgkmcnt(0)
    s_barrier
    s_and_b32 s{sE}, s{sSG}, 3
    s_cmp_lg_u32 s{sE}, s{sW}
    s_cbranch_scc1 {tag}_s""")
    T = 164
    for w in range(4):
        if w == 2: a(f"v_add_u32 v13, 65536, v{vL}")
        for e in range(2): a(f"ds_read_b128 v[{T+8*w+4*e}:{T+8*w+4*e+3}], v{vL if w < 2 else 13} offset:{32768*(w&1)+1024*e}")
    for w in range(1, 4):
        a(f"s_waitcnt lgkmcnt({6 - 2 * w})")
        for i in range(0, 8, 2): a(f"v_pk_add_f32 v[{T+i}:{T+i+1}], v[{T+i}:{T+i+1}], v[{T+8*w+i}:{T+8*w+i+1}]")
    pack(a, T, T, T + 4)
    a(f"""v_permlane16_swap_b32 v{T}, v{T+2}
    v_permlane16_swap_b32 v{T+1}, v{T+3}
    s_lshl_b32 s{sE}, s{sSG}, 16
    buffer_store_dwordx4 v[{T}:{T+3}], v{vO}, s[{SO}:{SO+3}], s{sE} offen{MODS.get('ot', '')}""")
    if trace: trace(sSG)
    a(f"""{tag}_s:
    v_xor_b32 v{vL}, 2048, v{vL}
    s_mov_b32 s{sSG}, s{sE+6}
    s_cbranch_vccz {tag}_top
    s_cmp_eq_u32 s{sSG}, 64
    s_cbranch_scc1 {tag}_x""")
    if 'fs' in MODS: a(f"s_waitcnt vmcnt(0)\nv_cmp_gt_u32 vcc, v{vTH}, v15\ns_cbranch_vccz {tag}_w1_d")
    wait(tag + "_w1")
    loads(sSG)
    a(f"s_branch {tag}_top")
    if MODS.get('sn', 0) & 2:
        for x in ("sp", "sn")[1 - ('a0' in MODS):]:
            a(f"{tag}_{x}:\ns_cmp_lt_u32 s{sSG}, {MODS.get('a0', 63)}\ns_cbranch_scc1 {tag}_{x}d\ns_cmp_eq_u32 s{sBUD}, 0\ns_cbranch_scc1 {tag}_{x}d")
            if x == "sp": a(f"s_branch {tag}_sr")
        a(f"{tag}_sr:\ns_sub_u32 s{sBUD}, s{sBUD}, 1\ns_waitcnt vmcnt(0)")
        loads(sSG, " sc1")
        a(f"s_branch {tag}_top")
    a.lab(tag + "_x")

def load_lists(a, lists, lab):
    def rec(lo, hi):
        if hi - lo == 1:
            l = list(lists[lo]) + [T_END] * (NLIST - len(lists[lo]))
            assert len(l) == NLIST and l[-1] == T_END
            a(f"s_mov_b32 s{sCUR}, {hex(l[0])}\ns_mov_b32 s{sNXT}, {hex(l[1])}")
            for i in range(8):
                if l[2 + i] != T_END: a(f"s_mov_b32 s{sLST+i}, {hex(l[2+i])}")
            a(f"s_branch {lab}_d")
            return
        m = (lo + hi) // 2
        a(f"s_cmp_ge_u32 s{sG}, {m}\ns_cbranch_scc1 {lab}_{m}_{hi}")
        rec(lo, m); a.lab(f"{lab}_{m}_{hi}"); rec(m, hi)
    for i in range(8): a(f"s_mov_b32 s{sLST+i}, {T_END}")
    rec(0, len(lists))
    a.lab(lab + "_d")

def next_dep(a):
    t = sE + 1
    a(f"s_and_b32 s{t}, s{sNXT}, 15")
    bfe(a, sE + 2, sNXT, 4, 3); bfe(a, sE + 3, sNXT, 11, 4); bfe(a, sE + 4, sNXT, 15, 5)
    a(f"""s_lshl_b32 s{sE+2}, s{sE+2}, 4
    s_add_u32 s{sE+2}, s{sE+2}, s{sE+3}
    s_lshl_b32 s{sE+2}, s{sE+2}, 2
    s_mov_b32 s{sDEP}, {CTRL_OFF + C_F1}
    s_cmp_eq_u32 s{t}, {T_WO}
    s_cselect_b32 s{sDEP}, {CTRL_OFF + C_QA}, s{sDEP}
    s_add_u32 s{sDEP}, s{sDEP}, s{sE+2}
    s_lshl_b32 s{sE+2}, s{sQ}, 9
    s_add_u32 s{sDEP}, s{sDEP}, s{sE+2}
    s_bfm_b32 s{sDMK}, s{sE+4}, 0
    s_cmp_ge_u32 s{t}, {T_TW}
    s_cselect_b32 s{sCOLD}, 1, 0""")
    dep_lanes(a)
    sum_fields(a, sE + 1, sE + 2)
    fw_flag(a, sE, sE + 1, sE + 2)
    a(f"s_sub_u32 s{sE}, s{sE}, s{sDEP}\nv_writelane_b32 v{vDL}, s{sE}, 32")
def cur_fields(a):
    a(f"s_and_b32 s{sTYP}, s{sCUR}, 15")
    bfe(a, sB, sCUR, 4, 3); bfe(a, sN, sCUR, 7, 4); bfe(a, sCNT, sCUR, 15, 5)
    a(f"s_lshl_b32 s{sCNT}, s{sCNT}, 1\ns_cmp_eq_u32 s{sCNT}, 0\ns_cselect_b32 s{sCNT}, 8, s{sCNT}")

def gemm_side(a, name, lists, trace=False, cs=None):
    cs = cs or Cfg(8)
    assert cs.lds <= LDS_BYTES and XN_OFF == 0
    n = name + "_g"
    for i, k in enumerate((A_WK, A_WV, A_WQ, A_W1, A_W2, A_WO)): a(f"s_load_dwordx2 s[{sWP+2*i}:{sWP+2*i+1}], s[0:1], {k}")
    a(f"""s_load_dwordx2 s[{SO}:{SO+1}], s[0:1], {A_OUT}
    s_lshr_b32 s{sQ}, s{sG}, 5
    s_lshr_b32 s{sWM}, s{sW}, 1
    s_and_b32 s{sWN}, s{sW}, 1
    s_and_b32 s{sSL}, s{sSELV}, 2
    s_lshl_b32 s{sSL}, s{sSL}, 12
    s_mov_b32 s{SA}, s{WS}
    s_mov_b32 s{SA+1}, s{WS+1}
    s_mov_b32 s{SA+2}, {WS_BYTES}
    s_mov_b32 s{SA+3}, 0x20000
    s_mov_b32 s{SB_+2}, {8 * MB}
    s_mov_b32 s{SB_+3}, 0x20000
    s_mov_b32 s{SO+2}, {2048 * 1024 * 2}
    s_mov_b32 s{SO+3}, 0x20000""")
    load_lists(a, lists, n + "_ll")
    if trace: a(f"s_lshl_b32 s{sTRC}, s{sG}, 9\ns_add_u32 s{sTRC}, s{sTRC}, {GTRACE_OFF}")
    def stamp(i):
        if trace: a(f"s_memrealtime s[{sTRC+2}:{sTRC+3}]\ns_waitcnt lgkmcnt(0)\ns_mov_b32 s{sTRC+4+i}, s{sTRC+2}")
        if trace and i in (1, 2): a(f"s_memtime s[{sTRC+2}:{sTRC+3}]\ns_waitcnt lgkmcnt(0)\n" + (f"s_mov_b32 s{sTRC+8}, s{sTRC+2}" if i == 1 else f"s_sub_u32 s{sTRC+8}, s{sTRC+2}, s{sTRC+8}"))
    def trace_out(lab):
        if not trace: return
        stamp(3)
        a(f"s_cmp_lg_u32 s{sW}, 0\ns_cbranch_scc1 {lab}")
        lane0(a, 14, 15)
        for i in range(0, 4, 2): a(f"v_mov_b32 v12, s{sTRC+4+i}\nv_mov_b32 v13, s{sTRC+5+i}\nbuffer_store_dwordx2 v[12:13], v14, {ws}, s{sTRC} offen offset:{4*i}\ns_nop 1")
        a(f"v_mov_b32 v12, s{sCUR}\nv_mov_b32 v13, s{sTRC+8}\nbuffer_store_dwordx2 v[12:13], v14, {ws}, s{sTRC} offen offset:16\ns_nop 1\nv_mov_b32 v12, s{sTRC+1}\nv_mov_b32 v13, s{sTRC+9}\nbuffer_store_dwordx2 v[12:13], v14, {ws}, s{sTRC} offen offset:24\ns_add_u32 s{sTRC}, s{sTRC}, 32")
        a.lab(lab)
    stamp(0)
    cur_fields(a)
    lane_setup(a, cs)
    a("s_waitcnt lgkmcnt(0)")
    stream_switch(a, cs, sCUR, n + "_w0")
    cold_dma(a, cs)
    a(f"""v_and_b32 v10, 15, v0
    v_lshrrev_b32 v11, 4, v0
    v_lshrrev_b32 v12, 2, v10
    v_and_b32 v13, 1, v0
    v_lshlrev_b32 v13, 4, v13
    v_mov_b32 v14, 0x3f80
    v_lshlrev_b32 v14, v13, v14
    v_cmp_eq_u32 vcc, v11, v12
    v_cndmask_b32 v14, 0, v14, vcc
    v_bfe_u32 v13, v0, 1, 1
    v_cmp_eq_u32 vcc, 0, v13
    v_cndmask_b32 v12, 0, v14, vcc
    v_cndmask_b32 v13, v14, 0, vcc
    v_mov_b32 v14, 0""")
    for r, v in enumerate((12, 13, 14, 14, 14, 14, 12, 13)): a(f"v_accvgpr_write_b32 a{aSEL+r}, v{v}")
    a(f"""s_mov_b64 vcc, 0
    s_mov_b32 s{sE+8}, {T_QA}
    s_waitcnt vmcnt({(cs.NS - 1) * cs.P})
    s_branch {n}_warm""")
    main_loop(a, cs, "N", n + "_N")
    stamp(2)
    epi_kv(a, cs, 1, n + "_ev")
    a(f"s_branch {n}_nx0")
    main_loop(a, cs, "T", n + "_T")
    stamp(2)
    a(f"""s_cmp_eq_u32 s{sTYP}, {T_F2}
    s_cbranch_scc1 {n}_nx2
    s_cmp_eq_u32 s{sTYP}, {T_K}
    s_cbranch_scc1 {n}_ek
    s_cmp_eq_u32 s{sTYP}, {T_F1}
    s_cbranch_scc1 {n}_ef
    s_cmp_eq_u32 s{sTYP}, {T_QA}
    s_cbranch_scc1 {n}_eq
    s_cmp_ge_u32 s{sTYP}, {T_QT}
    s_cbranch_scc1 {n}_es""")
    epi_park(a, cs)
    a(f"s_branch {n}_nx1\n{n}_eq:")
    epi_qa(a, cs, n + "_qa")
    a(f"s_branch {n}_nx1\n{n}_es:")
    if 'eb' in MODS: a("s_waitcnt lgkmcnt(0)\ns_barrier")
    epi_qa(a, cs, n + "_qs", True)
    row_flag(a, C_QA)
    a(f"s_cmp_eq_u32 s{sTYP}, {T_QT}\ns_cselect_b32 s{sPI}, 1, 0\ns_branch {n}_nx3\n{n}_ef:")
    tile_out(a, H1_OFF, 4 * 229376, 13)
    row_flag(a, C_F1)
    epi_store(a, cs, "silu", 229376)
    a(f"s_branch {n}_nx1\n{n}_ek:")
    epi_kv(a, cs, 0, n + "_eks")
    a(f"""{n}_nx0:
    s_mov_b32 s{sPI}, 2
    s_branch {n}_nx3
    {n}_nx1:
    s_mov_b32 s{sPI}, 1
    {n}_nx3:
    s_bitcmp1_b32 s{sCUR}, 26
    s_cbranch_scc0 {n}_nx4
    {n}_sum:""")
    sum_part(a, n + "_sm")
    a.lab(n + "_nx4")
    lane0(a, vFA, vFD)
    a(f"s_and_b32 s{sLOC}, s{sTYP}, 14\ns_cmp_eq_u32 s{sLOC}, 2\ns_cselect_b32 s{sLOC}, s{sMODE}, 0")
    a(f"v_mov_b32 v{vFD}, s{sPI}\ns_mov_b32 s{sPFL}, s{sFLG}\ns_cmp_lg_u32 s{sPI}, 0\ns_cselect_b64 vcc, -1, 0")
    a.lab(n + "_nx2")
    trace_out(n + "_ntr")
    stamp(0)
    a(f"""s_mov_b32 s{sE+8}, s{sTYP}
    s_mov_b32 s{sCUR}, s{sNXT}
    s_mov_b32 s{sNXT}, s{sLST}""")
    for i in range(7): a(f"s_mov_b32 s{sLST+i}, s{sLST+i+1}")
    a(f"s_mov_b32 s{sLST+7}, {T_END}")
    cur_fields(a)
    a(f"""s_cmp_eq_u32 s{sCOLD}, 0
    s_cbranch_scc1 {n}_warm
    s_waitcnt vmcnt(0)""")
    def xst(r):
        if trace: a(f"s_memrealtime s[{sTRC+2}:{sTRC+3}]\ns_waitcnt lgkmcnt(0)\ns_mov_b32 s{r}, s{sTRC+2}")
    xst(sTRC + 1)
    publish(a)
    a(f"""s_cmp_eq_u32 s{sTYP}, {T_END}
    s_cbranch_scc1 {n}_done
    s_cmp_eq_u32 s{sTYP}, {T_TW}
    s_cbranch_scc1 {n}_tw
    s_mov_b32 s{sPI}, 0
    s_mov_b32 s{sSV}, 0
    s_cmp_eq_u32 s{sTYP}, {T_SUM}
    s_cbranch_scc1 {n}_sum""")
    dep_lanes(a)
    a(f"""{n}_dp:
    {DEPLD}
    s_waitcnt vmcnt(0)""")
    notready(a)
    a(f"s_cbranch_scc0 {n}_dpd")
    spin(a, n + "_dp", n + "_dpd")
    a.lab(n + "_dpd")
    xst(sTRC + 9)
    stream_switch(a, cs, sCUR, n + "_wc")
    cold_dma(a, cs)
    a(f"s_waitcnt vmcnt({(cs.NS - 1) * cs.P})")
    a.lab(n + "_warm")
    next_dep(a)
    a(f"""s_sub_u32 s{sE}, s{sTYP}, {T_F2}
    s_cmp_lt_u32 s{sE}, 3
    s_cbranch_scc1 {n}_redo
    s_cmp_eq_u32 s{sE+8}, {T_QA}
    s_cbranch_scc1 {n}_redo
    s_cmp_lt_u32 s{sE+8}, {T_KH}
    s_cbranch_scc1 {n}_go
    {n}_redo:
    s_waitcnt lgkmcnt(0)
    s_barrier""")
    for x in reads(cs, 0, 0) + rebias(cs, 0, 1): a(x)
    a.lab(n + "_go")
    stamp(1)
    a(f"""s_cmp_eq_u32 s{sTYP}, {T_V}
    s_cbranch_scc1 {n}_N_f
    s_cmp_eq_u32 s{sE+8}, {T_F2}
    s_cbranch_scc1 {n}_T_c
    s_branch {n}_T_f""")
    a.lab(n + "_tw")
    stamp(1)
    def twtr(sg):
        a(f"""s_memrealtime s[{sTRC+2}:{sTRC+3}]
        s_lshl_b32 s{sE}, s{sG}, 8
        s_lshl_b32 s{sE+1}, s{sg}, 2
        s_add_u32 s{sE}, s{sE}, s{sE+1}
        s_add_u32 s{sE}, s{sE}, {GTRACE_OFF + MB}
        s_waitcnt lgkmcnt(0)
        v_mov_b32 v13, s{sTRC+2}
        v_mov_b32 v15, 0
        buffer_store_dword v13, v15, {ws}, s{sE} offen""")
    tail_wo(a, n + "_tw", twtr if trace else None)
    stamp(2)
    trace_out(n + "_ntw")
    a.lab(n + "_done")
```
